```python
import torch

def _softmax(x, axis=-1):
    return torch.softmax(x, dim=axis)
def _gelu(x):
    return torch.nn.functional.gelu(x, approximate="tanh")
def _silu(x):
    return torch.nn.functional.silu(x)
def _sigmoid(x):
    return torch.sigmoid(x)
def _layernorm(x, axis=-1, eps=1e-5):
    m = x.mean(dim=axis, keepdim=True)
    v = x.var(dim=axis, keepdim=True, unbiased=False)
    return (x - m) / torch.sqrt(v + eps)
def _scatter_add(tgt, idx, src, axis=0):
    return tgt.clone().index_add_(axis, idx, src)
def _segment_sum(src, seg, n):
    out = torch.zeros((n,) + src.shape[1:], dtype=src.dtype)
    return out.index_add_(0, seg, src)
def _pad(x, pw):
    flat = tuple(v for pair in reversed(pw) for v in pair)
    return torch.nn.functional.pad(x, flat)

kernel_name = 'gather_scatter__isomorphism_gin_2__graph'

def setup_inputs():

    _w = (lambda a: (lambda t: t.to(torch.bfloat16) if t.is_floating_point() else t)(torch.as_tensor(a)))
    N, deg, D = 10000, 16, 256
    E = N * deg
    H = 2 * D
    src = (lambda lo, hi, *s: torch.randint(lo, hi, s))(0, N, E).to(torch.int64)
    dst = (lambda lo, hi, *s: torch.randint(lo, hi, s))(0, N, E).to(torch.int64)
    return {
        "x": _w((lambda *s: torch.randn(*s, dtype=torch.bfloat16) * 0.05)(N, D)),
        "src": _w(src),
        "dst": _w(dst),
        "eps": _w((lambda *s: torch.randn(*s, dtype=torch.bfloat16) * 0.05)(1) * 0.1),
        "w1": _w((lambda *s: torch.randn(*s, dtype=torch.bfloat16) * 0.05)(D, H) * D ** -0.5),
        "b1": _w((lambda *s: torch.randn(*s, dtype=torch.bfloat16) * 0.4)(H) * 0.01),
        "w2": _w((lambda *s: torch.randn(*s, dtype=torch.bfloat16) * 0.05)(H, D) * H ** -0.5),
        "b2": _w((lambda *s: torch.randn(*s, dtype=torch.bfloat16) * 0.05)(D) * 0.01),
    }

def reference(x, src, dst, eps, w1, b1, w2, b2):
    N = x.shape[0]
    agg = _segment_sum(x[src], dst, N)
    h = (1.0 + eps) * x + agg
    h = torch.einsum('nd,dh->nh', h, w1) + b1
    h = torch.where(h > 0, h, 0.0 * h)
    h = torch.einsum('nh,hd->nd', h, w2) + b2
    return h
```

```python
import sys

class Asm:
    def __init__(self):
        self.l = []
    def __call__(self, s):
        self.l.append("    " + s)
    def label(self, s):
        self.l.append(s + ":")
    def raw(self, s):
        self.l.append(s)
    def text(self):
        return "\n".join(self.l) + "\n"

N = 10000
E = 160000
NB = 250
BN = 40
NCH = 64
CH = E // NCH
CAP = 32
CELLS_BYTES = NB * NCH * CAP * 4
W1F = 0x200000
W2F = 0x240000
WS_END = 0x280000
STAMP_OFF = 0x400000

def vr(a, n):
    return f"v[{a}:{a+n-1}]"
def sr(a, n):
    return f"s[{a}:{a+n-1}]"

def srd(a, d, base, nbytes):
    a(f"s_mov_b32 s{d}, s{base}")
    a(f"s_and_b32 s{d+1}, s{base+1}, 0xffff")
    a(f"s_mov_b32 s{d+2}, {nbytes}")
    a(f"s_mov_b32 s{d+3}, 0x00020000")

def stamp(a, opt, kidx, idx, srd_st, vtmp, stmp=90):
    if not opt.get('stamp'):
        return
    a(f"s_memrealtime {sr(stmp,2)}")
    a("s_waitcnt lgkmcnt(0)")
    a(f"v_mov_b32 v{vtmp}, s{stmp}")
    a(f"v_mov_b32 v{vtmp+1}, s{stmp+1}")
    a(f"s_mov_b64 {sr(stmp+2,2)}, exec")
    a("s_mov_b64 exec, 1")
    a(f"buffer_store_dwordx2 {vr(vtmp,2)}, v{vtmp+2}, {sr(srd_st,4)}, 0 offen offset:{idx*8}")
    a(f"s_mov_b64 exec, {sr(stmp+2,2)}")

def gen_prep(a, opt):
    NPF = opt.get('npf', 1)
    a.raw(".globl prep_kernel")
    a.raw(".p2align 8")
    a.raw(".type prep_kernel,@function")
    a.label("prep_kernel")
    a("s_cmp_ge_u32 s2, 256")
    a("s_cbranch_scc1 P_END")
    a("s_load_dwordx4 s[4:7], s[0:1], 0")
    a("s_load_dwordx2 s[8:9], s[0:1], 16")
    a("s_load_dwordx2 s[10:11], s[0:1], 32")
    a("s_load_dwordx2 s[12:13], s[0:1], 48")
    a("s_load_dwordx2 s[14:15], s[0:1], 80")
    a("s_and_b32 s40, s2, 7")
    a("s_lshr_b32 s41, s2, 3")
    a("s_mul_i32 s40, s40, 5000")
    a(f"s_mul_i32 s41, s41, {640*NPF}")
    a("s_add_u32 s40, s40, s41")
    a("v_add_u32 v2, s40, v0")
    a("v_lshrrev_b32 v3, 6, v0")
    a("s_nop 0")
    a("v_readfirstlane_b32 s42, v3")
    a("s_waitcnt lgkmcnt(0)")
    srd(a, 16, 4, N * 512)
    srd(a, 20, 6, E * 4)
    srd(a, 24, 8, E * 4)
    srd(a, 28, 10, 256 * 512 * 2)
    srd(a, 32, 12, 512 * 256 * 2)
    srd(a, 36, 14, CELLS_BYTES)
    srd(a, 44, 14, WS_END)
    if opt.get('stamp'):
        srd(a, 92, 14, 0x1000000)
        a("s_lshl_b32 s90, s2, 4")
        a("s_add_u32 s90, s90, s42")
        a("s_lshl_b32 s90, s90, 7")
        a(f"s_add_u32 s90, s90, {STAMP_OFF}")
        a("v_mov_b32 v62, s90")
        stamp(a, opt, 0, 0, 92, 60, 96)

    def prefetch():
        for i in range(NPF):
            a(f"v_add_u32 v40, {640*i}, v2")
            a("v_subrev_u32 v41, 40000, v40")
            a("v_min_u32 v40, v40, v41")
            a("v_lshlrev_b32 v40, 7, v40")
            a(f"buffer_load_dword v{42+i}, v40, s[16:19], 0 offen")

    a(f"s_cmp_lt_u32 s2, {NCH}")
    a("s_cbranch_scc1 P_BIN")
    a(f"s_cmp_lt_u32 s2, {NCH+64}")
    a("s_cbranch_scc0 P_PF")
    a("s_cmp_eq_u32 s42, 0")
    a("s_cbranch_scc0 P_PF")
    a(f"s_sub_u32 s43, s2, {NCH}")
    a("v_and_b32 v4, 15, v0")
    a("v_lshrrev_b32 v5, 4, v0")
    a("s_cmp_lt_u32 s43, 32")
    a("s_cbranch_scc0 P_W2")
    a("s_lshr_b32 s48, s43, 3")
    a("s_and_b32 s49, s43, 7")
    a("s_lshl_b32 s50, s49, 15")
    a("s_lshl_b32 s51, s48, 8")
    a("s_add_u32 s50, s50, s51")
    a("v_lshlrev_b32 v6, 13, v5")
    a("v_lshl_add_u32 v6, v4, 4, v6")
    a("v_add_u32 v6, s50, v6")
    a("v_add_u32 v7, 4096, v6")
    for e in range(8):
        a(f"buffer_load_dwordx4 {vr(8+4*e,4)}, v{6+e//4}, s[28:31], 0 offen offset:{(e%4)*1024}")
    a("s_lshl_b32 s50, s48, 16")
    a("s_lshl_b32 s51, s49, 12")
    a("s_add_u32 s50, s50, s51")
    a(f"s_add_u32 s50, s50, {W1F}")
    a("v_lshlrev_b32 v6, 4, v0")
    a("v_add_u32 v6, s50, v6")
    a("v_add_u32 v7, 32768, v6")
    a("s_branch P_WT")
    a.label("P_W2")
    a("s_sub_u32 s43, s43, 32")
    a("s_lshr_b32 s48, s43, 4")
    a("s_and_b32 s49, s43, 15")
    a("s_lshr_b32 s50, s49, 2")
    a("s_lshl_b32 s50, s50, 7")
    a("s_and_b32 s51, s49, 2")
    a("s_lshl_b32 s51, s51, 1")
    a("s_add_u32 s50, s50, s51")
    a("s_and_b32 s51, s49, 1")
    a("s_lshl_b32 s51, s51, 6")
    a("s_add_u32 s50, s50, s51")
    a("s_lshl_b32 s50, s50, 9")
    a("s_lshl_b32 s51, s48, 8")
    a("s_add_u32 s50, s50, s51")
    a("v_lshlrev_b32 v6, 13, v5")
    a("v_lshl_add_u32 v6, v4, 4, v6")
    a("v_add_u32 v6, s50, v6")
    a("v_add_u32 v7, 4096, v6")
    for e in range(8):
        a(f"buffer_load_dwordx4 {vr(8+4*e,4)}, v{6+e//4}, s[32:35], 0 offen offset:{(e%4)*512}")
    a("s_lshl_b32 s50, s48, 17")
    a("s_lshl_b32 s51, s49, 11")
    a("s_add_u32 s50, s50, s51")
    a(f"s_add_u32 s50, s50, {W2F}")
    a("v_lshrrev_b32 v6, 2, v4")
    a("v_lshlrev_b32 v6, 15, v6")
    a("v_lshl_add_u32 v6, v5, 8, v6")
    a("v_and_b32 v7, 3, v4")
    a("v_lshl_add_u32 v6, v7, 6, v6")
    a("v_add_u32 v6, s50, v6")
    a("v_add_u32 v7, 1024, v6")
    a("s_mov_b32 s52, 1")
    a("s_branch P_WT2")
    a.label("P_WT")
    a("s_mov_b32 s52, 0")
    a.label("P_WT2")
    prefetch()
    a("s_mov_b32 s50, 0x05040100")
    a("s_mov_b32 s51, 0x07060302")
    a(f"s_waitcnt vmcnt({NPF})")
    for c in range(8):
        for p in range(4):
            lo = 8 + 4 * (2 * p) + c // 2
            hi = 8 + 4 * (2 * p + 1) + c // 2
            a(f"v_perm_b32 v{64+4*c+p}, v{hi}, v{lo}, s{50 + c % 2}")
    a("s_cmp_eq_u32 s52, 0")
    a("s_cbranch_scc0 P_ST2")
    for c in range(8):
        a(f"buffer_store_dwordx4 {vr(64+4*c,4)}, v{6+c//4}, s[44:47], 0 offen offset:{(c%4)*1024}")
    a("s_branch P_DONE")
    a.label("P_ST2")
    for c in range(8):
        a(f"buffer_store_dwordx4 {vr(64+4*c,4)}, v{6+c//4}, s[44:47], 0 offen offset:{(c%4)*16}")
    a("s_branch P_DONE")
    a.label("P_PF")
    prefetch()
    a("s_branch P_DONE")
    a.label("P_BIN")
    CNT = 40960
    a(f"s_mul_i32 s43, s2, {CH*4}")
    a("v_lshlrev_b32 v1, 4, v0")
    a("v_add_u32 v3, s43, v1")
    a("buffer_load_dwordx4 v[4:7], v3, s[24:27], 0 offen")
    a("buffer_load_dwordx4 v[8:11], v3, s[20:23], 0 offen")
    prefetch()
    a("v_mov_b32 v12, -1")
    a("v_mov_b32 v13, -1")
    a("v_mov_b32 v14, -1")
    a("v_mov_b32 v15, -1")
    for i in range(4):
        a(f"ds_write_b128 v1, v[12:15] offset:{i*10240}")
    a("v_lshlrev_b32 v16, 2, v0")
    a("v_mov_b32 v17, 0")
    a(f"ds_write_b32 v16, v17 offset:{CNT}")
    a("v_mov_b32 v17, 1")
    a("s_mov_b32 s48, 52429")
    a("s_movk_i32 s49, -40")
    a("s_waitcnt lgkmcnt(0)")
    a("s_barrier")
    a(f"v_cmp_gt_u32 vcc, {CH//4}, v0")
    a("s_and_saveexec_b64 s[50:51], vcc")
    a(f"s_waitcnt vmcnt({NPF})")
    stamp(a, opt, 0, 1, 92, 60, 96)
    for k in range(4):
        a(f"v_mul_u32_u24 v{20+k}, s48, v{4+k}")
        a(f"v_lshrrev_b32 v{20+k}, 21, v{20+k}")
        a(f"v_lshlrev_b32 v{24+k}, 2, v{20+k}")
        a(f"ds_add_rtn_u32 v{28+k}, v{24+k}, v17 offset:{CNT}")
        a(f"v_mad_i32_i24 v{4+k}, v{20+k}, s49, v{4+k}")
        a(f"v_lshl_or_b32 v{8+k}, v{4+k}, 16, v{8+k}")
        a(f"v_lshlrev_b32 v{20+k}, 7, v{20+k}")
    a(f"v_mov_b32 v32, {CNT+2560-4}")
    for k in range(4):
        a(f"s_waitcnt lgkmcnt({3-k})")
        a(f"v_cmp_gt_u32 vcc, {CAP}, v{28+k}")
        a(f"v_lshl_add_u32 v{20+k}, v{28+k}, 2, v{20+k}")
        a("s_nop 0")
        a(f"v_cndmask_b32 v{20+k}, v32, v{20+k}, vcc")
    for k in range(4):
        a(f"ds_write_b32 v{20+k}, v{8+k}")
    a("s_mov_b64 exec, s[50:51]")
    a("v_lshrrev_b32 v4, 3, v0")
    a("v_lshlrev_b32 v5, 2, v4")
    a("v_lshlrev_b32 v4, 13, v4")
    a("v_and_b32 v6, 7, v0")
    a("v_lshl_add_u32 v4, v6, 4, v4")
    a("s_lshl_b32 s43, s2, 7")
    a("v_add_u32 v4, s43, v4")
    a("v_mov_b32 v7, 0xfffffffe")
    a("s_waitcnt lgkmcnt(0)")
    a("s_barrier")
    for i in range(4):
        a(f"ds_read_b128 {vr(8+4*i,4)}, v1 offset:{i*10240}")
        a(f"ds_read_b32 v{24+i}, v5 offset:{CNT+i*320}")
    for i in range(4):
        a(f"s_waitcnt lgkmcnt({6-2*i})")
        a(f"v_cmp_lt_u32 vcc, {CAP}, v{24+i}")
        a("s_nop 1")
        a(f"v_cndmask_b32 v{8+4*i}, v{8+4*i}, v7, vcc")
        a(f"buffer_store_dwordx4 {vr(8+4*i,4)}, v4, s[36:39], 0 offen")
        if i < 3:
            a(f"v_add_u32 v4, {80*8192}, v4")
    a.label("P_DONE")
    if opt.get('stamp'):
        stamp(a, opt, 0, 2, 92, 60, 96)
        a("s_waitcnt vmcnt(0)")
        stamp(a, opt, 0, 3, 92, 60, 96)
    a.label("P_END")
    a("s_endpgm")


def gen_main(a, opt, name):
    D = opt.get('depth', 16)
    assert 64 % D == 0
    HH = 0
    ACT = 24576
    LIST = ACT
    CNT = ACT + 5120
    FLAG = CNT + 48 * 4
    SENT = FLAG + 4
    B1 = ACT + 6144
    B2 = ACT + 7168
    vLane, vC16, vSh, vSeq, vT0, vT1, vOff, vFl = 1, 2, 3, 4, 5, 6, 7, 8
    vAcc = 10
    vStamp = 252
    RING = 16
    ACC1 = 80
    W = 128
    vA1 = 120
    vAS = 124
    sX, sWS, sOUT, sSRC, sDST, sB1, sB2 = 8, 12, 16, 20, 24, 28, 32
    sW = 36
    sO = 40
    sDl = 45
    sPC, sPI, sT, sXor, sNode, sId = 50, 51, 52, 53, 54, 55
    sMask = 56
    sTmp = 58
    sM = 64
    sST = 72

    def st(idx):
        if opt.get('stamp'):
            a(f"s_memrealtime s[96:97]")
            a("s_waitcnt lgkmcnt(0)")
            a("v_mov_b32 v14, s96")
            a("v_mov_b32 v15, s97")
            a("s_mov_b64 s[98:99], exec")
            a("s_mov_b64 exec, 1")
            a(f"buffer_store_dwordx2 v[14:15], v9, {sr(sST,4)}, 0 offen offset:{idx*8}")
            a("s_mov_b64 exec, s[98:99]")
    SV = 1 if opt.get('stamp') else 0

    a.raw(f".globl {name}")
    a.raw(".p2align 8")
    a.raw(f".type {name},@function")
    a.label(name)
    a(f"s_cmp_ge_u32 s2, {NB}")
    a("s_cbranch_scc1 M_END")
    a("s_load_dwordx4 s[76:79], s[0:1], 0")
    a("s_load_dwordx4 s[80:83], s[0:1], 16")
    a("s_load_dwordx2 s[84:85], s[0:1], 40")
    a("s_load_dwordx4 s[88:91], s[0:1], 56")
    a("s_load_dwordx2 s[86:87], s[0:1], 80")
    a(f"v_and_b32 v{vLane}, 63, v0")
    a(f"v_lshrrev_b32 v{vT0}, 6, v0")
    a(f"s_mul_i32 s3, s2, {BN}")
    a(f"v_readfirstlane_b32 s{sW}, v{vT0}")
    a(f"v_lshrrev_b32 v{vT0}, 3, v0")
    a(f"v_add_u32 v{vT0}, s3, v{vT0}")
    a(f"v_or_b32 v{vT0}, 0xffff0000, v{vT0}")
    a(f"v_and_b32 v{vT1}, 7, v0")
    a(f"v_cmp_eq_u32 vcc, 0, v{vT1}")
    a("v_mov_b32 v17, -1")
    a("v_mov_b32 v18, -1")
    a("v_mov_b32 v19, -1")
    a(f"v_cndmask_b32 v16, v17, v{vT0}, vcc")
    a(f"v_lshlrev_b32 v{vOff}, 4, v0")
    a(f"v_cmp_gt_u32 vcc, 320, v0")
    a("s_and_saveexec_b64 s[4:5], vcc")
    a(f"ds_write_b128 v{vOff}, v[16:19] offset:{LIST}")
    a("s_mov_b64 exec, s[4:5]")
    a(f"v_lshlrev_b32 v{vT0}, 2, v0")
    a(f"v_mov_b32 v{vT1}, 1")
    a("v_cmp_eq_u32 vcc, 48, v0")
    a("s_nop 1")
    a(f"v_cndmask_b32 v{vT1}, v{vT1}, 0, vcc")
    a("v_cmp_eq_u32 vcc, 49, v0")
    a("s_nop 1")
    a(f"v_cndmask_b32 v{vT1}, v{vT1}, v17, vcc")
    a(f"v_cmp_gt_u32 vcc, 50, v0")
    a("s_and_saveexec_b64 s[4:5], vcc")
    a(f"ds_write_b32 v{vT0}, v{vT1} offset:{CNT}")
    a("s_mov_b64 exec, s[4:5]")
    a("s_waitcnt lgkmcnt(0)")
    a("s_load_dword s92, s[82:83], 0")
    srd(a, sWS, 86, WS_END)
    srd(a, sX, 76, N * 512)
    srd(a, sB1, 84, 1024)
    srd(a, sB2, 88, 512)
    srd(a, sOUT, 90, N * 512)
    srd(a, sSRC, 78, E * 4)
    srd(a, sDST, 80, E * 4)
    if opt.get('stamp'):
        srd(a, sST, 86, 0x1000000)
        a("s_lshl_b32 s96, s2, 4")
        a(f"s_add_u32 s96, s96, s{sW}")
        a("s_lshl_b32 s96, s96, 7")
        a(f"s_add_u32 s96, s96, {STAMP_OFF + 0x100000}")
        a("v_mov_b32 v9, s96")
        st(0)
    a(f"v_lshlrev_b32 v{vC16}, 4, v{vLane}")
    a(f"s_cmp_eq_u32 s{sW}, 0")
    a("s_cbranch_scc0 M_NB1")
    a(f"buffer_load_dwordx4 v[20:23], v{vC16}, {sr(sB1,4)}, 0 offen")
    a.label("M_NB1")
    a(f"s_cmp_eq_u32 s{sW}, 1")
    a("s_cbranch_scc0 M_NB2")
    a(f"buffer_load_dwordx4 v[20:23], v{vC16}, {sr(sB2,4)}, 0 offen")
    a.label("M_NB2")
    a("s_lshl_b32 s4, s2, 13")
    a(f"buffer_load_dwordx4 v[16:19], v{vOff}, {sr(sWS,4)}, s4 offen")
    a(f"s_lshl_b32 s5, s{sW}, 15")
    a(f"s_add_u32 s6, s5, {W1F}")
    a(f"s_add_u32 s7, s5, {W2F}")
    for f in range(32):
        if f % 4 == 0 and f:
            a("s_add_u32 s6, s6, 4096")
        a(f"buffer_load_dwordx4 {vr(W+4*f,4)}, v{vC16}, {sr(sWS,4)}, s6 offen offset:{(f%4)*1024}")
    a(f"v_lshrrev_b32 v{vT0}, 4, v{vLane}")
    a(f"v_lshrrev_b32 v{vT1}, 3, v{vLane}")
    a(f"v_xor_b32 v{vT0}, v{vT0}, v{vT1}")
    a(f"v_and_b32 v{vT0}, 1, v{vT0}")
    a(f"v_bfe_u32 v{vT1}, v{vLane}, 1, 2")
    a(f"v_lshl_or_b32 v{vT0}, v{vT0}, 2, v{vT1}")
    a(f"v_and_b32 v{vT1}, 1, v{vLane}")
    a(f"v_lshlrev_b32 v{vT1}, 4, v{vT1}")
    a("s_waitcnt lgkmcnt(0)")
    a("s_lshl_b32 s92, s92, 16")
    a("v_mov_b32 v24, s92")
    a("v_add_f32 v24, 1.0, v24")
    a("v_cvt_pk_bf16_f32 v24, v24, v24")
    a("v_and_b32 v24, 0xffff, v24")
    a("v_mov_b32 v25, 0x3f80")
    a(f"v_cmp_gt_u32 vcc, 32, v{vLane}")
    a("s_nop 1")
    a("v_cndmask_b32 v24, v25, v24, vcc")
    a(f"v_lshlrev_b32 v24, v{vT1}, v24")
    a(f"v_lshlrev_b32 v25, v{vT1}, v25")
    for p in range(4):
        a(f"v_cmp_eq_u32 vcc, {p}, v{vT0}")
        a("s_nop 1")
        a(f"v_cndmask_b32 v{vA1+p}, 0, v25, vcc")
        a(f"v_cndmask_b32 v{vAS+p}, 0, v24, vcc")
    a(f"v_and_b32 v{vC16}, 31, v{vLane}")
    a(f"v_lshlrev_b32 v{vC16}, 4, v{vC16}")
    a(f"v_lshrrev_b32 v{vSh}, 5, v{vLane}")
    a(f"v_lshlrev_b32 v{vSh}, 4, v{vSh}")
    a(f"v_and_b32 v{vT0}, 15, v{vLane}")
    a(f"v_lshlrev_b32 v{vFl}, 4, v{vT0}")
    a(f"v_lshl_or_b32 v{vFl}, v{vSh}, 4, v{vFl}")
    a(f"v_bfe_u32 v{vT0}, v{vLane}, 4, 1")
    a(f"v_lshl_or_b32 v{vFl}, v{vT0}, 3, v{vFl}")
    a("s_barrier")
    a("s_waitcnt vmcnt(32)")
    st(1)
    a(f"v_lshlrev_b32 v{vT0}, 4, v{vLane}")
    a(f"s_cmp_eq_u32 s{sW}, 0")
    a("s_cbranch_scc0 M_NB3")
    a(f"ds_write_b128 v{vT0}, v[20:23] offset:{B1}")
    a.label("M_NB3")
    a(f"s_cmp_eq_u32 s{sW}, 1")
    a("s_cbranch_scc0 M_NB4")
    a("s_mov_b64 exec, 0xffffffff")
    a(f"ds_write_b128 v{vT0}, v[20:23] offset:{B2}")
    a("s_mov_b64 exec, -1")
    a.label("M_NB4")
    a("s_mov_b32 s4, 0xfffffffe")
    a("v_mov_b32 v28, 1")
    a("v_cmp_eq_u32 vcc, s4, v16")
    a("s_and_saveexec_b64 s[60:61], vcc")
    a(f"v_mov_b32 v29, {FLAG}")
    a("ds_write_b32 v29, v28")
    a("s_mov_b64 exec, s[60:61]")
    for k in range(4):
        a(f"v_lshrrev_b32 v{20+k}, 16, v{16+k}")
        a(f"v_lshlrev_b32 v{24+k}, 2, v{20+k}")
    for k in range(4):
        a(f"v_cmpx_gt_u32 vcc, s4, v{16+k}")
        a(f"ds_add_rtn_u32 v{30+k}, v{24+k}, v28 offset:{CNT}")
        a(f"s_mov_b64 {sr(sM+2*k,2)}, exec")
    a("s_mov_b64 exec, -1")
    a("s_waitcnt lgkmcnt(0)")
    for k in range(4):
        a(f"v_min_u32 v{30+k}, 63, v{30+k}")
        a(f"v_lshlrev_b32 v{20+k}, 7, v{20+k}")
        a(f"v_lshl_add_u32 v{20+k}, v{30+k}, 1, v{20+k}")
    for k in range(4):
        a(f"s_mov_b64 exec, {sr(sM+2*k,2)}")
        a(f"ds_write_b16 v{20+k}, v{16+k} offset:{LIST}")
    a("s_mov_b64 exec, -1")
    a(f"s_mul_i32 s{sNode}, s{sW}, 5")
    a(f"v_and_b32 v{vT0}, 7, v{vLane}")
    a(f"v_add_u32 v{vT0}, s{sNode}, v{vT0}")
    a(f"v_lshlrev_b32 v{vT0}, 2, v{vT0}")
    a(f"v_mov_b32 v{vT1}, {FLAG}")
    a("s_waitcnt lgkmcnt(0)")
    a("s_barrier")
    a(f"ds_read_b32 v16, v{vT0} offset:{CNT}")
    a(f"ds_read_b32 v17, v{vT1}")
    a("s_waitcnt lgkmcnt(0)")
    for j in range(5):
        a(f"v_readlane_b32 s{sTmp+j}, v16, {j}")
    a(f"v_readfirstlane_b32 s{sTmp+5}, v17")
    a("s_nop 3")
    a(f"s_max_u32 s4, s{sTmp}, s{sTmp+1}")
    a(f"s_max_u32 s5, s{sTmp+2}, s{sTmp+3}")
    a(f"s_max_u32 s4, s4, s{sTmp+4}")
    a("s_max_u32 s4, s4, s5")
    a(f"s_lshl_b32 s5, s{sTmp+5}, 8")
    a("s_max_u32 s4, s4, s5")
    a("s_cmp_gt_u32 s4, 64")
    a("s_cbranch_scc1 M_SLOW")
    for j in range(5):
        a(f"s_add_u32 s{sTmp+j}, s{sTmp+j}, 1")
        a(f"s_lshr_b32 s{sTmp+j}, s{sTmp+j}, 1")
        if j == 0:
            a(f"s_mov_b32 s{sO}, s{sTmp}")
        else:
            a(f"s_add_u32 s{sO+j}, s{sO+j-1}, s{sTmp+j}")
        if j < 4:
            a(f"s_lshl_b32 s4, s{sTmp+j}, 2")
            a(f"s_sub_u32 s{sDl+j}, 128, s4")
    a(f"s_mov_b32 s{sT}, s{sO+4}")
    a(f"s_lshl_b32 s49, s{sNode}, 7")
    a(f"s_add_u32 s49, s49, {LIST}")

    def build_seq(sP0):
        a(f"v_add_u32 v{vT0}, {sP0}, v{vLane}")
        a(f"v_lshlrev_b32 v{vT1}, 2, v{vT0}")
        a(f"v_add_u32 v{vT1}, s49, v{vT1}")
        for b in range(4):
            a(f"v_cmpx_le_u32 vcc, s{sO+b}, v{vT0}")
            a(f"v_add_u32 v{vT1}, s{sDl+b}, v{vT1}")
        a(f"v_cmpx_le_u32 vcc, s{sT}, v{vT0}")
        a(f"v_mov_b32 v{vT1}, {SENT}")
        a("s_mov_b64 exec, -1")
        a(f"ds_read_b32 v{vSeq}, v{vT1}")

    def build_mask(sP0):
        a(f"v_add_u32 v{vT0}, {sP0}, v{vLane}")
        a(f"v_add_u32 v{vT0}, 1, v{vT0}")
        a(f"v_cmp_eq_u32 {sr(sMask,2)}, s{sO}, v{vT0}")
        for b in range(1, 5):
            a(f"v_cmp_eq_u32 vcc, s{sO+b}, v{vT0}")
            a(f"s_or_b64 {sr(sMask,2)}, {sr(sMask,2)}, vcc")

    build_seq(0)
    build_mask(0)
    a(f"s_lshl_b32 s{sXor}, s{sNode}, 9")
    a(f"s_and_b32 s4, s{sNode}, 15")
    a("s_lshl_b32 s4, s4, 4")
    a(f"s_or_b32 s{sXor}, s{sXor}, s4")
    a(f"s_mov_b32 s{sPC}, 0")
    a(f"s_mov_b32 s{sPI}, {D}")
    a("s_waitcnt lgkmcnt(0)")
    st(2)
    for s in range(D):
        a(f"v_readlane_b32 s{sTmp + s % 4}, v{vSeq}, {s}")
        if s >= 2:
            p = s - 2
            a(f"v_bfe_u32 v{vOff}, s{sTmp + p % 4}, v{vSh}, 16")
            a(f"v_lshl_add_u32 v{vOff}, v{vOff}, 9, v{vC16}")
            a(f"buffer_load_dwordx4 {vr(RING+4*p,4)}, v{vOff}, {sr(sX,4)}, 0 offen")
    a("s_nop 1")
    for p in range(D - 2, D):
        a(f"v_bfe_u32 v{vOff}, s{sTmp + p % 4}, v{vSh}, 16")
        a(f"v_lshl_add_u32 v{vOff}, v{vOff}, 9, v{vC16}")
        a(f"buffer_load_dwordx4 {vr(RING+4*p,4)}, v{vOff}, {sr(sX,4)}, 0 offen")
    a(f"s_cmp_lt_u32 s{sPI}, s{sT}")
    a("s_cbranch_scc1 G_F0")
    a("s_waitcnt vmcnt(0)")
    a("s_branch T_F0")

    def flush():
        a("s_nop 3")
        a(f"v_xor_b32 v{vT0}, s{sXor}, v{vFl}")
        a(f"v_cvt_pk_bf16_f32 v14, v{vAcc}, v{vAcc+1}")
        a(f"v_cvt_pk_bf16_f32 v15, v{vAcc+2}, v{vAcc+3}")
        a(f"ds_write_b64 v{vT0}, v[14:15] offset:{HH}")
        a(f"s_add_u32 s{sNode}, s{sNode}, 1")
        a(f"s_lshl_b32 s{sXor}, s{sNode}, 9")
        a(f"s_and_b32 s4, s{sNode}, 15")
        a("s_lshl_b32 s4, s4, 4")
        a(f"s_or_b32 s{sXor}, s{sXor}, s4")

    acc = vr(vAcc, 4)
    def mf_norm(s):
        a(f"v_mfma_f32_16x16x32_bf16 {acc}, {vr(vA1,4)}, {vr(RING+4*s,4)}, {acc}")
    def mf_first(s):
        a(f"v_mfma_f32_16x16x32_bf16 {acc}, {vr(vAS,4)}, {vr(RING+4*s,4)}, 0")

    def seg_checks(tag, issue):
        if issue:
            a(f"s_and_b32 s4, s{sPI}, 63")
            a(f"s_cbranch_scc0 {tag}_SEGI")
            a.label(f"{tag}_SEGI_R")
        if not issue:
            a(f"s_cmp_ge_u32 s{sPC}, s{sT}")
            a("s_cbranch_scc1 M_GDONE")
        a(f"s_and_b32 s4, s{sPC}, 63")
        a(f"s_cbranch_scc0 {tag}_SEGC")
        a.label(f"{tag}_SEGC_R")

    out_of_line = []
    for s in range(D):
        n = (s + 1) % D
        a.label(f"G_N{s}")
        if s == 0:
            seg_checks("GN", True)
        a(f"s_waitcnt vmcnt({D-1})")
        a(f"v_readlane_b32 s{sId}, v{vSeq}, s{sPI}")
        mf_norm(s)
        a.label(f"G_C{s}")
        a(f"s_add_u32 s{sPI}, s{sPI}, 1")
        a(f"v_bfe_u32 v{vOff}, s{sId}, v{vSh}, 16")
        a(f"v_lshl_add_u32 v{vOff}, v{vOff}, 9, v{vC16}")
        a(f"buffer_load_dwordx4 {vr(RING+4*s,4)}, v{vOff}, {sr(sX,4)}, 0 offen")
        a(f"s_bitcmp1_b64 {sr(sMask,2)}, s{sPC}")
        a(f"s_cbranch_scc1 G_FL{s}")
        a(f"s_add_u32 s{sPC}, s{sPC}, 1")
        a(f"s_cmp_lt_u32 s{sPI}, s{sT}")
        if n == 0:
            a("s_cbranch_scc1 G_N0")
            a("s_waitcnt vmcnt(0)")
            a("s_branch T_N0")
        else:
            a(f"s_cbranch_scc0 G_X{n}")
    for s in range(D):
        n = (s + 1) % D
        a.label(f"G_FL{s}")
        flush()
        a(f"s_add_u32 s{sPC}, s{sPC}, 1")
        a(f"s_cmp_lt_u32 s{sPI}, s{sT}")
        a(f"s_cbranch_scc1 G_F{n}")
        a("s_waitcnt vmcnt(0)")
        a(f"s_branch T_F{n}")
    for s in range(D):
        a.label(f"G_F{s}")
        if s == 0:
            seg_checks("GF", True)
        a(f"s_waitcnt vmcnt({D-1})")
        a(f"v_readlane_b32 s{sId}, v{vSeq}, s{sPI}")
        mf_first(s)
        a(f"s_branch G_C{s}")
    for s in range(1, D):
        a.label(f"G_X{s}")
        a("s_waitcnt vmcnt(0)")
        a(f"s_branch T_N{s}")
    for tag in ("GN", "GF"):
        a.label(f"{tag}_SEGI")
        build_seq(f"s{sPI}")
        a("s_waitcnt lgkmcnt(0)")
        a(f"s_branch {tag}_SEGI_R")
    for tag in ("GN", "GF", "TN", "TF"):
        a.label(f"{tag}_SEGC")
        build_mask(f"s{sPC}")
        a(f"s_branch {tag}_SEGC_R")
    for s in range(D):
        n = (s + 1) % D
        a.label(f"T_N{s}")
        if s == 0:
            seg_checks("TN", False)
        mf_norm(s)
        a.label(f"T_C{s}")
        a(f"s_bitcmp1_b64 {sr(sMask,2)}, s{sPC}")
        a(f"s_cbranch_scc1 T_FL{s}")
        a(f"s_add_u32 s{sPC}, s{sPC}, 1")
        if n == 0:
            a("s_branch T_N0")
    for s in range(D):
        n = (s + 1) % D
        a.label(f"T_FL{s}")
        a("s_nop 3")
        flush()
        a(f"s_add_u32 s{sPC}, s{sPC}, 1")
        a(f"s_cmp_lt_u32 s{sPC}, s{sT}")
        a(f"s_cbranch_scc0 M_GDONE")
        a.label(f"T_F{n}")
        if n == 0:
            seg_checks("TF", False)
        mf_first(n)
        a(f"s_branch T_C{n}")

    a.label("M_SLOW")
    SA = RING + 16
    a("s_waitcnt vmcnt(0)")
    a(f"v_mov_b32 v{vT0}, 0x7f000000")
    a(f"v_cmp_gt_u32 vcc, 32, v{vLane}")
    a("s_nop 1")
    a(f"v_cndmask_b32 v{vSeq}, v{vT0}, v{vC16}, vcc")
    a(f"s_add_u32 s40, s3, s{sNode}")
    for j in range(5):
        a(f"s_add_u32 s4, s40, {j}")
        a("s_lshl_b32 s4, s4, 9")
        a(f"v_add_u32 v{vOff}, s4, v{vSeq}")
        a(f"buffer_load_dwordx4 {vr(RING,4)}, v{vOff}, {sr(sX,4)}, 0 offen")
        a("s_waitcnt vmcnt(0)")
        a(f"v_mfma_f32_16x16x32_bf16 {vr(SA+4*j,4)}, {vr(vAS,4)}, {vr(RING,4)}, 0")
        a("s_nop 7")
    a(f"v_lshlrev_b32 v{vT0}, 2, v{vLane}")
    a("s_mov_b32 s41, 0")
    a.label("S_LOOP")
    a(f"buffer_load_dword v{RING+4}, v{vT0}, {sr(sDST,4)}, s41 offen")
    a(f"buffer_load_dword v{RING+5}, v{vT0}, {sr(sSRC,4)}, s41 offen")
    a("s_waitcnt vmcnt(0)")
    a(f"v_subrev_u32 v{RING+4}, s40, v{RING+4}")
    a(f"v_cmp_gt_u32 vcc, 5, v{RING+4}")
    a("s_nop 3")
    a("s_mov_b64 s[42:43], vcc")
    a.label("S_IN")
    a("s_cmp_eq_u64 s[42:43], 0")
    a("s_cbranch_scc1 S_NEXT")
    a("s_ff1_i32_b64 s44, s[42:43]")
    a("s_bitset0_b64 s[42:43], s44")
    a(f"v_readlane_b32 s45, v{RING+4}, s44")
    a(f"v_readlane_b32 s46, v{RING+5}, s44")
    a("s_nop 3")
    a("s_lshl_b32 s46, s46, 9")
    a(f"v_add_u32 v{vOff}, s46, v{vSeq}")
    a(f"buffer_load_dwordx4 {vr(RING,4)}, v{vOff}, {sr(sX,4)}, 0 offen")
    a("s_waitcnt vmcnt(0)")
    for j in range(5):
        if j < 4:
            a(f"s_cmp_eq_u32 s45, {j}")
            a(f"s_cbranch_scc0 S_J{j+1}")
        a(f"v_mfma_f32_16x16x32_bf16 {vr(SA+4*j,4)}, {vr(vA1,4)}, {vr(RING,4)}, {vr(SA+4*j,4)}")
        a("s_nop 7")
        a("s_branch S_IN")
        if j < 4:
            a.label(f"S_J{j+1}")
    a.label("S_NEXT")
    a("s_add_u32 s41, s41, 256")
    a(f"s_cmp_lt_u32 s41, {E*4}")
    a("s_cbranch_scc1 S_LOOP")
    a(f"s_lshl_b32 s{sXor}, s{sNode}, 9")
    a(f"s_and_b32 s4, s{sNode}, 15")
    a("s_lshl_b32 s4, s4, 4")
    a(f"s_or_b32 s{sXor}, s{sXor}, s4")
    for j in range(5):
        for r in range(4):
            a(f"v_mov_b32 v{vAcc+r}, v{SA+4*j+r}")
        flush()

    a.label("M_GDONE")
    st(3)
    BF = RING
    ACC2 = RING + 36
    vRd = 76
    vJ, vQ = vT0, vT1
    a(f"v_and_b32 v{vJ}, 15, v{vLane}")
    a(f"v_lshrrev_b32 v{vQ}, 4, v{vLane}")
    a(f"s_lshr_b32 s4, s{sW}, 1")
    a("s_lshl_b32 s4, s4, 8")
    a(f"s_and_b32 s5, s{sW}, 1")
    a("s_lshl_b32 s5, s5, 3")
    a("s_add_u32 s4, s4, s5")
    a(f"v_lshlrev_b32 v{vOff}, 6, v{vQ}")
    a(f"v_add_u32 v{vOff}, s4, v{vOff}")
    for r in range(4):
        a(f"ds_read_b64 {vr(BF+2*r,2)}, v{vOff} offset:{B1+16*r}")
    a(f"s_lshl_b32 s4, s{sW}, 6")
    a(f"v_lshlrev_b32 v{vOff}, 4, v{vQ}")
    a(f"v_add_u32 v{vOff}, s4, v{vOff}")
    a(f"ds_read_b128 {vr(BF+8,4)}, v{vOff} offset:{B2}")
    a(f"v_xor_b32 v{vSeq}, v{vQ}, v{vJ}")
    for k in range(4):
        a(f"v_xor_b32 v{vRd+k}, {4*k}, v{vSeq}")
        a(f"v_lshlrev_b32 v{vRd+k}, 4, v{vRd+k}")
        a(f"v_lshl_or_b32 v{vRd+k}, v{vJ}, 9, v{vRd+k}")
    a(f"v_lshlrev_b32 v{vC16}, 4, v{vLane}")
    a("s_waitcnt lgkmcnt(0)")
    def A1(cc, nt): return ACC1 + 4 * (cc * 3 + nt)
    def A2(t, nt): return ACC2 + 4 * (t * 3 + nt)
    for cc in range(4):
        for r in range(4):
            src = BF + 2 * r + cc // 2
            for nt in range(3):
                if cc % 2 == 0:
                    a(f"v_lshlrev_b32 v{A1(cc,nt)+r}, 16, v{src}")
                else:
                    a(f"v_and_b32 v{A1(cc,nt)+r}, 0xffff0000, v{src}")
    for t in range(2):
        for r in range(4):
            src = BF + 8 + (4 * t + r) // 2
            for nt in range(3):
                if r % 2 == 0:
                    a(f"v_lshlrev_b32 v{A2(t,nt)+r}, 16, v{src}")
                else:
                    a(f"v_and_b32 v{A2(t,nt)+r}, 0xffff0000, v{src}")
    a("s_barrier")
    st(4)
    def rd1(ks):
        for nt in range(3):
            a(f"ds_read_b128 {vr(BF+12*(ks%3)+4*nt,4)}, v{vRd+ks%4} offset:{HH + (ks//4)*256 + nt*8192}")
    rd1(0)
    rd1(1)
    for ks in range(8):
        if ks + 2 < 8:
            rd1(ks + 2)
            a("s_waitcnt lgkmcnt(6)")
        elif ks + 1 < 8:
            a("s_waitcnt lgkmcnt(3)")
        else:
            a("s_waitcnt lgkmcnt(0)")
        for cc in range(4):
            for nt in range(3):
                a(f"v_mfma_f32_16x16x32_bf16 {vr(A1(cc,nt),4)}, {vr(W+16*ks+4*cc,4)}, {vr(BF+12*(ks%3)+4*nt,4)}, {vr(A1(cc,nt),4)}")
        for f in range(4):
            a(f"buffer_load_dwordx4 {vr(W+16*ks+4*f,4)}, v{vC16}, {sr(sWS,4)}, s7 offen offset:{f*1024}")
        a("s_add_u32 s7, s7, 4096")
    a(f"s_lshl_b32 s4, s{sW}, 3")
    a(f"v_lshlrev_b32 v{vOff}, 1, v{vQ}")
    a(f"v_or_b32 v{vOff}, s4, v{vOff}")
    a(f"v_xor_b32 v{vOff}, v{vOff}, v{vJ}")
    a(f"v_xor_b32 v{vFl}, 1, v{vOff}")
    a(f"v_lshlrev_b32 v{vOff}, 4, v{vOff}")
    a(f"v_lshl_or_b32 v{vOff}, v{vJ}, 10, v{vOff}")
    a(f"v_lshlrev_b32 v{vFl}, 4, v{vFl}")
    a(f"v_lshl_or_b32 v{vFl}, v{vJ}, 10, v{vFl}")
    for k in range(4):
        a(f"v_lshl_add_u32 v{vRd+k}, v{vJ}, 9, v{vRd+k}")
    for nt in range(3):
        for aa in range(2):
            d = BF + 4 * ((nt * 2 + aa) % 6)
            for rr in range(2):
                r = 2 * aa + rr
                a(f"v_cvt_pk_bf16_f32 v{d+2*rr}, v{A1(0,nt)+r}, v{A1(1,nt)+r}")
                a(f"v_cvt_pk_bf16_f32 v{d+2*rr+1}, v{A1(2,nt)+r}, v{A1(3,nt)+r}")
            for x in range(4):
                a(f"v_pk_max_i16 v{d+x}, v{d+x}, 0")
            a(f"ds_write_b128 v{vOff if aa == 0 else vFl}, {vr(d,4)} offset:{ACT + nt*16384}")
    a("s_waitcnt lgkmcnt(0)")
    a("s_barrier")
    st(5)
    def rd2(ks):
        for nt in range(3):
            a(f"ds_read_b128 {vr(BF+12*(ks%3)+4*nt,4)}, v{vRd+ks%4} offset:{ACT + (ks//4)*256 + nt*16384}")
    rd2(0)
    rd2(1)
    for ks in range(16):
        if ks + 2 < 16:
            rd2(ks + 2)
            lg = 6
        elif ks + 1 < 16:
            lg = 3
        else:
            lg = 0
        a(f"s_waitcnt vmcnt({32 - 2*(ks+1) + SV}) lgkmcnt({lg})")
        for t in range(2):
            for nt in range(3):
                a(f"v_mfma_f32_16x16x32_bf16 {vr(A2(t,nt),4)}, {vr(W+8*ks+4*t,4)}, {vr(BF+12*(ks%3)+4*nt,4)}, {vr(A2(t,nt),4)}")
    a("s_lshl_b32 s4, s3, 9")
    a(f"s_lshl_b32 s5, s{sW}, 6")
    a("s_add_u32 s4, s4, s5")
    a(f"v_lshlrev_b32 v{vOff}, 9, v{vJ}")
    a(f"v_lshl_add_u32 v{vOff}, v{vQ}, 4, v{vOff}")
    a(f"v_add_u32 v{vOff}, s4, v{vOff}")
    a("s_nop 4")
    for nt in range(3):
        d = BF + 4 * nt
        for t in range(2):
            a(f"v_cvt_pk_bf16_f32 v{d+2*t}, v{A2(t,nt)}, v{A2(t,nt)+1}")
            a(f"v_cvt_pk_bf16_f32 v{d+2*t+1}, v{A2(t,nt)+2}, v{A2(t,nt)+3}")
        if nt == 2:
            a("s_mov_b32 s4, 0x00ff00ff")
            a("s_mov_b32 s5, 0x00ff00ff")
            a("s_mov_b64 exec, s[4:5]")
        a(f"buffer_store_dwordx4 {vr(d,4)}, v{vOff}, {sr(sOUT,4)}, 0 offen")
        if nt < 2:
            a(f"v_add_u32 v{vOff}, 8192, v{vOff}")
    if opt.get('stamp'):
        a("s_mov_b64 exec, -1")
        st(6)
        a("s_waitcnt vmcnt(0)")
        st(7)
    a.label("M_END")
    a("s_endpgm")


HEADER = open('gather_scatter__isomorphism_gin_2__graph.s.ref').read().split('; Override launch')[0]

def kd(name, vgpr, sgpr):
    acc = (vgpr + 3) // 4 * 4
    return f""".p2align 6
.amdhsa_kernel {name}
  .amdhsa_next_free_vgpr {vgpr}
  .amdhsa_next_free_sgpr {sgpr}
  .amdhsa_accum_offset {acc}
  .amdhsa_group_segment_fixed_size 0
  .amdhsa_kernarg_size 88
  .amdhsa_user_sgpr_count 2
  .amdhsa_user_sgpr_kernarg_segment_ptr 1
  .amdhsa_system_sgpr_workgroup_id_x 1
.end_amdhsa_kernel
"""

def build(opt):
    name = "gather_scatter__isomorphism_gin_2__graph_kernel"
    a = Asm()
    a.raw(HEADER.rstrip())
    a.raw("; @launch kernel=prep_kernel grid=(256,1,1) block=(640,1,1) lds=43520")
    a.raw(f"; @launch kernel={name} grid=({NB},1,1) block=(512,1,1) lds=73728")
    a.raw('.amdgcn_target "amdgcn-amd-amdhsa--gfx950"')
    a.raw(".text")
    gen_prep(a, opt)
    gen_main(a, opt, name)
    a.raw('.section .rodata,"a"')
    a.raw(kd("prep_kernel", 96, 102))
    a.raw(kd(name, 256, 102))
    return a.text()

if __name__ == "__main__":
    out = sys.argv[1]
    opt = {}
    for kv in sys.argv[2:]:
        k, v = kv.split("=")
        opt[k] = int(v)
    open(out, "w").write(build(opt))
```

```python
import sys

class Asm:
    def __init__(self):
        self.l = []
    def __call__(self, s):
        self.l.append("    " + s)
    def label(self, s):
        self.l.append(s + ":")
    def raw(self, s):
        self.l.append(s)
    def text(self):
        return "\n".join(self.l) + "\n"

class Ctr:
    def __init__(self, mx):
        self.q = []
        self.mx = mx
    def issue(self, tag):
        self.q.append(tag)
    def need(self, tag):
        idx = [i for i, t in enumerate(self.q) if t == tag]
        if not idx:
            return None
        n = len(self.q) - 1 - idx[-1]
        n = min(n, self.mx)
        self.q = self.q[len(self.q) - n:] if n else []
        return n
    def clear(self):
        self.q = []
    def copy(self):
        c = Ctr(self.mx); c.q = list(self.q); return c

N = 10000
E = 160000
NB = 250
BN = 40
NCH = 64
CH = E // NCH
CELLS_BYTES = NB * 16384
STAMP_OFF = 0x400000
MAGIC = 0xA5B
MHI = MAGIC << 20
EMPTY = MHI | (63 << 14)
MARK = MHI | (62 << 14)

def vr(a, n):
    return f"v[{a}:{a+n-1}]"
def sr(a, n):
    return f"s[{a}:{a+n-1}]"

def srd(a, d, base, nbytes):
    a(f"s_mov_b32 s{d}, s{base}")
    a(f"s_and_b32 s{d+1}, s{base+1}, 0xffff")
    a(f"s_mov_b32 s{d+2}, {nbytes}")
    a(f"s_mov_b32 s{d+3}, 0x00020000")


def gen_main(a, opt, name):
    D = opt.get('depth', 16)
    NPF1 = opt.get('npf1', 1)
    NPF2 = opt.get('npf2', 0)
    assert 64 % D == 0
    HH = 0
    ACT = 20480
    WST = 61440
    IMG = 0
    PCNT = 32768
    LIST = 40960
    CNT = LIST + 5120
    FLAG = CNT + 48 * 4
    SENT = FLAG + 4
    NONCE = SENT + 4
    B1 = LIST + 6144
    B2 = LIST + 7168
    LDS_TOTAL = WST + 8 * 12288
    vLane, vC16, vSh, vSeq, vT0, vT1, vOff, vFl = 1, 2, 3, 4, 5, 6, 7, 8
    vAcc = 10
    RING = 16
    ACC1 = 80
    W = 128
    vA1 = 120
    vAS = 124
    vS1 = 80
    vS2 = 82
    vTR = 84
    vPF = 88
    vPD = 90
    vT16 = 100
    sX, sWS, sOUT, sSRC, sDST, sB1, sB2, sW1, sW2, sDBG = 8, 12, 16, 20, 24, 28, 32, 64, 68, 72
    sW = 36
    sO = 40
    sDl = 45
    sPC, sPI, sT, sXor, sNode, sId = 50, 51, 52, 53, 54, 55
    sMask = 56
    sTmp = 58
    sM = 76
    sST = 92
    sWB = 37
    sA, sB = 38, 39

    vm = Ctr(63)
    lg = Ctr(15)

    def st(idx):
        if opt.get('stamp'):
            a(f"s_memrealtime s[96:97]")
            a("s_waitcnt lgkmcnt(0)")
            lg.clear()
            a("v_mov_b32 v14, s96")
            a("v_mov_b32 v15, s97")
            a("s_mov_b64 s[98:99], exec")
            a("s_mov_b64 exec, 1")
            a(f"buffer_store_dwordx2 v[14:15], v9, {sr(sST,4)}, 0 offen offset:{idx*8}")
            vm.issue('st')
            a("s_mov_b64 exec, s[98:99]")

    def wait(vtag=None, ltag=None):
        p = []
        if vtag is not None:
            n = vm.need(vtag)
            if n is not None:
                p.append(f"vmcnt({n})")
        if ltag is not None:
            n = lg.need(ltag)
            if n is not None:
                p.append(f"lgkmcnt({n})")
        if p:
            a("s_waitcnt " + " ".join(p))

    a.raw(f".globl {name}")
    a.raw(".p2align 8")
    a.raw(f".type {name},@function")
    a.label(name)
    a(f"s_cmp_ge_u32 s2, {NB}")
    a("s_cbranch_scc1 M_END")
    a("s_load_dwordx16 s[76:91], s[0:1], 0")
    a("s_load_dwordx4 s[4:7], s[0:1], 64")
    a("s_load_dwordx2 s[100:101], s[0:1], 80")
    a("s_memrealtime s[96:97]")
    a(f"v_and_b32 v{vLane}, 63, v0")
    a(f"v_lshrrev_b32 v{vT0}, 6, v0")
    a(f"s_mul_i32 s3, s2, {BN}")
    a(f"v_readfirstlane_b32 s{sW}, v{vT0}")
    a(f"v_lshlrev_b32 v{vT16}, 4, v0")
    a(f"v_bfe_u32 v{vT0}, v{vLane}, 1, 2")
    a(f"v_bfe_u32 v{vT1}, v{vLane}, 4, 1")
    a(f"v_sub_u32 v{vT0}, v{vT0}, v{vT1}")
    a(f"v_lshrrev_b32 v{vT1}, 3, v{vLane}")
    a(f"v_lshlrev_b32 v{vT1}, 10, v{vT1}")
    a(f"v_and_b32 v{vOff}, 1, v{vLane}")
    a(f"v_lshl_or_b32 v{vT1}, v{vOff}, 4, v{vT1}")
    a(f"s_lshl_b32 s{sA}, s{sW}, 7")
    a(f"v_or_b32 v{vT1}, s{sA}, v{vT1}")
    a(f"v_and_b32 v{vOff}, 3, v{vT0}")
    a(f"v_lshl_or_b32 v{vS1}, v{vOff}, 5, v{vT1}")
    a(f"v_xor_b32 v{vS1+1}, 64, v{vS1}")
    a(f"v_lshrrev_b32 v{vT0}, 2, v{vLane}")
    a(f"v_lshlrev_b32 v{vT0}, 9, v{vT0}")
    a(f"v_and_b32 v{vT1}, 3, v{vLane}")
    a(f"v_lshl_or_b32 v{vT0}, v{vT1}, 4, v{vT0}")
    a(f"s_lshl_b32 s{sA}, s{sW}, 6")
    a(f"v_or_b32 v{vS2}, s{sA}, v{vT0}")
    a(f"s_mul_i32 s{sWB}, s{sW}, 12288")
    a(f"s_add_u32 s{sWB}, s{sWB}, {WST}")
    NPFT = NPF1 + NPF2
    a(f"s_and_b32 s{sA}, s2, 7")
    a(f"s_mul_i32 s{sA}, s{sA}, 5000")
    a(f"s_lshr_b32 s{sB}, s2, 3")
    a(f"s_mul_i32 s{sId}, s{sB}, {512*max(NPFT,1)}")
    a(f"s_add_u32 s{sA}, s{sA}, s{sId}")
    a(f"v_add_u32 v{vPF}, s{sA}, v0")
    a(f"s_lshl_b32 s{sB}, s{sB}, 1")
    a(f"s_add_u32 s{sB}, s{sB}, s{sW}")
    a(f"s_lshl_b32 s{sB}, s{sB}, 13")
    a(f"v_lshlrev_b32 v{vOff}, 7, v{vLane}")
    a(f"v_lshlrev_b32 v{vC16}, 4, v{vLane}")
    a("s_waitcnt lgkmcnt(0)")
    srd(a, sW1, 84, 256 * 1024)
    srd(a, sDST, 80, E * 4)
    srd(a, sSRC, 78, E * 4)
    srd(a, sW2, 88, 256 * 1024)
    srd(a, sX, 76, N * 512)
    srd(a, sDBG, 6, 256)
    srd(a, sB1, 86, 1024)
    srd(a, sB2, 90, 512)
    srd(a, sWS, 100, CELLS_BYTES)
    srd(a, sOUT, 4, N * 512)
    a(f"s_or_b32 s{sNode}, s96, 1")
    a("s_load_dword s49, s[82:83], 0")
    if opt.get('stamp'):
        srd(a, sST, 100, 0x1000000)
        a("s_lshl_b32 s96, s2, 4")
        a(f"s_add_u32 s96, s96, s{sW}")
        a("s_lshl_b32 s96, s96, 7")
        a(f"s_add_u32 s96, s96, {STAMP_OFF}")
        a("v_mov_b32 v9, s96")
        st(0)

    def dma_w1(u):
        for i in range(4):
            a(f"s_add_u32 m0, s{sWB}, {(u % 3) * 4096 + i * 1024}")
            a(f"s_mov_b32 s{sA}, {(u * 32 + i * 8) * 1024}")
            a(f"buffer_load_dwordx4 v{vS1 + i % 2}, {sr(sW1,4)}, s{sA} offen lds")
            vm.issue(f"w1_{u}")

    def dma_w2(k, vsrc):
        for hf in range(2):
            a(f"s_add_u32 m0, s{sWB}, {(k % 6) * 2048 + hf * 1024}")
            a(f"s_mov_b32 s{sA}, {(k * 32 + hf * 16) * 512}")
            a(f"buffer_load_dwordx4 v{vsrc}, {sr(sW2,4)}, s{sA} offen lds")
            vm.issue(f"w2_{k}")

    def pf(i0, n):
        for i in range(i0, i0 + n):
            a(f"v_add_u32 v{vT0}, {512*i}, v{vPF}")
            a(f"v_subrev_u32 v{vT1}, 40000, v{vT0}")
            a(f"v_min_u32 v{vT0}, v{vT0}, v{vT1}")
            a(f"v_lshlrev_b32 v{vT0}, 7, v{vT0}")
            a(f"buffer_load_dword v{vPD+i}, v{vT0}, {sr(sX,4)}, 0 offen")
            vm.issue("pf")

    def small_loads(tag):
        a(f"s_cmp_lt_u32 s{sW}, 2")
        a(f"s_cbranch_scc0 {tag}_SL1")
        a(f"s_cmp_lt_u32 s{sB}, 0x40000")
        a(f"s_cbranch_scc0 {tag}_SL0")
        a(f"buffer_load_dword v{vPD+9}, v{vOff}, {sr(sW1,4)}, s{sB} offen")
        a(f"s_branch {tag}_SL3")
        a.label(f"{tag}_SL0")
        a(f"s_sub_u32 s{sB}, s{sB}, 0x40000")
        a(f"buffer_load_dword v{vPD+9}, v{vOff}, {sr(sW2,4)}, s{sB} offen")
        a(f"s_branch {tag}_SL3")
        a.label(f"{tag}_SL1")
        a(f"s_cmp_eq_u32 s{sW}, 2")
        a(f"s_cbranch_scc0 {tag}_SL2")
        a(f"buffer_load_dwordx4 v[104:107], v{vC16}, {sr(sB1,4)}, 0 offen")
        a(f"s_branch {tag}_SL3")
        a.label(f"{tag}_SL2")
        a(f"s_cmp_eq_u32 s{sW}, 3")
        a(f"s_cbranch_scc0 {tag}_SL3")
        a(f"buffer_load_dwordx4 v[104:107], v{vC16}, {sr(sB2,4)}, 0 offen")
        a.label(f"{tag}_SL3")

    def lds_init_consumer():
        a(f"v_lshrrev_b32 v{vT0}, 3, v0")
        a(f"v_add_u32 v{vT0}, s3, v{vT0}")
        a(f"v_or_b32 v{vT0}, 0xffff0000, v{vT0}")
        a(f"v_and_b32 v{vT1}, 7, v0")
        a(f"v_cmp_eq_u32 vcc, 0, v{vT1}")
        a("v_mov_b32 v109, -1")
        a("v_mov_b32 v110, -1")
        a("v_mov_b32 v111, -1")
        a(f"v_cndmask_b32 v108, v109, v{vT0}, vcc")
        a(f"v_cmp_gt_u32 vcc, 320, v0")
        a("s_and_saveexec_b64 s[4:5], vcc")
        a(f"ds_write_b128 v{vT16}, v[108:111] offset:{LIST}")
        a("s_mov_b64 exec, s[4:5]")
        a(f"v_lshlrev_b32 v{vT0}, 2, v0")
        a(f"v_mov_b32 v{vT1}, 1")
        a("v_cmp_eq_u32 vcc, 48, v0")
        a("s_nop 1")
        a(f"v_cndmask_b32 v{vT1}, v{vT1}, 0, vcc")
        a("v_cmp_eq_u32 vcc, 49, v0")
        a("s_nop 1")
        a(f"v_cndmask_b32 v{vT1}, v{vT1}, v109, vcc")
        a(f"v_mov_b32 v108, s{sNode}")
        a("v_cmp_eq_u32 vcc, 50, v0")
        a("s_nop 1")
        a(f"v_cndmask_b32 v{vT1}, v{vT1}, v108, vcc")
        a(f"v_cmp_gt_u32 vcc, 51, v0")
        a("s_and_saveexec_b64 s[4:5], vcc")
        a(f"ds_write_b32 v{vT0}, v{vT1} offset:{CNT}")
        a("s_mov_b64 exec, s[4:5]")

    def consts():
        a(f"v_lshrrev_b32 v{vT0}, 4, v{vLane}")
        a(f"v_lshlrev_b32 v{vT0}, 10, v{vT0}")
        a(f"v_bfe_u32 v{vT1}, v{vLane}, 2, 2")
        a(f"v_lshl_or_b32 v{vT0}, v{vT1}, 7, v{vT0}")
        a(f"v_and_b32 v{vT1}, 3, v{vLane}")
        a(f"v_lshl_or_b32 v{vT0}, v{vT1}, 3, v{vT0}")
        a(f"v_add_u32 v{vT0}, s{sWB}, v{vT0}")
        a(f"v_bfe_u32 v{vT1}, v{vLane}, 3, 2")
        for mt in range(4):
            a(f"v_add_u32 v{vOff}, {mt}, v{vT1}")
            a(f"v_and_b32 v{vOff}, 3, v{vOff}")
            a(f"v_lshl_add_u32 v{vTR+mt}, v{vOff}, 5, v{vT0}")
        a(f"v_lshrrev_b32 v{vT0}, 4, v{vLane}")
        a(f"v_lshrrev_b32 v{vT1}, 3, v{vLane}")
        a(f"v_xor_b32 v{vT0}, v{vT0}, v{vT1}")
        a(f"v_and_b32 v{vT0}, 1, v{vT0}")
        a(f"v_bfe_u32 v{vT1}, v{vLane}, 1, 2")
        a(f"v_lshl_or_b32 v{vT0}, v{vT0}, 2, v{vT1}")
        a(f"v_and_b32 v{vT1}, 1, v{vLane}")
        a(f"v_lshlrev_b32 v{vT1}, 4, v{vT1}")
        a("s_waitcnt lgkmcnt(0)")
        lg.clear()
        a("s_lshl_b32 s49, s49, 16")
        a("v_mov_b32 v112, s49")
        a("v_add_f32 v112, 1.0, v112")
        a("v_cvt_pk_bf16_f32 v112, v112, v112")
        a("v_and_b32 v112, 0xffff, v112")
        a("v_mov_b32 v113, 0x3f80")
        a(f"v_cmp_gt_u32 vcc, 32, v{vLane}")
        a("s_nop 1")
        a("v_cndmask_b32 v112, v113, v112, vcc")
        a(f"v_lshlrev_b32 v112, v{vT1}, v112")
        a(f"v_lshlrev_b32 v113, v{vT1}, v113")
        for p in range(4):
            a(f"v_cmp_eq_u32 vcc, {p}, v{vT0}")
            a("s_nop 1")
            a(f"v_cndmask_b32 v{vA1+p}, 0, v113, vcc")
            a(f"v_cndmask_b32 v{vAS+p}, 0, v112, vcc")
        a(f"v_lshrrev_b32 v{vSh}, 5, v{vLane}")
        a(f"v_lshlrev_b32 v{vSh}, 4, v{vSh}")
        a(f"v_and_b32 v{vT0}, 15, v{vLane}")
        a(f"v_lshlrev_b32 v{vFl}, 4, v{vT0}")
        a(f"v_lshl_or_b32 v{vFl}, v{vSh}, 4, v{vFl}")
        a(f"v_bfe_u32 v{vT0}, v{vLane}, 4, 1")
        a(f"v_lshl_or_b32 v{vFl}, v{vT0}, 3, v{vFl}")

    def w1_step(u):
        wait(vtag=f"w1_{u}")
        for mt in range(4):
            for hf in range(2):
                a(f"ds_read_b64_tr_b16 {vr(W+16*u+4*mt+2*hf,2)}, v{vTR+mt} offset:{(u%3)*4096 + hf*512}")
                lg.issue(f"t1_{u}")
        wait(ltag=f"t1_{u}")
        if u + 3 < 8:
            dma_w1(u + 3)
        else:
            k = 2 * (u % 3)
            dma_w2(k, vS2)
            dma_w2(k + 1, vS2)

    a(f"s_cmp_lt_u32 s2, {NCH}")
    a("s_cbranch_scc1 PROD")
    vm_save, lg_save = vm.copy(), lg.copy()
    small_loads("C")
    for u in range(3):
        dma_w1(u)
    pf(0, NPF1)
    lds_init_consumer()
    consts()
    a("s_barrier")
    for u in range(3):
        w1_step(u)
    a("s_branch JOIN1")
    q_c = list(vm.q)
    vm.q, lg.q = list(vm_save.q), list(lg_save.q)
    a.label("PROD")
    a(f"s_mul_i32 s{sA}, s2, {CH*4}")
    a(f"buffer_load_dwordx4 v[16:19], v{vT16}, {sr(sDST,4)}, s{sA} offen")
    a(f"buffer_load_dwordx4 v[20:23], v{vT16}, {sr(sSRC,4)}, s{sA} offen")
    a(f"s_cmp_lt_u32 s{sW}, 2")
    a("s_cbranch_scc0 P_E2")
    a(f"s_add_u32 s{sA}, s{sA}, 8192")
    a(f"buffer_load_dwordx4 v[24:27], v{vT16}, {sr(sDST,4)}, s{sA} offen")
    a(f"buffer_load_dwordx4 v[28:31], v{vT16}, {sr(sSRC,4)}, s{sA} offen")
    a(f"s_cmp_eq_u32 s{sW}, 0")
    a("s_cbranch_scc0 P_E2")
    a(f"v_mov_b32 v{vT0}, s{sNode}")
    a(f"s_lshl_b32 s{sA}, s2, 2")
    a(f"v_mov_b32 v{vT1}, s{sA}")
    a("s_mov_b64 exec, 1")
    a(f"buffer_store_dword v{vT0}, v{vT1}, {sr(sDBG,4)}, 0 offen sc1")
    a("s_mov_b64 exec, -1")
    a.label("P_E2")
    small_loads("P")
    vm.issue("edges")
    st(11)
    for u in range(3):
        dma_w1(u)
    pf(0, NPF1)
    st(12)
    lds_init_consumer()
    a(f"v_mov_b32 v32, {EMPTY}")
    a("v_mov_b32 v33, v32")
    a("v_mov_b32 v34, v32")
    a("v_mov_b32 v35, v32")
    for i in range(4):
        a(f"ds_write_b128 v{vT16}, v[32:35] offset:{IMG + i*8192}")
    a(f"v_lshlrev_b32 v{vT0}, 2, v0")
    a(f"v_mov_b32 v{vT1}, 0")
    a(f"ds_write_b32 v{vT0}, v{vT1} offset:{PCNT}")
    consts()
    st(13)
    a("s_barrier")
    st(14)
    a("v_mov_b32 v36, 1")
    a(f"v_mov_b32 v37, {PCNT + 2044}")
    a(f"s_mov_b32 s{sA}, 52429")
    a(f"s_movk_i32 s{sB}, -40")
    a(f"s_mov_b32 s{sId}, {MHI}")
    wait(vtag="edges")
    st(8)

    def bin4(vd, vs, vb, va, vrk):
        for k in range(4):
            a(f"v_mul_u32_u24 v{vb+k}, s{sA}, v{vd+k}")
            a(f"v_lshrrev_b32 v{vb+k}, 21, v{vb+k}")
            a(f"v_lshlrev_b32 v{va+k}, 2, v{vb+k}")
            a(f"ds_add_rtn_u32 v{vrk+k}, v{va+k}, v36 offset:{PCNT}")
            a(f"v_mad_i32_i24 v{vd+k}, v{vb+k}, s{sB}, v{vd+k}")
            a(f"v_lshl_or_b32 v{vs+k}, v{vd+k}, 14, v{vs+k}")
            a(f"v_or_b32 v{vs+k}, s{sId}, v{vs+k}")
            a(f"v_lshlrev_b32 v{vb+k}, 7, v{vb+k}")
        for k in range(4):
            a(f"s_waitcnt lgkmcnt({3-k})")
            a(f"v_cmp_gt_u32 vcc, 32, v{vrk+k}")
            a(f"v_lshl_add_u32 v{vb+k}, v{vrk+k}, 2, v{vb+k}")
            a("s_nop 0")
            a(f"v_cndmask_b32 v{vb+k}, v37, v{vb+k}, vcc")
        for k in range(4):
            a(f"ds_write_b32 v{vb+k}, v{vs+k} offset:{IMG}")
    bin4(16, 20, 40, 44, 48)
    a(f"s_cmp_lt_u32 s{sW}, 2")
    a("s_cbranch_scc0 P_B2")
    a(f"v_cmp_gt_u32 vcc, {CH//4 - 512}, v0")
    a("s_and_saveexec_b64 s[4:5], vcc")
    a("s_waitcnt lgkmcnt(0)")
    bin4(24, 28, 40, 44, 48)
    a("s_mov_b64 exec, s[4:5]")
    a.label("P_B2")
    a("v_lshrrev_b32 v16, 3, v0")
    a("v_and_b32 v17, 7, v0")
    a("v_lshlrev_b32 v18, 7, v16")
    a("v_lshl_or_b32 v18, v17, 3, v18")
    a("v_lshlrev_b32 v19, 2, v16")
    a("v_lshlrev_b32 v20, 14, v16")
    a("v_lshl_or_b32 v20, v17, 4, v20")
    a(f"s_lshl_b32 s{sA}, s2, 7")
    a(f"v_add_u32 v20, s{sA}, v20")
    a(f"v_mov_b32 v21, {NONCE}")
    a(f"v_mov_b32 v22, {MARK}")
    a("s_waitcnt lgkmcnt(0)")
    a("s_barrier")
    st(15)
    a("ds_read_b32 v23, v21")
    for i in range(4):
        a(f"ds_read_b64 {vr(24+2*i,2)}, v18 offset:{IMG + i*8192}")
    for i in range(4):
        a(f"ds_read_b64 {vr(32+2*i,2)}, v18 offset:{IMG + i*8192 + 64}")
        a(f"ds_read_b32 v{40+i}, v19 offset:{PCNT + i*256}")
    for i in range(4):
        d = 44 + 4 * i
        a(f"s_waitcnt lgkmcnt({11-i})")
        a(f"v_mov_b32 v{d}, v{24+2*i}")
        a(f"v_mov_b32 v{d+1}, v23")
        a(f"v_mov_b32 v{d+2}, v{25+2*i}")
        a(f"v_mov_b32 v{d+3}, v23")
        a(f"s_mov_b32 s{sA}, {i*64*16384}")
        a(f"buffer_store_dwordx4 {vr(d,4)}, v20, {sr(sWS,4)}, s{sA} offen sc1")
        vm.issue("cst")
    for i in range(4):
        d = 60 + 4 * i
        a(f"s_waitcnt lgkmcnt({6-2*i})")
        a(f"v_cmp_lt_u32 vcc, 32, v{40+i}")
        a(f"v_mov_b32 v{d+1}, v23")
        a(f"v_mov_b32 v{d+2}, v{33+2*i}")
        a(f"v_cndmask_b32 v{d}, v{32+2*i}, v22, vcc")
        a(f"v_mov_b32 v{d+3}, v23")
        a(f"s_mov_b32 s{sA}, {i*64*16384 + 8192}")
        a(f"v_cmpx_le_u32 vcc, 16, v{40+i}")
        a(f"buffer_store_dwordx4 {vr(d,4)}, v20, {sr(sWS,4)}, s{sA} offen sc1")
        a("s_mov_b64 exec, -1")
    st(9)
    for u in range(3):
        w1_step(u)
    assert vm.q[-12:] == q_c[-12:], (vm.q, q_c)
    vm.q = ["old"] + vm.q[-12:]
    a.label("JOIN1")
    for u in range(3, 8):
        w1_step(u)
    st(1)
    if NPF2:
        pf(NPF1, NPF2)
    a(f"s_cmp_eq_u32 s{sW}, 2")
    a("s_cbranch_scc0 M_NB3")
    a(f"ds_write_b128 v{vC16}, v[104:107] offset:{B1}")
    a.label("M_NB3")
    a(f"s_cmp_eq_u32 s{sW}, 3")
    a("s_cbranch_scc0 M_NB4")
    a("s_mov_b64 exec, 0xffffffff")
    a(f"ds_write_b128 v{vC16}, v[104:107] offset:{B2}")
    a("s_mov_b64 exec, -1")
    a.label("M_NB4")
    a(f"v_and_b32 v{vC16}, 31, v{vLane}")
    a(f"v_lshlrev_b32 v{vC16}, 4, v{vC16}")
    a("v_lshrrev_b32 v32, 3, v0")
    a("v_lshlrev_b32 v32, 2, v32")
    a(f"s_lshl_b32 s{sA}, s2, 14")
    a(f"s_add_u32 s{sB}, s{sA}, 8192")
    a(f"s_mov_b32 s{sPC}, 0")
    a(f"s_mov_b32 s{sId}, {MHI}")
    a(f"s_mov_b32 s{sT}, {EMPTY}")
    a.label("POLL")
    a(f"buffer_load_dword v24, v32, {sr(sDBG,4)}, 0 offen sc1")
    a(f"buffer_load_dwordx4 v[16:19], v{vT16}, {sr(sWS,4)}, s{sA} offen sc1")
    a(f"buffer_load_dwordx4 v[20:23], v{vT16}, {sr(sWS,4)}, s{sB} offen sc1")
    a("s_waitcnt vmcnt(0)")
    vm.clear()
    for h in range(2):
        b = 16 + 4 * h
        a(f"v_xor_b32 v25, s{sId}, v{b}")
        a(f"v_xor_b32 v26, s{sId}, v{b+2}")
        a("v_or_b32 v25, v25, v26")
        a("v_lshrrev_b32 v25, 20, v25")
        a(f"v_xor_b32 v26, v24, v{b+1}")
        a(f"v_xor_b32 v27, v24, v{b+3}")
        a(f"v_or3_b32 v{28+h}, v25, v26, v27")
    a(f"v_cmp_ne_u32 {sr(sM,2)}, 0, v28")
    a("v_cmp_eq_u32 vcc, 0, v24")
    a(f"s_or_b64 {sr(sM,2)}, {sr(sM,2)}, vcc")
    a(f"v_cmp_ne_u32 {sr(sM+2,2)}, 0, v29")
    a(f"v_cmp_ne_u32 vcc, s{sT}, v18")
    a(f"s_and_b32 s4, vcc_lo, 0x80808080")
    a(f"s_and_b32 s5, vcc_hi, 0x80808080")
    a("s_lshr_b32 s4, s4, 7")
    a("s_lshr_b32 s5, s5, 7")
    a("s_mul_i32 s4, s4, 255")
    a("s_mul_i32 s5, s5, 255")
    a(f"s_and_b64 {sr(sM+2,2)}, {sr(sM+2,2)}, s[4:5]")
    a(f"s_or_b64 {sr(sM,2)}, {sr(sM,2)}, {sr(sM+2,2)}")
    a("s_cbranch_scc0 POLL_OK")
    a("s_sleep 4")
    a(f"s_add_u32 s{sPC}, s{sPC}, 1")
    a(f"s_cmp_lt_u32 s{sPC}, {opt.get('spin', 30000)}")
    a("s_cbranch_scc1 POLL")
    a(f"v_mov_b32 v16, {EMPTY}")
    a("v_mov_b32 v18, v16")
    a(f"v_mov_b32 v20, {MARK}")
    a("v_mov_b32 v22, v16")
    a("s_mov_b64 s[4:5], -1")
    a.label("POLL_OK")
    st(2)
    a(f"v_mov_b32 v25, s{sT}")
    a("v_cndmask_b32 v20, v25, v20, s[4:5]")
    a("v_cndmask_b32 v22, v25, v22, s[4:5]")
    a(f"s_mov_b32 s4, {MARK}")
    a("v_mov_b32 v28, 1")
    a("v_cmp_eq_u32 vcc, s4, v20")
    a("s_and_saveexec_b64 s[60:61], vcc")
    a(f"v_mov_b32 v29, {FLAG}")
    a("ds_write_b32 v29, v28")
    a("s_mov_b64 exec, s[60:61]")
    ent = [16, 18, 20, 22]
    for k in range(4):
        a(f"v_bfe_u32 v{34+k}, v{ent[k]}, 14, 6")
        a(f"v_lshlrev_b32 v{38+k}, 2, v{34+k}")
    for k in range(4):
        if k == 2:
            a("s_mov_b64 exec, -1")
        a(f"v_cmpx_gt_u32 vcc, s4, v{ent[k]}")
        a(f"ds_add_rtn_u32 v{42+k}, v{38+k}, v28 offset:{CNT}")
        a(f"s_mov_b64 {sr(sM+2*k,2)}, exec")
    a("s_mov_b64 exec, -1")
    for k in range(4):
        a(f"v_and_b32 v{ent[k]}, 0x3fff, v{ent[k]}")
        a(f"v_lshlrev_b32 v{34+k}, 7, v{34+k}")
    a("s_waitcnt lgkmcnt(0)")
    for k in range(4):
        a(f"v_min_u32 v{42+k}, 63, v{42+k}")
        a(f"v_lshl_add_u32 v{34+k}, v{42+k}, 1, v{34+k}")
    for k in range(4):
        a(f"s_mov_b64 exec, {sr(sM+2*k,2)}")
        a(f"ds_write_b16 v{34+k}, v{ent[k]} offset:{LIST}")
    a("s_mov_b64 exec, -1")
    a(f"s_mul_i32 s{sNode}, s{sW}, 5")
    a(f"v_and_b32 v{vT0}, 7, v{vLane}")
    a(f"v_add_u32 v{vT0}, s{sNode}, v{vT0}")
    a(f"v_lshlrev_b32 v{vT0}, 2, v{vT0}")
    a(f"v_mov_b32 v{vT1}, {FLAG}")
    a("s_waitcnt lgkmcnt(0)")
    a("s_barrier")
    a(f"ds_read_b32 v16, v{vT0} offset:{CNT}")
    a(f"ds_read_b32 v17, v{vT1}")
    a("s_waitcnt lgkmcnt(0)")
    for j in range(5):
        a(f"v_readlane_b32 s{sTmp+j}, v16, {j}")
    a(f"v_readfirstlane_b32 s{sTmp+5}, v17")
    a("s_nop 3")
    a(f"s_max_u32 s4, s{sTmp}, s{sTmp+1}")
    a(f"s_max_u32 s5, s{sTmp+2}, s{sTmp+3}")
    a(f"s_max_u32 s4, s4, s{sTmp+4}")
    a("s_max_u32 s4, s4, s5")
    a(f"s_lshl_b32 s5, s{sTmp+5}, 8")
    a("s_max_u32 s4, s4, s5")
    a("s_cmp_gt_u32 s4, 64")
    a("s_cbranch_scc1 M_SLOW")
    for j in range(5):
        a(f"s_add_u32 s{sTmp+j}, s{sTmp+j}, 1")
        a(f"s_lshr_b32 s{sTmp+j}, s{sTmp+j}, 1")
        if j == 0:
            a(f"s_mov_b32 s{sO}, s{sTmp}")
        else:
            a(f"s_add_u32 s{sO+j}, s{sO+j-1}, s{sTmp+j}")
        if j < 4:
            a(f"s_lshl_b32 s4, s{sTmp+j}, 2")
            a(f"s_sub_u32 s{sDl+j}, 128, s4")
    a(f"s_mov_b32 s{sT}, s{sO+4}")
    a(f"s_lshl_b32 s49, s{sNode}, 7")
    a(f"s_add_u32 s49, s49, {LIST}")

    def build_seq(sP0):
        a(f"v_add_u32 v{vT0}, {sP0}, v{vLane}")
        a(f"v_lshlrev_b32 v{vT1}, 2, v{vT0}")
        a(f"v_add_u32 v{vT1}, s49, v{vT1}")
        for b in range(4):
            a(f"v_cmpx_le_u32 vcc, s{sO+b}, v{vT0}")
            a(f"v_add_u32 v{vT1}, s{sDl+b}, v{vT1}")
        a(f"v_cmpx_le_u32 vcc, s{sT}, v{vT0}")
        a(f"v_mov_b32 v{vT1}, {SENT}")
        a("s_mov_b64 exec, -1")
        a(f"ds_read_b32 v{vSeq}, v{vT1}")

    def build_mask(sP0):
        a(f"v_add_u32 v{vT0}, {sP0}, v{vLane}")
        a(f"v_add_u32 v{vT0}, 1, v{vT0}")
        a(f"v_cmp_eq_u32 {sr(sMask,2)}, s{sO}, v{vT0}")
        for b in range(1, 5):
            a(f"v_cmp_eq_u32 vcc, s{sO+b}, v{vT0}")
            a(f"s_or_b64 {sr(sMask,2)}, {sr(sMask,2)}, vcc")

    build_seq(0)
    build_mask(0)
    a(f"s_lshl_b32 s{sXor}, s{sNode}, 9")
    a(f"s_and_b32 s4, s{sNode}, 15")
    a("s_lshl_b32 s4, s4, 4")
    a(f"s_or_b32 s{sXor}, s{sXor}, s4")
    a(f"s_mov_b32 s{sPC}, 0")
    a(f"s_mov_b32 s{sPI}, {D}")
    a("s_waitcnt lgkmcnt(0)")
    st(3)
    for s in range(D):
        a(f"v_readlane_b32 s{sTmp + s % 4}, v{vSeq}, {s}")
        if s >= 2:
            p = s - 2
            a(f"v_bfe_u32 v{vOff}, s{sTmp + p % 4}, v{vSh}, 16")
            a(f"v_lshl_add_u32 v{vOff}, v{vOff}, 9, v{vC16}")
            a(f"buffer_load_dwordx4 {vr(RING+4*p,4)}, v{vOff}, {sr(sX,4)}, 0 offen")
    a("s_nop 1")
    for p in range(D - 2, D):
        a(f"v_bfe_u32 v{vOff}, s{sTmp + p % 4}, v{vSh}, 16")
        a(f"v_lshl_add_u32 v{vOff}, v{vOff}, 9, v{vC16}")
        a(f"buffer_load_dwordx4 {vr(RING+4*p,4)}, v{vOff}, {sr(sX,4)}, 0 offen")
    a(f"s_cmp_lt_u32 s{sPI}, s{sT}")
    a("s_cbranch_scc1 G_F0")
    a("s_waitcnt vmcnt(0)")
    a("s_branch T_F0")

    def flush():
        a("s_nop 3")
        a(f"v_xor_b32 v{vT0}, s{sXor}, v{vFl}")
        a(f"v_cvt_pk_bf16_f32 v14, v{vAcc}, v{vAcc+1}")
        a(f"v_cvt_pk_bf16_f32 v15, v{vAcc+2}, v{vAcc+3}")
        a(f"ds_write_b64 v{vT0}, v[14:15] offset:{HH}")
        a(f"s_add_u32 s{sNode}, s{sNode}, 1")
        a(f"s_lshl_b32 s{sXor}, s{sNode}, 9")
        a(f"s_and_b32 s4, s{sNode}, 15")
        a("s_lshl_b32 s4, s4, 4")
        a(f"s_or_b32 s{sXor}, s{sXor}, s4")

    acc = vr(vAcc, 4)
    def mf_norm(s):
        a(f"v_mfma_f32_16x16x32_bf16 {acc}, {vr(vA1,4)}, {vr(RING+4*s,4)}, {acc}")
    def mf_first(s):
        a(f"v_mfma_f32_16x16x32_bf16 {acc}, {vr(vAS,4)}, {vr(RING+4*s,4)}, 0")

    def seg_checks(tag, issue):
        if issue:
            a(f"s_and_b32 s4, s{sPI}, 63")
            a(f"s_cbranch_scc0 {tag}_SEGI")
            a.label(f"{tag}_SEGI_R")
        if not issue:
            a(f"s_cmp_ge_u32 s{sPC}, s{sT}")
            a("s_cbranch_scc1 M_GDONE")
        a(f"s_and_b32 s4, s{sPC}, 63")
        a(f"s_cbranch_scc0 {tag}_SEGC")
        a.label(f"{tag}_SEGC_R")

    for s in range(D):
        n = (s + 1) % D
        a.label(f"G_N{s}")
        if s == 0:
            seg_checks("GN", True)
        a(f"s_waitcnt vmcnt({D-1})")
        a(f"v_readlane_b32 s{sId}, v{vSeq}, s{sPI}")
        mf_norm(s)
        a.label(f"G_C{s}")
        a(f"s_add_u32 s{sPI}, s{sPI}, 1")
        a(f"v_bfe_u32 v{vOff}, s{sId}, v{vSh}, 16")
        a(f"v_lshl_add_u32 v{vOff}, v{vOff}, 9, v{vC16}")
        a(f"buffer_load_dwordx4 {vr(RING+4*s,4)}, v{vOff}, {sr(sX,4)}, 0 offen")
        a(f"s_bitcmp1_b64 {sr(sMask,2)}, s{sPC}")
        a(f"s_cbranch_scc1 G_FL{s}")
        a(f"s_add_u32 s{sPC}, s{sPC}, 1")
        a(f"s_cmp_lt_u32 s{sPI}, s{sT}")
        if n == 0:
            a("s_cbranch_scc1 G_N0")
            a("s_waitcnt vmcnt(0)")
            a("s_branch T_N0")
        else:
            a(f"s_cbranch_scc0 G_X{n}")
    for s in range(D):
        n = (s + 1) % D
        a.label(f"G_FL{s}")
        flush()
        a(f"s_add_u32 s{sPC}, s{sPC}, 1")
        a(f"s_cmp_lt_u32 s{sPI}, s{sT}")
        a(f"s_cbranch_scc1 G_F{n}")
        a("s_waitcnt vmcnt(0)")
        a(f"s_branch T_F{n}")
    for s in range(D):
        a.label(f"G_F{s}")
        if s == 0:
            seg_checks("GF", True)
        a(f"s_waitcnt vmcnt({D-1})")
        a(f"v_readlane_b32 s{sId}, v{vSeq}, s{sPI}")
        mf_first(s)
        a(f"s_branch G_C{s}")
    for s in range(1, D):
        a.label(f"G_X{s}")
        a("s_waitcnt vmcnt(0)")
        a(f"s_branch T_N{s}")
    for tag in ("GN", "GF"):
        a.label(f"{tag}_SEGI")
        build_seq(f"s{sPI}")
        a("s_waitcnt lgkmcnt(0)")
        a(f"s_branch {tag}_SEGI_R")
    for tag in ("GN", "GF", "TN", "TF"):
        a.label(f"{tag}_SEGC")
        build_mask(f"s{sPC}")
        a(f"s_branch {tag}_SEGC_R")
    for s in range(D):
        n = (s + 1) % D
        a.label(f"T_N{s}")
        if s == 0:
            seg_checks("TN", False)
        mf_norm(s)
        a.label(f"T_C{s}")
        a(f"s_bitcmp1_b64 {sr(sMask,2)}, s{sPC}")
        a(f"s_cbranch_scc1 T_FL{s}")
        a(f"s_add_u32 s{sPC}, s{sPC}, 1")
        if n == 0:
            a("s_branch T_N0")
    for s in range(D):
        n = (s + 1) % D
        a.label(f"T_FL{s}")
        a("s_nop 3")
        flush()
        a(f"s_add_u32 s{sPC}, s{sPC}, 1")
        a(f"s_cmp_lt_u32 s{sPC}, s{sT}")
        a(f"s_cbranch_scc0 M_GDONE")
        a.label(f"T_F{n}")
        if n == 0:
            seg_checks("TF", False)
        mf_first(n)
        a(f"s_branch T_C{n}")

    a.label("M_SLOW")
    SA = RING + 16
    a("s_waitcnt vmcnt(0)")
    a(f"v_mov_b32 v{vT0}, 0x7f000000")
    a(f"v_cmp_gt_u32 vcc, 32, v{vLane}")
    a("s_nop 1")
    a(f"v_cndmask_b32 v{vSeq}, v{vT0}, v{vC16}, vcc")
    a(f"s_add_u32 s40, s3, s{sNode}")
    for j in range(5):
        a(f"s_add_u32 s4, s40, {j}")
        a("s_lshl_b32 s4, s4, 9")
        a(f"v_add_u32 v{vOff}, s4, v{vSeq}")
        a(f"buffer_load_dwordx4 {vr(RING,4)}, v{vOff}, {sr(sX,4)}, 0 offen")
        a("s_waitcnt vmcnt(0)")
        a(f"v_mfma_f32_16x16x32_bf16 {vr(SA+4*j,4)}, {vr(vAS,4)}, {vr(RING,4)}, 0")
        a("s_nop 7")
    a(f"v_lshlrev_b32 v{vT0}, 2, v{vLane}")
    a("s_mov_b32 s41, 0")
    a.label("S_LOOP")
    a(f"buffer_load_dword v{RING+4}, v{vT0}, {sr(sDST,4)}, s41 offen")
    a(f"buffer_load_dword v{RING+5}, v{vT0}, {sr(sSRC,4)}, s41 offen")
    a("s_waitcnt vmcnt(0)")
    a(f"v_subrev_u32 v{RING+4}, s40, v{RING+4}")
    a(f"v_cmp_gt_u32 vcc, 5, v{RING+4}")
    a("s_nop 3")
    a("s_mov_b64 s[42:43], vcc")
    a.label("S_IN")
    a("s_cmp_eq_u64 s[42:43], 0")
    a("s_cbranch_scc1 S_NEXT")
    a("s_ff1_i32_b64 s44, s[42:43]")
    a("s_bitset0_b64 s[42:43], s44")
    a(f"v_readlane_b32 s45, v{RING+4}, s44")
    a(f"v_readlane_b32 s46, v{RING+5}, s44")
    a("s_nop 3")
    a("s_lshl_b32 s46, s46, 9")
    a(f"v_add_u32 v{vOff}, s46, v{vSeq}")
    a(f"buffer_load_dwordx4 {vr(RING,4)}, v{vOff}, {sr(sX,4)}, 0 offen")
    a("s_waitcnt vmcnt(0)")
    for j in range(5):
        if j < 4:
            a(f"s_cmp_eq_u32 s45, {j}")
            a(f"s_cbranch_scc0 S_J{j+1}")
        a(f"v_mfma_f32_16x16x32_bf16 {vr(SA+4*j,4)}, {vr(vA1,4)}, {vr(RING,4)}, {vr(SA+4*j,4)}")
        a("s_nop 7")
        a("s_branch S_IN")
        if j < 4:
            a.label(f"S_J{j+1}")
    a.label("S_NEXT")
    a("s_add_u32 s41, s41, 256")
    a(f"s_cmp_lt_u32 s41, {E*4}")
    a("s_cbranch_scc1 S_LOOP")
    a(f"s_lshl_b32 s{sXor}, s{sNode}, 9")
    a(f"s_and_b32 s4, s{sNode}, 15")
    a("s_lshl_b32 s4, s4, 4")
    a(f"s_or_b32 s{sXor}, s{sXor}, s4")
    for j in range(5):
        for r in range(4):
            a(f"v_mov_b32 v{vAcc+r}, v{SA+4*j+r}")
        flush()

    a.label("M_GDONE")
    vm.clear(); lg.clear()
    st(4)
    BF = RING
    ACC2 = RING + 36
    vRd = 76
    vJ, vQ = vT0, vT1
    vW2S, vW2T = vSh, vSeq
    a(f"v_mov_b32 v{vW2S}, v{vS2}")
    a(f"v_and_b32 v{vJ}, 15, v{vLane}")
    a(f"v_lshrrev_b32 v{vQ}, 4, v{vLane}")
    a(f"s_lshl_b32 s4, s{sW}, 7")
    a(f"v_lshlrev_b32 v{vOff}, 3, v{vQ}")
    a(f"v_add_u32 v{vOff}, s4, v{vOff}")
    for mt in range(4):
        a(f"ds_read_b64 {vr(BF+2*mt,2)}, v{vOff} offset:{B1+32*mt}")
    a(f"s_lshl_b32 s4, s{sW}, 6")
    a(f"v_lshlrev_b32 v{vOff}, 4, v{vQ}")
    a(f"v_add_u32 v{vOff}, s4, v{vOff}")
    a(f"ds_read_b128 {vr(BF+8,4)}, v{vOff} offset:{B2}")
    a(f"v_xor_b32 v{vC16}, v{vQ}, v{vJ}")
    for k in range(4):
        a(f"v_xor_b32 v{vRd+k}, {4*k}, v{vC16}")
        a(f"v_lshlrev_b32 v{vRd+k}, 4, v{vRd+k}")
        a(f"v_lshl_or_b32 v{vRd+k}, v{vJ}, 9, v{vRd+k}")
    a(f"v_lshlrev_b32 v{vW2T}, 4, v{vLane}")
    a(f"v_add_u32 v{vW2T}, s{sWB}, v{vW2T}")
    a("s_waitcnt lgkmcnt(0)")
    def A1(mt, nt): return ACC1 + 4 * (mt * 3 + nt)
    def A2(t, nt): return ACC2 + 4 * (t * 3 + nt)
    for mt in range(4):
        for r in range(4):
            src = BF + 2 * mt + r // 2
            for nt in range(3):
                if r % 2 == 0:
                    a(f"v_lshlrev_b32 v{A1(mt,nt)+r}, 16, v{src}")
                else:
                    a(f"v_and_b32 v{A1(mt,nt)+r}, 0xffff0000, v{src}")
    for t in range(2):
        for r in range(4):
            src = BF + 8 + (4 * t + r) // 2
            for nt in range(3):
                if r % 2 == 0:
                    a(f"v_lshlrev_b32 v{A2(t,nt)+r}, 16, v{src}")
                else:
                    a(f"v_and_b32 v{A2(t,nt)+r}, 0xffff0000, v{src}")
    a("s_barrier")
    st(5)

    def rd1(ks):
        for nt in range(3):
            a(f"ds_read_b128 {vr(BF+12*(ks%3)+4*nt,4)}, v{vRd+ks%4} offset:{HH + (ks//4)*256 + nt*8192}")
            lg.issue(f"b1_{ks}")
    def tr2(k):
        wait(vtag=f"w2_{k}")
        for t in range(2):
            for hf in range(2):
                a(f"ds_read_b64_tr_b16 {vr(W+8*k+4*t+2*hf,2)}, v{vW2T} offset:{(k%6)*2048 + hf*1024 + 8*t}")
                lg.issue(f"t2_{k}")
    tr_at = {0: [0, 1], 1: [2, 3], 2: [4, 5], 5: [6, 7], 6: [8, 9], 7: [10, 11]}
    dma_at = {1: [6, 7], 2: [8, 9], 3: [10, 11], 6: [12, 13], 7: [14, 15]}
    rd1(0)
    rd1(1)
    for ks in range(8):
        if ks + 2 < 8:
            rd1(ks + 2)
        wait(ltag=f"b1_{ks}")
        for mt in range(4):
            for nt in range(3):
                a(f"v_mfma_f32_16x16x32_bf16 {vr(A1(mt,nt),4)}, {vr(W+16*ks+4*mt,4)}, {vr(BF+12*(ks%3)+4*nt,4)}, {vr(A1(mt,nt),4)}")
        for k in dma_at.get(ks, []):
            if opt.get('nodma2'): continue
            wait(ltag=f"t2_{k-6}")
            dma_w2(k, vW2S)
        for k in tr_at.get(ks, []):
            if opt.get('notr2'): continue
            tr2(k)
    st(10)
    a(f"s_lshl_b32 s4, s{sW}, 3")
    a(f"v_or_b32 v{vOff}, s4, v{vQ}")
    a(f"v_xor_b32 v{vOff}, v{vOff}, v{vJ}")
    a(f"v_xor_b32 v{vFl}, 4, v{vOff}")
    a(f"v_lshlrev_b32 v{vOff}, 4, v{vOff}")
    a(f"v_lshl_or_b32 v{vOff}, v{vJ}, 10, v{vOff}")
    a(f"v_lshlrev_b32 v{vFl}, 4, v{vFl}")
    a(f"v_lshl_or_b32 v{vFl}, v{vJ}, 10, v{vFl}")
    for k in range(4):
        a(f"v_lshl_add_u32 v{vRd+k}, v{vJ}, 9, v{vRd+k}")
    a("s_mov_b32 s4, 0x00ff00ff")
    a("s_mov_b32 s5, 0x00ff00ff")
    for nt in range(3):
        for aa in range(2):
            d = BF + 4 * ((nt * 2 + aa) % 6)
            for hf in range(2):
                m = 2 * aa + hf
                a(f"v_cvt_pk_bf16_f32 v{d+2*hf}, v{A1(m,nt)}, v{A1(m,nt)+1}")
                a(f"v_cvt_pk_bf16_f32 v{d+2*hf+1}, v{A1(m,nt)+2}, v{A1(m,nt)+3}")
            for x in range(4):
                a(f"v_pk_max_i16 v{d+x}, v{d+x}, 0")
            if nt == 2:
                a("s_mov_b64 exec, s[4:5]")
            a(f"ds_write_b128 v{vOff if aa == 0 else vFl}, {vr(d,4)} offset:{ACT + nt*16384}")
            if nt == 2:
                a("s_mov_b64 exec, -1")
    a("s_waitcnt lgkmcnt(0)")
    lg.clear()
    a("s_barrier")
    st(6)
    def rd2(ks):
        for nt in range(3):
            a(f"ds_read_b128 {vr(BF+12*(ks%3)+4*nt,4)}, v{vRd+ks%4} offset:{ACT + (ks//4)*256 + nt*16384}")
            lg.issue(f"b2_{ks}")
    tr2_at = {2: [12], 3: [13], 4: [14], 5: [15]}
    rd2(0)
    rd2(1)
    for ks in range(16):
        if ks + 2 < 16:
            rd2(ks + 2)
        wait(ltag=f"b2_{ks}")
        wait(ltag=f"t2_{ks}")
        for t in range(2):
            for nt in range(3):
                a(f"v_mfma_f32_16x16x32_bf16 {vr(A2(t,nt),4)}, {vr(W+8*ks+4*t,4)}, {vr(BF+12*(ks%3)+4*nt,4)}, {vr(A2(t,nt),4)}")
        for k in tr2_at.get(ks, []):
            tr2(k)
    a("s_lshl_b32 s6, s3, 9")
    a(f"s_lshl_b32 s7, s{sW}, 6")
    a("s_add_u32 s6, s6, s7")
    a(f"v_lshlrev_b32 v{vOff}, 9, v{vJ}")
    a(f"v_lshl_add_u32 v{vOff}, v{vQ}, 4, v{vOff}")
    a(f"v_add_u32 v{vOff}, s6, v{vOff}")
    a("s_nop 4")
    for nt in range(3):
        d = BF + 4 * nt
        for t in range(2):
            a(f"v_cvt_pk_bf16_f32 v{d+2*t}, v{A2(t,nt)}, v{A2(t,nt)+1}")
            a(f"v_cvt_pk_bf16_f32 v{d+2*t+1}, v{A2(t,nt)+2}, v{A2(t,nt)+3}")
        if nt == 2:
            a("s_mov_b64 exec, s[4:5]")
        a(f"buffer_store_dwordx4 {vr(d,4)}, v{vOff}, {sr(sOUT,4)}, 0 offen")
        if nt < 2:
            a(f"v_add_u32 v{vOff}, 8192, v{vOff}")
    if opt.get('stamp'):
        a("s_mov_b64 exec, -1")
        a("s_waitcnt vmcnt(0)")
        st(7)
    a.label("M_END")
    a("s_endpgm")
    return LDS_TOTAL


HEADER = open('gather_scatter__isomorphism_gin_2__graph.s.ref').read().split('; Override launch')[0]

def kd(name, vgpr, sgpr):
    acc = (vgpr + 3) // 4 * 4
    return f""".p2align 6
.amdhsa_kernel {name}
  .amdhsa_next_free_vgpr {vgpr}
  .amdhsa_next_free_sgpr {sgpr}
  .amdhsa_accum_offset {acc}
  .amdhsa_group_segment_fixed_size 0
  .amdhsa_kernarg_size 88
  .amdhsa_user_sgpr_count 2
  .amdhsa_user_sgpr_kernarg_segment_ptr 1
  .amdhsa_system_sgpr_workgroup_id_x 1
.end_amdhsa_kernel
"""

def build(opt):
    name = "gather_scatter__isomorphism_gin_2__graph_kernel"
    b = Asm()
    lds = gen_main(b, opt, name)
    a = Asm()
    a.raw(HEADER.rstrip())
    a.raw(f"; @launch grid=({NB},1,1) block=(512,1,1) lds={lds}")
    a.raw('.amdgcn_target "amdgcn-amd-amdhsa--gfx950"')
    a.raw(".text")
    a.l += b.l
    a.raw('.section .rodata,"a"')
    a.raw(kd(name, 256, 102))
    return a.text()

if __name__ == "__main__":
    out = sys.argv[1]
    opt = {}
    for kv in sys.argv[2:]:
        k, v = kv.split("=")
        opt[k] = int(v)
    open(out, "w").write(build(opt))
```

```python
import sys
from gen2 import Asm, Ctr, vr, sr, srd, kd, HEADER

N = 10000
E = 160000
BN = 48
NBLK = 209
NPROD = 32
NHELP = 15
C0 = NPROD + NHELP
CH = E // NPROD
CELLS_BYTES = NBLK * 16384
STAMP_OFF = 0x400000
MAGIC = 0xA5B
MHI = MAGIC << 20
EMPTY = MHI | (63 << 14)
MARK = MHI | (62 << 14)
NPW = 6


def gen_main(a, opt, name):
    D = opt.get('depth', 8)
    NH = opt.get('nh', 8)
    NP = opt.get('np', 4)
    assert 64 % D == 0 and D <= 8
    HH = 0
    ACT = 24576
    WST = 73728
    LIST = 65536
    CNT = LIST + 6144
    FLAG = CNT + 56 * 4
    SENT = FLAG + 4
    BIAS = 155648
    LDS_TOTAL = BIAS + 3072
    IMG = 0
    PCNT = 57344
    NONCE = PCNT + 2048
    vLane, vC16, vSh, vSeq, vT0, vT1, vOff, vFl = 1, 2, 3, 4, 5, 6, 7, 8
    vAcc = 10
    RING = 16
    vA1, vAS = 48, 52
    vS2 = 56
    vT16 = 57
    vLB = 58
    W2R = 64
    W = 128
    vS1 = 16
    vTR = 20
    vTR2 = 28
    vBI = 32
    sX, sWS, sOUT, sSRC, sDST, sB1, sB2, sW1, sW2, sDBG = 8, 12, 16, 20, 24, 28, 32, 64, 68, 72
    sW = 36
    sWB, sA, sB = 37, 38, 39
    sO = 40
    sDl = 84
    sLB = 46
    sRot = 47
    sWL = 48
    sPC, sPI, sT, sXor, sNode, sId = 50, 51, 52, 53, 54, 55
    sMask = 56
    sTmp = 58
    sM = 76
    sST = 92

    vm = Ctr(63)
    lg = Ctr(15)

    def st(idx):
        if opt.get('stamp'):
            a(f"s_memrealtime s[96:97]")
            a("s_waitcnt lgkmcnt(0)")
            lg.clear()
            a("v_mov_b32 v14, s96")
            a("v_mov_b32 v15, s97")
            a("s_mov_b64 s[98:99], exec")
            a("s_mov_b64 exec, 1")
            a(f"buffer_store_dwordx2 v[14:15], v9, {sr(sST,4)}, 0 offen offset:{idx*8}")
            vm.issue('st')
            a("s_mov_b64 exec, s[98:99]")

    def wait(vtag=None, ltag=None):
        p = []
        if vtag is not None:
            n = vm.need(vtag)
            if n is not None:
                p.append(f"vmcnt({n})")
        if ltag is not None:
            n = lg.need(ltag)
            if n is not None:
                p.append(f"lgkmcnt({n})")
        if p:
            a("s_waitcnt " + " ".join(p))

    def stamp_setup():
        if opt.get('stamp'):
            srd(a, sST, 100, 0x1000000)
            a("s_lshl_b32 s96, s2, 4")
            a(f"s_add_u32 s96, s96, s{sW}")
            a("s_lshl_b32 s96, s96, 7")
            a(f"s_add_u32 s96, s96, {STAMP_OFF}")
            a("v_mov_b32 v9, s96")

    a.raw(f".globl {name}")
    a.raw(".p2align 8")
    a.raw(f".type {name},@function")
    a.label(name)
    a("s_cmp_ge_u32 s2, 256")
    a("s_cbranch_scc1 M_END")
    a("s_load_dwordx16 s[76:91], s[0:1], 0")
    a("s_load_dwordx4 s[4:7], s[0:1], 64")
    a("s_load_dwordx2 s[100:101], s[0:1], 80")
    a(f"v_and_b32 v{vLane}, 63, v0")
    a(f"v_lshrrev_b32 v{vT0}, 6, v0")
    a(f"v_lshlrev_b32 v{vT16}, 4, v0")
    a(f"v_readfirstlane_b32 s{sW}, v{vT0}")
    a(f"s_cmp_lt_u32 s2, {C0}")
    a("s_cbranch_scc1 AUX")

    a(f"s_sub_u32 s3, s2, {C0}")
    a(f"s_lshl_b32 s{sLB}, s3, 14")
    a(f"s_mul_i32 s3, s3, {BN}")
    a(f"s_lshr_b32 s{sRot}, s2, 3")
    a(f"s_and_b32 s{sRot}, s{sRot}, 7")
    a(f"v_bfe_u32 v{vT0}, v{vLane}, 1, 2")
    a(f"v_bfe_u32 v{vT1}, v{vLane}, 4, 1")
    a(f"v_sub_u32 v{vT0}, v{vT0}, v{vT1}")
    a(f"v_lshrrev_b32 v{vT1}, 3, v{vLane}")
    a(f"v_lshlrev_b32 v{vT1}, 10, v{vT1}")
    a(f"v_and_b32 v{vOff}, 1, v{vLane}")
    a(f"v_lshl_or_b32 v{vT1}, v{vOff}, 4, v{vT1}")
    a(f"s_lshl_b32 s{sA}, s{sW}, 7")
    a(f"v_or_b32 v{vT1}, s{sA}, v{vT1}")
    a(f"v_and_b32 v{vOff}, 3, v{vT0}")
    a(f"v_lshl_or_b32 v{vS1}, v{vOff}, 5, v{vT1}")
    a(f"v_xor_b32 v{vS1+1}, 64, v{vS1}")
    a(f"s_mul_i32 s{sWB}, s{sW}, 10240")
    a(f"s_add_u32 s{sWB}, s{sWB}, {WST}")
    a(f"s_lshl_b32 s{sWL}, s{sW}, 13")
    a(f"s_lshl_b32 s{sB}, s{sRot}, 15")
    a("s_waitcnt lgkmcnt(0)")
    srd(a, sW1, 84, 256 * 1024)

    def slot_base(sl):
        return (sWB if sl < 2 else sWL), (sl % 2) * 4096

    def dma_unit(u):
        sb, off = slot_base(u % 4)
        if u < 8:
            for i in range(4):
                a(f"s_add_u32 m0, s{sb}, {off + i * 1024}")
                a(f"s_xor_b32 s{sA}, s{sB}, {(u * 32 + i * 8) * 1024}")
                a(f"buffer_load_dwordx4 v{vS1 + i % 2}, {sr(sW1,4)}, s{sA} offen lds")
                vm.issue(f"u{u}")
        else:
            k0 = 5 + 2 * (u - 8)
            for i in range(4):
                a(f"s_add_u32 m0, s{sb}, {off + i * 1024}")
                a(f"s_mov_b32 s{sA}, {(k0 * 32 + i * 16) * 512}")
                a(f"buffer_load_dwordx4 v{vS2}, {sr(sW2,4)}, s{sA} offen lds")
                vm.issue(f"u{u}")

    NINF = opt.get('ninf', 3)
    stamp_setup()
    st(0)
    dma_unit(0)
    srd(a, sB1, 86, 1024)
    srd(a, sB2, 90, 512)
    srd(a, sW2, 88, 256 * 1024)
    srd(a, sX, 76, N * 512)
    srd(a, sDBG, 6, 256)
    srd(a, sWS, 100, CELLS_BYTES)
    srd(a, sOUT, 4, N * 512)
    srd(a, sDST, 80, E * 4)
    srd(a, sSRC, 78, E * 4)
    a("s_load_dword s49, s[82:83], 0")
    a(f"v_lshlrev_b32 v{vC16}, 4, v{vLane}")
    a(f"s_cmp_eq_u32 s{sW}, 2")
    a("s_cbranch_scc0 C_SL2")
    a(f"buffer_load_dwordx4 {vr(vBI,4)}, v{vC16}, {sr(sB1,4)}, 0 offen")
    a.label("C_SL2")
    a(f"s_cmp_eq_u32 s{sW}, 3")
    a("s_cbranch_scc0 C_SL3")
    a(f"buffer_load_dwordx4 {vr(vBI,4)}, v{vC16}, {sr(sB2,4)}, 0 offen")
    a.label("C_SL3")
    for u in range(1, NINF):
        dma_unit(u)
    a(f"v_lshrrev_b32 v{vT0}, 2, v{vLane}")
    a(f"v_lshlrev_b32 v{vT0}, 9, v{vT0}")
    a(f"v_and_b32 v{vT1}, 3, v{vLane}")
    a(f"v_lshl_or_b32 v{vT0}, v{vT1}, 4, v{vT0}")
    a(f"s_lshl_b32 s{sA}, s{sW}, 6")
    a(f"v_or_b32 v{vS2}, s{sA}, v{vT0}")
    a(f"v_mov_b32 v{vLB}, {LIST}")
    a(f"v_lshrrev_b32 v{vT0}, 3, v0")
    a(f"v_add_u32 v{vT0}, s3, v{vT0}")
    a(f"v_or_b32 v{vT0}, 0xffff0000, v{vT0}")
    a(f"v_and_b32 v{vT1}, 7, v0")
    a(f"v_cmp_eq_u32 vcc, 0, v{vT1}")
    a("v_mov_b32 v37, -1")
    a("v_mov_b32 v38, -1")
    a("v_mov_b32 v39, -1")
    a(f"v_cndmask_b32 v36, v37, v{vT0}, vcc")
    a(f"v_add_u32 v{vOff}, v{vLB}, v{vT16}")
    a(f"v_cmp_gt_u32 vcc, 384, v0")
    a("s_and_saveexec_b64 s[4:5], vcc")
    a(f"ds_write_b128 v{vOff}, v[36:39]")
    a("s_mov_b64 exec, s[4:5]")
    a(f"v_lshl_add_u32 v{vT0}, v0, 2, v{vLB}")
    a(f"v_mov_b32 v{vT1}, 1")
    a("v_cmp_eq_u32 vcc, 56, v0")
    a("s_nop 1")
    a(f"v_cndmask_b32 v{vT1}, v{vT1}, 0, vcc")
    a("v_cmp_eq_u32 vcc, 57, v0")
    a("s_nop 1")
    a(f"v_cndmask_b32 v{vT1}, v{vT1}, v37, vcc")
    a(f"v_cmp_gt_u32 vcc, 58, v0")
    a("s_and_saveexec_b64 s[4:5], vcc")
    a(f"ds_write_b32 v{vT0}, v{vT1} offset:{CNT-LIST}")
    a("s_mov_b64 exec, s[4:5]")
    a(f"v_lshrrev_b32 v{vT0}, 4, v{vLane}")
    a(f"v_lshlrev_b32 v{vT0}, 10, v{vT0}")
    a(f"v_bfe_u32 v{vT1}, v{vLane}, 2, 2")
    a(f"v_lshl_or_b32 v{vT0}, v{vT1}, 7, v{vT0}")
    a(f"v_and_b32 v{vT1}, 3, v{vLane}")
    a(f"v_lshl_or_b32 v{vT0}, v{vT1}, 3, v{vT0}")
    a(f"v_bfe_u32 v{vT1}, v{vLane}, 3, 2")
    for mt in range(4):
        a(f"v_add_u32 v{vOff}, {mt}, v{vT1}")
        a(f"v_and_b32 v{vOff}, 3, v{vOff}")
        a(f"v_lshl_add_u32 v{vOff}, v{vOff}, 5, v{vT0}")
        a(f"v_add_u32 v{vTR+mt}, s{sWB}, v{vOff}")
        a(f"v_add_u32 v{vTR+4+mt}, s{sWL}, v{vOff}")
    a(f"v_add_u32 v{vTR2}, s{sWB}, v{vC16}")
    a(f"v_add_u32 v{vTR2+1}, s{sWL}, v{vC16}")
    a(f"v_lshrrev_b32 v{vT0}, 4, v{vLane}")
    a(f"v_lshrrev_b32 v{vT1}, 3, v{vLane}")
    a(f"v_xor_b32 v{vT0}, v{vT0}, v{vT1}")
    a(f"v_and_b32 v{vT0}, 1, v{vT0}")
    a(f"v_bfe_u32 v{vT1}, v{vLane}, 1, 2")
    a(f"v_lshl_or_b32 v{vT0}, v{vT0}, 2, v{vT1}")
    a(f"v_and_b32 v{vT1}, 1, v{vLane}")
    a(f"v_lshlrev_b32 v{vT1}, 4, v{vT1}")
    a("s_waitcnt lgkmcnt(0)")
    a("s_lshl_b32 s49, s49, 16")
    a("v_mov_b32 v40, s49")
    a("v_add_f32 v40, 1.0, v40")
    a("v_cvt_pk_bf16_f32 v40, v40, v40")
    a("v_and_b32 v40, 0xffff, v40")
    a("v_mov_b32 v41, 0x3f80")
    a(f"v_cmp_gt_u32 vcc, 32, v{vLane}")
    a("s_nop 1")
    a("v_cndmask_b32 v40, v41, v40, vcc")
    a(f"v_lshlrev_b32 v40, v{vT1}, v40")
    a(f"v_lshlrev_b32 v41, v{vT1}, v41")
    for p in range(4):
        a(f"v_cmp_eq_u32 vcc, {p}, v{vT0}")
        a("s_nop 1")
        a(f"v_cndmask_b32 v{vA1+p}, 0, v41, vcc")
        a(f"v_cndmask_b32 v{vAS+p}, 0, v40, vcc")
    a(f"v_lshrrev_b32 v{vSh}, 5, v{vLane}")
    a(f"v_lshlrev_b32 v{vSh}, 4, v{vSh}")
    a(f"v_and_b32 v{vT0}, 15, v{vLane}")
    a(f"v_lshlrev_b32 v{vFl}, 4, v{vT0}")
    a(f"v_lshl_or_b32 v{vFl}, v{vSh}, 4, v{vFl}")
    a(f"v_bfe_u32 v{vT0}, v{vLane}, 4, 1")
    a(f"v_lshl_or_b32 v{vFl}, v{vT0}, 3, v{vFl}")
    a("s_barrier")

    def unit_step(u):
        sl = u % 4
        hi = 0 if sl < 2 else 1
        off = (sl % 2) * 4096
        wait(vtag=f"u{u}")
        if u < 8:
            for mt in range(4):
                for hf in range(2):
                    a(f"ds_read_b64_tr_b16 {vr(W+16*u+4*mt+2*hf,2)}, v{vTR+4*hi+mt} offset:{off + hf*512}")
                    lg.issue(f"t{u}")
        else:
            for kk in range(2):
                for t in range(2):
                    for hf in range(2):
                        a(f"ds_read_b64_tr_b16 {vr(W2R+16*(u-8)+8*kk+4*t+2*hf,2)}, v{vTR2+hi} offset:{off + kk*2048 + hf*1024 + 8*t}")
                        lg.issue(f"t{u}")
        nx = u + NINF
        if nx < 12:
            if nx - 4 >= 0:
                wait(ltag=f"t{nx-4}")
            dma_unit(nx)
        if u == 1:
            a(f"s_sub_u32 s{sA}, s{sW}, 2")
            a(f"s_cmp_lt_u32 s{sA}, 2")
            a("s_cbranch_scc0 C_NB")
            for x in range(4):
                a(f"v_lshlrev_b32 v{36+2*x}, 16, v{vBI+x}")
                a(f"v_and_b32 v{37+2*x}, 0xffff0000, v{vBI+x}")
            a(f"s_lshl_b32 s{sA}, s{sA}, 11")
            a(f"s_add_u32 s{sA}, s{sA}, {BIAS}")
            a(f"v_lshl_add_u32 v{vOff}, v{vLane}, 5, s{sA}")
            a(f"s_cmp_eq_u32 s{sW}, 3")
            a("s_cbranch_scc0 C_NB2")
            a("s_mov_b64 exec, 0xffffffff")
            a.label("C_NB2")
            a(f"ds_write_b128 v{vOff}, v[36:39]")
            a(f"ds_write_b128 v{vOff}, v[40:43] offset:16")
            a("s_mov_b64 exec, -1")
            a("s_waitcnt lgkmcnt(0)")
            a.label("C_NB")

    for u in range(12):
        unit_step(u)
    st(1)
    a(f"v_and_b32 v{vC16}, 31, v{vLane}")
    a(f"v_lshlrev_b32 v{vC16}, 4, v{vC16}")
    a("v_lshrrev_b32 v32, 4, v0")
    a("v_lshlrev_b32 v32, 2, v32")
    a(f"s_add_u32 s{sB}, s{sLB}, 8192")
    a(f"s_mov_b32 s{sPC}, 0")
    a(f"s_mov_b32 s{sId}, {MHI}")
    a(f"s_mov_b32 s{sT}, {EMPTY}")
    a.label("POLL")
    a(f"buffer_load_dword v24, v32, {sr(sDBG,4)}, 0 offen sc1")
    a(f"buffer_load_dwordx4 v[16:19], v{vT16}, {sr(sWS,4)}, s{sLB} offen sc1")
    a(f"buffer_load_dwordx4 v[20:23], v{vT16}, {sr(sWS,4)}, s{sB} offen sc1")
    a("s_waitcnt vmcnt(0)")
    vm.clear()
    for h in range(2):
        b = 16 + 4 * h
        a(f"v_xor_b32 v25, s{sId}, v{b}")
        a(f"v_xor_b32 v26, s{sId}, v{b+2}")
        a("v_or_b32 v25, v25, v26")
        a("v_lshrrev_b32 v25, 20, v25")
        a(f"v_xor_b32 v26, v24, v{b+1}")
        a(f"v_xor_b32 v27, v24, v{b+3}")
        a(f"v_or3_b32 v{28+h}, v25, v26, v27")
    a(f"v_cmp_ne_u32 {sr(sM,2)}, 0, v28")
    a("v_cmp_eq_u32 vcc, 0, v24")
    a(f"s_or_b64 {sr(sM,2)}, {sr(sM,2)}, vcc")
    a(f"v_cmp_ne_u32 {sr(sM+2,2)}, 0, v29")
    a(f"v_cmp_ne_u32 vcc, s{sT}, v18")
    a(f"s_and_b32 s4, vcc_lo, 0x80008000")
    a(f"s_and_b32 s5, vcc_hi, 0x80008000")
    a("s_lshr_b32 s4, s4, 15")
    a("s_lshr_b32 s5, s5, 15")
    a("s_mul_i32 s4, s4, 0xffff")
    a("s_mul_i32 s5, s5, 0xffff")
    a(f"s_and_b64 {sr(sM+2,2)}, {sr(sM+2,2)}, s[4:5]")
    a(f"s_or_b64 {sr(sM,2)}, {sr(sM,2)}, {sr(sM+2,2)}")
    a("s_cbranch_scc0 POLL_OK")
    a("s_sleep 4")
    a(f"s_add_u32 s{sPC}, s{sPC}, 1")
    a(f"s_cmp_lt_u32 s{sPC}, {opt.get('spin', 30000)}")
    a("s_cbranch_scc1 POLL")
    a(f"v_mov_b32 v16, {EMPTY}")
    a("v_mov_b32 v18, v16")
    a(f"v_mov_b32 v20, {MARK}")
    a("v_mov_b32 v22, v16")
    a("s_mov_b64 s[4:5], -1")
    a.label("POLL_OK")
    st(2)
    a(f"v_mov_b32 v25, s{sT}")
    a("v_cndmask_b32 v20, v25, v20, s[4:5]")
    a("v_cndmask_b32 v22, v25, v22, s[4:5]")
    a(f"s_mov_b32 s4, {MARK}")
    a("v_mov_b32 v28, 1")
    ent = [16, 18, 20, 22]
    for k in range(4):
        a(f"v_bfe_u32 v{34+k}, v{ent[k]}, 14, 6")
        a(f"v_lshl_add_u32 v{38+k}, v{34+k}, 2, v{vLB}")
    for k in range(4):
        if k == 2:
            a("s_mov_b64 exec, -1")
        a(f"v_cmpx_gt_u32 vcc, s4, v{ent[k]}")
        a(f"ds_add_rtn_u32 v{42+k}, v{38+k}, v28 offset:{CNT-LIST}")
        a(f"s_mov_b64 {sr(sM+2*k,2)}, exec")
    a("s_mov_b64 exec, -1")
    a("v_cmp_eq_u32 vcc, s4, v20")
    a("s_and_saveexec_b64 s[60:61], vcc")
    a(f"ds_write_b32 v{vLB}, v28 offset:{FLAG-LIST}")
    a("s_mov_b64 exec, s[60:61]")
    for k in range(4):
        a(f"v_and_b32 v{ent[k]}, 0x3fff, v{ent[k]}")
        a(f"v_lshl_add_u32 v{34+k}, v{34+k}, 7, v{vLB}")
    a("s_waitcnt lgkmcnt(0)")
    lg.clear()
    for k in range(4):
        a(f"v_min_u32 v{42+k}, 63, v{42+k}")
        a(f"v_lshl_add_u32 v{34+k}, v{42+k}, 1, v{34+k}")
    for k in range(4):
        a(f"s_mov_b64 exec, {sr(sM+2*k,2)}")
        a(f"ds_write_b16 v{34+k}, v{ent[k]}")
    a("s_mov_b64 exec, -1")
    a(f"s_mul_i32 s{sNode}, s{sW}, {NPW}")
    a(f"v_and_b32 v{vT0}, 7, v{vLane}")
    a(f"v_add_u32 v{vT0}, s{sNode}, v{vT0}")
    a(f"v_lshl_add_u32 v{vT0}, v{vT0}, 2, v{vLB}")

    def dma_w2l(k, slot):
        for hf in range(2):
            a(f"s_add_u32 m0, s{sWB}, {slot * 2048 + hf * 1024}")
            a(f"s_mov_b32 s{sA}, {(k * 32 + hf * 16) * 512}")
            a(f"buffer_load_dwordx4 v{vS2}, {sr(sW2,4)}, s{sA} offen lds")
            vm.issue(f"w2_{k}")
    NPRE = opt.get('w2pre', 2)
    a("s_waitcnt lgkmcnt(0)")
    for k in range(NPRE):
        dma_w2l(k, k)
    a("s_barrier")
    a(f"ds_read_b32 v16, v{vT0} offset:{CNT-LIST}")
    a(f"ds_read_b32 v17, v{vLB} offset:{FLAG-LIST}")
    for k in range(NPRE, 5):
        dma_w2l(k, k)
    a("s_waitcnt lgkmcnt(0)")
    sC = [58, 59, 60, 61, 62, 63]
    for j in range(NPW):
        a(f"v_readlane_b32 s{sC[j]}, v16, {j}")
    a(f"v_readfirstlane_b32 s89, v17")
    a("s_nop 3")
    a(f"s_max_u32 s4, s{sC[0]}, s{sC[1]}")
    a(f"s_max_u32 s5, s{sC[2]}, s{sC[3]}")
    a(f"s_max_u32 s6, s{sC[4]}, s{sC[5]}")
    a("s_max_u32 s4, s4, s5")
    a("s_max_u32 s4, s4, s6")
    a(f"s_lshl_b32 s5, s89, 8")
    a("s_max_u32 s4, s4, s5")
    a("s_cmp_gt_u32 s4, 64")
    a("s_cbranch_scc1 M_SLOW")
    for j in range(NPW):
        a(f"s_add_u32 s{sC[j]}, s{sC[j]}, 1")
        a(f"s_lshr_b32 s{sC[j]}, s{sC[j]}, 1")
        if j == 0:
            a(f"s_mov_b32 s{sO}, s{sC[0]}")
        else:
            a(f"s_add_u32 s{sO+j}, s{sO+j-1}, s{sC[j]}")
        if j < NPW - 1:
            a(f"s_lshl_b32 s4, s{sC[j]}, 2")
            a(f"s_sub_u32 s{sDl+j}, 128, s4")
    a(f"s_mov_b32 s{sT}, s{sO+NPW-1}")
    a(f"s_lshl_b32 s{sLB}, s{sNode}, 7")
    a(f"s_add_u32 s{sLB}, s{sLB}, {LIST}")

    def build_seq(sP0):
        a(f"v_add_u32 v{vT0}, {sP0}, v{vLane}")
        a(f"v_lshlrev_b32 v{vT1}, 2, v{vT0}")
        a(f"v_add_u32 v{vT1}, s{sLB}, v{vT1}")
        for b in range(NPW - 1):
            a(f"v_cmpx_le_u32 vcc, s{sO+b}, v{vT0}")
            a(f"v_add_u32 v{vT1}, s{sDl+b}, v{vT1}")
        a(f"v_cmpx_le_u32 vcc, s{sT}, v{vT0}")
        a(f"v_mov_b32 v{vT1}, {SENT}")
        a("s_mov_b64 exec, -1")
        a(f"ds_read_b32 v{vSeq}, v{vT1}")

    def build_mask(sP0):
        a(f"v_add_u32 v{vT0}, {sP0}, v{vLane}")
        a(f"v_add_u32 v{vT0}, 1, v{vT0}")
        a(f"v_cmp_eq_u32 {sr(sMask,2)}, s{sO}, v{vT0}")
        for b in range(1, NPW):
            a(f"v_cmp_eq_u32 vcc, s{sO+b}, v{vT0}")
            a(f"s_or_b64 {sr(sMask,2)}, {sr(sMask,2)}, vcc")

    def set_xor():
        a(f"s_lshl_b32 s{sXor}, s{sNode}, 9")
        a(f"s_and_b32 s4, s{sNode}, 15")
        a("s_lshl_b32 s4, s4, 4")
        a(f"s_or_b32 s{sXor}, s{sXor}, s4")

    build_seq(0)
    build_mask(0)
    set_xor()
    a(f"s_mov_b32 s{sPC}, 0")
    a(f"s_mov_b32 s{sPI}, {D}")
    a("s_waitcnt lgkmcnt(0)")
    st(3)
    for s in range(D):
        a(f"v_readlane_b32 s{sTmp + s % 4}, v{vSeq}, {s}")
        if s >= 2:
            p = s - 2
            a(f"v_bfe_u32 v{vOff}, s{sTmp + p % 4}, v{vSh}, 16")
            a(f"v_lshl_add_u32 v{vOff}, v{vOff}, 9, v{vC16}")
            a(f"buffer_load_dwordx4 {vr(RING+4*p,4)}, v{vOff}, {sr(sX,4)}, 0 offen")
    a("s_nop 1")
    for p in range(D - 2, D):
        a(f"v_bfe_u32 v{vOff}, s{sTmp + p % 4}, v{vSh}, 16")
        a(f"v_lshl_add_u32 v{vOff}, v{vOff}, 9, v{vC16}")
        a(f"buffer_load_dwordx4 {vr(RING+4*p,4)}, v{vOff}, {sr(sX,4)}, 0 offen")
    a(f"s_cmp_lt_u32 s{sPI}, s{sT}")
    a("s_cbranch_scc1 G_F0")
    a("s_waitcnt vmcnt(0)")
    a("s_branch T_F0")

    def flush():
        a("s_nop 3")
        a(f"v_xor_b32 v{vT0}, s{sXor}, v{vFl}")
        a(f"v_cvt_pk_bf16_f32 v14, v{vAcc}, v{vAcc+1}")
        a(f"v_cvt_pk_bf16_f32 v15, v{vAcc+2}, v{vAcc+3}")
        a(f"ds_write_b64 v{vT0}, v[14:15] offset:{HH}")
        a(f"s_add_u32 s{sNode}, s{sNode}, 1")
        set_xor()

    acc = vr(vAcc, 4)
    def mf_norm(s):
        a(f"v_mfma_f32_16x16x32_bf16 {acc}, {vr(vA1,4)}, {vr(RING+4*s,4)}, {acc}")
    def mf_first(s):
        a(f"v_mfma_f32_16x16x32_bf16 {acc}, {vr(vAS,4)}, {vr(RING+4*s,4)}, 0")

    def seg_checks(tag, issue):
        if issue:
            a(f"s_and_b32 s4, s{sPI}, 63")
            a(f"s_cbranch_scc0 {tag}_SEGI")
            a.label(f"{tag}_SEGI_R")
        if not issue:
            a(f"s_cmp_ge_u32 s{sPC}, s{sT}")
            a("s_cbranch_scc1 M_GDONE")
        a(f"s_and_b32 s4, s{sPC}, 63")
        a(f"s_cbranch_scc0 {tag}_SEGC")
        a.label(f"{tag}_SEGC_R")

    for s in range(D):
        n = (s + 1) % D
        a.label(f"G_N{s}")
        if s == 0:
            seg_checks("GN", True)
        a(f"s_waitcnt vmcnt({D-1})")
        a(f"v_readlane_b32 s{sId}, v{vSeq}, s{sPI}")
        mf_norm(s)
        a.label(f"G_C{s}")
        a(f"s_add_u32 s{sPI}, s{sPI}, 1")
        a(f"v_bfe_u32 v{vOff}, s{sId}, v{vSh}, 16")
        a(f"v_lshl_add_u32 v{vOff}, v{vOff}, 9, v{vC16}")
        a(f"buffer_load_dwordx4 {vr(RING+4*s,4)}, v{vOff}, {sr(sX,4)}, 0 offen")
        a(f"s_bitcmp1_b64 {sr(sMask,2)}, s{sPC}")
        a(f"s_cbranch_scc1 G_FL{s}")
        a(f"s_add_u32 s{sPC}, s{sPC}, 1")
        a(f"s_cmp_lt_u32 s{sPI}, s{sT}")
        if n == 0:
            a("s_cbranch_scc1 G_N0")
            a("s_waitcnt vmcnt(0)")
            a("s_branch T_N0")
        else:
            a(f"s_cbranch_scc0 G_X{n}")
    for s in range(D):
        n = (s + 1) % D
        a.label(f"G_FL{s}")
        flush()
        a(f"s_add_u32 s{sPC}, s{sPC}, 1")
        a(f"s_cmp_lt_u32 s{sPI}, s{sT}")
        a(f"s_cbranch_scc1 G_F{n}")
        a("s_waitcnt vmcnt(0)")
        a(f"s_branch T_F{n}")
    for s in range(D):
        a.label(f"G_F{s}")
        if s == 0:
            seg_checks("GF", True)
        a(f"s_waitcnt vmcnt({D-1})")
        a(f"v_readlane_b32 s{sId}, v{vSeq}, s{sPI}")
        mf_first(s)
        a(f"s_branch G_C{s}")
    for s in range(1, D):
        a.label(f"G_X{s}")
        a("s_waitcnt vmcnt(0)")
        a(f"s_branch T_N{s}")
    for tag in ("GN", "GF"):
        a.label(f"{tag}_SEGI")
        build_seq(f"s{sPI}")
        a("s_waitcnt lgkmcnt(0)")
        a(f"s_branch {tag}_SEGI_R")
    for tag in ("GN", "GF", "TN", "TF"):
        a.label(f"{tag}_SEGC")
        build_mask(f"s{sPC}")
        a(f"s_branch {tag}_SEGC_R")
    for s in range(D):
        n = (s + 1) % D
        a.label(f"T_N{s}")
        if s == 0:
            seg_checks("TN", False)
        mf_norm(s)
        a.label(f"T_C{s}")
        a(f"s_bitcmp1_b64 {sr(sMask,2)}, s{sPC}")
        a(f"s_cbranch_scc1 T_FL{s}")
        a(f"s_add_u32 s{sPC}, s{sPC}, 1")
        if n == 0:
            a("s_branch T_N0")
    for s in range(D):
        n = (s + 1) % D
        a.label(f"T_FL{s}")
        a("s_nop 3")
        flush()
        a(f"s_add_u32 s{sPC}, s{sPC}, 1")
        a(f"s_cmp_lt_u32 s{sPC}, s{sT}")
        a(f"s_cbranch_scc0 M_GDONE")
        a.label(f"T_F{n}")
        if n == 0:
            seg_checks("TF", False)
        mf_first(n)
        a(f"s_branch T_C{n}")

    a.label("M_SLOW")
    SA = RING + 8
    a("s_waitcnt vmcnt(0)")
    a(f"v_mov_b32 v{vT0}, 0x7f000000")
    a(f"v_cmp_gt_u32 vcc, 32, v{vLane}")
    a("s_nop 1")
    a(f"v_cndmask_b32 v{vSeq}, v{vT0}, v{vC16}, vcc")
    a(f"s_add_u32 s40, s3, s{sNode}")
    for j in range(NPW):
        a(f"s_add_u32 s4, s40, {j}")
        a("s_lshl_b32 s4, s4, 9")
        a(f"v_add_u32 v{vOff}, s4, v{vSeq}")
        a(f"buffer_load_dwordx4 {vr(RING,4)}, v{vOff}, {sr(sX,4)}, 0 offen")
        a("s_waitcnt vmcnt(0)")
        a(f"v_mfma_f32_16x16x32_bf16 {vr(SA+4*j,4)}, {vr(vAS,4)}, {vr(RING,4)}, 0")
        a("s_nop 7")
    a(f"v_lshlrev_b32 v{vT0}, 2, v{vLane}")
    a("s_mov_b32 s41, 0")
    a.label("S_LOOP")
    a(f"buffer_load_dword v{RING+4}, v{vT0}, {sr(sDST,4)}, s41 offen")
    a(f"buffer_load_dword v{RING+5}, v{vT0}, {sr(sSRC,4)}, s41 offen")
    a("s_waitcnt vmcnt(0)")
    a(f"v_subrev_u32 v{RING+4}, s40, v{RING+4}")
    a(f"v_cmp_gt_u32 vcc, {NPW}, v{RING+4}")
    a("s_nop 3")
    a("s_mov_b64 s[42:43], vcc")
    a.label("S_IN")
    a("s_cmp_eq_u64 s[42:43], 0")
    a("s_cbranch_scc1 S_NEXT")
    a("s_ff1_i32_b64 s44, s[42:43]")
    a("s_bitset0_b64 s[42:43], s44")
    a(f"v_readlane_b32 s45, v{RING+4}, s44")
    a(f"v_readlane_b32 s46, v{RING+5}, s44")
    a("s_nop 3")
    a("s_lshl_b32 s46, s46, 9")
    a(f"v_add_u32 v{vOff}, s46, v{vSeq}")
    a(f"buffer_load_dwordx4 {vr(RING,4)}, v{vOff}, {sr(sX,4)}, 0 offen")
    a("s_waitcnt vmcnt(0)")
    for j in range(NPW):
        if j < NPW - 1:
            a(f"s_cmp_eq_u32 s45, {j}")
            a(f"s_cbranch_scc0 S_J{j+1}")
        a(f"v_mfma_f32_16x16x32_bf16 {vr(SA+4*j,4)}, {vr(vA1,4)}, {vr(RING,4)}, {vr(SA+4*j,4)}")
        a("s_nop 7")
        a("s_branch S_IN")
        if j < NPW - 1:
            a.label(f"S_J{j+1}")
    a.label("S_NEXT")
    a("s_add_u32 s41, s41, 256")
    a(f"s_cmp_lt_u32 s41, {E*4}")
    a("s_cbranch_scc1 S_LOOP")
    set_xor()
    for j in range(NPW):
        for r in range(4):
            a(f"v_mov_b32 v{vAcc+r}, v{SA+4*j+r}")
        flush()

    a.label("M_GDONE")
    vm.clear(); lg.clear()
    st(4)
    AC = [16, 32]
    BF = 48
    BFR = [48, 52, 60, 10]
    vRd = [2, 3, 4, 7, 8, 14, 15, 57]
    if opt.get('stamp'):
        vRd = [2, 3, 4, 7, 8, 58, 59, 57]
    vJ, vQ = vT0, vT1
    vBA = 58 if not opt.get('stamp') else 0
    vWr = 59 if not opt.get('stamp') else 1
    a(f"v_and_b32 v{vJ}, 15, v{vLane}")
    a(f"v_lshrrev_b32 v{vQ}, 4, v{vLane}")
    a(f"s_lshl_b32 s4, s{sW}, 8")
    a(f"s_add_u32 s4, s4, {BIAS}")
    a(f"v_lshl_add_u32 v{vBA}, v{vQ}, 4, s4")
    def bias1(nt):
        for mt in range(4):
            a(f"ds_read_b128 {vr(AC[nt%2]+4*mt,4)}, v{vBA} offset:{64*mt}")
            lg.issue(f"bias{nt}")
    bias1(0)
    a(f"s_lshl_b32 s4, s{sRot}, 2")
    a(f"v_xor_b32 v{BFR[0]}, v{vQ}, v{vJ}")
    a(f"v_xor_b32 v{BFR[0]}, s4, v{BFR[0]}")
    for k in range(8):
        a(f"v_xor_b32 v{vRd[k]}, {4*k}, v{BFR[0]}")
        a(f"v_lshlrev_b32 v{vRd[k]}, 4, v{vRd[k]}")
        a(f"v_lshl_or_b32 v{vRd[k]}, v{vJ}, 9, v{vRd[k]}")
    a(f"s_lshl_b32 s4, s{sW}, 3")
    a(f"v_or_b32 v{vWr}, s4, v{vQ}")
    a(f"v_xor_b32 v{vWr}, v{vWr}, v{vJ}")
    a(f"v_lshlrev_b32 v{vWr}, 4, v{vWr}")
    a(f"v_lshl_or_b32 v{vWr}, v{vJ}, 10, v{vWr}")
    a("s_waitcnt lgkmcnt(0)")
    lg.clear()
    a("s_barrier")
    st(5)

    steps = [(nt, s) for nt in range(3) for s in range(8)]
    def rd1(i):
        nt, s = steps[i]
        a(f"ds_read_b128 {vr(BFR[i%4],4)}, v{vRd[s]} offset:{HH + nt*8192}")
        lg.issue(f"b1_{i}")

    def epi1_ops(nt):
        A = AC[nt % 2]
        ops = []
        for aa in range(2):
            m = A + 8 * aa
            ops.append(f"v_cvt_pk_bf16_f32 v{m}, v{m}, v{m+1}")
            ops.append(f"v_cvt_pk_bf16_f32 v{m+1}, v{m+2}, v{m+3}")
            ops.append(f"v_cvt_pk_bf16_f32 v{m+2}, v{m+4}, v{m+5}")
            ops.append(f"v_cvt_pk_bf16_f32 v{m+3}, v{m+6}, v{m+7}")
            for x in range(4):
                ops.append(f"v_pk_max_i16 v{m+x}, v{m+x}, 0")
            if aa == 1:
                ops.append(f"v_xor_b32 v{m+4}, 64, v{vWr}")
                ops.append(("ds", f"ds_write_b128 v{m+4}, {vr(m,4)} offset:{ACT + nt*16384}", f"aw{nt}"))
            else:
                ops.append(("ds", f"ds_write_b128 v{vWr}, {vr(m,4)} offset:{ACT + nt*16384}", f"aw{nt}"))
        return ops

    def emit(op):
        if isinstance(op, tuple):
            a(op[1]); lg.issue(op[2])
        else:
            a(op)

    def w2reg(k):
        if k < 5:
            return W + 8 * k
        if k < 13:
            return W2R + 8 * (k - 5)
        return W + 8 * (k - 8)
    vW2T = W + 127
    for i in range(3):
        rd1(i)
    pend = []
    for i, (nt, s) in enumerate(steps):
        if i + 3 < len(steps):
            rd1(i + 3)
        if s == 0:
            wait(ltag=f"bias{nt}")
        wait(ltag=f"b1_{i}")
        for mt in range(4):
            A = AC[nt % 2] + 4 * mt
            a(f"v_mfma_f32_16x16x32_bf16 {vr(A,4)}, {vr(W+16*s+4*mt,4)}, {vr(BFR[i%4],4)}, {vr(A,4)}")
            if s >= 2 and pend:
                emit(pend.pop(0))
                if pend:
                    emit(pend.pop(0))
        if s == 0 and nt > 0:
            pend = epi1_ops(nt - 1)
        if s == 5 and nt + 1 < 3:
            assert not pend
            if nt > 0:
                wait(ltag=f"aw{nt-1}")
            bias1(nt + 1)
        if nt == 2:
            if s == 0:
                a(f"v_lshlrev_b32 v{vBA}, 4, v{vJ}")
                a(f"v_lshl_or_b32 v{vBA}, v{vQ}, 8, v{vBA}")
                a(f"v_add_u32 v{vBA}, s{sWB}, v{vBA}")
            trk = {1: [0, 1], 2: [2, 3], 3: [4]}.get(s, [])
            for k in trk:
                for t in range(2):
                    for hf in range(2):
                        a(f"ds_read_b64_tr_b16 {vr(w2reg(k)+4*t+2*hf,2)}, v{vBA} offset:{k*2048 + hf*1024 + 8*t}")
                        lg.issue(f"t2_{k}")
            dk = {4: [13], 5: [14], 6: [15]}.get(s, [])
            for k in dk:
                wait(ltag=f"t2_{k-13}")
                dma_w2l(k, k - 13)
    st(10)
    ACC2 = AC[1]
    A2R = [32, 36, 40, 44, 48, 52]
    B2F = W + 64
    vR2 = [2, 3, 4, 7]
    wait(ltag="aw1")
    a(f"s_lshl_b32 s4, s{sW}, 7")
    a(f"s_add_u32 s4, s4, {BIAS + 2048}")
    a(f"v_lshl_add_u32 v8, v{vQ}, 5, s4")
    for t in range(2):
        for nt in range(3):
            a(f"ds_read_b128 {vr(A2R[t*3+nt],4)}, v8 offset:{16*t}")
            lg.issue("bias2")
    a(f"v_xor_b32 v57, v{vQ}, v{vJ}")
    for k in range(4):
        a(f"v_xor_b32 v{vR2[k]}, {4*k}, v57")
        a(f"v_lshlrev_b32 v{vR2[k]}, 4, v{vR2[k]}")
        a(f"v_lshl_or_b32 v{vR2[k]}, v{vJ}, 10, v{vR2[k]}")
    for op in epi1_ops(2):
        emit(op)
    a("s_waitcnt lgkmcnt(0)")
    lg.clear()
    a("s_barrier")
    st(6)
    def rd2(ks):
        for nt in range(3):
            a(f"ds_read_b128 {vr(B2F+12*(ks%3)+4*nt,4)}, v{vR2[ks%4]} offset:{ACT + (ks//4)*256 + nt*16384}")
            lg.issue(f"b2_{ks}")
    rd2(0)
    rd2(1)
    for ks in range(16):
        if ks + 2 < 16:
            rd2(ks + 2)
        wait(ltag=f"b2_{ks}")
        wait(ltag=f"t2_{ks}")
        for t in range(2):
            for nt in range(3):
                A = A2R[t * 3 + nt]
                a(f"v_mfma_f32_16x16x32_bf16 {vr(A,4)}, {vr(w2reg(ks)+4*t,4)}, {vr(B2F+12*(ks%3)+4*nt,4)}, {vr(A,4)}")
        k = {7: 13, 8: 14, 9: 15}.get(ks)
        if k:
            wait(vtag=f"w2_{k}")
            for t in range(2):
                for hf in range(2):
                    a(f"ds_read_b64_tr_b16 {vr(w2reg(k)+4*t+2*hf,2)}, v{vBA} offset:{(k-13)*2048 + hf*1024 + 8*t}")
                    lg.issue(f"t2_{k}")
    a("s_lshl_b32 s6, s3, 9")
    a(f"s_lshl_b32 s7, s{sW}, 6")
    a("s_add_u32 s6, s6, s7")
    a(f"v_lshlrev_b32 v{vOff}, 9, v{vJ}")
    a(f"v_lshl_add_u32 v{vOff}, v{vQ}, 4, v{vOff}")
    a(f"v_add_u32 v{vOff}, s6, v{vOff}")
    a("s_nop 4")
    for nt in range(3):
        d = 16 + 4 * nt
        for t in range(2):
            A = A2R[t * 3 + nt]
            a(f"v_cvt_pk_bf16_f32 v{d+2*t}, v{A}, v{A+1}")
            a(f"v_cvt_pk_bf16_f32 v{d+2*t+1}, v{A+2}, v{A+3}")
        a(f"buffer_store_dwordx4 {vr(d,4)}, v{vOff}, {sr(sOUT,4)}, 0 offen")
        if nt < 2:
            a(f"v_add_u32 v{vOff}, 8192, v{vOff}")
    if opt.get('stamp'):
        a("s_waitcnt vmcnt(0)")
        st(7)
    a("s_endpgm")

    a.label("AUX")
    vm.clear(); lg.clear()
    a("s_memrealtime s[96:97]")
    a(f"s_and_b32 s{sA}, s2, 7")
    a(f"s_mul_i32 s{sPI}, s{sA}, 5000")
    a(f"s_lshr_b32 s{sB}, s2, 3")
    a("s_waitcnt lgkmcnt(0)")
    srd(a, sDST, 80, E * 4)
    srd(a, sSRC, 78, E * 4)
    srd(a, sX, 76, N * 512)

    def xpf(first, stride, n, vd):
        for r in range(n):
            a(f"v_add_u32 v{vT0}, {first + r*stride}, v{vSeq}")
            a(f"v_subrev_u32 v{vT1}, 40000, v{vT0}")
            a(f"v_min_u32 v{vT0}, v{vT0}, v{vT1}")
            a(f"v_lshlrev_b32 v{vT0}, 7, v{vT0}")
            a(f"buffer_load_dword v{vd+r}, v{vT0}, {sr(sX,4)}, 0 offen")

    a(f"s_cmp_lt_u32 s2, {NPROD}")
    a("s_cbranch_scc1 PROD")
    stamp_setup()
    st(0)
    a(f"s_sub_u32 s{sB}, s{sB}, 4")
    a(f"s_lshl_b32 s{sB}, s{sB}, 9")
    a(f"s_add_u32 s{sPI}, s{sPI}, s{sB}")
    a(f"v_add_u32 v{vSeq}, s{sPI}, v0")
    xpf(0, 1024, NH, 16)
    if opt.get('stamp'):
        a("s_waitcnt vmcnt(0)")
        st(11)
    a("s_endpgm")
    a.label("PROD")
    a(f"s_mul_i32 s{sA}, s2, {CH*4}")
    for r in range(3):
        if r == 2:
            a(f"s_cmp_lt_u32 s{sW}, 4")
            a("s_cbranch_scc0 P_E2")
        a(f"buffer_load_dwordx4 {vr(16+8*r,4)}, v{vT16}, {sr(sDST,4)}, s{sA} offen")
        a(f"buffer_load_dwordx4 {vr(20+8*r,4)}, v{vT16}, {sr(sSRC,4)}, s{sA} offen")
        if r < 2:
            a(f"s_add_u32 s{sA}, s{sA}, 8192")
    a.label("P_E2")
    vm.issue("edges")
    srd(a, sW2, 88, 256 * 1024)
    srd(a, sDBG, 6, 256)
    srd(a, sWS, 100, CELLS_BYTES)
    a(f"s_or_b32 s{sNode}, s96, 1")
    stamp_setup()
    st(0)
    a(f"s_cmp_eq_u32 s{sW}, 0")
    a("s_cbranch_scc0 P_N")
    a(f"v_mov_b32 v{vT0}, s{sNode}")
    a(f"s_lshl_b32 s{sA}, s2, 2")
    a(f"v_mov_b32 v{vT1}, s{sA}")
    a(f"v_mov_b32 v{vOff}, {NONCE}")
    a("s_mov_b64 exec, 1")
    a(f"buffer_store_dword v{vT0}, v{vT1}, {sr(sDBG,4)}, 0 offen sc1")
    a(f"ds_write_b32 v{vOff}, v{vT0}")
    a("s_mov_b64 exec, -1")
    a.label("P_N")
    a(f"s_lshl_b32 s{sA}, s{sB}, 16")
    a(f"v_lshlrev_b32 v{vT0}, 7, v0")
    a(f"buffer_load_dword v60, v{vT0}, {sr(sW2,4)}, s{sA} offen")
    vm.issue("touch")
    a(f"v_mov_b32 v40, {EMPTY}")
    a("v_mov_b32 v41, v40")
    a("v_mov_b32 v42, v40")
    a("v_mov_b32 v43, v40")
    for i in range(7):
        a(f"ds_write_b128 v{vT16}, v[40:43] offset:{IMG + i*8192}")
    a(f"v_lshlrev_b32 v{vT0}, 2, v0")
    a(f"v_mov_b32 v{vT1}, 0")
    a(f"ds_write_b32 v{vT0}, v{vT1} offset:{PCNT}")
    a("v_mov_b32 v44, 1")
    a(f"v_mov_b32 v45, {PCNT + 2040}")
    a(f"s_mov_b32 s{sA}, 43691")
    a(f"s_movk_i32 s{sT}, -48")
    a(f"s_mov_b32 s{sId}, {MHI}")
    a("v_lshrrev_b32 v46, 4, v0")
    a("v_and_b32 v47, 15, v0")
    a("v_lshlrev_b32 v48, 8, v46")
    a("v_lshl_or_b32 v48, v47, 3, v48")
    a("v_lshlrev_b32 v49, 2, v46")
    a("v_lshlrev_b32 v50, 14, v46")
    a("v_lshl_or_b32 v50, v47, 4, v50")
    a(f"s_lshl_b32 s4, s2, 8")
    a(f"v_add_u32 v50, s4, v50")
    a(f"v_mov_b32 v51, {NONCE}")
    a(f"v_mov_b32 v52, {MARK}")
    a(f"s_lshl_b32 s{sB}, s{sB}, 9")
    a(f"s_add_u32 s{sPI}, s{sPI}, s{sB}")
    a(f"v_add_u32 v{vSeq}, s{sPI}, v0")
    a("s_waitcnt lgkmcnt(0)")
    a("s_barrier")
    a("ds_read_b32 v53, v51")
    a("s_waitcnt lgkmcnt(0)")
    Q1, Q2 = 128, 160
    for i in range(7):
        for q in (Q1, Q2):
            a(f"v_mov_b32 v{q+4*i+1}, v53")
            a(f"v_mov_b32 v{q+4*i+3}, v53")
    wait(vtag="edges")
    st(8)
    def bin_a(r):
        vd, vs, vb, va, vrk = 16 + 8 * r, 20 + 8 * r, 64 + 4 * r, 76 + 4 * r, 88 + 4 * r
        for k in range(4):
            a(f"v_mul_u32_u24 v{vb+k}, s{sA}, v{vd+k}")
            a(f"v_lshrrev_b32 v{vb+k}, 21, v{vb+k}")
            a(f"v_lshlrev_b32 v{va+k}, 2, v{vb+k}")
            a(f"ds_add_rtn_u32 v{vrk+k}, v{va+k}, v44 offset:{PCNT}")
        for k in range(4):
            a(f"v_mad_i32_i24 v{vd+k}, v{vb+k}, s{sT}, v{vd+k}")
            a(f"v_lshl_or_b32 v{vs+k}, v{vd+k}, 14, v{vs+k}")
            a(f"v_or_b32 v{vs+k}, s{sId}, v{vs+k}")
            a(f"v_lshlrev_b32 v{vb+k}, 8, v{vb+k}")
    def bin_b(r):
        vd, vs, vb, va, vrk = 16 + 8 * r, 20 + 8 * r, 64 + 4 * r, 76 + 4 * r, 88 + 4 * r
        for k in range(4):
            a(f"v_cmp_gt_u32 vcc, 64, v{vrk+k}")
            a(f"v_lshl_add_u32 v{vb+k}, v{vrk+k}, 2, v{vb+k}")
            a("s_nop 0")
            a(f"v_cndmask_b32 v{vb+k}, v45, v{vb+k}, vcc")
            a(f"ds_write_b32 v{vb+k}, v{vs+k} offset:{IMG}")
    bin_a(0)
    bin_a(1)
    a(f"v_cmp_gt_u32 vcc, {CH//4 - 1024}, v0")
    a("s_and_saveexec_b64 s[4:5], vcc")
    a("s_mov_b64 s[6:7], exec")
    bin_a(2)
    a("s_mov_b64 exec, s[4:5]")
    a("s_waitcnt lgkmcnt(0)")
    bin_b(0)
    bin_b(1)
    a("s_mov_b64 exec, s[6:7]")
    bin_b(2)
    a("s_mov_b64 exec, s[4:5]")
    a("s_waitcnt lgkmcnt(0)")
    a("s_barrier")
    st(12)
    for i in range(7):
        a(f"ds_read_b64 {vr(16+2*i,2)}, v48 offset:{IMG + i*8192}")
        lg.issue(f"c{i}")
    for i in range(7):
        a(f"ds_read_b32 v{64+i}, v49 offset:{PCNT + i*128}")
        lg.issue(f"n{i}")
    for i in range(7):
        d = Q1 + 4 * i
        wait(ltag=f"c{i}")
        a(f"v_mov_b32 v{d}, v{16+2*i}")
        a(f"v_mov_b32 v{d+2}, v{17+2*i}")
        a(f"v_add_u32 v{72+i}, {i*32*16384}, v50")
        a(f"buffer_store_dwordx4 {vr(d,4)}, v{72+i}, {sr(sWS,4)}, 0 offen sc1")
        a(f"ds_read_b64 {vr(96+2*i,2)}, v48 offset:{IMG + i*8192 + 128}")
        lg.issue(f"d{i}")
    a("s_movk_i32 s6, 0x2000")
    for i in range(7):
        d = Q2 + 4 * i
        wait(ltag=f"d{i}")
        a(f"v_cmp_lt_u32 vcc, 64, v{64+i}")
        a(f"v_mov_b32 v{d+2}, v{97+2*i}")
        a("s_nop 0")
        a(f"v_cndmask_b32 v{d}, v{96+2*i}, v52, vcc")
        a(f"v_cmp_le_u32 vcc, 32, v{64+i}")
        a("s_and_b64 exec, exec, vcc")
        a(f"s_cbranch_scc0 P_SK{i}")
        a(f"buffer_store_dwordx4 {vr(d,4)}, v{72+i}, {sr(sWS,4)}, s6 offen sc1")
        a.label(f"P_SK{i}")
        a("s_mov_b64 exec, -1")
    st(9)
    xpf(NH * 1024, 2048, NP, 16)
    if opt.get('stamp'):
        a("s_waitcnt vmcnt(0)")
        st(11)
    a.label("M_END")
    a("s_endpgm")
    return LDS_TOTAL


def build(opt):
    name = "gather_scatter__isomorphism_gin_2__graph_kernel"
    b = Asm()
    lds = gen_main(b, opt, name)
    a = Asm()
    a.raw(HEADER.rstrip())
    a.raw(f"; @launch grid=(256,1,1) block=(512,1,1) lds={lds}")
    a.raw('.amdgcn_target "amdgcn-amd-amdhsa--gfx950"')
    a.raw(".text")
    a.l += b.l
    a.raw('.section .rodata,"a"')
    a.raw(kd(name, 256, 102))
    return a.text()

if __name__ == "__main__":
    out = sys.argv[1]
    opt = {}
    for kv in sys.argv[2:]:
        k, v = kv.split("=")
        opt[k] = int(v)
    open(out, "w").write(build(opt))
```

```python
import sys
from gen2 import Asm, Ctr, vr, sr, srd, kd, HEADER

N = 10000
E = 160000
BN = 48
NBLK = 209
NPROD = 32
NHELP = 15
C0 = NPROD + NHELP
CH = E // NPROD
CELLS_BYTES = NBLK * 16384
STAMP_OFF = 0x400000
MAGIC = 0xA5B
MHI = MAGIC << 20
EMPTY = MHI | (63 << 14)
MARK = MHI | (62 << 14)
NPW = 6


def gen_main(a, opt, name, bars_hint=None):
    D = opt.get('depth', 8)
    NH = opt.get('nh', 8)
    NP = opt.get('np', 4)
    STAMP = opt.get('stamp')
    assert D <= 8
    HH = 0
    ACT = 24576
    WST = 73728
    LIST = 65536
    CNT = LIST + 6144
    FLAG = CNT + 56 * 4
    BIAS = WST + 65536
    LDS_TOTAL = BIAS + 3072
    IMG = 0
    PCNT = 57344
    NONCE = PCNT + 2048
    vLane, vC16, vSh, vSeq, vT0, vT1, vOff, vFl = 1, 2, 3, 4, 5, 6, 7, 8
    vAcc = 10
    RING = 16
    vA1, vAS = 48, 52
    vS2, vT16, vLB, vTB = 56, 57, 58, 63
    W2R = 64
    W = 128
    vS1 = 16
    vTR = 20
    vTR2 = 29
    vBI = 44
    sX, sWS, sOUT, sSRC, sDST, sB1, sB2, sW1, sW2, sDBG = 8, 12, 16, 20, 24, 28, 32, 64, 68, 72
    sW, sWB, sA, sB = 36, 37, 38, 39
    sLB, sRot, sWL, sV = 46, 47, 48, 49
    sPC, sPI, sT, sXor, sNode, sId = 50, 51, 52, 53, 54, 55
    sMask = 56
    sM = 76
    sST = 92

    vm = Ctr(63)
    lg = Ctr(15)

    def st(idx):
        if STAMP:
            a("s_memrealtime s[96:97]" if not opt.get('cyc') else "s_memtime s[96:97]")
            a("s_waitcnt lgkmcnt(0)")
            lg.clear()
            a("v_mov_b32 v14, s96")
            a("v_mov_b32 v15, s97")
            a("s_mov_b64 s[98:99], exec")
            a("s_mov_b64 exec, 1")
            a(f"buffer_store_dwordx2 v[14:15], v9, {sr(sST,4)}, 0 offen offset:{idx*8}")
            vm.issue('st')
            a("s_mov_b64 exec, s[98:99]")

    def wait(vtag=None, ltag=None):
        p = []
        if vtag is not None:
            n = vm.need(vtag)
            if n is not None:
                p.append(f"vmcnt({n})")
        if ltag is not None:
            tags = ltag if isinstance(ltag, (list, tuple)) else [ltag]
            ns = [lg.need(t) for t in tags]
            ns = [n for n in ns if n is not None]
            if ns:
                p.append(f"lgkmcnt({min(ns)})")
        if p:
            a("s_waitcnt " + " ".join(p))
            return True
        return False

    def stamp_setup():
        if STAMP:
            srd(a, sST, 100, 0x1000000)
            a("s_lshl_b32 s96, s2, 4")
            a(f"s_add_u32 s96, s96, s{sW}")
            a("s_lshl_b32 s96, s96, 7")
            a(f"s_add_u32 s96, s96, {STAMP_OFF}")
            a("v_mov_b32 v9, s96")

    a.raw(f".globl {name}")
    a.raw(".p2align 8")
    a.raw(f".type {name},@function")
    a.label(name)
    a("s_cmp_ge_u32 s2, 256")
    a("s_cbranch_scc1 M_END")
    a("s_load_dwordx16 s[76:91], s[0:1], 0")
    a("s_load_dwordx4 s[4:7], s[0:1], 64")
    a("s_load_dwordx2 s[100:101], s[0:1], 80")
    a(f"v_and_b32 v{vLane}, 63, v0")
    a(f"v_lshrrev_b32 v{vT0}, 6, v0")
    a(f"v_lshlrev_b32 v{vT16}, 4, v0")
    a(f"v_readfirstlane_b32 s{sW}, v{vT0}")
    a(f"s_cmp_lt_u32 s2, {C0}")
    a("s_cbranch_scc1 AUX")

    a(f"s_sub_u32 s3, s2, {C0}")
    a(f"s_lshl_b32 s{sLB}, s3, 14")
    a(f"s_mul_i32 s3, s3, {BN}")
    a(f"v_mov_b32 v{vLB}, {LIST}")
    a(f"v_lshrrev_b32 v{vT0}, 3, v0")
    a(f"v_add_u32 v{vT0}, s3, v{vT0}")
    a(f"v_or_b32 v{vT0}, 0xffff0000, v{vT0}")
    a(f"v_and_b32 v{vT1}, 7, v0")
    a(f"v_cmp_eq_u32 vcc, 0, v{vT1}")
    a("v_mov_b32 v37, -1")
    a(f"v_add_u32 v{vOff}, v{vLB}, v{vT16}")
    a(f"v_cndmask_b32 v36, v37, v{vT0}, vcc")
    a("v_cmp_le_u32 vcc, 384, v0")
    a("v_mov_b32 v40, 1")
    a("s_nop 0")
    a("v_cndmask_b32 v36, v36, v40, vcc")
    a("v_cndmask_b32 v37, v37, v40, vcc")
    a("v_cmp_eq_u32 vcc, 398, v0")
    a("v_mov_b32 v38, v37")
    a("v_mov_b32 v39, v37")
    a("v_cndmask_b32 v36, v36, 0, vcc")
    a(f"ds_write_b128 v{vOff}, v[36:39]")
    a(f"s_lshr_b32 s{sRot}, s2, 3")
    a(f"s_and_b32 s{sRot}, s{sRot}, 7")
    a(f"s_lshr_b32 s{sV}, s2, 4")
    a(f"s_and_b32 s{sV}, s{sV}, 4")
    a(f"s_and_b32 s{sA}, s{sRot}, 3")
    a(f"s_or_b32 s{sV}, s{sV}, s{sA}")
    a(f"s_xor_b32 s{sV}, s{sW}, s{sV}")
    a(f"v_bfe_u32 v{vT0}, v{vLane}, 1, 2")
    a(f"v_bfe_u32 v{vT1}, v{vLane}, 4, 1")
    a(f"v_xor_b32 v{vT0}, v{vT0}, v{vT1}")
    a(f"v_lshrrev_b32 v{vT1}, 3, v{vLane}")
    a(f"v_lshlrev_b32 v{vT1}, 10, v{vT1}")
    a(f"v_and_b32 v{vOff}, 1, v{vLane}")
    a(f"v_lshl_or_b32 v{vT1}, v{vOff}, 4, v{vT1}")
    a(f"s_lshl_b32 s{sA}, s{sV}, 7")
    a(f"v_or_b32 v{vT1}, s{sA}, v{vT1}")
    a(f"v_lshl_or_b32 v{vS1}, v{vT0}, 5, v{vT1}")
    a(f"v_xor_b32 v{vS1+1}, 64, v{vS1}")
    a(f"s_lshl_b32 s{sWL}, s{sW}, 13")
    a(f"s_add_u32 s{sWB}, s{sWL}, {WST}")
    a(f"s_lshl_b32 s{sB}, s{sRot}, 15")
    a("s_waitcnt lgkmcnt(0)")
    srd(a, sW1, 84, 256 * 1024)
    a("s_barrier")

    def slot_base(sl):
        return (sWB if sl < 2 else sWL), (sl % 2) * 4096

    def dma_unit(u):
        sb, off = slot_base(u % 4)
        for i in range(4):
            a(f"s_add_u32 m0, s{sb}, {off + i * 1024}")
            if u < 8:
                a(f"s_xor_b32 s{sA}, s{sB}, {(u * 32 + i * 8) * 1024}")
                a(f"buffer_load_dwordx4 v{vS1 + i % 2}, {sr(sW1,4)}, s{sA} offen lds")
            else:
                a(f"s_mov_b32 s{sA}, {((u - 8) * 32 + i * 8) * 512}")
                a(f"buffer_load_dwordx4 v{vS2}, {sr(sW2,4)}, s{sA} offen lds")
            vm.issue(f"u{u}")

    NINF = opt.get('ninf', 3)
    PPRIO = opt.get('pprio', 1)
    stamp_setup()
    st(0)
    if PPRIO:
        a("s_setprio 3")
    dma_unit(0)
    if PPRIO:
        a("s_setprio 2")
    a("s_load_dword s45, s[82:83], 0")
    for u in range(1, NINF):
        dma_unit(u)
    srd(a, sB1, 86, 1024)
    srd(a, sB2, 90, 512)
    a(f"v_lshlrev_b32 v{vC16}, 4, v{vLane}")
    a(f"s_cmp_eq_u32 s{sW}, 2")
    a("s_cbranch_scc0 C_SL2")
    a(f"buffer_load_dwordx4 {vr(vBI,4)}, v{vC16}, {sr(sB1,4)}, 0 offen")
    a.label("C_SL2")
    a(f"s_cmp_eq_u32 s{sW}, 3")
    a("s_cbranch_scc0 C_SL3")
    a(f"buffer_load_dwordx4 {vr(vBI,4)}, v{vC16}, {sr(sB2,4)}, 0 offen")
    a.label("C_SL3")
    a(f"v_lshrrev_b32 v{vT0}, 4, v{vLane}")
    a(f"v_lshlrev_b32 v{vT0}, 10, v{vT0}")
    a(f"v_bfe_u32 v{vT1}, v{vLane}, 2, 2")
    a(f"v_lshl_or_b32 v{vT0}, v{vT1}, 7, v{vT0}")
    a(f"v_and_b32 v{vT1}, 3, v{vLane}")
    a(f"v_lshl_or_b32 v{vT0}, v{vT1}, 3, v{vT0}")
    a(f"v_bfe_u32 v{vT1}, v{vLane}, 3, 2")
    for mt in range(4):
        a(f"v_xor_b32 v{vOff}, {mt}, v{vT1}")
        a(f"v_lshl_add_u32 v{vOff}, v{vOff}, 5, v{vT0}")
        a(f"v_add_u32 v{vTR+mt}, s{sWB}, v{vOff}")
        a(f"v_add_u32 v{vTR+4+mt}, s{sWL}, v{vOff}")

    def setup_a():
        a(f"v_bfe_u32 v{vT1}, v{vLane}, 3, 2")
        a(f"s_and_b32 s{sA}, s{sV}, 1")
        a(f"s_lshl_b32 s{sA}, s{sA}, 1")
        a(f"v_xor_b32 v{vT1}, s{sA}, v{vT1}")
        a(f"v_lshrrev_b32 v{vT0}, 2, v{vLane}")
        a(f"v_lshlrev_b32 v{vT0}, 7, v{vT0}")
        a(f"v_lshl_or_b32 v{vT0}, v{vT1}, 5, v{vT0}")
        a(f"v_and_b32 v{vT1}, 3, v{vLane}")
        a(f"v_lshl_or_b32 v{vT0}, v{vT1}, 3, v{vT0}")
        a(f"v_add_u32 v{vTB}, s{sWB}, v{vT0}")
        a(f"v_add_u32 v{vTR2}, s{sWL}, v{vT0}")
        srd(a, sW2, 88, 256 * 1024)
        a(f"v_bfe_u32 v{vT0}, v{vLane}, 1, 2")
        a(f"v_lshrrev_b32 v{vT1}, 4, v{vLane}")
        a(f"v_xor_b32 v{vT0}, v{vT0}, v{vT1}")
        a(f"v_lshrrev_b32 v{vT1}, 3, v{vLane}")
        a(f"v_lshlrev_b32 v{vT1}, 9, v{vT1}")
        a(f"v_lshl_or_b32 v{vT0}, v{vT0}, 5, v{vT1}")
        a(f"v_and_b32 v{vT1}, 1, v{vLane}")
        a(f"v_lshl_or_b32 v{vT0}, v{vT1}, 4, v{vT0}")
        a(f"s_lshr_b32 s{sA}, s{sV}, 1")
        a(f"s_lshl_b32 s{sA}, s{sA}, 7")
        a(f"s_and_b32 s44, s{sV}, 1")
        a(f"s_lshl_b32 s44, s44, 17")
        a(f"s_or_b32 s{sA}, s{sA}, s44")
        a(f"v_or_b32 v{vS2}, s{sA}, v{vT0}")

    def setup_b():
        srd(a, sX, 76, N * 512)
        srd(a, sDBG, 6, 256)
        srd(a, sWS, 100, CELLS_BYTES)
        srd(a, sOUT, 4, N * 512)
        srd(a, sDST, 80, E * 4)
        srd(a, sSRC, 78, E * 4)

    def setup_c():
        a(f"v_lshrrev_b32 v{vT0}, 4, v{vLane}")
        a(f"v_lshrrev_b32 v{vT1}, 3, v{vLane}")
        a(f"v_xor_b32 v{vT0}, v{vT0}, v{vT1}")
        a(f"v_and_b32 v{vT0}, 1, v{vT0}")
        a(f"v_bfe_u32 v{vT1}, v{vLane}, 1, 2")
        a(f"v_lshl_or_b32 v{vT0}, v{vT0}, 2, v{vT1}")
        a(f"v_and_b32 v{vT1}, 1, v{vLane}")
        a(f"v_lshlrev_b32 v{vT1}, 4, v{vT1}")
        a("s_lshl_b32 s45, s45, 16")
        a("v_mov_b32 v40, s45")
        a("v_add_f32 v40, 1.0, v40")
        a("v_cvt_pk_bf16_f32 v40, v40, v40")
        a("v_and_b32 v40, 0xffff, v40")
        a("v_mov_b32 v41, 0x3f80")
        a(f"v_cmp_gt_u32 vcc, 32, v{vLane}")
        a("s_nop 1")
        a("v_cndmask_b32 v40, v41, v40, vcc")
        a(f"v_lshlrev_b32 v40, v{vT1}, v40")
        a(f"v_lshlrev_b32 v41, v{vT1}, v41")
        for p in range(4):
            a(f"v_cmp_eq_u32 vcc, {p}, v{vT0}")
            a("s_nop 1")
            a(f"v_cndmask_b32 v{vA1+p}, 0, v41, vcc")
            a(f"v_cndmask_b32 v{vAS+p}, 0, v40, vcc")

    def setup_d():
        a(f"v_lshrrev_b32 v{vSh}, 5, v{vLane}")
        a(f"v_lshlrev_b32 v{vSh}, 4, v{vSh}")
        a(f"v_and_b32 v{vT0}, 15, v{vLane}")
        a(f"v_lshlrev_b32 v{vFl}, 4, v{vT0}")
        a(f"v_lshl_or_b32 v{vFl}, v{vSh}, 4, v{vFl}")
        a(f"v_bfe_u32 v{vT0}, v{vLane}, 4, 1")
        a(f"v_lshl_or_b32 v{vFl}, v{vT0}, 3, v{vFl}")
        a(f"v_and_b32 v{vC16}, 31, v{vLane}")
        a(f"v_lshlrev_b32 v{vC16}, 4, v{vC16}")
        a("v_lshrrev_b32 v42, 4, v0")
        a("v_lshlrev_b32 v42, 2, v42")
        a(f"s_add_u32 s{sPI}, s{sLB}, 8192")
        a(f"s_mov_b32 s{sPC}, 0")
        a(f"s_mov_b32 s{sId}, {MHI}")
        a(f"s_mov_b32 s{sT}, {EMPTY}")
        a(f"v_lshrrev_b32 v{vT0}, 1, v{vLane}")
        a(f"v_lshlrev_b32 v{vT0}, 4, v{vT0}")
        a(f"v_and_b32 v{vT1}, 1, v{vLane}")
        a(f"v_or_b32 v{vT0}, v{vT0}, v{vT1}")
        a(f"s_lshl_b32 s{sNode}, s{sW}, 1")
        a(f"v_add_u32 v{vT0}, s{sNode}, v{vT0}")
        a(f"v_cmp_gt_u32 vcc, 6, v{vLane}")
        a(f"v_mov_b32 v{vT1}, 56")
        a("v_mov_b32 v62, 64")
        a(f"v_cndmask_b32 v{vT0}, v{vT1}, v{vT0}, vcc")
        a(f"v_lshl_add_u32 v61, v{vT0}, 2, v{vLB}")
        a(f"s_lshl_b32 s{sA}, s{sW}, 8")
        a(f"v_lshl_add_u32 v{vT1}, v{vLane}, 2, v{vLB}")
        a(f"v_add_u32 v60, s{sA}, v{vT1}")
        a("v_cndmask_b32 v62, 0, v62, vcc")
        set_xor()

    def set_xor():
        a(f"s_lshl_b32 s{sXor}, s{sNode}, 9")
        a(f"s_and_b32 s44, s{sNode}, 15")
        a("s_lshl_b32 s44, s44, 4")
        a(f"s_or_b32 s{sXor}, s{sXor}, s44")

    def bias_to_lds():
        a(f"s_sub_u32 s{sA}, s{sW}, 2")
        a(f"s_cmp_lt_u32 s{sA}, 2")
        a("s_cbranch_scc0 C_NB")
        for x in range(4):
            a(f"v_lshlrev_b32 v{32+2*x}, 16, v{vBI+x}")
            a(f"v_and_b32 v{33+2*x}, 0xffff0000, v{vBI+x}")
        a(f"s_lshl_b32 s{sA}, s{sA}, 11")
        a(f"s_add_u32 s{sA}, s{sA}, {BIAS}")
        a(f"v_lshl_add_u32 v{vOff}, v{vLane}, 5, s{sA}")
        a(f"s_cmp_eq_u32 s{sW}, 3")
        a("s_cbranch_scc0 C_NB2")
        a("s_mov_b64 exec, 0xffffffff")
        a.label("C_NB2")
        a(f"ds_write_b128 v{vOff}, v[32:35]")
        a(f"ds_write_b128 v{vOff}, v[36:39] offset:16")
        a("s_mov_b64 exec, -1")
        a("s_waitcnt lgkmcnt(0)")
        a.label("C_NB")

    def tr_w2_ops(dst, vbase, off, tag, scr):
        ops = []
        for mt in range(4):
            if mt == 0:
                ad = vbase
            else:
                ad = scr[mt % len(scr)]
                ops.append(f"v_xor_b32 v{ad}, {32*mt}, v{vbase}")
            for hf in range(2):
                ops.append(("ds", f"ds_read_b64_tr_b16 {vr(dst+4*mt+2*hf,2)}, v{ad} offset:{off + hf*2048}", tag))
        return ops

    def dma_w2l_ops(k, slot):
        ops = []
        for i in range(4):
            ops.append(("dma", [f"s_add_u32 m0, s{sWB}, {slot * 4096 + i * 1024}",
                                f"s_mov_b32 s{sA}, {(k * 32 + i * 8) * 512}",
                                f"buffer_load_dwordx4 v{vS2}, {sr(sW2,4)}, s{sA} offen lds"], f"w2_{k}"))
        return ops

    bars = []
    cur_q = [0]
    def emit(op):
        if isinstance(op, tuple):
            k = op[0]
            if k == "ds":
                a(op[1]); lg.issue(op[2]); return 1
            if k == "vm":
                a(op[1]); vm.issue(op[2]); return 1
            if k == "dma":
                for l in op[1]:
                    a(l)
                vm.issue(op[2]); return 2
            if k == "skip":
                return 2
            if k == "wl":
                return 1 if wait(ltag=op[1]) else 0
            if k == "wv":
                return 1 if wait(vtag=op[1]) else 0
            if k == "bar":
                wait(ltag=op[1])
                a("s_barrier")
                bars.append(cur_q[0])
                return 2
            raise ValueError(op)
        a(op)
        return 1

    def poll_issue():
        a(f"buffer_load_dword v40, v42, {sr(sDBG,4)}, 0 offen sc1")
        a(f"buffer_load_dwordx4 v[32:35], v{vT16}, {sr(sWS,4)}, s{sLB} offen sc1")
        a(f"buffer_load_dwordx4 v[36:39], v{vT16}, {sr(sWS,4)}, s{sPI} offen sc1")

    def unit_step(u):
        sl = u % 4
        hi = 0 if sl < 2 else 1
        off = (sl % 2) * 4096
        if not opt.get('nowait'):
            wait(vtag=f"u{u}")
        if opt.get('notr'):
            pass
        elif u < 8:
            for mt in range(4):
                for hf in range(2):
                    a(f"ds_read_b64_tr_b16 {vr(W+16*u+4*mt+2*hf,2)}, v{vTR+4*hi+mt} offset:{off + hf*512}")
                    lg.issue(f"t{u}")
        else:
            for op in tr_w2_ops(W2R + 16 * (u - 8), vTB if hi == 0 else vTR2, off, f"t{u}", [30, 31]):
                emit(op)
        nx = u + NINF
        if nx < 12:
            if nx - 4 >= 0:
                wait(ltag=f"t{nx-4}")
            dma_unit(nx)

    DEFER = opt.get('defer', 1)
    a("s_waitcnt lgkmcnt(0)")
    if not DEFER:
        setup_a()
        setup_b()
        setup_c()
        setup_d()
    if opt.get('sync0'):
        a("s_waitcnt vmcnt(0)")
        a("s_barrier")
    PU = opt.get('pu', 9)
    for u in range(12):
        if opt.get('pst') and u in (0, 1, 4, 8):
            st({0: 8, 1: 9, 4: 11, 8: 12}[u])
        if PPRIO and u in (3, 7):
            a(f"s_setprio {1 if u == 3 else 0}")
        unit_step(u)
        if DEFER:
            {0: setup_a, 1: setup_b, 2: setup_c, 5: setup_d}.get(u, lambda: None)()
        if u == NINF:
            bias_to_lds()
        if u == PU:
            poll_issue()
            vm.issue("poll"); vm.issue("poll"); vm.issue("poll")
        if opt.get('latel', 1):
            continue
        if u == 9:
            wait(ltag="t8")
            for op in dma_w2l_ops(4, 0):
                emit(op)
        if u == 10:
            wait(ltag="t9")
            for op in dma_w2l_ops(5, 1):
                emit(op)
    st(1)
    wait(vtag="poll")
    a.label("POLL_CHK")
    for h in range(2):
        b = 32 + 4 * h
        a(f"v_xor_b32 v16, s{sId}, v{b}")
        a(f"v_xor_b32 v17, s{sId}, v{b+2}")
        a("v_or_b32 v16, v16, v17")
        a("v_lshrrev_b32 v16, 20, v16")
        a(f"v_xor_b32 v17, v40, v{b+1}")
        a(f"v_xor_b32 v18, v40, v{b+3}")
        a(f"v_or3_b32 v{20+h}, v16, v17, v18")
    a(f"v_cmp_ne_u32 {sr(sM,2)}, 0, v20")
    a("v_cmp_eq_u32 vcc, 0, v40")
    a(f"s_or_b64 {sr(sM,2)}, {sr(sM,2)}, vcc")
    a(f"v_cmp_ne_u32 {sr(sM+2,2)}, 0, v21")
    a(f"v_cmp_ne_u32 vcc, s{sT}, v34")
    a(f"s_and_b32 s4, vcc_lo, 0x80008000")
    a(f"s_and_b32 s5, vcc_hi, 0x80008000")
    a("s_lshr_b32 s4, s4, 15")
    a("s_lshr_b32 s5, s5, 15")
    a("s_mul_i32 s4, s4, 0xffff")
    a("s_mul_i32 s5, s5, 0xffff")
    a(f"s_and_b64 {sr(sM+2,2)}, {sr(sM+2,2)}, s[4:5]")
    a(f"s_or_b64 {sr(sM,2)}, {sr(sM,2)}, {sr(sM+2,2)}")
    a("s_cbranch_scc1 POLL_RETRY")
    a.label("POLL_OK")
    vm.clear()
    st(2)
    a(f"v_mov_b32 v16, s{sT}")
    a("v_cndmask_b32 v36, v16, v36, s[4:5]")
    a("v_cndmask_b32 v38, v16, v38, s[4:5]")
    a(f"s_mov_b32 s4, {MARK}")
    a("v_mov_b32 v41, 1")
    ent = [32, 34, 36, 38]
    for k in range(4):
        a(f"v_bfe_u32 v{ent[k]+1}, v{ent[k]}, 14, 6")
        a(f"v_lshl_add_u32 v{16+k}, v{ent[k]+1}, 2, v{vLB}")
    for k in range(4):
        if k == 2:
            a("s_mov_b64 exec, -1")
        a(f"v_cmpx_gt_u32 vcc, s4, v{ent[k]}")
        a(f"ds_add_rtn_u32 v{16+k}, v{16+k}, v41 offset:{CNT-LIST}")
        a(f"s_mov_b64 {sr(sM+2*k,2)}, exec")
    a("s_mov_b64 exec, -1")
    a("v_cmp_eq_u32 vcc, s4, v36")
    a("s_and_saveexec_b64 s[6:7], vcc")
    a(f"ds_write_b32 v{vLB}, v41 offset:{FLAG-LIST}")
    a("s_mov_b64 exec, -1")
    for k in range(4):
        a(f"v_and_b32 v{ent[k]}, 0x3fff, v{ent[k]}")
        a(f"v_lshl_add_u32 v{ent[k]+1}, v{ent[k]+1}, 7, v{vLB}")
    a("s_waitcnt lgkmcnt(0)")
    for k in range(4):
        a(f"v_min_u32 v{16+k}, 63, v{16+k}")
        a(f"v_lshl_add_u32 v{ent[k]+1}, v{16+k}, 1, v{ent[k]+1}")
    for k in range(4):
        a(f"s_mov_b64 exec, {sr(sM+2*k,2)}")
        a(f"ds_write_b16 v{ent[k]+1}, v{ent[k]}")
    a("s_mov_b64 exec, -1")
    lg.clear()
    vL = [vSeq, 59, 60]
    vCnt = 61
    sFlush, sJ, sEnd, sLeft = sMask, sMask + 1, sT, sPC
    a(f"s_mov_b32 s{sFlush}, 0")
    a(f"s_mov_b32 s{sJ}, 0")
    a(f"s_mov_b32 s{sPI}, 0")
    a(f"s_mov_b32 s{sLeft}, {NPW}")
    a("s_waitcnt lgkmcnt(0)")
    a("s_barrier")
    a(f"ds_read_b32 v{vCnt}, v61 offset:{CNT-LIST}")
    for i in range(3):
        a(f"ds_read_b32 v{vL[i]}, v60 offset:{2048*i}")
    GPRIO = opt.get('gprio', 1)
    if GPRIO:
        a("s_setprio 3")
    a("s_waitcnt lgkmcnt(2)")
    a(f"v_cmp_gt_u32 vcc, v{vCnt}, v62")
    a(f"v_add_u32 v{vCnt}, 1, v{vCnt}")
    a(f"v_lshrrev_b32 v{vCnt}, 1, v{vCnt}")
    a("s_cmp_lg_u64 vcc, 0")
    a("s_cbranch_scc1 M_SLOW")
    a(f"v_readlane_b32 s{sEnd}, v{vCnt}, 0")
    a("s_waitcnt lgkmcnt(0)")
    st(3)

    def flush():
        a(f"v_xor_b32 v{vT0}, s{sXor}, v{vFl}")
        a(f"v_cvt_pk_bf16_f32 v14, v{vAcc}, v{vAcc+1}")
        a(f"v_cvt_pk_bf16_f32 v15, v{vAcc+2}, v{vAcc+3}")
        a(f"ds_write_b64 v{vT0}, v[14:15] offset:{HH}")
        a(f"s_and_b32 s4, s{sNode}, 1")
        a("s_mul_i32 s4, s4, 14")
        a(f"s_add_u32 s{sNode}, s{sNode}, s4")
        a(f"s_add_u32 s{sNode}, s{sNode}, 1")
        set_xor()

    acc = vr(vAcc, 4)
    def mf_norm(s):
        a(f"v_mfma_f32_16x16x32_bf16 {acc}, {vr(vA1,4)}, {vr(RING+4*s,4)}, {acc}")
    def mf_first(s):
        a(f"v_mfma_f32_16x16x32_bf16 {acc}, {vr(vAS,4)}, {vr(RING+4*s,4)}, 0")
    def issue(s):
        a(f"v_bfe_u32 v{vOff}, s{sId}, v{vSh}, 16")
        a(f"v_lshl_add_u32 v{vOff}, v{vOff}, 9, v{vC16}")
        a(f"buffer_load_dwordx4 {vr(RING+4*s,4)}, v{vOff}, {sr(sX,4)}, 0 offen")
    swn = [0]
    def switch(s, lab_exit):
        a(f"s_bitset1_b32 s{sFlush}, {s}")
        a(f"s_add_u32 s{sJ}, s{sJ}, 1")
        a(f"s_cmp_eq_u32 s{sJ}, {NPW}")
        a(f"s_cbranch_scc1 {lab_exit}")
        a(f"v_readlane_b32 s{sEnd}, v{vCnt}, s{sJ}")
        a(f"s_and_b32 s{sPI}, s{sJ}, 1")
        a(f"s_cselect_b32 s4, 0, -1")
        a(f"s_mov_b32 s5, s4")
        a(f"s_lshl_b32 s{sPI}, s{sPI}, 5")
        a(f"v_cndmask_b32 v{vL[0]}, v{vL[0]}, v{vL[1]}, s[4:5]")
        a(f"v_cndmask_b32 v{vL[1]}, v{vL[1]}, v{vL[2]}, s[4:5]")
        a(f"s_add_u32 s{sEnd}, s{sEnd}, s{sPI}")
        if GPRIO:
            k = swn[0]; swn[0] += 1
            a(f"s_cmp_lt_u32 s{sJ}, 3")
            a(f"s_cbranch_scc1 SWP{k}")
            a("s_setprio 2")
            a(f"s_cmp_lt_u32 s{sJ}, 4")
            a(f"s_cbranch_scc1 SWP{k}")
            a("s_setprio 1")
            a(f"s_cmp_lt_u32 s{sJ}, 5")
            a(f"s_cbranch_scc1 SWP{k}")
            a("s_setprio 0")
            a.label(f"SWP{k}")

    for s in range(D):
        a.label(f"F_{s}")
        a(f"v_readlane_b32 s{sId}, v{vL[0]}, s{sPI}")
        a(f"s_add_u32 s{sPI}, s{sPI}, 1")
        a(f"s_cmp_eq_u32 s{sPI}, s{sEnd}")
        issue(s)
        a(f"s_cbranch_scc1 F_SW{s}")
    a("s_branch G_F0")
    for s in range(D):
        a.label(f"F_SW{s}")
        switch(s, "X_F0")
        a(f"s_branch {'F_%d' % (s+1) if s + 1 < D else 'G_F0'}")
    for s in range(D):
        n = (s + 1) % D
        a.label(f"G_N{s}")
        a(f"s_waitcnt vmcnt({D-1})")
        a(f"v_readlane_b32 s{sId}, v{vL[0]}, s{sPI}")
        mf_norm(s)
        a.label(f"G_C{s}")
        a(f"s_add_u32 s{sPI}, s{sPI}, 1")
        a(f"s_bitcmp1_b32 s{sFlush}, {s}")
        issue(s)
        a(f"s_cbranch_scc1 G_FL{s}")
        a(f"s_cmp_eq_u32 s{sPI}, s{sEnd}")
        a(f"s_cbranch_scc1 G_SN{s}")
        if n == 0:
            a("s_branch G_N0")
    for s in range(D):
        n = (s + 1) % D
        a.label(f"G_SN{s}")
        switch(s, f"X_N{n}")
        a(f"s_branch G_N{n}")
    for s in range(D):
        n = (s + 1) % D
        a.label(f"G_FL{s}")
        a(f"s_bitset0_b32 s{sFlush}, {s}")
        a(f"s_sub_u32 s{sLeft}, s{sLeft}, 1")
        a("s_nop 0")
        flush()
        a(f"s_cmp_eq_u32 s{sPI}, s{sEnd}")
        a(f"s_cbranch_scc0 G_F{n}")
        switch(s, f"X_F{n}")
        a.label(f"G_F{n}")
        a(f"s_waitcnt vmcnt({D-1})")
        a(f"v_readlane_b32 s{sId}, v{vL[0]}, s{sPI}")
        mf_first(n)
        a(f"s_branch G_C{n}")
    for s in range(D):
        a.label(f"X_N{s}")
        a("s_waitcnt vmcnt(0)")
        a(f"s_branch T_N{s}")
        a.label(f"X_F{s}")
        a("s_waitcnt vmcnt(0)")
        a(f"s_branch T_F{s}")
    for s in range(D):
        n = (s + 1) % D
        a.label(f"T_N{s}")
        mf_norm(s)
        a.label(f"T_C{s}")
        a(f"s_bitcmp1_b32 s{sFlush}, {s}")
        a(f"s_cbranch_scc1 T_FL{s}")
        if n == 0:
            a(f"s_cmp_eq_u32 s{sFlush}, 0")
            a("s_cbranch_scc1 M_GDONE")
            a("s_branch T_N0")
    for s in range(D):
        n = (s + 1) % D
        a.label(f"T_FL{s}")
        a(f"s_bitset0_b32 s{sFlush}, {s}")
        a(f"s_sub_u32 s{sLeft}, s{sLeft}, 1")
        a("s_nop 4")
        flush()
        a(f"s_cmp_eq_u32 s{sLeft}, 0")
        a(f"s_cbranch_scc1 M_GDONE")
        a.label(f"T_F{n}")
        mf_first(n)
        a(f"s_branch T_C{n}")

    a.label("POLL_RETRY")
    a(f"s_add_u32 s{sPC}, s{sPC}, 1")
    a(f"s_cmp_lt_u32 s{sPC}, {opt.get('spin', 30000)}")
    a("s_cbranch_scc0 POLL_GIVEUP")
    a(f"s_cmp_eq_u32 s{sPC}, 1")
    a("s_cbranch_scc1 POLL_NOSLEEP")
    a(f"s_sleep {opt.get('psleep', 4)}")
    a.label("POLL_NOSLEEP")
    poll_issue()
    a("s_waitcnt vmcnt(0)")
    a("s_branch POLL_CHK")
    a.label("POLL_GIVEUP")
    a(f"v_mov_b32 v32, {EMPTY}")
    a("v_mov_b32 v34, v32")
    a(f"v_mov_b32 v36, {MARK}")
    a("v_mov_b32 v38, v32")
    a("s_mov_b64 s[4:5], -1")
    a("s_branch POLL_OK")

    a.label("M_SLOW")
    SA = RING + 8
    a("s_waitcnt vmcnt(0) lgkmcnt(0)")
    a(f"v_mov_b32 v{vT0}, 0x7f000000")
    a(f"v_cmp_gt_u32 vcc, 32, v{vLane}")
    a("s_nop 1")
    a(f"v_cndmask_b32 v{vSeq}, v{vT0}, v{vC16}, vcc")
    a(f"s_add_u32 s40, s3, s{sNode}")
    for j in range(NPW):
        a(f"s_add_u32 s4, s40, {16*(j//2) + j%2}")
        a("s_lshl_b32 s4, s4, 9")
        a(f"v_add_u32 v{vOff}, s4, v{vSeq}")
        a(f"buffer_load_dwordx4 {vr(RING,4)}, v{vOff}, {sr(sX,4)}, 0 offen")
        a("s_waitcnt vmcnt(0)")
        a(f"v_mfma_f32_16x16x32_bf16 {vr(SA+4*j,4)}, {vr(vAS,4)}, {vr(RING,4)}, 0")
        a("s_nop 7")
    a(f"v_lshlrev_b32 v{vT0}, 2, v{vLane}")
    a("s_mov_b32 s41, 0")
    a.label("S_LOOP")
    a(f"buffer_load_dword v{RING+4}, v{vT0}, {sr(sDST,4)}, s41 offen")
    a(f"buffer_load_dword v{RING+5}, v{vT0}, {sr(sSRC,4)}, s41 offen")
    a("s_waitcnt vmcnt(0)")
    a(f"v_subrev_u32 v{RING+4}, s40, v{RING+4}")
    a(f"v_and_b32 v{RING+6}, 0xffffffce, v{RING+4}")
    a(f"v_cmp_eq_u32 vcc, 0, v{RING+6}")
    a(f"v_cmp_gt_u32 s[42:43], 48, v{RING+4}")
    a("s_nop 3")
    a("s_and_b64 s[42:43], s[42:43], vcc")
    a.label("S_IN")
    a("s_cmp_eq_u64 s[42:43], 0")
    a("s_cbranch_scc1 S_NEXT")
    a("s_ff1_i32_b64 s44, s[42:43]")
    a("s_bitset0_b64 s[42:43], s44")
    a(f"v_readlane_b32 s45, v{RING+4}, s44")
    a(f"v_readlane_b32 s46, v{RING+5}, s44")
    a("s_nop 3")
    a("s_lshl_b32 s46, s46, 9")
    a(f"v_add_u32 v{vOff}, s46, v{vSeq}")
    a(f"buffer_load_dwordx4 {vr(RING,4)}, v{vOff}, {sr(sX,4)}, 0 offen")
    a("s_waitcnt vmcnt(0)")
    for j in range(NPW):
        if j < NPW - 1:
            a(f"s_cmp_eq_u32 s45, {16*(j//2) + j%2}")
            a(f"s_cbranch_scc0 S_J{j+1}")
        a(f"v_mfma_f32_16x16x32_bf16 {vr(SA+4*j,4)}, {vr(vA1,4)}, {vr(RING,4)}, {vr(SA+4*j,4)}")
        a("s_nop 7")
        a("s_branch S_IN")
        if j < NPW - 1:
            a.label(f"S_J{j+1}")
    a.label("S_NEXT")
    a("s_add_u32 s41, s41, 256")
    a(f"s_cmp_lt_u32 s41, {E*4}")
    a("s_cbranch_scc1 S_LOOP")
    for j in range(NPW):
        for r in range(4):
            a(f"v_mov_b32 v{vAcc+r}, v{SA+4*j+r}")
        flush()

    a.label("M_GDONE")
    vm.clear(); lg.clear()
    st(4)
    ACP = [16, 32, 16, W + 64, W + 80, W + 96]
    if STAMP:
        BFR = [48, 52, 58]
        vRd = [2, 3, 4, 7, 8, 10, 11, 12]
        vBA, vWr, vRB2, vXW, vOut, vBA2 = 13, 57, 62, 0, 5, 6
        tJ, tQ = 48, 49
    else:
        BFR = [48, 52, 58, 10]
        vRd = [2, 3, 4, 7, 8, 9, 14, 15]
        vBA, vWr, vRB2, vXW, vOut, vBA2 = 1, 57, 62, 0, 5, 6
        tJ, tQ = 48, 49
    NBF = len(BFR)
    PRE = NBF - 1
    XB = [0, ACT]
    a(f"v_and_b32 v{tJ}, 15, v{vLane}")
    a(f"v_lshrrev_b32 v{tQ}, 4, v{vLane}")
    a(f"s_lshl_b32 s4, s{sV}, 11")
    a(f"v_lshl_add_u32 v{vXW}, v{vLane}, 4, s4")
    a(f"s_lshl_b32 s4, s{sV}, 8")
    a(f"s_add_u32 s4, s4, {BIAS}")
    a(f"v_lshl_add_u32 v{vBA}, v{tQ}, 4, s4")
    def bias_ops(p):
        A = ACP[p]
        if p < 3:
            return [("ds", f"ds_read_b128 {vr(A+4*mt,4)}, v{vBA} offset:{64*mt}", f"bias{p}") for mt in range(4)]
        return [("ds", f"ds_read_b128 {vr(A+4*mt,4)}, v{vBA2} offset:{64*mt}", f"bias{p}") for mt in range(2)]
    for op in bias_ops(0) + bias_ops(1):
        emit(op)
    a(f"s_lshl_b32 s4, s{sRot}, 2")
    a(f"v_xor_b32 v{vRB2}, v{tQ}, v{tJ}")
    a(f"v_xor_b32 v{vRd[0]}, s4, v{vRB2}")
    a(f"v_lshlrev_b32 v{vRd[0]}, 4, v{vRd[0]}")
    a(f"v_lshl_or_b32 v{vRd[0]}, v{tJ}, 9, v{vRd[0]}")
    for k in range(1, 8):
        a(f"v_xor_b32 v{vRd[k]}, {64*k}, v{vRd[0]}")
    a(f"v_lshlrev_b32 v{vRB2}, 4, v{vRB2}")
    a(f"v_lshl_or_b32 v{vRB2}, v{tJ}, 10, v{vRB2}")
    a(f"s_and_b32 s4, s{sV}, 1")
    a("s_lshl_b32 s4, s4, 9")
    a(f"v_or_b32 v{vRB2}, s4, v{vRB2}")
    a(f"s_lshl_b32 s4, s{sV}, 3")
    a(f"v_or_b32 v{vWr}, s4, v{tQ}")
    a(f"v_xor_b32 v{vWr}, v{vWr}, v{tJ}")
    a(f"v_lshlrev_b32 v{vWr}, 4, v{vWr}")
    a(f"v_lshl_or_b32 v{vWr}, v{tJ}, 10, v{vWr}")
    a(f"s_lshl_b32 s4, s{sV}, 7")
    a(f"s_add_u32 s4, s4, {BIAS + 2048}")
    a(f"v_lshl_add_u32 v{vBA2}, v{tQ}, 4, s4")
    a("s_lshl_b32 s6, s3, 9")
    a(f"s_lshl_b32 s7, s{sV}, 6")
    a("s_add_u32 s6, s6, s7")
    a(f"v_and_b32 v{vOut}, 1, v{tQ}")
    a(f"v_lshlrev_b32 v{vOut}, 5, v{vOut}")
    a(f"v_lshl_or_b32 v{vOut}, v{tJ}, 9, v{vOut}")
    a(f"v_lshrrev_b32 v{tQ}, 1, v{tQ}")
    a(f"v_lshl_or_b32 v{vOut}, v{tQ}, 4, v{vOut}")
    a(f"v_add_u32 v{vOut}, s6, v{vOut}")
    a("s_movk_i32 s6, 0x2000")
    a("s_movk_i32 s7, 0x4000")
    a("s_waitcnt lgkmcnt(0)")
    lg.clear()
    a("s_barrier")
    st(5)

    steps = [(p, s) for p in range(6) for s in range(8)]
    vR2 = [vRB2, vRd[0], vRd[1], vRd[2]]
    SCR = [vRd[3], vRd[4]]
    vXR = W + 112
    def rd_op(i):
        p, s = steps[i]
        if p < 3:
            return ("ds", f"ds_read_b128 {vr(BFR[i%NBF],4)}, v{vRd[s]} offset:{HH + p*8192}", f"b_{i}")
        return ("ds", f"ds_read_b128 {vr(BFR[i%NBF],4)}, v{vR2[s%4]} offset:{ACT + (p-3)*16384 + (s//4)*256}", f"b_{i}")
    def w2reg(k):
        return W2R + 16 * k if k < 4 else W + 16 * (k - 4)
    def areg(p, s, mt):
        return (W + 16 * s if p < 3 else w2reg(s)) + 4 * mt
    def epi_a(p):
        A = ACP[p]
        ops = []
        if p < 3:
            for aa in range(2):
                m = A + 8 * aa
                ops.append(f"v_cvt_pk_bf16_f32 v{m}, v{m}, v{m+1}")
                ops.append(f"v_cvt_pk_bf16_f32 v{m+1}, v{m+2}, v{m+3}")
                ops.append(f"v_cvt_pk_bf16_f32 v{m+2}, v{m+4}, v{m+5}")
                ops.append(f"v_cvt_pk_bf16_f32 v{m+3}, v{m+6}, v{m+7}")
                for x in range(4):
                    ops.append(f"v_pk_max_i16 v{m+x}, v{m+x}, 0")
                if aa == 1:
                    ops.append(f"v_xor_b32 v{m+4}, 64, v{vWr}")
                    ops.append(("ds", f"ds_write_b128 v{m+4}, {vr(m,4)} offset:{ACT + p*16384}", f"aw{p}"))
                else:
                    ops.append(("ds", f"ds_write_b128 v{vWr}, {vr(m,4)} offset:{ACT + p*16384}", f"aw{p}"))
        else:
            for x in range(2):
                ops.append(("ds", f"ds_write_b128 v{vXW}, {vr(A+8+4*x,4)} offset:{XB[(p-3)%2] + 1024*x}", f"aw{p}"))
        return ops
    def epi_b1(p):
        A = ACP[p]
        return [("ds", f"ds_read_b128 {vr(A+8+4*x,4)}, v{vXR} offset:{XB[(p-3)%2] + 1024*x}", f"xr{p}") for x in range(2)]
    def epi_b2(p):
        A = ACP[p]
        ops = [("wl", f"xr{p}")]
        for x in range(8):
            ops.append(f"v_add_f32 v{A+x}, v{A+x}, v{A+8+x}")
        for x in range(4):
            ops.append(f"v_cvt_pk_bf16_f32 v{A+8+x}, v{A+2*x}, v{A+2*x+1}")
        ops.append("s_nop 1")
        ops.append(f"v_permlane16_swap_b32 v{A+8}, v{A+10}")
        ops.append(f"v_permlane16_swap_b32 v{A+9}, v{A+11}")
        if p > 3:
            ops.append(f"v_add_u32 v{vOut}, 8192, v{vOut}")
        ops.append(("vm", f"buffer_store_dwordx4 {vr(A+8,4)}, v{vOut}, {sr(sOUT,4)}, 0 offen", "out"))
        return ops

    G = lambda p, s, mt=0: (p * 8 + s) * 4 + mt
    streams = []
    def add(name, ops, start=0, dl=10**9, after=None):
        streams.append(dict(name=name, ops=list(ops), start=start, dl=dl, after=after or [], done=None))
    RDL = 8 - PRE
    if opt.get('latel', 1):
        ops = []
        for o in dma_w2l_ops(4, 0) + dma_w2l_ops(5, 1):
            ops += [o, ("skip",)]
        add("dmaL", ops, 1, G(1, 0, 3))
    add("e0", epi_a(0), G(1, 1, 2), G(1, 6, 3))
    add("bias2", [("wl", "aw0")] + bias_ops(2), 0, G(1, 7, 2), after=[("e0", 1)])
    add("bar0", [("bar", ["aw0"])], 0, G(2, RDL - 1, 3), after=[("bias2", 2)])
    add("e1", epi_a(1), G(2, 1, 2), G(3, RDL - 2, 3))
    add("bar1", [("bar", ["aw1"])], 0, G(3, RDL - 1, 3), after=[("e1", 3), ("bar0", 0)])
    add("a2", [f"v_xor_b32 v{vR2[k]}, {64*k}, v{vRB2}" for k in range(1, 4)], G(2, max(0, 2 - PRE) + 1), G(2, RDL - 1, 3))
    add("tr4", [("wv", "w2_4")] + tr_w2_ops(w2reg(4), vTB, 0, "t2_4", SCR), G(2, max(1, 4 - PRE + 1)), G(2, 4, 3))
    add("tr5", [("wv", "w2_5")] + tr_w2_ops(w2reg(5), vTB, 4096, "t2_5", SCR), G(2, 2), G(2, 6, 0), after=[("tr4", 0)])
    add("dma6", [("wl", "t2_4")] + dma_w2l_ops(6, 0), 0, G(2, 7, 0), after=[("tr4", 3)])
    add("dma7", [("wl", "t2_5")] + dma_w2l_ops(7, 1), 0, G(3, 0, 3), after=[("tr5", 3), ("dma6", 0)])
    add("bias3", bias_ops(3), G(2, 5, 1), G(2, 7, 1))
    add("tr6", [("wv", "w2_6")] + tr_w2_ops(w2reg(6), vTB, 0, "t2_6", SCR), G(3, 2), G(3, 5, 0), after=[("dma7", 0)])
    add("tr7", [("wv", "w2_7")] + tr_w2_ops(w2reg(7), vTB, 4096, "t2_7", SCR), G(3, 3), G(3, 6, 0), after=[("tr6", 0)])
    add("bias4", [f"v_xor_b32 v{vXR}, 2048, v{vXW}"] + bias_ops(4), G(3, 0, 1), G(3, 7, 1))
    add("e2", epi_a(2), G(3, 1, 2), G(4, 2, 3))
    add("bias5", bias_ops(5), G(3, 0, 1), G(4, 7, 1))
    add("e3", epi_a(3), G(4, 1, 2), G(4, 2, 3), after=[("bar1", 0)])
    add("bar2", [("bar", ["aw2", "aw3"])], 0, G(4, RDL - 1, 3), after=[("e2", 3), ("e3", 3), ("bar1", 0)])
    add("x3", epi_b1(3), 0, G(4, 6, 0), after=[("bar2", 0)])
    add("f3", epi_b2(3), 0, G(5, 3, 3), after=[("x3", 4)])
    add("e4", epi_a(4), G(5, 1, 2), G(5, 2, 3), after=[("bar2", 0)])
    add("bar3", [("bar", ["aw4", "xr3"])], 0, G(5, 4, 0), after=[("e4", 3), ("x3", 0)])
    add("x4", epi_b1(4), 0, G(5, 5, 0), after=[("bar3", 0)])
    add("f4", epi_b2(4), 0, G(5, 7, 3), after=[("x4", 4), ("f3", 0)])
    byname = {s_['name']: s_ for s_ in streams}

    def ready(s_, g, force=False):
        if not s_['ops']:
            return False
        if g < s_['start']:
            return False
        for nm, dly in s_['after']:
            d = byname[nm]['done']
            if d is None or (g < d + dly and not force):
                return False
        return True
    def force_finish(s_, g):
        for nm, _ in s_['after']:
            force_finish(byname[nm], g)
        if s_['ops']:
            assert g >= s_['start'], (s_['name'], g)
            while s_['ops']:
                emit(s_['ops'].pop(0))
            s_['done'] = g
    BUD = opt.get('bud', 3)
    for i in range(PRE):
        emit(rd_op(i))
    segs = None
    if bars_hint is not None and opt.get('mprio', 1):
        pts = [0] + [b + 1 for b in bars_hint] + [len(steps)]
        segs = {}
        for x, y in zip(pts[:-1], pts[1:]):
            L = y - x
            for k in range(4):
                segs.setdefault(x + k * L // 4, 3 - k)
                segs[x + k * L // 4] = min(segs[x + k * L // 4], 3 - k) if k and (x + k * L // 4) != x else segs[x + k * L // 4]
    for i, (p, s) in enumerate(steps):
        cur_q[0] = i
        if segs and i in segs:
            a(f"s_setprio {segs[i]}")
        tags = [f"b_{i}"]
        if s == 0:
            tags.append(f"bias{p}")
        if p == 3 and s >= 4:
            tags.append(f"t2_{s}")
        wait(ltag=tags)
        for mt in range(4):
            g = i * 4 + mt
            A = ACP[p] + 4 * mt
            c = "0" if (p >= 3 and s == 0 and mt >= 2) else vr(A, 4)
            a(f"v_mfma_f32_16x16x32_bf16 {vr(A,4)}, {vr(areg(p,s,mt),4)}, {vr(BFR[i%NBF],4)}, {c}")
            B_ = opt.get('bud23', 4) if p in (2, 3) else BUD
            bud = (B_ + (g % 2)) // 2
            if mt == 3:
                bud = min(bud, opt.get('bud3', 1))
            if mt == 0 and i + PRE < len(steps):
                bud -= emit(rd_op(i + PRE))
            while bud > 0:
                cand = [s_ for s_ in streams if ready(s_, g)]
                if not cand:
                    break
                s_ = min(cand, key=lambda z: z['dl'] - len(z['ops']))
                bud -= emit(s_['ops'].pop(0))
                if not s_['ops']:
                    s_['done'] = g
            for s_ in streams:
                if s_['ops'] and s_['dl'] <= g:
                    if opt.get('verbose'):
                        print("forced", s_['name'], len(s_['ops']), "ops at", p, s, mt, file=sys.stderr)
                    force_finish(s_, g)
        if p == 2 and s == 7:
            st(6)
    assert all(not s_['ops'] for s_ in streams)
    st(10)
    a("s_nop 7")
    for op in epi_a(5):
        emit(op)
    a("s_waitcnt lgkmcnt(0)")
    lg.clear()
    a("s_barrier")
    for op in epi_b1(5) + epi_b2(5):
        emit(op)
    if STAMP:
        a("s_waitcnt vmcnt(0)")
        st(7)
    a("s_endpgm")

    a.label("AUX")
    vm.clear(); lg.clear()
    a("s_memrealtime s[96:97]")
    a(f"s_and_b32 s{sA}, s2, 7")
    a(f"s_mul_i32 s{sPI}, s{sA}, 5000")
    a(f"s_lshr_b32 s{sB}, s2, 3")
    a("s_waitcnt lgkmcnt(0)")
    srd(a, sDST, 80, E * 4)
    srd(a, sSRC, 78, E * 4)
    srd(a, sX, 76, N * 512)

    def xpf(first, stride, n, vd):
        for r in range(n):
            a(f"v_add_u32 v{vT0}, {first + r*stride}, v{vSeq}")
            a(f"v_subrev_u32 v{vT1}, 40000, v{vT0}")
            a(f"v_min_u32 v{vT0}, v{vT0}, v{vT1}")
            a(f"v_lshlrev_b32 v{vT0}, 7, v{vT0}")
            a(f"buffer_load_dword v{vd+r}, v{vT0}, {sr(sX,4)}, 0 offen")

    a(f"s_cmp_lt_u32 s2, {NPROD}")
    a("s_cbranch_scc1 PROD")
    stamp_setup()
    st(0)
    a(f"s_sub_u32 s{sB}, s{sB}, 4")
    a(f"s_lshl_b32 s{sB}, s{sB}, 9")
    a(f"s_add_u32 s{sPI}, s{sPI}, s{sB}")
    a(f"v_add_u32 v{vSeq}, s{sPI}, v0")
    xpf(0, 1024, NH, 16)
    if STAMP:
        a("s_waitcnt vmcnt(0)")
        st(13)
    a("s_endpgm")
    a.label("PROD")
    a(f"s_mul_i32 s{sA}, s2, {CH*4}")
    for r in range(3):
        if r == 2:
            a(f"s_cmp_lt_u32 s{sW}, 4")
            a("s_cbranch_scc0 P_E2")
        a(f"buffer_load_dwordx4 {vr(16+8*r,4)}, v{vT16}, {sr(sDST,4)}, s{sA} offen")
        a(f"buffer_load_dwordx4 {vr(20+8*r,4)}, v{vT16}, {sr(sSRC,4)}, s{sA} offen")
        if r < 2:
            a(f"s_add_u32 s{sA}, s{sA}, 8192")
    a.label("P_E2")
    vm.issue("edges")
    srd(a, sW2, 88, 256 * 1024)
    srd(a, sDBG, 6, 256)
    srd(a, sWS, 100, CELLS_BYTES)
    a(f"s_or_b32 s{sNode}, s96, 1")
    stamp_setup()
    st(0)
    a(f"s_cmp_eq_u32 s{sW}, 0")
    a("s_cbranch_scc0 P_N")
    a(f"v_mov_b32 v{vT0}, s{sNode}")
    a(f"s_lshl_b32 s{sA}, s2, 2")
    a(f"v_mov_b32 v{vT1}, s{sA}")
    a(f"v_mov_b32 v{vOff}, {NONCE}")
    a("s_mov_b64 exec, 1")
    a(f"buffer_store_dword v{vT0}, v{vT1}, {sr(sDBG,4)}, 0 offen sc1")
    a(f"ds_write_b32 v{vOff}, v{vT0}")
    a("s_mov_b64 exec, -1")
    a.label("P_N")
    a(f"v_mov_b32 v40, {EMPTY}")
    a("v_mov_b32 v41, v40")
    a("v_mov_b32 v42, v40")
    a("v_mov_b32 v43, v40")
    for i in range(7):
        a(f"ds_write_b128 v{vT16}, v[40:43] offset:{IMG + i*8192}")
    a(f"v_lshlrev_b32 v{vT0}, 2, v0")
    a(f"v_mov_b32 v{vT1}, 0")
    a(f"ds_write_b32 v{vT0}, v{vT1} offset:{PCNT}")
    a("v_mov_b32 v44, 1")
    a(f"v_mov_b32 v45, {PCNT + 2040}")
    a(f"s_movk_i32 s{sT}, -48")
    a(f"s_mov_b32 s{sId}, {MHI}")
    a("v_lshrrev_b32 v46, 4, v0")
    a("v_and_b32 v47, 15, v0")
    a("v_lshlrev_b32 v48, 8, v46")
    a("v_lshl_or_b32 v48, v47, 3, v48")
    a("v_lshlrev_b32 v49, 2, v46")
    a("v_lshlrev_b32 v50, 14, v46")
    a("v_lshl_or_b32 v50, v47, 4, v50")
    a(f"s_lshl_b32 s4, s2, 8")
    a(f"v_add_u32 v50, s4, v50")
    a(f"v_mov_b32 v51, {NONCE}")
    a(f"v_mov_b32 v52, {MARK}")
    a("s_waitcnt lgkmcnt(0)")
    a("s_barrier")
    if opt.get('w2touch', 1):
        a(f"s_lshl_b32 s{sA}, s{sB}, 16")
        a(f"v_lshlrev_b32 v{vT0}, 7, v0")
        a(f"buffer_load_dword v60, v{vT0}, {sr(sW2,4)}, s{sA} offen")
        vm.issue("touch")
    a(f"s_mov_b32 s{sA}, 43691")
    a(f"s_lshl_b32 s{sB}, s{sB}, 9")
    a(f"s_add_u32 s{sPI}, s{sPI}, s{sB}")
    a(f"v_add_u32 v{vSeq}, s{sPI}, v0")
    a("ds_read_b32 v53, v51")
    for i in range(7):
        a(f"v_add_u32 v{72+i}, {i*32*16384}, v50")
    a("s_waitcnt lgkmcnt(0)")
    Q1, Q2 = 128, 160
    for i in range(7):
        for q in (Q1, Q2):
            a(f"v_mov_b32 v{q+4*i+1}, v53")
            a(f"v_mov_b32 v{q+4*i+3}, v53")
    wait(vtag="edges")
    st(14)
    def bin_a(r):
        vd, vs, vb, va, vrk = 16 + 8 * r, 20 + 8 * r, 192 + 4 * r, 204 + 4 * r, 216 + 4 * r
        for k in range(4):
            a(f"v_mul_u32_u24 v{vb+k}, s{sA}, v{vd+k}")
            a(f"v_lshrrev_b32 v{vb+k}, 21, v{vb+k}")
            a(f"v_lshlrev_b32 v{va+k}, 2, v{vb+k}")
            a(f"ds_add_rtn_u32 v{vrk+k}, v{va+k}, v44 offset:{PCNT}")
    def bin_a2(r):
        vd, vs, vb, va, vrk = 16 + 8 * r, 20 + 8 * r, 192 + 4 * r, 204 + 4 * r, 216 + 4 * r
        for k in range(4):
            a(f"v_mad_i32_i24 v{vd+k}, v{vb+k}, s{sT}, v{vd+k}")
            a(f"v_lshl_or_b32 v{vs+k}, v{vd+k}, 14, v{vs+k}")
            a(f"v_or_b32 v{vs+k}, s{sId}, v{vs+k}")
            a(f"v_lshlrev_b32 v{vb+k}, 8, v{vb+k}")
    def bin_b(r):
        vd, vs, vb, va, vrk = 16 + 8 * r, 20 + 8 * r, 192 + 4 * r, 204 + 4 * r, 216 + 4 * r
        for k in range(4):
            a(f"v_cmp_gt_u32 vcc, 64, v{vrk+k}")
            a(f"v_lshl_add_u32 v{vb+k}, v{vrk+k}, 2, v{vb+k}")
            a("s_nop 0")
            a(f"v_cndmask_b32 v{vb+k}, v45, v{vb+k}, vcc")
            a(f"ds_write_b32 v{vb+k}, v{vs+k} offset:{IMG}")
    bin_a(0)
    bin_a(1)
    a(f"s_cmp_lt_u32 s{sW}, 4")
    a("s_cbranch_scc0 P_R2")
    a(f"v_cmp_gt_u32 vcc, {CH//4 - 1024}, v0")
    a("s_and_saveexec_b64 s[4:5], vcc")
    bin_a(2)
    bin_a2(2)
    a("s_waitcnt lgkmcnt(0)")
    bin_b(2)
    a("s_mov_b64 exec, s[4:5]")
    a.label("P_R2")
    bin_a2(0)
    bin_a2(1)
    a("s_waitcnt lgkmcnt(0)")
    bin_b(0)
    bin_b(1)
    a("s_waitcnt lgkmcnt(0)")
    a("s_barrier")
    st(15)
    for i in range(7):
        a(f"ds_read_b64 {vr(16+2*i,2)}, v48 offset:{IMG + i*8192}")
        lg.issue(f"c{i}")
    for i in range(7):
        a(f"ds_read_b32 v{64+i}, v49 offset:{PCNT + i*128}")
        lg.issue(f"n{i}")
    for i in range(7):
        d = Q1 + 4 * i
        wait(ltag=f"c{i}")
        a(f"v_mov_b32 v{d}, v{16+2*i}")
        a(f"v_mov_b32 v{d+2}, v{17+2*i}")
        a(f"buffer_store_dwordx4 {vr(d,4)}, v{72+i}, {sr(sWS,4)}, 0 offen sc1")
        a(f"ds_read_b64 {vr(96+2*i,2)}, v48 offset:{IMG + i*8192 + 128}")
        lg.issue(f"d{i}")
    a("s_movk_i32 s6, 0x2000")
    for i in range(7):
        d = Q2 + 4 * i
        wait(ltag=f"d{i}")
        a(f"v_cmp_lt_u32 vcc, 64, v{64+i}")
        a(f"v_mov_b32 v{d+2}, v{97+2*i}")
        a("s_nop 0")
        a(f"v_cndmask_b32 v{d}, v{96+2*i}, v52, vcc")
        a(f"v_cmp_le_u32 vcc, 32, v{64+i}")
        a("s_and_b64 exec, exec, vcc")
        a(f"s_cbranch_scc0 P_SK{i}")
        a(f"buffer_store_dwordx4 {vr(d,4)}, v{72+i}, {sr(sWS,4)}, s6 offen sc1")
        a.label(f"P_SK{i}")
        a("s_mov_b64 exec, -1")
    if STAMP:
        st(1)
        a("s_waitcnt vmcnt(0)")
        st(2)
    a("s_barrier")
    xpf(NH * 1024, 2048, NP, 16)
    if STAMP:
        a("s_waitcnt vmcnt(0)")
        st(13)
    a.label("M_END")
    a("s_endpgm")
    return LDS_TOTAL, bars


def build(opt):
    name = "gather_scatter__isomorphism_gin_2__graph_kernel"
    _, bars = gen_main(Asm(), dict(opt, verbose=0), name)
    b = Asm()
    lds, bars2 = gen_main(b, opt, name, bars)
    assert bars == bars2
    a = Asm()
    a.raw(HEADER.rstrip())
    a.raw(f"; @launch grid=(256,1,1) block=(512,1,1) lds={lds}")
    a.raw('.amdgcn_target "amdgcn-amd-amdhsa--gfx950"')
    a.raw(".text")
    a.l += b.l
    a.raw('.section .rodata,"a"')
    a.raw(kd(name, 256, 102))
    return a.text()

if __name__ == "__main__":
    out = sys.argv[1]
    opt = {}
    for kv in sys.argv[2:]:
        k, v = kv.split("=")
        opt[k] = int(v)
    open(out, "w").write(build(opt))
```

```python
import sys
from gen2 import Asm, Ctr, vr, sr, srd, kd, HEADER

N = 10000
E = 160000
BN = 48
NBLK = 209
NPROD = 32
NHELP = 15
C0 = NPROD + NHELP
CH = E // NPROD
CELLS_BYTES = NBLK * 16384
STAMP_OFF = 0x400000
MAGIC = 0xA5B
MHI = MAGIC << 20
EMPTY = MHI | (63 << 14)
MARK = MHI | (62 << 14)
NPW = 6


def gen_main(a, opt, name, bars_hint=None):
    D = opt.get('depth', 8)
    NH = opt.get('nh', 8)
    NP = opt.get('np', 4)
    STAMP = opt.get('stamp')
    assert D <= 8
    HH = 0
    ACT = 24576
    WST = 73728
    LIST = 65536
    CNT = LIST + 6144
    FLAG = CNT + 56 * 4
    BIAS = WST + 65536
    LDS_TOTAL = BIAS + 3072
    IMG = 0
    PCNT = 57344
    NONCE = PCNT + 2048
    vLane, vC16, vSh, vSeq, vT0, vT1, vOff, vFl = 1, 2, 3, 4, 5, 6, 7, 8
    vAcc = 10
    RING = 16
    vA1, vAS = 48, 52
    vS2, vT16, vLB, vTB = 56, 57, 58, 63
    W2R = 64
    W = 128
    vS1 = 16
    vTR = 20
    vTR2 = 29
    vBI = 44
    sX, sWS, sOUT, sSRC, sDST, sB1, sB2, sW1, sW2, sDBG = 8, 12, 16, 20, 24, 28, 32, 64, 68, 72
    sW, sWB, sA, sB = 36, 37, 38, 39
    sLB, sRot, sWL, sV = 46, 47, 48, 49
    sPC, sPI, sT, sXor, sNode, sId = 50, 51, 52, 53, 54, 55
    sMask = 56
    sM = 76
    sST = 92

    vm = Ctr(63)
    lg = Ctr(15)

    def st(idx):
        if STAMP:
            a("s_memrealtime s[96:97]" if not opt.get('cyc') else "s_memtime s[96:97]")
            a("s_waitcnt lgkmcnt(0)")
            lg.clear()
            a("v_mov_b32 v14, s96")
            a("v_mov_b32 v15, s97")
            a("s_mov_b64 s[98:99], exec")
            a("s_mov_b64 exec, 1")
            a(f"buffer_store_dwordx2 v[14:15], v9, {sr(sST,4)}, 0 offen offset:{idx*8}")
            vm.issue('st')
            a("s_mov_b64 exec, s[98:99]")

    def wait(vtag=None, ltag=None):
        p = []
        if vtag is not None:
            n = vm.need(vtag)
            if n is not None:
                p.append(f"vmcnt({n})")
        if ltag is not None:
            tags = ltag if isinstance(ltag, (list, tuple)) else [ltag]
            ns = [lg.need(t) for t in tags]
            ns = [n for n in ns if n is not None]
            if ns:
                p.append(f"lgkmcnt({min(ns)})")
        if p:
            a("s_waitcnt " + " ".join(p))
            return True
        return False

    def stamp_setup():
        if STAMP:
            srd(a, sST, 100, 0x1000000)
            a("s_lshl_b32 s96, s2, 4")
            a(f"s_add_u32 s96, s96, s{sW}")
            a("s_lshl_b32 s96, s96, 7")
            a(f"s_add_u32 s96, s96, {STAMP_OFF}")
            a("v_mov_b32 v9, s96")

    a.raw(f".globl {name}")
    a.raw(".p2align 8")
    a.raw(f".type {name},@function")
    a.label(name)
    a("s_cmp_ge_u32 s2, 256")
    a("s_cbranch_scc1 M_END")
    a("s_load_dwordx16 s[76:91], s[0:1], 0")
    a("s_load_dwordx4 s[4:7], s[0:1], 64")
    a("s_load_dwordx2 s[100:101], s[0:1], 80")
    a(f"v_and_b32 v{vLane}, 63, v0")
    a(f"v_lshrrev_b32 v{vT0}, 6, v0")
    a(f"v_lshlrev_b32 v{vT16}, 4, v0")
    a(f"v_readfirstlane_b32 s{sW}, v{vT0}")
    a(f"s_cmp_lt_u32 s2, {C0}")
    a("s_cbranch_scc1 AUX")

    a(f"s_sub_u32 s3, s2, {C0}")
    a(f"s_lshl_b32 s{sLB}, s3, 14")
    a(f"s_mul_i32 s3, s3, {BN}")
    a(f"v_mov_b32 v{vLB}, {LIST}")
    a(f"v_lshrrev_b32 v{vT0}, 3, v0")
    a(f"v_add_u32 v{vT0}, s3, v{vT0}")
    a(f"v_or_b32 v{vT0}, 0xffff0000, v{vT0}")
    a(f"v_and_b32 v{vT1}, 7, v0")
    a(f"v_cmp_eq_u32 vcc, 0, v{vT1}")
    a("v_mov_b32 v37, -1")
    a(f"v_add_u32 v{vOff}, v{vLB}, v{vT16}")
    a(f"v_cndmask_b32 v36, v37, v{vT0}, vcc")
    a("v_cmp_le_u32 vcc, 384, v0")
    a("v_mov_b32 v40, 1")
    a("s_nop 0")
    a("v_cndmask_b32 v36, v36, v40, vcc")
    a("v_cndmask_b32 v37, v37, v40, vcc")
    a("v_cmp_eq_u32 vcc, 398, v0")
    a("v_mov_b32 v38, v37")
    a("v_mov_b32 v39, v37")
    a("v_cndmask_b32 v36, v36, 0, vcc")
    a(f"ds_write_b128 v{vOff}, v[36:39]")
    a(f"s_lshr_b32 s{sRot}, s2, 3")
    a(f"s_and_b32 s{sRot}, s{sRot}, 7")
    a(f"s_lshr_b32 s{sV}, s2, 4")
    a(f"s_and_b32 s{sV}, s{sV}, 4")
    a(f"s_and_b32 s{sA}, s{sRot}, 3")
    a(f"s_or_b32 s{sV}, s{sV}, s{sA}")
    a(f"s_xor_b32 s{sV}, s{sW}, s{sV}")
    a(f"v_bfe_u32 v{vT0}, v{vLane}, 1, 2")
    a(f"v_bfe_u32 v{vT1}, v{vLane}, 4, 1")
    a(f"v_xor_b32 v{vT0}, v{vT0}, v{vT1}")
    a(f"v_lshrrev_b32 v{vT1}, 3, v{vLane}")
    a(f"v_lshlrev_b32 v{vT1}, 10, v{vT1}")
    a(f"v_and_b32 v{vOff}, 1, v{vLane}")
    a(f"v_lshl_or_b32 v{vT1}, v{vOff}, 4, v{vT1}")
    a(f"s_lshl_b32 s{sA}, s{sV}, 7")
    a(f"v_or_b32 v{vT1}, s{sA}, v{vT1}")
    a(f"v_lshl_or_b32 v{vS1}, v{vT0}, 5, v{vT1}")
    a(f"v_xor_b32 v{vS1+1}, 64, v{vS1}")
    a(f"s_lshl_b32 s{sWL}, s{sW}, 13")
    a(f"s_add_u32 s{sWB}, s{sWL}, {WST}")
    a(f"s_lshl_b32 s{sB}, s{sRot}, 15")
    a("s_waitcnt lgkmcnt(0)")
    srd(a, sW1, 84, 256 * 1024)
    a("s_barrier")

    def slot_base(sl):
        return (sWB if sl < 2 else sWL), (sl % 2) * 4096

    def dma_unit(u):
        sb, off = slot_base(u % 4)
        for i in range(4):
            a(f"s_add_u32 m0, s{sb}, {off + i * 1024}")
            if u < 8:
                a(f"s_xor_b32 s{sA}, s{sB}, {(u * 32 + i * 8) * 1024}")
                a(f"buffer_load_dwordx4 v{vS1 + i % 2}, {sr(sW1,4)}, s{sA} offen lds")
            else:
                a(f"s_mov_b32 s{sA}, {((u - 8) * 32 + i * 8) * 512}")
                a(f"buffer_load_dwordx4 v{vS2}, {sr(sW2,4)}, s{sA} offen lds")
            vm.issue(f"u{u}")

    NINF = opt.get('ninf', 3)
    PPRIO = opt.get('pprio', 1)
    stamp_setup()
    st(0)
    if opt.get('dly_c'):
        a(f"s_sleep {opt['dly_c']}")
    if PPRIO:
        a("s_setprio 3")
    dma_unit(0)
    if PPRIO:
        a("s_setprio 2")
    a("s_load_dword s45, s[82:83], 0")
    for u in range(1, NINF):
        dma_unit(u)
    srd(a, sB1, 86, 1024)
    srd(a, sB2, 90, 512)
    a(f"v_lshlrev_b32 v{vC16}, 4, v{vLane}")
    a(f"s_cmp_eq_u32 s{sW}, 2")
    a("s_cbranch_scc0 C_SL2")
    a(f"buffer_load_dwordx4 {vr(vBI,4)}, v{vC16}, {sr(sB1,4)}, 0 offen")
    a.label("C_SL2")
    a(f"s_cmp_eq_u32 s{sW}, 3")
    a("s_cbranch_scc0 C_SL3")
    a(f"buffer_load_dwordx4 {vr(vBI,4)}, v{vC16}, {sr(sB2,4)}, 0 offen")
    a.label("C_SL3")
    a(f"v_lshrrev_b32 v{vT0}, 4, v{vLane}")
    a(f"v_lshlrev_b32 v{vT0}, 10, v{vT0}")
    a(f"v_bfe_u32 v{vT1}, v{vLane}, 2, 2")
    a(f"v_lshl_or_b32 v{vT0}, v{vT1}, 7, v{vT0}")
    a(f"v_and_b32 v{vT1}, 3, v{vLane}")
    a(f"v_lshl_or_b32 v{vT0}, v{vT1}, 3, v{vT0}")
    a(f"v_bfe_u32 v{vT1}, v{vLane}, 3, 2")
    for mt in range(4):
        a(f"v_xor_b32 v{vOff}, {mt}, v{vT1}")
        a(f"v_lshl_add_u32 v{vOff}, v{vOff}, 5, v{vT0}")
        a(f"v_add_u32 v{vTR+mt}, s{sWB}, v{vOff}")
        a(f"v_add_u32 v{vTR+4+mt}, s{sWL}, v{vOff}")

    def setup_a():
        a(f"v_bfe_u32 v{vT1}, v{vLane}, 3, 2")
        a(f"s_and_b32 s{sA}, s{sV}, 1")
        a(f"s_lshl_b32 s{sA}, s{sA}, 1")
        a(f"v_xor_b32 v{vT1}, s{sA}, v{vT1}")
        a(f"v_lshrrev_b32 v{vT0}, 2, v{vLane}")
        a(f"v_lshlrev_b32 v{vT0}, 7, v{vT0}")
        a(f"v_lshl_or_b32 v{vT0}, v{vT1}, 5, v{vT0}")
        a(f"v_and_b32 v{vT1}, 3, v{vLane}")
        a(f"v_lshl_or_b32 v{vT0}, v{vT1}, 3, v{vT0}")
        a(f"v_add_u32 v{vTB}, s{sWB}, v{vT0}")
        a(f"v_add_u32 v{vTR2}, s{sWL}, v{vT0}")
        srd(a, sW2, 88, 256 * 1024)
        a(f"v_bfe_u32 v{vT0}, v{vLane}, 1, 2")
        a(f"v_lshrrev_b32 v{vT1}, 4, v{vLane}")
        a(f"v_xor_b32 v{vT0}, v{vT0}, v{vT1}")
        a(f"v_lshrrev_b32 v{vT1}, 3, v{vLane}")
        a(f"v_lshlrev_b32 v{vT1}, 9, v{vT1}")
        a(f"v_lshl_or_b32 v{vT0}, v{vT0}, 5, v{vT1}")
        a(f"v_and_b32 v{vT1}, 1, v{vLane}")
        a(f"v_lshl_or_b32 v{vT0}, v{vT1}, 4, v{vT0}")
        a(f"s_lshr_b32 s{sA}, s{sV}, 1")
        a(f"s_lshl_b32 s{sA}, s{sA}, 7")
        a(f"s_and_b32 s44, s{sV}, 1")
        a(f"s_lshl_b32 s44, s44, 17")
        a(f"s_or_b32 s{sA}, s{sA}, s44")
        a(f"v_or_b32 v{vS2}, s{sA}, v{vT0}")

    def setup_b():
        srd(a, sX, 76, N * 512)
        srd(a, sDBG, 6, 256)
        srd(a, sWS, 100, CELLS_BYTES)
        srd(a, sOUT, 4, N * 512)
        srd(a, sDST, 80, E * 4)
        srd(a, sSRC, 78, E * 4)

    def setup_c():
        a(f"v_lshrrev_b32 v{vT0}, 4, v{vLane}")
        a(f"v_lshrrev_b32 v{vT1}, 3, v{vLane}")
        a(f"v_xor_b32 v{vT0}, v{vT0}, v{vT1}")
        a(f"v_and_b32 v{vT0}, 1, v{vT0}")
        a(f"v_bfe_u32 v{vT1}, v{vLane}, 1, 2")
        a(f"v_lshl_or_b32 v{vT0}, v{vT0}, 2, v{vT1}")
        a(f"v_and_b32 v{vT1}, 1, v{vLane}")
        a(f"v_lshlrev_b32 v{vT1}, 4, v{vT1}")
        a("s_lshl_b32 s45, s45, 16")
        a("v_mov_b32 v40, s45")
        a("v_add_f32 v40, 1.0, v40")
        a("v_cvt_pk_bf16_f32 v40, v40, v40")
        a("v_and_b32 v40, 0xffff, v40")
        a("v_mov_b32 v41, 0x3f80")
        a(f"v_cmp_gt_u32 vcc, 32, v{vLane}")
        a("s_nop 1")
        a("v_cndmask_b32 v40, v41, v40, vcc")
        a(f"v_lshlrev_b32 v40, v{vT1}, v40")
        a(f"v_lshlrev_b32 v41, v{vT1}, v41")
        for p in range(4):
            a(f"v_cmp_eq_u32 vcc, {p}, v{vT0}")
            a("s_nop 1")
            a(f"v_cndmask_b32 v{vA1+p}, 0, v41, vcc")
            a(f"v_cndmask_b32 v{vAS+p}, 0, v40, vcc")

    def setup_d():
        a(f"v_lshrrev_b32 v{vSh}, 5, v{vLane}")
        a(f"v_lshlrev_b32 v{vSh}, 4, v{vSh}")
        a(f"v_and_b32 v{vT0}, 15, v{vLane}")
        a(f"v_lshlrev_b32 v{vFl}, 4, v{vT0}")
        a(f"v_lshl_or_b32 v{vFl}, v{vSh}, 4, v{vFl}")
        a(f"v_bfe_u32 v{vT0}, v{vLane}, 4, 1")
        a(f"v_lshl_or_b32 v{vFl}, v{vT0}, 3, v{vFl}")
        a(f"v_and_b32 v{vC16}, 31, v{vLane}")
        a(f"v_lshlrev_b32 v{vC16}, 4, v{vC16}")
        a("v_lshrrev_b32 v42, 4, v0")
        a("v_lshlrev_b32 v42, 2, v42")
        a(f"s_add_u32 s{sPI}, s{sLB}, 8192")
        a(f"s_mov_b32 s{sPC}, 0")
        a(f"s_mov_b32 s{sId}, {MHI}")
        a(f"s_mov_b32 s{sT}, {EMPTY}")
        a(f"v_lshrrev_b32 v{vT0}, 1, v{vLane}")
        a(f"v_lshlrev_b32 v{vT0}, 4, v{vT0}")
        a(f"v_and_b32 v{vT1}, 1, v{vLane}")
        a(f"v_or_b32 v{vT0}, v{vT0}, v{vT1}")
        a(f"s_lshl_b32 s{sNode}, s{sW}, 1")
        a(f"v_add_u32 v{vT0}, s{sNode}, v{vT0}")
        a(f"v_cmp_gt_u32 vcc, 6, v{vLane}")
        a(f"v_mov_b32 v{vT1}, 56")
        a("v_mov_b32 v62, 64")
        a(f"v_cndmask_b32 v{vT0}, v{vT1}, v{vT0}, vcc")
        a(f"v_lshl_add_u32 v61, v{vT0}, 2, v{vLB}")
        a(f"s_lshl_b32 s{sA}, s{sW}, 8")
        a(f"v_lshl_add_u32 v{vT1}, v{vLane}, 2, v{vLB}")
        a(f"v_add_u32 v60, s{sA}, v{vT1}")
        a("v_cndmask_b32 v62, 0, v62, vcc")
        set_xor()

    def set_xor():
        a(f"s_lshl_b32 s{sXor}, s{sNode}, 9")
        a(f"s_and_b32 s44, s{sNode}, 15")
        a("s_lshl_b32 s44, s44, 4")
        a(f"s_or_b32 s{sXor}, s{sXor}, s44")

    def bias_to_lds():
        a(f"s_sub_u32 s{sA}, s{sW}, 2")
        a(f"s_cmp_lt_u32 s{sA}, 2")
        a("s_cbranch_scc0 C_NB")
        for x in range(4):
            a(f"v_lshlrev_b32 v{32+2*x}, 16, v{vBI+x}")
            a(f"v_and_b32 v{33+2*x}, 0xffff0000, v{vBI+x}")
        a(f"s_lshl_b32 s{sA}, s{sA}, 11")
        a(f"s_add_u32 s{sA}, s{sA}, {BIAS}")
        a(f"v_lshl_add_u32 v{vOff}, v{vLane}, 5, s{sA}")
        a(f"s_cmp_eq_u32 s{sW}, 3")
        a("s_cbranch_scc0 C_NB2")
        a("s_mov_b64 exec, 0xffffffff")
        a.label("C_NB2")
        a(f"ds_write_b128 v{vOff}, v[32:35]")
        a(f"ds_write_b128 v{vOff}, v[36:39] offset:16")
        a("s_mov_b64 exec, -1")
        a("s_waitcnt lgkmcnt(0)")
        a.label("C_NB")

    def tr_w2_ops(dst, vbase, off, tag, scr):
        ops = []
        for mt in range(4):
            if mt == 0:
                ad = vbase
            else:
                ad = scr[mt % len(scr)]
                ops.append(f"v_xor_b32 v{ad}, {32*mt}, v{vbase}")
            for hf in range(2):
                ops.append(("ds", f"ds_read_b64_tr_b16 {vr(dst+4*mt+2*hf,2)}, v{ad} offset:{off + hf*2048}", tag))
        return ops

    def dma_w2l_ops(k, slot):
        ops = []
        for i in range(4):
            ops.append(("dma", [f"s_add_u32 m0, s{sWB}, {slot * 4096 + i * 1024}",
                                f"s_mov_b32 s{sA}, {(k * 32 + i * 8) * 512}",
                                f"buffer_load_dwordx4 v{vS2}, {sr(sW2,4)}, s{sA} offen lds"], f"w2_{k}"))
        return ops

    bars = []
    cur_q = [0]
    def emit(op):
        if isinstance(op, tuple):
            k = op[0]
            if k == "ds":
                a(op[1]); lg.issue(op[2]); return 1
            if k == "vm":
                a(op[1]); vm.issue(op[2]); return 1
            if k == "dma":
                for l in op[1]:
                    a(l)
                vm.issue(op[2]); return 2
            if k == "skip":
                return 2
            if k == "wl":
                return 1 if wait(ltag=op[1]) else 0
            if k == "wv":
                return 1 if wait(vtag=op[1]) else 0
            if k == "bar":
                wait(ltag=op[1])
                a("s_barrier")
                bars.append(cur_q[0])
                return 2
            raise ValueError(op)
        a(op)
        return 1

    def poll_issue():
        a(f"buffer_load_dword v40, v42, {sr(sDBG,4)}, 0 offen sc1")
        a(f"buffer_load_dwordx4 v[32:35], v{vT16}, {sr(sWS,4)}, s{sLB} offen sc1")
        a(f"buffer_load_dwordx4 v[36:39], v{vT16}, {sr(sWS,4)}, s{sPI} offen sc1")

    def unit_step(u):
        sl = u % 4
        hi = 0 if sl < 2 else 1
        off = (sl % 2) * 4096
        if not opt.get('nowait'):
            wait(vtag=f"u{u}")
        if opt.get('notr'):
            pass
        elif u < 8:
            for mt in range(4):
                for hf in range(2):
                    a(f"ds_read_b64_tr_b16 {vr(W+16*u+4*mt+2*hf,2)}, v{vTR+4*hi+mt} offset:{off + hf*512}")
                    lg.issue(f"t{u}")
        else:
            for op in tr_w2_ops(W2R + 16 * (u - 8), vTB if hi == 0 else vTR2, off, f"t{u}", [30, 31]):
                emit(op)
        nx = u + NINF
        if nx < 12:
            if nx - 4 >= 0:
                wait(ltag=f"t{nx-4}")
            dma_unit(nx)

    DEFER = opt.get('defer', 1)
    a("s_waitcnt lgkmcnt(0)")
    if not DEFER:
        setup_a()
        setup_b()
        setup_c()
        setup_d()
    if opt.get('sync0'):
        a("s_waitcnt vmcnt(0)")
        a("s_barrier")
    PU = opt.get('pu', 9)
    for u in range(12):
        if opt.get('pst') and u in (0, 1, 4, 8):
            st({0: 8, 1: 9, 4: 11, 8: 12}[u])
        if PPRIO and u in (3, 7):
            a(f"s_setprio {1 if u == 3 else 0}")
        unit_step(u)
        if DEFER:
            {0: setup_a, 1: setup_b, 2: setup_c, 5: setup_d}.get(u, lambda: None)()
        if u == NINF:
            bias_to_lds()
        if u == PU:
            poll_issue()
            vm.issue("poll"); vm.issue("poll"); vm.issue("poll")
        if opt.get('latel', 1):
            continue
        if u == 9:
            wait(ltag="t8")
            for op in dma_w2l_ops(4, 0):
                emit(op)
        if u == 10:
            wait(ltag="t9")
            for op in dma_w2l_ops(5, 1):
                emit(op)
    st(1)
    wait(vtag="poll")
    a.label("POLL_CHK")
    for h in range(2):
        b = 32 + 4 * h
        a(f"v_xor_b32 v16, s{sId}, v{b}")
        a(f"v_xor_b32 v17, s{sId}, v{b+2}")
        a("v_or_b32 v16, v16, v17")
        a("v_lshrrev_b32 v16, 20, v16")
        a(f"v_xor_b32 v17, v40, v{b+1}")
        a(f"v_xor_b32 v18, v40, v{b+3}")
        a(f"v_or3_b32 v{20+h}, v16, v17, v18")
    a(f"v_cmp_ne_u32 {sr(sM,2)}, 0, v20")
    a("v_cmp_eq_u32 vcc, 0, v40")
    a(f"s_or_b64 {sr(sM,2)}, {sr(sM,2)}, vcc")
    a(f"v_cmp_ne_u32 {sr(sM+2,2)}, 0, v21")
    a(f"v_cmp_ne_u32 vcc, s{sT}, v34")
    a(f"s_and_b32 s4, vcc_lo, 0x80008000")
    a(f"s_and_b32 s5, vcc_hi, 0x80008000")
    a("s_lshr_b32 s4, s4, 15")
    a("s_lshr_b32 s5, s5, 15")
    a("s_mul_i32 s4, s4, 0xffff")
    a("s_mul_i32 s5, s5, 0xffff")
    a(f"s_and_b64 {sr(sM+2,2)}, {sr(sM+2,2)}, s[4:5]")
    a(f"s_or_b64 {sr(sM,2)}, {sr(sM,2)}, {sr(sM+2,2)}")
    a("s_cbranch_scc1 POLL_RETRY")
    a.label("POLL_OK")
    vm.clear()
    st(2)
    a(f"v_mov_b32 v16, s{sT}")
    a("v_cndmask_b32 v36, v16, v36, s[4:5]")
    a("v_cndmask_b32 v38, v16, v38, s[4:5]")
    a(f"s_mov_b32 s4, {MARK}")
    a("v_mov_b32 v41, 1")
    ent = [32, 34, 36, 38]
    for k in range(4):
        a(f"v_bfe_u32 v{ent[k]+1}, v{ent[k]}, 14, 6")
        a(f"v_lshl_add_u32 v{16+k}, v{ent[k]+1}, 2, v{vLB}")
    for k in range(4):
        if k == 2:
            a("s_mov_b64 exec, -1")
        a(f"v_cmpx_gt_u32 vcc, s4, v{ent[k]}")
        a(f"ds_add_rtn_u32 v{16+k}, v{16+k}, v41 offset:{CNT-LIST}")
        a(f"s_mov_b64 {sr(sM+2*k,2)}, exec")
    a("s_mov_b64 exec, -1")
    a("v_cmp_eq_u32 vcc, s4, v36")
    a("s_and_saveexec_b64 s[6:7], vcc")
    a(f"ds_write_b32 v{vLB}, v41 offset:{FLAG-LIST}")
    a("s_mov_b64 exec, -1")
    for k in range(4):
        a(f"v_and_b32 v{ent[k]}, 0x3fff, v{ent[k]}")
        a(f"v_lshl_add_u32 v{ent[k]+1}, v{ent[k]+1}, 7, v{vLB}")
    a("s_waitcnt lgkmcnt(0)")
    for k in range(4):
        a(f"v_min_u32 v{16+k}, 63, v{16+k}")
        a(f"v_lshl_add_u32 v{ent[k]+1}, v{16+k}, 1, v{ent[k]+1}")
    for k in range(4):
        a(f"s_mov_b64 exec, {sr(sM+2*k,2)}")
        a(f"ds_write_b16 v{ent[k]+1}, v{ent[k]}")
    a("s_mov_b64 exec, -1")
    lg.clear()
    vL = [vSeq, 59, 60]
    vCnt = 61
    sFlush, sJ, sEnd, sLeft = sMask, sMask + 1, sT, sPC
    a(f"s_mov_b32 s{sFlush}, 0")
    a(f"s_mov_b32 s{sJ}, 0")
    a(f"s_mov_b32 s{sPI}, 0")
    a(f"s_mov_b32 s{sLeft}, {NPW}")
    a("s_waitcnt lgkmcnt(0)")
    a("s_barrier")
    a(f"ds_read_b32 v{vCnt}, v61 offset:{CNT-LIST}")
    for i in range(3):
        a(f"ds_read_b32 v{vL[i]}, v60 offset:{2048*i}")
    GPRIO = opt.get('gprio', 1)
    if GPRIO:
        a("s_setprio 3")
    a("s_waitcnt lgkmcnt(2)")
    a(f"v_cmp_gt_u32 vcc, v{vCnt}, v62")
    a(f"v_add_u32 v{vCnt}, 1, v{vCnt}")
    a(f"v_lshrrev_b32 v{vCnt}, 1, v{vCnt}")
    a("s_cmp_lg_u64 vcc, 0")
    a("s_cbranch_scc1 M_SLOW")
    a(f"v_readlane_b32 s{sEnd}, v{vCnt}, 0")
    a("s_waitcnt lgkmcnt(0)")
    st(3)

    def flush():
        a(f"v_xor_b32 v{vT0}, s{sXor}, v{vFl}")
        a(f"v_cvt_pk_bf16_f32 v14, v{vAcc}, v{vAcc+1}")
        a(f"v_cvt_pk_bf16_f32 v15, v{vAcc+2}, v{vAcc+3}")
        a(f"ds_write_b64 v{vT0}, v[14:15] offset:{HH}")
        a(f"s_and_b32 s4, s{sNode}, 1")
        a("s_mul_i32 s4, s4, 14")
        a(f"s_add_u32 s{sNode}, s{sNode}, s4")
        a(f"s_add_u32 s{sNode}, s{sNode}, 1")
        set_xor()

    acc = vr(vAcc, 4)
    def mf_norm(s):
        a(f"v_mfma_f32_16x16x32_bf16 {acc}, {vr(vA1,4)}, {vr(RING+4*s,4)}, {acc}")
    def mf_first(s):
        a(f"v_mfma_f32_16x16x32_bf16 {acc}, {vr(vAS,4)}, {vr(RING+4*s,4)}, 0")
    def issue(s):
        a(f"v_bfe_u32 v{vOff}, s{sId}, v{vSh}, 16")
        a(f"v_lshl_add_u32 v{vOff}, v{vOff}, 9, v{vC16}")
        a(f"buffer_load_dwordx4 {vr(RING+4*s,4)}, v{vOff}, {sr(sX,4)}, 0 offen")
    swn = [0]
    def switch(s, lab_exit):
        a(f"s_bitset1_b32 s{sFlush}, {s}")
        a(f"s_add_u32 s{sJ}, s{sJ}, 1")
        a(f"s_cmp_eq_u32 s{sJ}, {NPW}")
        a(f"s_cbranch_scc1 {lab_exit}")
        a(f"v_readlane_b32 s{sEnd}, v{vCnt}, s{sJ}")
        a(f"s_and_b32 s{sPI}, s{sJ}, 1")
        a(f"s_cselect_b32 s4, 0, -1")
        a(f"s_mov_b32 s5, s4")
        a(f"s_lshl_b32 s{sPI}, s{sPI}, 5")
        a(f"v_cndmask_b32 v{vL[0]}, v{vL[0]}, v{vL[1]}, s[4:5]")
        a(f"v_cndmask_b32 v{vL[1]}, v{vL[1]}, v{vL[2]}, s[4:5]")
        a(f"s_add_u32 s{sEnd}, s{sEnd}, s{sPI}")
        if GPRIO:
            k = swn[0]; swn[0] += 1
            a(f"s_cmp_lt_u32 s{sJ}, 3")
            a(f"s_cbranch_scc1 SWP{k}")
            a("s_setprio 2")
            a(f"s_cmp_lt_u32 s{sJ}, 4")
            a(f"s_cbranch_scc1 SWP{k}")
            a("s_setprio 1")
            a(f"s_cmp_lt_u32 s{sJ}, 5")
            a(f"s_cbranch_scc1 SWP{k}")
            a("s_setprio 0")
            a.label(f"SWP{k}")

    for s in range(D):
        a.label(f"F_{s}")
        a(f"v_readlane_b32 s{sId}, v{vL[0]}, s{sPI}")
        a(f"s_add_u32 s{sPI}, s{sPI}, 1")
        a(f"s_cmp_eq_u32 s{sPI}, s{sEnd}")
        issue(s)
        a(f"s_cbranch_scc1 F_SW{s}")
    a("s_branch G_F0")
    for s in range(D):
        a.label(f"F_SW{s}")
        switch(s, "X_F0")
        a(f"s_branch {'F_%d' % (s+1) if s + 1 < D else 'G_F0'}")
    for s in range(D):
        n = (s + 1) % D
        a.label(f"G_N{s}")
        a(f"s_waitcnt vmcnt({D-1})")
        a(f"v_readlane_b32 s{sId}, v{vL[0]}, s{sPI}")
        mf_norm(s)
        a.label(f"G_C{s}")
        a(f"s_add_u32 s{sPI}, s{sPI}, 1")
        a(f"s_bitcmp1_b32 s{sFlush}, {s}")
        issue(s)
        a(f"s_cbranch_scc1 G_FL{s}")
        a(f"s_cmp_eq_u32 s{sPI}, s{sEnd}")
        a(f"s_cbranch_scc1 G_SN{s}")
        if n == 0:
            a("s_branch G_N0")
    for s in range(D):
        n = (s + 1) % D
        a.label(f"G_SN{s}")
        switch(s, f"X_N{n}")
        a(f"s_branch G_N{n}")
    for s in range(D):
        n = (s + 1) % D
        a.label(f"G_FL{s}")
        a(f"s_bitset0_b32 s{sFlush}, {s}")
        a(f"s_sub_u32 s{sLeft}, s{sLeft}, 1")
        a("s_nop 0")
        flush()
        a(f"s_cmp_eq_u32 s{sPI}, s{sEnd}")
        a(f"s_cbranch_scc0 G_F{n}")
        switch(s, f"X_F{n}")
        a.label(f"G_F{n}")
        a(f"s_waitcnt vmcnt({D-1})")
        a(f"v_readlane_b32 s{sId}, v{vL[0]}, s{sPI}")
        mf_first(n)
        a(f"s_branch G_C{n}")
    for s in range(D):
        a.label(f"X_N{s}")
        a("s_waitcnt vmcnt(0)")
        a(f"s_branch T_N{s}")
        a.label(f"X_F{s}")
        a("s_waitcnt vmcnt(0)")
        a(f"s_branch T_F{s}")
    for s in range(D):
        n = (s + 1) % D
        a.label(f"T_N{s}")
        mf_norm(s)
        a.label(f"T_C{s}")
        a(f"s_bitcmp1_b32 s{sFlush}, {s}")
        a(f"s_cbranch_scc1 T_FL{s}")
        if n == 0:
            a(f"s_cmp_eq_u32 s{sFlush}, 0")
            a("s_cbranch_scc1 M_GDONE")
            a("s_branch T_N0")
    for s in range(D):
        n = (s + 1) % D
        a.label(f"T_FL{s}")
        a(f"s_bitset0_b32 s{sFlush}, {s}")
        a(f"s_sub_u32 s{sLeft}, s{sLeft}, 1")
        a("s_nop 4")
        flush()
        a(f"s_cmp_eq_u32 s{sLeft}, 0")
        a(f"s_cbranch_scc1 M_GDONE")
        a.label(f"T_F{n}")
        mf_first(n)
        a(f"s_branch T_C{n}")

    a.label("POLL_RETRY")
    a(f"s_add_u32 s{sPC}, s{sPC}, 1")
    a(f"s_cmp_lt_u32 s{sPC}, {opt.get('spin', 30000)}")
    a("s_cbranch_scc0 POLL_GIVEUP")
    a(f"s_cmp_eq_u32 s{sPC}, 1")
    a("s_cbranch_scc1 POLL_NOSLEEP")
    a(f"s_sleep {opt.get('psleep', 4)}")
    a.label("POLL_NOSLEEP")
    poll_issue()
    a("s_waitcnt vmcnt(0)")
    a("s_branch POLL_CHK")
    a.label("POLL_GIVEUP")
    a(f"v_mov_b32 v32, {EMPTY}")
    a("v_mov_b32 v34, v32")
    a(f"v_mov_b32 v36, {MARK}")
    a("v_mov_b32 v38, v32")
    a("s_mov_b64 s[4:5], -1")
    a("s_branch POLL_OK")

    a.label("M_SLOW")
    SA = RING + 8
    a("s_waitcnt vmcnt(0) lgkmcnt(0)")
    a(f"v_mov_b32 v{vT0}, 0x7f000000")
    a(f"v_cmp_gt_u32 vcc, 32, v{vLane}")
    a("s_nop 1")
    a(f"v_cndmask_b32 v{vSeq}, v{vT0}, v{vC16}, vcc")
    a(f"s_add_u32 s40, s3, s{sNode}")
    for j in range(NPW):
        a(f"s_add_u32 s4, s40, {16*(j//2) + j%2}")
        a("s_lshl_b32 s4, s4, 9")
        a(f"v_add_u32 v{vOff}, s4, v{vSeq}")
        a(f"buffer_load_dwordx4 {vr(RING,4)}, v{vOff}, {sr(sX,4)}, 0 offen")
        a("s_waitcnt vmcnt(0)")
        a(f"v_mfma_f32_16x16x32_bf16 {vr(SA+4*j,4)}, {vr(vAS,4)}, {vr(RING,4)}, 0")
        a("s_nop 7")
    a(f"v_lshlrev_b32 v{vT0}, 2, v{vLane}")
    a("s_mov_b32 s41, 0")
    a.label("S_LOOP")
    a(f"buffer_load_dword v{RING+4}, v{vT0}, {sr(sDST,4)}, s41 offen")
    a(f"buffer_load_dword v{RING+5}, v{vT0}, {sr(sSRC,4)}, s41 offen")
    a("s_waitcnt vmcnt(0)")
    a(f"v_subrev_u32 v{RING+4}, s40, v{RING+4}")
    a(f"v_and_b32 v{RING+6}, 0xffffffce, v{RING+4}")
    a(f"v_cmp_eq_u32 vcc, 0, v{RING+6}")
    a(f"v_cmp_gt_u32 s[42:43], 48, v{RING+4}")
    a("s_nop 3")
    a("s_and_b64 s[42:43], s[42:43], vcc")
    a.label("S_IN")
    a("s_cmp_eq_u64 s[42:43], 0")
    a("s_cbranch_scc1 S_NEXT")
    a("s_ff1_i32_b64 s44, s[42:43]")
    a("s_bitset0_b64 s[42:43], s44")
    a(f"v_readlane_b32 s45, v{RING+4}, s44")
    a(f"v_readlane_b32 s46, v{RING+5}, s44")
    a("s_nop 3")
    a("s_lshl_b32 s46, s46, 9")
    a(f"v_add_u32 v{vOff}, s46, v{vSeq}")
    a(f"buffer_load_dwordx4 {vr(RING,4)}, v{vOff}, {sr(sX,4)}, 0 offen")
    a("s_waitcnt vmcnt(0)")
    for j in range(NPW):
        if j < NPW - 1:
            a(f"s_cmp_eq_u32 s45, {16*(j//2) + j%2}")
            a(f"s_cbranch_scc0 S_J{j+1}")
        a(f"v_mfma_f32_16x16x32_bf16 {vr(SA+4*j,4)}, {vr(vA1,4)}, {vr(RING,4)}, {vr(SA+4*j,4)}")
        a("s_nop 7")
        a("s_branch S_IN")
        if j < NPW - 1:
            a.label(f"S_J{j+1}")
    a.label("S_NEXT")
    a("s_add_u32 s41, s41, 256")
    a(f"s_cmp_lt_u32 s41, {E*4}")
    a("s_cbranch_scc1 S_LOOP")
    for j in range(NPW):
        for r in range(4):
            a(f"v_mov_b32 v{vAcc+r}, v{SA+4*j+r}")
        flush()

    a.label("M_GDONE")
    vm.clear(); lg.clear()
    st(4)
    ACP = [16, 32, 16, W + 64, W + 80, W + 96]
    if STAMP:
        BFR = [48, 52, 58]
        vRd = [2, 3, 4, 7, 8, 10, 11, 12]
        vBA, vWr, vRB2, vXW, vOut, vBA2 = 13, 57, 62, 0, 5, 6
        tJ, tQ = 48, 49
    else:
        BFR = [48, 52, 58, 10]
        vRd = [2, 3, 4, 7, 8, 9, 14, 15]
        vBA, vWr, vRB2, vXW, vOut, vBA2 = 1, 57, 62, 0, 5, 6
        tJ, tQ = 48, 49
    NBF = len(BFR)
    PRE = NBF - 1
    XB = [0, ACT]
    a(f"v_and_b32 v{tJ}, 15, v{vLane}")
    a(f"v_lshrrev_b32 v{tQ}, 4, v{vLane}")
    a(f"s_lshl_b32 s4, s{sV}, 11")
    a(f"v_lshl_add_u32 v{vXW}, v{vLane}, 4, s4")
    a(f"s_lshl_b32 s4, s{sV}, 8")
    a(f"s_add_u32 s4, s4, {BIAS}")
    a(f"v_lshl_add_u32 v{vBA}, v{tQ}, 4, s4")
    def bias_ops(p):
        A = ACP[p]
        if p < 3:
            return [("ds", f"ds_read_b128 {vr(A+4*mt,4)}, v{vBA} offset:{64*mt}", f"bias{p}") for mt in range(4)]
        return [("ds", f"ds_read_b128 {vr(A+4*mt,4)}, v{vBA2} offset:{64*mt}", f"bias{p}") for mt in range(2)]
    for op in bias_ops(0) + bias_ops(1):
        emit(op)
    a(f"s_lshl_b32 s4, s{sRot}, 2")
    a(f"v_xor_b32 v{vRB2}, v{tQ}, v{tJ}")
    a(f"v_xor_b32 v{vRd[0]}, s4, v{vRB2}")
    a(f"v_lshlrev_b32 v{vRd[0]}, 4, v{vRd[0]}")
    a(f"v_lshl_or_b32 v{vRd[0]}, v{tJ}, 9, v{vRd[0]}")
    for k in range(1, 8):
        a(f"v_xor_b32 v{vRd[k]}, {64*k}, v{vRd[0]}")
    a(f"v_lshlrev_b32 v{vRB2}, 4, v{vRB2}")
    a(f"v_lshl_or_b32 v{vRB2}, v{tJ}, 10, v{vRB2}")
    a(f"s_and_b32 s4, s{sV}, 1")
    a("s_lshl_b32 s4, s4, 9")
    a(f"v_or_b32 v{vRB2}, s4, v{vRB2}")
    a(f"s_lshl_b32 s4, s{sV}, 3")
    a(f"v_or_b32 v{vWr}, s4, v{tQ}")
    a(f"v_xor_b32 v{vWr}, v{vWr}, v{tJ}")
    a(f"v_lshlrev_b32 v{vWr}, 4, v{vWr}")
    a(f"v_lshl_or_b32 v{vWr}, v{tJ}, 10, v{vWr}")
    a(f"s_lshl_b32 s4, s{sV}, 7")
    a(f"s_add_u32 s4, s4, {BIAS + 2048}")
    a(f"v_lshl_add_u32 v{vBA2}, v{tQ}, 4, s4")
    a("s_lshl_b32 s6, s3, 9")
    a(f"s_lshl_b32 s7, s{sV}, 6")
    a("s_add_u32 s6, s6, s7")
    a(f"v_and_b32 v{vOut}, 1, v{tQ}")
    a(f"v_lshlrev_b32 v{vOut}, 5, v{vOut}")
    a(f"v_lshl_or_b32 v{vOut}, v{tJ}, 9, v{vOut}")
    a(f"v_lshrrev_b32 v{tQ}, 1, v{tQ}")
    a(f"v_lshl_or_b32 v{vOut}, v{tQ}, 4, v{vOut}")
    a(f"v_add_u32 v{vOut}, s6, v{vOut}")
    a("s_movk_i32 s6, 0x2000")
    a("s_movk_i32 s7, 0x4000")
    a("s_waitcnt lgkmcnt(0)")
    lg.clear()
    a("s_barrier")
    st(5)

    steps = [(p, s) for p in range(6) for s in range(8)]
    vR2 = [vRB2, vRd[0], vRd[1], vRd[2]]
    SCR = [vRd[3], vRd[4]]
    vXR = W + 112
    def rd_op(i):
        p, s = steps[i]
        if p < 3:
            return ("ds", f"ds_read_b128 {vr(BFR[i%NBF],4)}, v{vRd[s]} offset:{HH + p*8192}", f"b_{i}")
        return ("ds", f"ds_read_b128 {vr(BFR[i%NBF],4)}, v{vR2[s%4]} offset:{ACT + (p-3)*16384 + (s//4)*256}", f"b_{i}")
    def w2reg(k):
        return W2R + 16 * k if k < 4 else W + 16 * (k - 4)
    def areg(p, s, mt):
        return (W + 16 * s if p < 3 else w2reg(s)) + 4 * mt
    def epi_a(p):
        A = ACP[p]
        ops = []
        if p < 3:
            for aa in range(2):
                m = A + 8 * aa
                ops.append(f"v_cvt_pk_bf16_f32 v{m}, v{m}, v{m+1}")
                ops.append(f"v_cvt_pk_bf16_f32 v{m+1}, v{m+2}, v{m+3}")
                ops.append(f"v_cvt_pk_bf16_f32 v{m+2}, v{m+4}, v{m+5}")
                ops.append(f"v_cvt_pk_bf16_f32 v{m+3}, v{m+6}, v{m+7}")
                for x in range(4):
                    ops.append(f"v_pk_max_i16 v{m+x}, v{m+x}, 0")
                if aa == 1:
                    ops.append(f"v_xor_b32 v{m+4}, 64, v{vWr}")
                    ops.append(("ds", f"ds_write_b128 v{m+4}, {vr(m,4)} offset:{ACT + p*16384}", f"aw{p}"))
                else:
                    ops.append(("ds", f"ds_write_b128 v{vWr}, {vr(m,4)} offset:{ACT + p*16384}", f"aw{p}"))
        else:
            for x in range(2):
                ops.append(("ds", f"ds_write_b128 v{vXW}, {vr(A+8+4*x,4)} offset:{XB[(p-3)%2] + 1024*x}", f"aw{p}"))
        return ops
    def epi_b1(p):
        A = ACP[p]
        return [("ds", f"ds_read_b128 {vr(A+8+4*x,4)}, v{vXR} offset:{XB[(p-3)%2] + 1024*x}", f"xr{p}") for x in range(2)]
    def epi_b2(p):
        A = ACP[p]
        ops = [("wl", f"xr{p}")]
        for x in range(8):
            ops.append(f"v_add_f32 v{A+x}, v{A+x}, v{A+8+x}")
        for x in range(4):
            ops.append(f"v_cvt_pk_bf16_f32 v{A+8+x}, v{A+2*x}, v{A+2*x+1}")
        ops.append("s_nop 1")
        ops.append(f"v_permlane16_swap_b32 v{A+8}, v{A+10}")
        ops.append(f"v_permlane16_swap_b32 v{A+9}, v{A+11}")
        if p > 3:
            ops.append(f"v_add_u32 v{vOut}, 8192, v{vOut}")
        ops.append(("vm", f"buffer_store_dwordx4 {vr(A+8,4)}, v{vOut}, {sr(sOUT,4)}, 0 offen", "out"))
        return ops

    G = lambda p, s, mt=0: (p * 8 + s) * 4 + mt
    streams = []
    def add(name, ops, start=0, dl=10**9, after=None):
        streams.append(dict(name=name, ops=list(ops), start=start, dl=dl, after=after or [], done=None))
    RDL = 8 - PRE
    if opt.get('latel', 1):
        ops = []
        for o in dma_w2l_ops(4, 0) + dma_w2l_ops(5, 1):
            ops += [o, ("skip",)]
        add("dmaL", ops, 1, G(1, 0, 3))
    add("e0", epi_a(0), G(1, 1, 2), G(1, 6, 3))
    add("bias2", [("wl", "aw0")] + bias_ops(2), 0, G(1, 7, 2), after=[("e0", 1)])
    add("bar0", [("bar", ["aw0"])], 0, G(2, RDL - 1, 3), after=[("bias2", 2)])
    add("e1", epi_a(1), G(2, 1, 2), G(3, RDL - 2, 3))
    add("bar1", [("bar", ["aw1"])], 0, G(3, RDL - 1, 3), after=[("e1", 3), ("bar0", 0)])
    add("a2", [f"v_xor_b32 v{vR2[k]}, {64*k}, v{vRB2}" for k in range(1, 4)], G(2, max(0, 2 - PRE) + 1), G(2, RDL - 1, 3))
    add("tr4", [("wv", "w2_4")] + tr_w2_ops(w2reg(4), vTB, 0, "t2_4", SCR), G(2, max(1, 4 - PRE + 1)), G(2, 4, 3))
    add("tr5", [("wv", "w2_5")] + tr_w2_ops(w2reg(5), vTB, 4096, "t2_5", SCR), G(2, 2), G(2, 6, 0), after=[("tr4", 0)])
    add("dma6", [("wl", "t2_4")] + dma_w2l_ops(6, 0), 0, G(2, 7, 0), after=[("tr4", 3)])
    add("dma7", [("wl", "t2_5")] + dma_w2l_ops(7, 1), 0, G(3, 0, 3), after=[("tr5", 3), ("dma6", 0)])
    add("bias3", bias_ops(3), G(2, 5, 1), G(2, 7, 1))
    add("tr6", [("wv", "w2_6")] + tr_w2_ops(w2reg(6), vTB, 0, "t2_6", SCR), G(3, 2), G(3, 5, 0), after=[("dma7", 0)])
    add("tr7", [("wv", "w2_7")] + tr_w2_ops(w2reg(7), vTB, 4096, "t2_7", SCR), G(3, 3), G(3, 6, 0), after=[("tr6", 0)])
    add("bias4", [f"v_xor_b32 v{vXR}, 2048, v{vXW}"] + bias_ops(4), G(3, 0, 1), G(3, 7, 1))
    add("e2", epi_a(2), G(3, 1, 2), G(4, 2, 3))
    add("bias5", bias_ops(5), G(3, 0, 1), G(4, 7, 1))
    add("e3", epi_a(3), G(4, 1, 2), G(4, 2, 3), after=[("bar1", 0)])
    add("bar2", [("bar", ["aw2", "aw3"])], 0, G(4, RDL - 1, 3), after=[("e2", 3), ("e3", 3), ("bar1", 0)])
    add("x3", epi_b1(3), 0, G(4, 6, 0), after=[("bar2", 0)])
    add("f3", epi_b2(3), 0, G(5, 3, 3), after=[("x3", 4)])
    add("e4", epi_a(4), G(5, 1, 2), G(5, 2, 3), after=[("bar2", 0)])
    add("bar3", [("bar", ["aw4", "xr3"])], 0, G(5, 4, 0), after=[("e4", 3), ("x3", 0)])
    add("x4", epi_b1(4), 0, G(5, 5, 0), after=[("bar3", 0)])
    add("f4", epi_b2(4), 0, G(5, 7, 3), after=[("x4", 4), ("f3", 0)])
    byname = {s_['name']: s_ for s_ in streams}

    def ready(s_, g, force=False):
        if not s_['ops']:
            return False
        if g < s_['start']:
            return False
        for nm, dly in s_['after']:
            d = byname[nm]['done']
            if d is None or (g < d + dly and not force):
                return False
        return True
    def force_finish(s_, g):
        for nm, _ in s_['after']:
            force_finish(byname[nm], g)
        if s_['ops']:
            assert g >= s_['start'], (s_['name'], g)
            while s_['ops']:
                emit(s_['ops'].pop(0))
            s_['done'] = g
    BUD = opt.get('bud', 3)
    for i in range(PRE):
        emit(rd_op(i))
    segs = None
    if bars_hint is not None and opt.get('mprio', 1):
        pts = [0] + [b + 1 for b in bars_hint] + [len(steps)]
        segs = {}
        for x, y in zip(pts[:-1], pts[1:]):
            L = y - x
            for k in range(4):
                segs.setdefault(x + k * L // 4, 3 - k)
                segs[x + k * L // 4] = min(segs[x + k * L // 4], 3 - k) if k and (x + k * L // 4) != x else segs[x + k * L // 4]
    for i, (p, s) in enumerate(steps):
        cur_q[0] = i
        if segs and i in segs:
            a(f"s_setprio {segs[i]}")
        tags = [f"b_{i}"]
        if s == 0:
            tags.append(f"bias{p}")
        if p == 3 and s >= 4:
            tags.append(f"t2_{s}")
        wait(ltag=tags)
        for mt in range(4):
            g = i * 4 + mt
            A = ACP[p] + 4 * mt
            c = "0" if (p >= 3 and s == 0 and mt >= 2) else vr(A, 4)
            a(f"v_mfma_f32_16x16x32_bf16 {vr(A,4)}, {vr(areg(p,s,mt),4)}, {vr(BFR[i%NBF],4)}, {c}")
            B_ = opt.get('bud23', 4) if p in (2, 3) else BUD
            bud = (B_ + (g % 2)) // 2
            if mt == 3:
                bud = min(bud, opt.get('bud3', 1))
            if mt == 0 and i + PRE < len(steps):
                bud -= emit(rd_op(i + PRE))
            while bud > 0:
                cand = [s_ for s_ in streams if ready(s_, g)]
                if not cand:
                    break
                s_ = min(cand, key=lambda z: z['dl'] - len(z['ops']))
                bud -= emit(s_['ops'].pop(0))
                if not s_['ops']:
                    s_['done'] = g
            for s_ in streams:
                if s_['ops'] and s_['dl'] <= g:
                    if opt.get('verbose'):
                        print("forced", s_['name'], len(s_['ops']), "ops at", p, s, mt, file=sys.stderr)
                    force_finish(s_, g)
        if p == 2 and s == 7:
            st(6)
    assert all(not s_['ops'] for s_ in streams)
    st(10)
    if opt.get('dly_e'):
        a(f"s_sleep {opt['dly_e']}")
    a("s_nop 7")
    for op in epi_a(5):
        emit(op)
    a("s_waitcnt lgkmcnt(0)")
    lg.clear()
    a("s_barrier")
    for op in epi_b1(5) + epi_b2(5):
        emit(op)
    if STAMP:
        a("s_waitcnt vmcnt(0)")
        st(7)
    a("s_endpgm")

    a.label("AUX")
    vm.clear(); lg.clear()
    a("s_memrealtime s[96:97]")
    a(f"s_and_b32 s{sA}, s2, 7")
    a(f"s_mul_i32 s{sPI}, s{sA}, 5000")
    a(f"s_lshr_b32 s{sB}, s2, 3")
    a("s_waitcnt lgkmcnt(0)")
    srd(a, sDST, 80, E * 4)
    srd(a, sSRC, 78, E * 4)
    srd(a, sX, 76, N * 512)

    def xpf(first, stride, n, vd):
        for r in range(n):
            a(f"v_add_u32 v{vT0}, {first + r*stride}, v{vSeq}")
            a(f"v_subrev_u32 v{vT1}, 40000, v{vT0}")
            a(f"v_min_u32 v{vT0}, v{vT0}, v{vT1}")
            a(f"v_lshlrev_b32 v{vT0}, 7, v{vT0}")
            a(f"buffer_load_dword v{vd+r}, v{vT0}, {sr(sX,4)}, 0 offen")

    a(f"s_cmp_lt_u32 s2, {NPROD}")
    a("s_cbranch_scc1 PROD")
    stamp_setup()
    st(0)
    a(f"s_sub_u32 s{sB}, s{sB}, 4")
    a(f"s_lshl_b32 s{sB}, s{sB}, 9")
    a(f"s_add_u32 s{sPI}, s{sPI}, s{sB}")
    a(f"v_add_u32 v{vSeq}, s{sPI}, v0")
    xpf(0, 1024, NH, 16)
    if STAMP:
        a("s_waitcnt vmcnt(0)")
        st(13)
    a("s_endpgm")
    a.label("PROD")
    a(f"s_mul_i32 s{sA}, s2, {CH*4}")
    for r in range(3):
        if r == 2:
            a(f"s_cmp_lt_u32 s{sW}, 4")
            a("s_cbranch_scc0 P_E2")
        a(f"buffer_load_dwordx4 {vr(16+8*r,4)}, v{vT16}, {sr(sDST,4)}, s{sA} offen")
        a(f"buffer_load_dwordx4 {vr(20+8*r,4)}, v{vT16}, {sr(sSRC,4)}, s{sA} offen")
        if r < 2:
            a(f"s_add_u32 s{sA}, s{sA}, 8192")
    a.label("P_E2")
    vm.issue("edges")
    srd(a, sW2, 88, 256 * 1024)
    srd(a, sDBG, 6, 256)
    srd(a, sWS, 100, CELLS_BYTES)
    a(f"s_or_b32 s{sNode}, s96, 1")
    stamp_setup()
    st(0)
    a(f"s_cmp_eq_u32 s{sW}, 0")
    a("s_cbranch_scc0 P_N")
    a(f"v_mov_b32 v{vT0}, s{sNode}")
    a(f"s_lshl_b32 s{sA}, s2, 2")
    a(f"v_mov_b32 v{vT1}, s{sA}")
    a(f"v_mov_b32 v{vOff}, {NONCE}")
    a("s_mov_b64 exec, 1")
    a(f"buffer_store_dword v{vT0}, v{vT1}, {sr(sDBG,4)}, 0 offen sc1")
    a(f"ds_write_b32 v{vOff}, v{vT0}")
    a("s_mov_b64 exec, -1")
    a.label("P_N")
    a(f"v_mov_b32 v40, {EMPTY}")
    a("v_mov_b32 v41, v40")
    a("v_mov_b32 v42, v40")
    a("v_mov_b32 v43, v40")
    for i in range(7):
        a(f"ds_write_b128 v{vT16}, v[40:43] offset:{IMG + i*8192}")
    a(f"v_lshlrev_b32 v{vT0}, 2, v0")
    a(f"v_mov_b32 v{vT1}, 0")
    a(f"ds_write_b32 v{vT0}, v{vT1} offset:{PCNT}")
    a("v_mov_b32 v44, 1")
    a(f"v_mov_b32 v45, {PCNT + 2040}")
    a(f"s_movk_i32 s{sT}, -48")
    a(f"s_mov_b32 s{sId}, {MHI}")
    a("v_lshrrev_b32 v46, 4, v0")
    a("v_and_b32 v47, 15, v0")
    a("v_lshlrev_b32 v48, 8, v46")
    a("v_lshl_or_b32 v48, v47, 3, v48")
    a("v_lshlrev_b32 v49, 2, v46")
    a("v_lshlrev_b32 v50, 14, v46")
    a("v_lshl_or_b32 v50, v47, 4, v50")
    a(f"s_lshl_b32 s4, s2, 8")
    a(f"v_add_u32 v50, s4, v50")
    a(f"v_mov_b32 v51, {NONCE}")
    a(f"v_mov_b32 v52, {MARK}")
    a("s_waitcnt lgkmcnt(0)")
    a("s_barrier")
    if opt.get('w2touch', 1):
        a(f"s_lshl_b32 s{sA}, s{sB}, 16")
        a(f"v_lshlrev_b32 v{vT0}, 7, v0")
        a(f"buffer_load_dword v60, v{vT0}, {sr(sW2,4)}, s{sA} offen")
        vm.issue("touch")
    a(f"s_mov_b32 s{sA}, 43691")
    a(f"s_lshl_b32 s{sB}, s{sB}, 9")
    a(f"s_add_u32 s{sPI}, s{sPI}, s{sB}")
    a(f"v_add_u32 v{vSeq}, s{sPI}, v0")
    a("ds_read_b32 v53, v51")
    for i in range(7):
        a(f"v_add_u32 v{72+i}, {i*32*16384}, v50")
    a("s_waitcnt lgkmcnt(0)")
    Q1, Q2 = 128, 160
    for i in range(7):
        for q in (Q1, Q2):
            a(f"v_mov_b32 v{q+4*i+1}, v53")
            a(f"v_mov_b32 v{q+4*i+3}, v53")
    wait(vtag="edges")
    st(14)
    def bin_a(r):
        vd, vs, vb, va, vrk = 16 + 8 * r, 20 + 8 * r, 192 + 4 * r, 204 + 4 * r, 216 + 4 * r
        for k in range(4):
            a(f"v_mul_u32_u24 v{vb+k}, s{sA}, v{vd+k}")
            a(f"v_lshrrev_b32 v{vb+k}, 21, v{vb+k}")
            a(f"v_lshlrev_b32 v{va+k}, 2, v{vb+k}")
            a(f"ds_add_rtn_u32 v{vrk+k}, v{va+k}, v44 offset:{PCNT}")
    def bin_a2(r):
        vd, vs, vb, va, vrk = 16 + 8 * r, 20 + 8 * r, 192 + 4 * r, 204 + 4 * r, 216 + 4 * r
        for k in range(4):
            a(f"v_mad_i32_i24 v{vd+k}, v{vb+k}, s{sT}, v{vd+k}")
            a(f"v_lshl_or_b32 v{vs+k}, v{vd+k}, 14, v{vs+k}")
            a(f"v_or_b32 v{vs+k}, s{sId}, v{vs+k}")
            a(f"v_lshlrev_b32 v{vb+k}, 8, v{vb+k}")
    def bin_b(r):
        vd, vs, vb, va, vrk = 16 + 8 * r, 20 + 8 * r, 192 + 4 * r, 204 + 4 * r, 216 + 4 * r
        for k in range(4):
            a(f"v_cmp_gt_u32 vcc, 64, v{vrk+k}")
            a(f"v_lshl_add_u32 v{vb+k}, v{vrk+k}, 2, v{vb+k}")
            a("s_nop 0")
            a(f"v_cndmask_b32 v{vb+k}, v45, v{vb+k}, vcc")
            a(f"ds_write_b32 v{vb+k}, v{vs+k} offset:{IMG}")
    bin_a(0)
    bin_a(1)
    a(f"s_cmp_lt_u32 s{sW}, 4")
    a("s_cbranch_scc0 P_R2")
    a(f"v_cmp_gt_u32 vcc, {CH//4 - 1024}, v0")
    a("s_and_saveexec_b64 s[4:5], vcc")
    bin_a(2)
    bin_a2(2)
    a("s_waitcnt lgkmcnt(0)")
    bin_b(2)
    a("s_mov_b64 exec, s[4:5]")
    a.label("P_R2")
    bin_a2(0)
    bin_a2(1)
    a("s_waitcnt lgkmcnt(0)")
    bin_b(0)
    bin_b(1)
    a("s_waitcnt lgkmcnt(0)")
    a("s_barrier")
    if opt.get('dly_p'):
        a(f"s_sleep {opt['dly_p']}")
    st(15)
    for i in range(7):
        a(f"ds_read_b64 {vr(16+2*i,2)}, v48 offset:{IMG + i*8192}")
        lg.issue(f"c{i}")
    for i in range(7):
        a(f"ds_read_b32 v{64+i}, v49 offset:{PCNT + i*128}")
        lg.issue(f"n{i}")
    for i in range(7):
        d = Q1 + 4 * i
        wait(ltag=f"c{i}")
        a(f"v_mov_b32 v{d}, v{16+2*i}")
        a(f"v_mov_b32 v{d+2}, v{17+2*i}")
        a(f"buffer_store_dwordx4 {vr(d,4)}, v{72+i}, {sr(sWS,4)}, 0 offen sc1")
        a(f"ds_read_b64 {vr(96+2*i,2)}, v48 offset:{IMG + i*8192 + 128}")
        lg.issue(f"d{i}")
    a("s_movk_i32 s6, 0x2000")
    for i in range(7):
        d = Q2 + 4 * i
        wait(ltag=f"d{i}")
        a(f"v_cmp_lt_u32 vcc, 64, v{64+i}")
        a(f"v_mov_b32 v{d+2}, v{97+2*i}")
        a("s_nop 0")
        a(f"v_cndmask_b32 v{d}, v{96+2*i}, v52, vcc")
        a(f"v_cmp_le_u32 vcc, 32, v{64+i}")
        a("s_and_b64 exec, exec, vcc")
        a(f"s_cbranch_scc0 P_SK{i}")
        a(f"buffer_store_dwordx4 {vr(d,4)}, v{72+i}, {sr(sWS,4)}, s6 offen sc1")
        a.label(f"P_SK{i}")
        a("s_mov_b64 exec, -1")
    if STAMP:
        st(1)
        a("s_waitcnt vmcnt(0)")
        st(2)
    a("s_barrier")
    xpf(NH * 1024, 2048, NP, 16)
    if STAMP:
        a("s_waitcnt vmcnt(0)")
        st(13)
    a.label("M_END")
    a("s_endpgm")
    return LDS_TOTAL, bars


def build(opt):
    name = "gather_scatter__isomorphism_gin_2__graph_kernel"
    _, bars = gen_main(Asm(), dict(opt, verbose=0), name)
    b = Asm()
    lds, bars2 = gen_main(b, opt, name, bars)
    assert bars == bars2
    a = Asm()
    a.raw(HEADER.rstrip())
    a.raw(f"; @launch grid=(256,1,1) block=(512,1,1) lds={lds}")
    a.raw('.amdgcn_target "amdgcn-amd-amdhsa--gfx950"')
    a.raw(".text")
    a.l += b.l
    a.raw('.section .rodata,"a"')
    a.raw(kd(name, 256, 102))
    return a.text()

if __name__ == "__main__":
    out = sys.argv[1]
    opt = {}
    for kv in sys.argv[2:]:
        k, v = kv.split("=")
        opt[k] = int(v)
    open(out, "w").write(build(opt))
```

```python
import sys
from gen2 import Asm, Ctr, vr, sr, srd, kd, HEADER

N = 10000
E = 160000
BN = 48
NBLK = 209
NPROD = 32
NHELP = 15
C0 = NPROD + NHELP
CH = E // NPROD
CELLS_BYTES = NBLK * 16384
STAMP_OFF = 0x400000
MAGIC = 0xA5B
MHI = MAGIC << 20
EMPTY = MHI | (63 << 14)
MARK = MHI | (62 << 14)
NPW = 6


def gen_main(a, opt, name, bars_hint=None):
    D = opt.get('depth', 8)
    NH = opt.get('nh', 8)
    NP = opt.get('np', 4)
    STAMP = opt.get('stamp')
    assert D <= 8
    HH = 0
    ACT = 24576
    WST = 73728
    LIST = 65536
    CNT = LIST + 6144
    FLAG = CNT + 56 * 4
    BIAS = WST + 65536
    LDS_TOTAL = BIAS + 3072
    IMG = 0
    PCNT = 57344
    NONCE = PCNT + 2048
    vLane, vC16, vSh, vSeq, vT0, vT1, vOff, vFl = 1, 2, 3, 4, 5, 6, 7, 8
    vAcc = 10
    RING = 16
    vA1, vAS = 48, 52
    vS2, vT16, vLB, vTB = 56, 57, 58, 63
    W2R = 64
    W = 128
    vS1 = 16
    vTR = 20
    vTR2 = 29
    vBI = 44
    sX, sWS, sOUT, sSRC, sDST, sB1, sB2, sW1, sW2, sDBG = 8, 12, 16, 20, 24, 28, 32, 64, 68, 72
    sW, sWB, sA, sB = 36, 37, 38, 39
    sLB, sRot, sWL, sV = 46, 47, 48, 49
    sPC, sPI, sT, sXor, sNode, sId = 50, 51, 52, 53, 54, 55
    sMask = 56
    sM = 76
    sST = 92

    vm = Ctr(63)
    lg = Ctr(15)
    aux = [False]

    def st(idx):
        amp = opt.get('amp')
        if amp is not None and not aux[0]:
            if idx == 0 or idx == amp:
                a("s_memrealtime s[96:97]")
                a("s_waitcnt lgkmcnt(0)")
                lg.clear()
                a(f"s_mov_b32 s{98 if idx == 0 else 99}, s96")
            if idx == 2 and amp in (20, 21):
                for i in range(4):
                    a(f"v_readlane_b32 s{92+i}, v40, {16*i}")
                a("s_nop 3")
                op = "s_min_u32" if amp == 20 else "s_max_u32"
                a(f"{op} s92, s92, s93")
                a(f"{op} s94, s94, s95")
                a(f"{op} s92, s92, s94")
                if amp == 20:
                    a("s_mov_b32 s99, s98")
                    a("s_min_u32 s98, s92, s98")
                else:
                    a("s_max_u32 s99, s92, s98")
        if STAMP:
            a("s_memrealtime s[96:97]" if not opt.get('cyc') else "s_memtime s[96:97]")
            a("s_waitcnt lgkmcnt(0)")
            lg.clear()
            a("v_mov_b32 v14, s96")
            a("v_mov_b32 v15, s97")
            a("s_mov_b64 s[98:99], exec")
            a("s_mov_b64 exec, 1")
            a(f"buffer_store_dwordx2 v[14:15], v9, {sr(sST,4)}, 0 offen offset:{idx*8}")
            vm.issue('st')
            a("s_mov_b64 exec, s[98:99]")

    def wait(vtag=None, ltag=None):
        p = []
        if vtag is not None:
            n = vm.need(vtag)
            if n is not None:
                p.append(f"vmcnt({n})")
        if ltag is not None:
            tags = ltag if isinstance(ltag, (list, tuple)) else [ltag]
            ns = [lg.need(t) for t in tags]
            ns = [n for n in ns if n is not None]
            if ns:
                p.append(f"lgkmcnt({min(ns)})")
        if p:
            a("s_waitcnt " + " ".join(p))
            return True
        return False

    def stamp_setup():
        if STAMP:
            srd(a, sST, 100, 0x1000000)
            a("s_lshl_b32 s96, s2, 4")
            a(f"s_add_u32 s96, s96, s{sW}")
            a("s_lshl_b32 s96, s96, 7")
            a(f"s_add_u32 s96, s96, {STAMP_OFF}")
            a("v_mov_b32 v9, s96")

    a.raw(f".globl {name}")
    a.raw(".p2align 8")
    a.raw(f".type {name},@function")
    a.label(name)
    a("s_cmp_ge_u32 s2, 256")
    a("s_cbranch_scc1 M_END")
    a("s_load_dwordx16 s[76:91], s[0:1], 0")
    a("s_load_dwordx4 s[4:7], s[0:1], 64")
    a("s_load_dwordx2 s[100:101], s[0:1], 80")
    a(f"v_and_b32 v{vLane}, 63, v0")
    a(f"v_lshrrev_b32 v{vT0}, 6, v0")
    a(f"v_lshlrev_b32 v{vT16}, 4, v0")
    a(f"v_readfirstlane_b32 s{sW}, v{vT0}")
    a(f"s_cmp_lt_u32 s2, {C0}")
    a("s_cbranch_scc1 AUX")

    a(f"s_sub_u32 s3, s2, {C0}")
    a(f"s_lshl_b32 s{sLB}, s3, 14")
    a(f"s_mul_i32 s3, s3, {BN}")
    a(f"v_mov_b32 v{vLB}, {LIST}")
    a(f"v_lshrrev_b32 v{vT0}, 3, v0")
    a(f"v_add_u32 v{vT0}, s3, v{vT0}")
    a(f"v_or_b32 v{vT0}, 0xffff0000, v{vT0}")
    a(f"v_and_b32 v{vT1}, 7, v0")
    a(f"v_cmp_eq_u32 vcc, 0, v{vT1}")
    a("v_mov_b32 v37, -1")
    a(f"v_add_u32 v{vOff}, v{vLB}, v{vT16}")
    a(f"v_cndmask_b32 v36, v37, v{vT0}, vcc")
    a("v_cmp_le_u32 vcc, 384, v0")
    a("v_mov_b32 v40, 1")
    a("s_nop 0")
    a("v_cndmask_b32 v36, v36, v40, vcc")
    a("v_cndmask_b32 v37, v37, v40, vcc")
    a("v_cmp_eq_u32 vcc, 398, v0")
    a("v_mov_b32 v38, v37")
    a("v_mov_b32 v39, v37")
    a("v_cndmask_b32 v36, v36, 0, vcc")
    a(f"ds_write_b128 v{vOff}, v[36:39]")
    a(f"s_lshr_b32 s{sRot}, s2, 3")
    a(f"s_and_b32 s{sRot}, s{sRot}, 7")
    a(f"s_lshr_b32 s{sV}, s2, 4")
    a(f"s_and_b32 s{sV}, s{sV}, 4")
    a(f"s_and_b32 s{sA}, s{sRot}, 3")
    a(f"s_or_b32 s{sV}, s{sV}, s{sA}")
    a(f"s_xor_b32 s{sV}, s{sW}, s{sV}")
    a(f"v_bfe_u32 v{vT0}, v{vLane}, 1, 2")
    a(f"v_bfe_u32 v{vT1}, v{vLane}, 4, 1")
    a(f"v_xor_b32 v{vT0}, v{vT0}, v{vT1}")
    a(f"v_lshrrev_b32 v{vT1}, 3, v{vLane}")
    a(f"v_lshlrev_b32 v{vT1}, 10, v{vT1}")
    a(f"v_and_b32 v{vOff}, 1, v{vLane}")
    a(f"v_lshl_or_b32 v{vT1}, v{vOff}, 4, v{vT1}")
    a(f"s_lshl_b32 s{sA}, s{sV}, 7")
    a(f"v_or_b32 v{vT1}, s{sA}, v{vT1}")
    a(f"v_lshl_or_b32 v{vS1}, v{vT0}, 5, v{vT1}")
    a(f"v_xor_b32 v{vS1+1}, 64, v{vS1}")
    a(f"s_lshl_b32 s{sWL}, s{sW}, 13")
    a(f"s_add_u32 s{sWB}, s{sWL}, {WST}")
    a(f"s_lshl_b32 s{sB}, s{sRot}, 15")
    a("s_waitcnt lgkmcnt(0)")
    srd(a, sW1, 84, 256 * 1024)
    a("s_barrier")

    def slot_base(sl):
        return (sWB if sl < 2 else sWL), (sl % 2) * 4096

    def dma_unit(u):
        sb, off = slot_base(u % 4)
        for i in range(4):
            a(f"s_add_u32 m0, s{sb}, {off + i * 1024}")
            if u < 8:
                a(f"s_xor_b32 s{sA}, s{sB}, {(u * 32 + i * 8) * 1024}")
                a(f"buffer_load_dwordx4 v{vS1 + i % 2}, {sr(sW1,4)}, s{sA} offen lds")
            else:
                a(f"s_mov_b32 s{sA}, {((u - 8) * 32 + i * 8) * 512}")
                a(f"buffer_load_dwordx4 v{vS2}, {sr(sW2,4)}, s{sA} offen lds")
            vm.issue(f"u{u}")

    NINF = opt.get('ninf', 3)
    PPRIO = opt.get('pprio', 1)
    stamp_setup()
    st(0)
    if opt.get('dly_c'):
        a(f"s_sleep {opt['dly_c']}")
    if PPRIO:
        a("s_setprio 3")
    dma_unit(0)
    if PPRIO:
        a("s_setprio 2")
    a("s_load_dword s45, s[82:83], 0")
    for u in range(1, NINF):
        dma_unit(u)
    srd(a, sB1, 86, 1024)
    srd(a, sB2, 90, 512)
    a(f"v_lshlrev_b32 v{vC16}, 4, v{vLane}")
    a(f"s_cmp_eq_u32 s{sW}, 2")
    a("s_cbranch_scc0 C_SL2")
    a(f"buffer_load_dwordx4 {vr(vBI,4)}, v{vC16}, {sr(sB1,4)}, 0 offen")
    a.label("C_SL2")
    a(f"s_cmp_eq_u32 s{sW}, 3")
    a("s_cbranch_scc0 C_SL3")
    a(f"buffer_load_dwordx4 {vr(vBI,4)}, v{vC16}, {sr(sB2,4)}, 0 offen")
    a.label("C_SL3")
    a(f"v_lshrrev_b32 v{vT0}, 4, v{vLane}")
    a(f"v_lshlrev_b32 v{vT0}, 10, v{vT0}")
    a(f"v_bfe_u32 v{vT1}, v{vLane}, 2, 2")
    a(f"v_lshl_or_b32 v{vT0}, v{vT1}, 7, v{vT0}")
    a(f"v_and_b32 v{vT1}, 3, v{vLane}")
    a(f"v_lshl_or_b32 v{vT0}, v{vT1}, 3, v{vT0}")
    a(f"v_bfe_u32 v{vT1}, v{vLane}, 3, 2")
    for mt in range(4):
        a(f"v_xor_b32 v{vOff}, {mt}, v{vT1}")
        a(f"v_lshl_add_u32 v{vOff}, v{vOff}, 5, v{vT0}")
        a(f"v_add_u32 v{vTR+mt}, s{sWB}, v{vOff}")
        a(f"v_add_u32 v{vTR+4+mt}, s{sWL}, v{vOff}")

    def setup_a():
        a(f"v_bfe_u32 v{vT1}, v{vLane}, 3, 2")
        a(f"s_and_b32 s{sA}, s{sV}, 1")
        a(f"s_lshl_b32 s{sA}, s{sA}, 1")
        a(f"v_xor_b32 v{vT1}, s{sA}, v{vT1}")
        a(f"v_lshrrev_b32 v{vT0}, 2, v{vLane}")
        a(f"v_lshlrev_b32 v{vT0}, 7, v{vT0}")
        a(f"v_lshl_or_b32 v{vT0}, v{vT1}, 5, v{vT0}")
        a(f"v_and_b32 v{vT1}, 3, v{vLane}")
        a(f"v_lshl_or_b32 v{vT0}, v{vT1}, 3, v{vT0}")
        a(f"v_add_u32 v{vTB}, s{sWB}, v{vT0}")
        a(f"v_add_u32 v{vTR2}, s{sWL}, v{vT0}")
        srd(a, sW2, 88, 256 * 1024)
        a(f"v_bfe_u32 v{vT0}, v{vLane}, 1, 2")
        a(f"v_lshrrev_b32 v{vT1}, 4, v{vLane}")
        a(f"v_xor_b32 v{vT0}, v{vT0}, v{vT1}")
        a(f"v_lshrrev_b32 v{vT1}, 3, v{vLane}")
        a(f"v_lshlrev_b32 v{vT1}, 9, v{vT1}")
        a(f"v_lshl_or_b32 v{vT0}, v{vT0}, 5, v{vT1}")
        a(f"v_and_b32 v{vT1}, 1, v{vLane}")
        a(f"v_lshl_or_b32 v{vT0}, v{vT1}, 4, v{vT0}")
        a(f"s_lshr_b32 s{sA}, s{sV}, 1")
        a(f"s_lshl_b32 s{sA}, s{sA}, 7")
        a(f"s_and_b32 s44, s{sV}, 1")
        a(f"s_lshl_b32 s44, s44, 17")
        a(f"s_or_b32 s{sA}, s{sA}, s44")
        a(f"v_or_b32 v{vS2}, s{sA}, v{vT0}")

    def setup_b():
        srd(a, sX, 76, N * 512)
        srd(a, sDBG, 6, 256)
        srd(a, sWS, 100, CELLS_BYTES)
        srd(a, sOUT, 4, N * 512)
        srd(a, sDST, 80, E * 4)
        srd(a, sSRC, 78, E * 4)

    def setup_c():
        a(f"v_lshrrev_b32 v{vT0}, 4, v{vLane}")
        a(f"v_lshrrev_b32 v{vT1}, 3, v{vLane}")
        a(f"v_xor_b32 v{vT0}, v{vT0}, v{vT1}")
        a(f"v_and_b32 v{vT0}, 1, v{vT0}")
        a(f"v_bfe_u32 v{vT1}, v{vLane}, 1, 2")
        a(f"v_lshl_or_b32 v{vT0}, v{vT0}, 2, v{vT1}")
        a(f"v_and_b32 v{vT1}, 1, v{vLane}")
        a(f"v_lshlrev_b32 v{vT1}, 4, v{vT1}")
        a("s_lshl_b32 s45, s45, 16")
        a("v_mov_b32 v40, s45")
        a("v_add_f32 v40, 1.0, v40")
        a("v_cvt_pk_bf16_f32 v40, v40, v40")
        a("v_and_b32 v40, 0xffff, v40")
        a("v_mov_b32 v41, 0x3f80")
        a(f"v_cmp_gt_u32 vcc, 32, v{vLane}")
        a("s_nop 1")
        a("v_cndmask_b32 v40, v41, v40, vcc")
        a(f"v_lshlrev_b32 v40, v{vT1}, v40")
        a(f"v_lshlrev_b32 v41, v{vT1}, v41")
        for p in range(4):
            a(f"v_cmp_eq_u32 vcc, {p}, v{vT0}")
            a("s_nop 1")
            a(f"v_cndmask_b32 v{vA1+p}, 0, v41, vcc")
            a(f"v_cndmask_b32 v{vAS+p}, 0, v40, vcc")

    def setup_d():
        a(f"v_lshrrev_b32 v{vSh}, 5, v{vLane}")
        a(f"v_lshlrev_b32 v{vSh}, 4, v{vSh}")
        a(f"v_and_b32 v{vT0}, 15, v{vLane}")
        a(f"v_lshlrev_b32 v{vFl}, 4, v{vT0}")
        a(f"v_lshl_or_b32 v{vFl}, v{vSh}, 4, v{vFl}")
        a(f"v_bfe_u32 v{vT0}, v{vLane}, 4, 1")
        a(f"v_lshl_or_b32 v{vFl}, v{vT0}, 3, v{vFl}")
        a(f"v_and_b32 v{vC16}, 31, v{vLane}")
        a(f"v_lshlrev_b32 v{vC16}, 4, v{vC16}")
        a("v_lshrrev_b32 v42, 4, v0")
        a("v_lshlrev_b32 v42, 2, v42")
        a(f"s_add_u32 s{sPI}, s{sLB}, 8192")
        a(f"s_mov_b32 s{sPC}, 0")
        a(f"s_mov_b32 s{sId}, {MHI}")
        a(f"s_mov_b32 s{sT}, {EMPTY}")
        a(f"v_lshrrev_b32 v{vT0}, 1, v{vLane}")
        a(f"v_lshlrev_b32 v{vT0}, 4, v{vT0}")
        a(f"v_and_b32 v{vT1}, 1, v{vLane}")
        a(f"v_or_b32 v{vT0}, v{vT0}, v{vT1}")
        a(f"s_lshl_b32 s{sNode}, s{sW}, 1")
        a(f"v_add_u32 v{vT0}, s{sNode}, v{vT0}")
        a(f"v_cmp_gt_u32 vcc, 6, v{vLane}")
        a(f"v_mov_b32 v{vT1}, 56")
        a("v_mov_b32 v62, 64")
        a(f"v_cndmask_b32 v{vT0}, v{vT1}, v{vT0}, vcc")
        a(f"v_lshl_add_u32 v61, v{vT0}, 2, v{vLB}")
        a(f"s_lshl_b32 s{sA}, s{sW}, 8")
        a(f"v_lshl_add_u32 v{vT1}, v{vLane}, 2, v{vLB}")
        a(f"v_add_u32 v60, s{sA}, v{vT1}")
        a("v_cndmask_b32 v62, 0, v62, vcc")
        set_xor()

    def set_xor():
        a(f"s_lshl_b32 s{sXor}, s{sNode}, 9")
        a(f"s_and_b32 s44, s{sNode}, 15")
        a("s_lshl_b32 s44, s44, 4")
        a(f"s_or_b32 s{sXor}, s{sXor}, s44")

    def bias_to_lds():
        a(f"s_sub_u32 s{sA}, s{sW}, 2")
        a(f"s_cmp_lt_u32 s{sA}, 2")
        a("s_cbranch_scc0 C_NB")
        for x in range(4):
            a(f"v_lshlrev_b32 v{32+2*x}, 16, v{vBI+x}")
            a(f"v_and_b32 v{33+2*x}, 0xffff0000, v{vBI+x}")
        a(f"s_lshl_b32 s{sA}, s{sA}, 11")
        a(f"s_add_u32 s{sA}, s{sA}, {BIAS}")
        a(f"v_lshl_add_u32 v{vOff}, v{vLane}, 5, s{sA}")
        a(f"s_cmp_eq_u32 s{sW}, 3")
        a("s_cbranch_scc0 C_NB2")
        a("s_mov_b64 exec, 0xffffffff")
        a.label("C_NB2")
        a(f"ds_write_b128 v{vOff}, v[32:35]")
        a(f"ds_write_b128 v{vOff}, v[36:39] offset:16")
        a("s_mov_b64 exec, -1")
        a("s_waitcnt lgkmcnt(0)")
        a.label("C_NB")

    def tr_w2_ops(dst, vbase, off, tag, scr):
        ops = []
        for mt in range(4):
            if mt == 0:
                ad = vbase
            else:
                ad = scr[mt % len(scr)]
                ops.append(f"v_xor_b32 v{ad}, {32*mt}, v{vbase}")
            for hf in range(2):
                ops.append(("ds", f"ds_read_b64_tr_b16 {vr(dst+4*mt+2*hf,2)}, v{ad} offset:{off + hf*2048}", tag))
        return ops

    def dma_w2l_ops(k, slot):
        ops = []
        for i in range(4):
            ops.append(("dma", [f"s_add_u32 m0, s{sWB}, {slot * 4096 + i * 1024}",
                                f"s_mov_b32 s{sA}, {(k * 32 + i * 8) * 512}",
                                f"buffer_load_dwordx4 v{vS2}, {sr(sW2,4)}, s{sA} offen lds"], f"w2_{k}"))
        return ops

    bars = []
    cur_q = [0]
    def emit(op):
        if isinstance(op, tuple):
            k = op[0]
            if k == "ds":
                a(op[1]); lg.issue(op[2]); return 1
            if k == "vm":
                a(op[1]); vm.issue(op[2]); return 1
            if k == "dma":
                for l in op[1]:
                    a(l)
                vm.issue(op[2]); return 2
            if k == "skip":
                return 2
            if k == "wl":
                return 1 if wait(ltag=op[1]) else 0
            if k == "wv":
                return 1 if wait(vtag=op[1]) else 0
            if k == "bar":
                wait(ltag=op[1])
                a("s_barrier")
                bars.append(cur_q[0])
                return 2
            raise ValueError(op)
        a(op)
        return 1

    def poll_issue():
        a(f"buffer_load_dword v40, v42, {sr(sDBG,4)}, 0 offen sc1")
        a(f"buffer_load_dwordx4 v[32:35], v{vT16}, {sr(sWS,4)}, s{sLB} offen sc1")
        a(f"buffer_load_dwordx4 v[36:39], v{vT16}, {sr(sWS,4)}, s{sPI} offen sc1")

    def unit_step(u):
        sl = u % 4
        hi = 0 if sl < 2 else 1
        off = (sl % 2) * 4096
        if not opt.get('nowait'):
            wait(vtag=f"u{u}")
        if opt.get('notr'):
            pass
        elif u < 8:
            for mt in range(4):
                for hf in range(2):
                    a(f"ds_read_b64_tr_b16 {vr(W+16*u+4*mt+2*hf,2)}, v{vTR+4*hi+mt} offset:{off + hf*512}")
                    lg.issue(f"t{u}")
        else:
            for op in tr_w2_ops(W2R + 16 * (u - 8), vTB if hi == 0 else vTR2, off, f"t{u}", [30, 31]):
                emit(op)
        nx = u + NINF
        if nx < 12:
            if nx - 4 >= 0:
                wait(ltag=f"t{nx-4}")
            dma_unit(nx)

    DEFER = opt.get('defer', 1)
    a("s_waitcnt lgkmcnt(0)")
    if not DEFER:
        setup_a()
        setup_b()
        setup_c()
        setup_d()
    if opt.get('sync0'):
        a("s_waitcnt vmcnt(0)")
        a("s_barrier")
    PU = opt.get('pu', 9)
    for u in range(12):
        if opt.get('pst') and u in (0, 1, 4, 8):
            st({0: 8, 1: 9, 4: 11, 8: 12}[u])
        if PPRIO and u in (3, 7):
            a(f"s_setprio {1 if u == 3 else 0}")
        unit_step(u)
        if DEFER:
            {0: setup_a, 1: setup_b, 2: setup_c, 5: setup_d}.get(u, lambda: None)()
        if u == NINF:
            bias_to_lds()
        if u == PU:
            poll_issue()
            vm.issue("poll"); vm.issue("poll"); vm.issue("poll")
        if opt.get('latel', 1):
            continue
        if u == 9:
            wait(ltag="t8")
            for op in dma_w2l_ops(4, 0):
                emit(op)
        if u == 10:
            wait(ltag="t9")
            for op in dma_w2l_ops(5, 1):
                emit(op)
    st(1)
    wait(vtag="poll")
    a.label("POLL_CHK")
    for h in range(2):
        b = 32 + 4 * h
        a(f"v_xor_b32 v16, s{sId}, v{b}")
        a(f"v_xor_b32 v17, s{sId}, v{b+2}")
        a("v_or_b32 v16, v16, v17")
        a("v_lshrrev_b32 v16, 20, v16")
        a(f"v_xor_b32 v17, v40, v{b+1}")
        a(f"v_xor_b32 v18, v40, v{b+3}")
        a(f"v_or3_b32 v{20+h}, v16, v17, v18")
    a(f"v_cmp_ne_u32 {sr(sM,2)}, 0, v20")
    a("v_cmp_eq_u32 vcc, 0, v40")
    a(f"s_or_b64 {sr(sM,2)}, {sr(sM,2)}, vcc")
    a(f"v_cmp_ne_u32 {sr(sM+2,2)}, 0, v21")
    a(f"v_cmp_ne_u32 vcc, s{sT}, v34")
    a(f"s_and_b32 s4, vcc_lo, 0x80008000")
    a(f"s_and_b32 s5, vcc_hi, 0x80008000")
    a("s_lshr_b32 s4, s4, 15")
    a("s_lshr_b32 s5, s5, 15")
    a("s_mul_i32 s4, s4, 0xffff")
    a("s_mul_i32 s5, s5, 0xffff")
    a(f"s_and_b64 {sr(sM+2,2)}, {sr(sM+2,2)}, s[4:5]")
    a(f"s_or_b64 {sr(sM,2)}, {sr(sM,2)}, {sr(sM+2,2)}")
    a("s_cbranch_scc1 POLL_RETRY")
    a.label("POLL_OK")
    vm.clear()
    st(2)
    a(f"v_mov_b32 v16, s{sT}")
    a("v_cndmask_b32 v36, v16, v36, s[4:5]")
    a("v_cndmask_b32 v38, v16, v38, s[4:5]")
    a(f"s_mov_b32 s4, {MARK}")
    a("v_mov_b32 v41, 1")
    ent = [32, 34, 36, 38]
    for k in range(4):
        a(f"v_bfe_u32 v{ent[k]+1}, v{ent[k]}, 14, 6")
        a(f"v_lshl_add_u32 v{16+k}, v{ent[k]+1}, 2, v{vLB}")
    for k in range(4):
        if k == 2:
            a("s_mov_b64 exec, -1")
        a(f"v_cmpx_gt_u32 vcc, s4, v{ent[k]}")
        a(f"ds_add_rtn_u32 v{16+k}, v{16+k}, v41 offset:{CNT-LIST}")
        a(f"s_mov_b64 {sr(sM+2*k,2)}, exec")
    a("s_mov_b64 exec, -1")
    a("v_cmp_eq_u32 vcc, s4, v36")
    a("s_and_saveexec_b64 s[6:7], vcc")
    a(f"ds_write_b32 v{vLB}, v41 offset:{FLAG-LIST}")
    a("s_mov_b64 exec, -1")
    for k in range(4):
        a(f"v_and_b32 v{ent[k]}, 0x3fff, v{ent[k]}")
        a(f"v_lshl_add_u32 v{ent[k]+1}, v{ent[k]+1}, 7, v{vLB}")
    a("s_waitcnt lgkmcnt(0)")
    for k in range(4):
        a(f"v_min_u32 v{16+k}, 63, v{16+k}")
        a(f"v_lshl_add_u32 v{ent[k]+1}, v{16+k}, 1, v{ent[k]+1}")
    for k in range(4):
        a(f"s_mov_b64 exec, {sr(sM+2*k,2)}")
        a(f"ds_write_b16 v{ent[k]+1}, v{ent[k]}")
    a("s_mov_b64 exec, -1")
    lg.clear()
    vL = [vSeq, 59, 60]
    vCnt = 61
    sFlush, sJ, sEnd, sLeft = sMask, sMask + 1, sT, sPC
    a(f"s_mov_b32 s{sFlush}, 0")
    a(f"s_mov_b32 s{sJ}, 0")
    a(f"s_mov_b32 s{sPI}, 0")
    a(f"s_mov_b32 s{sLeft}, {NPW}")
    a("s_waitcnt lgkmcnt(0)")
    a("s_barrier")
    a(f"ds_read_b32 v{vCnt}, v61 offset:{CNT-LIST}")
    for i in range(3):
        a(f"ds_read_b32 v{vL[i]}, v60 offset:{2048*i}")
    GPRIO = opt.get('gprio', 1)
    if GPRIO:
        a("s_setprio 3")
    a("s_waitcnt lgkmcnt(2)")
    a(f"v_cmp_gt_u32 vcc, v{vCnt}, v62")
    a(f"v_add_u32 v{vCnt}, 1, v{vCnt}")
    a(f"v_lshrrev_b32 v{vCnt}, 1, v{vCnt}")
    a("s_cmp_lg_u64 vcc, 0")
    a("s_cbranch_scc1 M_SLOW")
    a(f"v_readlane_b32 s{sEnd}, v{vCnt}, 0")
    a("s_waitcnt lgkmcnt(0)")
    st(3)

    def flush():
        a(f"v_xor_b32 v{vT0}, s{sXor}, v{vFl}")
        a(f"v_cvt_pk_bf16_f32 v14, v{vAcc}, v{vAcc+1}")
        a(f"v_cvt_pk_bf16_f32 v15, v{vAcc+2}, v{vAcc+3}")
        a(f"ds_write_b64 v{vT0}, v[14:15] offset:{HH}")
        a(f"s_and_b32 s4, s{sNode}, 1")
        a("s_mul_i32 s4, s4, 14")
        a(f"s_add_u32 s{sNode}, s{sNode}, s4")
        a(f"s_add_u32 s{sNode}, s{sNode}, 1")
        set_xor()

    acc = vr(vAcc, 4)
    def mf_norm(s):
        a(f"v_mfma_f32_16x16x32_bf16 {acc}, {vr(vA1,4)}, {vr(RING+4*s,4)}, {acc}")
    def mf_first(s):
        a(f"v_mfma_f32_16x16x32_bf16 {acc}, {vr(vAS,4)}, {vr(RING+4*s,4)}, 0")
    def issue(s):
        a(f"v_bfe_u32 v{vOff}, s{sId}, v{vSh}, 16")
        a(f"v_lshl_add_u32 v{vOff}, v{vOff}, 9, v{vC16}")
        a(f"buffer_load_dwordx4 {vr(RING+4*s,4)}, v{vOff}, {sr(sX,4)}, 0 offen")
    swn = [0]
    def switch(s, lab_exit):
        a(f"s_bitset1_b32 s{sFlush}, {s}")
        a(f"s_add_u32 s{sJ}, s{sJ}, 1")
        a(f"s_cmp_eq_u32 s{sJ}, {NPW}")
        a(f"s_cbranch_scc1 {lab_exit}")
        a(f"v_readlane_b32 s{sEnd}, v{vCnt}, s{sJ}")
        a(f"s_and_b32 s{sPI}, s{sJ}, 1")
        a(f"s_cselect_b32 s4, 0, -1")
        a(f"s_mov_b32 s5, s4")
        a(f"s_lshl_b32 s{sPI}, s{sPI}, 5")
        a(f"v_cndmask_b32 v{vL[0]}, v{vL[0]}, v{vL[1]}, s[4:5]")
        a(f"v_cndmask_b32 v{vL[1]}, v{vL[1]}, v{vL[2]}, s[4:5]")
        a(f"s_add_u32 s{sEnd}, s{sEnd}, s{sPI}")
        if GPRIO:
            k = swn[0]; swn[0] += 1
            a(f"s_cmp_lt_u32 s{sJ}, 3")
            a(f"s_cbranch_scc1 SWP{k}")
            a("s_setprio 2")
            a(f"s_cmp_lt_u32 s{sJ}, 4")
            a(f"s_cbranch_scc1 SWP{k}")
            a("s_setprio 1")
            a(f"s_cmp_lt_u32 s{sJ}, 5")
            a(f"s_cbranch_scc1 SWP{k}")
            a("s_setprio 0")
            a.label(f"SWP{k}")

    for s in range(D):
        a.label(f"F_{s}")
        a(f"v_readlane_b32 s{sId}, v{vL[0]}, s{sPI}")
        a(f"s_add_u32 s{sPI}, s{sPI}, 1")
        a(f"s_cmp_eq_u32 s{sPI}, s{sEnd}")
        issue(s)
        a(f"s_cbranch_scc1 F_SW{s}")
    a("s_branch G_F0")
    for s in range(D):
        a.label(f"F_SW{s}")
        switch(s, "X_F0")
        a(f"s_branch {'F_%d' % (s+1) if s + 1 < D else 'G_F0'}")
    for s in range(D):
        n = (s + 1) % D
        a.label(f"G_N{s}")
        a(f"s_waitcnt vmcnt({D-1})")
        a(f"v_readlane_b32 s{sId}, v{vL[0]}, s{sPI}")
        mf_norm(s)
        a.label(f"G_C{s}")
        a(f"s_add_u32 s{sPI}, s{sPI}, 1")
        a(f"s_bitcmp1_b32 s{sFlush}, {s}")
        issue(s)
        a(f"s_cbranch_scc1 G_FL{s}")
        a(f"s_cmp_eq_u32 s{sPI}, s{sEnd}")
        a(f"s_cbranch_scc1 G_SN{s}")
        if n == 0:
            a("s_branch G_N0")
    for s in range(D):
        n = (s + 1) % D
        a.label(f"G_SN{s}")
        switch(s, f"X_N{n}")
        a(f"s_branch G_N{n}")
    for s in range(D):
        n = (s + 1) % D
        a.label(f"G_FL{s}")
        a(f"s_bitset0_b32 s{sFlush}, {s}")
        a(f"s_sub_u32 s{sLeft}, s{sLeft}, 1")
        a("s_nop 0")
        flush()
        a(f"s_cmp_eq_u32 s{sPI}, s{sEnd}")
        a(f"s_cbranch_scc0 G_F{n}")
        switch(s, f"X_F{n}")
        a.label(f"G_F{n}")
        a(f"s_waitcnt vmcnt({D-1})")
        a(f"v_readlane_b32 s{sId}, v{vL[0]}, s{sPI}")
        mf_first(n)
        a(f"s_branch G_C{n}")
    for s in range(D):
        a.label(f"X_N{s}")
        a("s_waitcnt vmcnt(0)")
        a(f"s_branch T_N{s}")
        a.label(f"X_F{s}")
        a("s_waitcnt vmcnt(0)")
        a(f"s_branch T_F{s}")
    for s in range(D):
        n = (s + 1) % D
        a.label(f"T_N{s}")
        mf_norm(s)
        a.label(f"T_C{s}")
        a(f"s_bitcmp1_b32 s{sFlush}, {s}")
        a(f"s_cbranch_scc1 T_FL{s}")
        if n == 0:
            a(f"s_cmp_eq_u32 s{sFlush}, 0")
            a("s_cbranch_scc1 M_GDONE")
            a("s_branch T_N0")
    for s in range(D):
        n = (s + 1) % D
        a.label(f"T_FL{s}")
        a(f"s_bitset0_b32 s{sFlush}, {s}")
        a(f"s_sub_u32 s{sLeft}, s{sLeft}, 1")
        a("s_nop 4")
        flush()
        a(f"s_cmp_eq_u32 s{sLeft}, 0")
        a(f"s_cbranch_scc1 M_GDONE")
        a.label(f"T_F{n}")
        mf_first(n)
        a(f"s_branch T_C{n}")

    a.label("POLL_RETRY")
    a(f"s_add_u32 s{sPC}, s{sPC}, 1")
    a(f"s_cmp_lt_u32 s{sPC}, {opt.get('spin', 30000)}")
    a("s_cbranch_scc0 POLL_GIVEUP")
    a(f"s_cmp_eq_u32 s{sPC}, 1")
    a("s_cbranch_scc1 POLL_NOSLEEP")
    a(f"s_sleep {opt.get('psleep', 4)}")
    a.label("POLL_NOSLEEP")
    poll_issue()
    a("s_waitcnt vmcnt(0)")
    a("s_branch POLL_CHK")
    a.label("POLL_GIVEUP")
    a(f"v_mov_b32 v32, {EMPTY}")
    a("v_mov_b32 v34, v32")
    a(f"v_mov_b32 v36, {MARK}")
    a("v_mov_b32 v38, v32")
    a("s_mov_b64 s[4:5], -1")
    a("s_branch POLL_OK")

    a.label("M_SLOW")
    SA = RING + 8
    a("s_waitcnt vmcnt(0) lgkmcnt(0)")
    a(f"v_mov_b32 v{vT0}, 0x7f000000")
    a(f"v_cmp_gt_u32 vcc, 32, v{vLane}")
    a("s_nop 1")
    a(f"v_cndmask_b32 v{vSeq}, v{vT0}, v{vC16}, vcc")
    a(f"s_add_u32 s40, s3, s{sNode}")
    for j in range(NPW):
        a(f"s_add_u32 s4, s40, {16*(j//2) + j%2}")
        a("s_lshl_b32 s4, s4, 9")
        a(f"v_add_u32 v{vOff}, s4, v{vSeq}")
        a(f"buffer_load_dwordx4 {vr(RING,4)}, v{vOff}, {sr(sX,4)}, 0 offen")
        a("s_waitcnt vmcnt(0)")
        a(f"v_mfma_f32_16x16x32_bf16 {vr(SA+4*j,4)}, {vr(vAS,4)}, {vr(RING,4)}, 0")
        a("s_nop 7")
    a(f"v_lshlrev_b32 v{vT0}, 2, v{vLane}")
    a("s_mov_b32 s41, 0")
    a.label("S_LOOP")
    a(f"buffer_load_dword v{RING+4}, v{vT0}, {sr(sDST,4)}, s41 offen")
    a(f"buffer_load_dword v{RING+5}, v{vT0}, {sr(sSRC,4)}, s41 offen")
    a("s_waitcnt vmcnt(0)")
    a(f"v_subrev_u32 v{RING+4}, s40, v{RING+4}")
    a(f"v_and_b32 v{RING+6}, 0xffffffce, v{RING+4}")
    a(f"v_cmp_eq_u32 vcc, 0, v{RING+6}")
    a(f"v_cmp_gt_u32 s[42:43], 48, v{RING+4}")
    a("s_nop 3")
    a("s_and_b64 s[42:43], s[42:43], vcc")
    a.label("S_IN")
    a("s_cmp_eq_u64 s[42:43], 0")
    a("s_cbranch_scc1 S_NEXT")
    a("s_ff1_i32_b64 s44, s[42:43]")
    a("s_bitset0_b64 s[42:43], s44")
    a(f"v_readlane_b32 s45, v{RING+4}, s44")
    a(f"v_readlane_b32 s46, v{RING+5}, s44")
    a("s_nop 3")
    a("s_lshl_b32 s46, s46, 9")
    a(f"v_add_u32 v{vOff}, s46, v{vSeq}")
    a(f"buffer_load_dwordx4 {vr(RING,4)}, v{vOff}, {sr(sX,4)}, 0 offen")
    a("s_waitcnt vmcnt(0)")
    for j in range(NPW):
        if j < NPW - 1:
            a(f"s_cmp_eq_u32 s45, {16*(j//2) + j%2}")
            a(f"s_cbranch_scc0 S_J{j+1}")
        a(f"v_mfma_f32_16x16x32_bf16 {vr(SA+4*j,4)}, {vr(vA1,4)}, {vr(RING,4)}, {vr(SA+4*j,4)}")
        a("s_nop 7")
        a("s_branch S_IN")
        if j < NPW - 1:
            a.label(f"S_J{j+1}")
    a.label("S_NEXT")
    a("s_add_u32 s41, s41, 256")
    a(f"s_cmp_lt_u32 s41, {E*4}")
    a("s_cbranch_scc1 S_LOOP")
    for j in range(NPW):
        for r in range(4):
            a(f"v_mov_b32 v{vAcc+r}, v{SA+4*j+r}")
        flush()

    a.label("M_GDONE")
    vm.clear(); lg.clear()
    st(4)
    ACP = [16, 32, 16, W + 64, W + 80, W + 96]
    if STAMP:
        BFR = [48, 52, 58]
        vRd = [2, 3, 4, 7, 8, 10, 11, 12]
        vBA, vWr, vRB2, vXW, vOut, vBA2 = 13, 57, 62, 0, 5, 6
        tJ, tQ = 48, 49
    else:
        BFR = [48, 52, 58, 10]
        vRd = [2, 3, 4, 7, 8, 9, 14, 15]
        vBA, vWr, vRB2, vXW, vOut, vBA2 = 1, 57, 62, 0, 5, 6
        tJ, tQ = 48, 49
    NBF = len(BFR)
    PRE = NBF - 1
    XB = [0, ACT]
    a(f"v_and_b32 v{tJ}, 15, v{vLane}")
    a(f"v_lshrrev_b32 v{tQ}, 4, v{vLane}")
    a(f"s_lshl_b32 s4, s{sV}, 11")
    a(f"v_lshl_add_u32 v{vXW}, v{vLane}, 4, s4")
    a(f"s_lshl_b32 s4, s{sV}, 8")
    a(f"s_add_u32 s4, s4, {BIAS}")
    a(f"v_lshl_add_u32 v{vBA}, v{tQ}, 4, s4")
    def bias_ops(p):
        A = ACP[p]
        if p < 3:
            return [("ds", f"ds_read_b128 {vr(A+4*mt,4)}, v{vBA} offset:{64*mt}", f"bias{p}") for mt in range(4)]
        return [("ds", f"ds_read_b128 {vr(A+4*mt,4)}, v{vBA2} offset:{64*mt}", f"bias{p}") for mt in range(2)]
    for op in bias_ops(0) + bias_ops(1):
        emit(op)
    a(f"s_lshl_b32 s4, s{sRot}, 2")
    a(f"v_xor_b32 v{vRB2}, v{tQ}, v{tJ}")
    a(f"v_xor_b32 v{vRd[0]}, s4, v{vRB2}")
    a(f"v_lshlrev_b32 v{vRd[0]}, 4, v{vRd[0]}")
    a(f"v_lshl_or_b32 v{vRd[0]}, v{tJ}, 9, v{vRd[0]}")
    for k in range(1, 8):
        a(f"v_xor_b32 v{vRd[k]}, {64*k}, v{vRd[0]}")
    a(f"v_lshlrev_b32 v{vRB2}, 4, v{vRB2}")
    a(f"v_lshl_or_b32 v{vRB2}, v{tJ}, 10, v{vRB2}")
    a(f"s_and_b32 s4, s{sV}, 1")
    a("s_lshl_b32 s4, s4, 9")
    a(f"v_or_b32 v{vRB2}, s4, v{vRB2}")
    a(f"s_lshl_b32 s4, s{sV}, 3")
    a(f"v_or_b32 v{vWr}, s4, v{tQ}")
    a(f"v_xor_b32 v{vWr}, v{vWr}, v{tJ}")
    a(f"v_lshlrev_b32 v{vWr}, 4, v{vWr}")
    a(f"v_lshl_or_b32 v{vWr}, v{tJ}, 10, v{vWr}")
    a(f"s_lshl_b32 s4, s{sV}, 7")
    a(f"s_add_u32 s4, s4, {BIAS + 2048}")
    a(f"v_lshl_add_u32 v{vBA2}, v{tQ}, 4, s4")
    a("s_lshl_b32 s6, s3, 9")
    a(f"s_lshl_b32 s7, s{sV}, 6")
    a("s_add_u32 s6, s6, s7")
    a(f"v_and_b32 v{vOut}, 1, v{tQ}")
    a(f"v_lshlrev_b32 v{vOut}, 5, v{vOut}")
    a(f"v_lshl_or_b32 v{vOut}, v{tJ}, 9, v{vOut}")
    a(f"v_lshrrev_b32 v{tQ}, 1, v{tQ}")
    a(f"v_lshl_or_b32 v{vOut}, v{tQ}, 4, v{vOut}")
    a(f"v_add_u32 v{vOut}, s6, v{vOut}")
    a("s_movk_i32 s6, 0x2000")
    a("s_movk_i32 s7, 0x4000")
    a("s_waitcnt lgkmcnt(0)")
    lg.clear()
    a("s_barrier")
    st(5)

    steps = [(p, s) for p in range(6) for s in range(8)]
    vR2 = [vRB2, vRd[0], vRd[1], vRd[2]]
    SCR = [vRd[3], vRd[4]]
    vXR = W + 112
    def rd_op(i):
        p, s = steps[i]
        if p < 3:
            return ("ds", f"ds_read_b128 {vr(BFR[i%NBF],4)}, v{vRd[s]} offset:{HH + p*8192}", f"b_{i}")
        return ("ds", f"ds_read_b128 {vr(BFR[i%NBF],4)}, v{vR2[s%4]} offset:{ACT + (p-3)*16384 + (s//4)*256}", f"b_{i}")
    def w2reg(k):
        return W2R + 16 * k if k < 4 else W + 16 * (k - 4)
    def areg(p, s, mt):
        return (W + 16 * s if p < 3 else w2reg(s)) + 4 * mt
    def epi_a(p):
        A = ACP[p]
        ops = []
        if p < 3:
            for aa in range(2):
                m = A + 8 * aa
                ops.append(f"v_cvt_pk_bf16_f32 v{m}, v{m}, v{m+1}")
                ops.append(f"v_cvt_pk_bf16_f32 v{m+1}, v{m+2}, v{m+3}")
                ops.append(f"v_cvt_pk_bf16_f32 v{m+2}, v{m+4}, v{m+5}")
                ops.append(f"v_cvt_pk_bf16_f32 v{m+3}, v{m+6}, v{m+7}")
                for x in range(4):
                    ops.append(f"v_pk_max_i16 v{m+x}, v{m+x}, 0")
                if aa == 1:
                    ops.append(f"v_xor_b32 v{m+4}, 64, v{vWr}")
                    ops.append(("ds", f"ds_write_b128 v{m+4}, {vr(m,4)} offset:{ACT + p*16384}", f"aw{p}"))
                else:
                    ops.append(("ds", f"ds_write_b128 v{vWr}, {vr(m,4)} offset:{ACT + p*16384}", f"aw{p}"))
        else:
            for x in range(2):
                ops.append(("ds", f"ds_write_b128 v{vXW}, {vr(A+8+4*x,4)} offset:{XB[(p-3)%2] + 1024*x}", f"aw{p}"))
        return ops
    def epi_b1(p):
        A = ACP[p]
        return [("ds", f"ds_read_b128 {vr(A+8+4*x,4)}, v{vXR} offset:{XB[(p-3)%2] + 1024*x}", f"xr{p}") for x in range(2)]
    def epi_b2(p):
        A = ACP[p]
        ops = [("wl", f"xr{p}")]
        for x in range(8):
            ops.append(f"v_add_f32 v{A+x}, v{A+x}, v{A+8+x}")
        for x in range(4):
            ops.append(f"v_cvt_pk_bf16_f32 v{A+8+x}, v{A+2*x}, v{A+2*x+1}")
        ops.append("s_nop 1")
        ops.append(f"v_permlane16_swap_b32 v{A+8}, v{A+10}")
        ops.append(f"v_permlane16_swap_b32 v{A+9}, v{A+11}")
        if p > 3:
            ops.append(f"v_add_u32 v{vOut}, 8192, v{vOut}")
        ops.append(("vm", f"buffer_store_dwordx4 {vr(A+8,4)}, v{vOut}, {sr(sOUT,4)}, 0 offen", "out"))
        return ops

    G = lambda p, s, mt=0: (p * 8 + s) * 4 + mt
    streams = []
    def add(name, ops, start=0, dl=10**9, after=None):
        streams.append(dict(name=name, ops=list(ops), start=start, dl=dl, after=after or [], done=None))
    RDL = 8 - PRE
    if opt.get('latel', 1):
        ops = []
        for o in dma_w2l_ops(4, 0) + dma_w2l_ops(5, 1):
            ops += [o, ("skip",)]
        add("dmaL", ops, 1, G(1, 0, 3))
    add("e0", epi_a(0), G(1, 1, 2), G(1, 6, 3))
    add("bias2", [("wl", "aw0")] + bias_ops(2), 0, G(1, 7, 2), after=[("e0", 1)])
    add("bar0", [("bar", ["aw0"])], 0, G(2, RDL - 1, 3), after=[("bias2", 2)])
    add("e1", epi_a(1), G(2, 1, 2), G(3, RDL - 2, 3))
    add("bar1", [("bar", ["aw1"])], 0, G(3, RDL - 1, 3), after=[("e1", 3), ("bar0", 0)])
    add("a2", [f"v_xor_b32 v{vR2[k]}, {64*k}, v{vRB2}" for k in range(1, 4)], G(2, max(0, 2 - PRE) + 1), G(2, RDL - 1, 3))
    add("tr4", [("wv", "w2_4")] + tr_w2_ops(w2reg(4), vTB, 0, "t2_4", SCR), G(2, max(1, 4 - PRE + 1)), G(2, 4, 3))
    add("tr5", [("wv", "w2_5")] + tr_w2_ops(w2reg(5), vTB, 4096, "t2_5", SCR), G(2, 2), G(2, 6, 0), after=[("tr4", 0)])
    add("dma6", [("wl", "t2_4")] + dma_w2l_ops(6, 0), 0, G(2, 7, 0), after=[("tr4", 3)])
    add("dma7", [("wl", "t2_5")] + dma_w2l_ops(7, 1), 0, G(3, 0, 3), after=[("tr5", 3), ("dma6", 0)])
    add("bias3", bias_ops(3), G(2, 5, 1), G(2, 7, 1))
    add("tr6", [("wv", "w2_6")] + tr_w2_ops(w2reg(6), vTB, 0, "t2_6", SCR), G(3, 2), G(3, 5, 0), after=[("dma7", 0)])
    add("tr7", [("wv", "w2_7")] + tr_w2_ops(w2reg(7), vTB, 4096, "t2_7", SCR), G(3, 3), G(3, 6, 0), after=[("tr6", 0)])
    add("bias4", [f"v_xor_b32 v{vXR}, 2048, v{vXW}"] + bias_ops(4), G(3, 0, 1), G(3, 7, 1))
    add("e2", epi_a(2), G(3, 1, 2), G(4, 2, 3))
    add("bias5", bias_ops(5), G(3, 0, 1), G(4, 7, 1))
    add("e3", epi_a(3), G(4, 1, 2), G(4, 2, 3), after=[("bar1", 0)])
    add("bar2", [("bar", ["aw2", "aw3"])], 0, G(4, RDL - 1, 3), after=[("e2", 3), ("e3", 3), ("bar1", 0)])
    add("x3", epi_b1(3), 0, G(4, 6, 0), after=[("bar2", 0)])
    add("f3", epi_b2(3), 0, G(5, 3, 3), after=[("x3", 4)])
    add("e4", epi_a(4), G(5, 1, 2), G(5, 2, 3), after=[("bar2", 0)])
    add("bar3", [("bar", ["aw4", "xr3"])], 0, G(5, 4, 0), after=[("e4", 3), ("x3", 0)])
    add("x4", epi_b1(4), 0, G(5, 5, 0), after=[("bar3", 0)])
    add("f4", epi_b2(4), 0, G(5, 7, 3), after=[("x4", 4), ("f3", 0)])
    byname = {s_['name']: s_ for s_ in streams}

    def ready(s_, g, force=False):
        if not s_['ops']:
            return False
        if g < s_['start']:
            return False
        for nm, dly in s_['after']:
            d = byname[nm]['done']
            if d is None or (g < d + dly and not force):
                return False
        return True
    def force_finish(s_, g):
        for nm, _ in s_['after']:
            force_finish(byname[nm], g)
        if s_['ops']:
            assert g >= s_['start'], (s_['name'], g)
            while s_['ops']:
                emit(s_['ops'].pop(0))
            s_['done'] = g
    BUD = opt.get('bud', 3)
    for i in range(PRE):
        emit(rd_op(i))
    segs = None
    if bars_hint is not None and opt.get('mprio', 1):
        pts = [0] + [b + 1 for b in bars_hint] + [len(steps)]
        segs = {}
        for x, y in zip(pts[:-1], pts[1:]):
            L = y - x
            for k in range(4):
                segs.setdefault(x + k * L // 4, 3 - k)
                segs[x + k * L // 4] = min(segs[x + k * L // 4], 3 - k) if k and (x + k * L // 4) != x else segs[x + k * L // 4]
    for i, (p, s) in enumerate(steps):
        cur_q[0] = i
        if segs and i in segs:
            a(f"s_setprio {segs[i]}")
        tags = [f"b_{i}"]
        if s == 0:
            tags.append(f"bias{p}")
        if p == 3 and s >= 4:
            tags.append(f"t2_{s}")
        wait(ltag=tags)
        for mt in range(4):
            g = i * 4 + mt
            A = ACP[p] + 4 * mt
            c = "0" if (p >= 3 and s == 0 and mt >= 2) else vr(A, 4)
            a(f"v_mfma_f32_16x16x32_bf16 {vr(A,4)}, {vr(areg(p,s,mt),4)}, {vr(BFR[i%NBF],4)}, {c}")
            B_ = opt.get('bud23', 4) if p in (2, 3) else BUD
            bud = (B_ + (g % 2)) // 2
            if mt == 3:
                bud = min(bud, opt.get('bud3', 1))
            if mt == 0 and i + PRE < len(steps):
                bud -= emit(rd_op(i + PRE))
            while bud > 0:
                cand = [s_ for s_ in streams if ready(s_, g)]
                if not cand:
                    break
                s_ = min(cand, key=lambda z: z['dl'] - len(z['ops']))
                bud -= emit(s_['ops'].pop(0))
                if not s_['ops']:
                    s_['done'] = g
            for s_ in streams:
                if s_['ops'] and s_['dl'] <= g:
                    if opt.get('verbose'):
                        print("forced", s_['name'], len(s_['ops']), "ops at", p, s, mt, file=sys.stderr)
                    force_finish(s_, g)
        if p == 2 and s == 7:
            st(6)
    assert all(not s_['ops'] for s_ in streams)
    st(10)
    if opt.get('dly_e'):
        a(f"s_sleep {opt['dly_e']}")
    a("s_nop 7")
    for op in epi_a(5):
        emit(op)
    a("s_waitcnt lgkmcnt(0)")
    lg.clear()
    a("s_barrier")
    for op in epi_b1(5) + epi_b2(5):
        emit(op)
    if STAMP:
        a("s_waitcnt vmcnt(0)")
        st(7)
    if opt.get('amp') is not None:
        a("s_waitcnt vmcnt(0)")
        st(7)
        a("s_sub_u32 s99, s99, s98")
        a("s_lshl_b32 s99, s99, 3")
        a("s_min_u32 s99, s99, 100000")
        a("s_memrealtime s[96:97]")
        a("s_waitcnt lgkmcnt(0)")
        a("s_mov_b32 s98, s96")
        a.label("AMP_L")
        a("s_sleep 2")
        a("s_memrealtime s[96:97]")
        a("s_waitcnt lgkmcnt(0)")
        a("s_sub_u32 s96, s96, s98")
        a("s_cmp_lt_u32 s96, s99")
        a("s_cbranch_scc1 AMP_L")
    a("s_endpgm")

    a.label("AUX")
    aux[0] = True
    vm.clear(); lg.clear()
    a("s_memrealtime s[96:97]")
    a(f"s_and_b32 s{sA}, s2, 7")
    a(f"s_mul_i32 s{sPI}, s{sA}, 5000")
    a(f"s_lshr_b32 s{sB}, s2, 3")
    a("s_waitcnt lgkmcnt(0)")
    srd(a, sDST, 80, E * 4)
    srd(a, sSRC, 78, E * 4)
    srd(a, sX, 76, N * 512)

    def xpf(first, stride, n, vd):
        for r in range(n):
            a(f"v_add_u32 v{vT0}, {first + r*stride}, v{vSeq}")
            a(f"v_subrev_u32 v{vT1}, 40000, v{vT0}")
            a(f"v_min_u32 v{vT0}, v{vT0}, v{vT1}")
            a(f"v_lshlrev_b32 v{vT0}, 7, v{vT0}")
            a(f"buffer_load_dword v{vd+r}, v{vT0}, {sr(sX,4)}, 0 offen")

    a(f"s_cmp_lt_u32 s2, {NPROD}")
    a("s_cbranch_scc1 PROD")
    stamp_setup()
    st(0)
    a(f"s_sub_u32 s{sB}, s{sB}, 4")
    a(f"s_lshl_b32 s{sB}, s{sB}, 9")
    a(f"s_add_u32 s{sPI}, s{sPI}, s{sB}")
    a(f"v_add_u32 v{vSeq}, s{sPI}, v0")
    xpf(0, 1024, NH, 16)
    if STAMP:
        a("s_waitcnt vmcnt(0)")
        st(13)
    a("s_endpgm")
    a.label("PROD")
    a(f"s_mul_i32 s{sA}, s2, {CH*4}")
    for r in range(3):
        if r == 2:
            a(f"s_cmp_lt_u32 s{sW}, 4")
            a("s_cbranch_scc0 P_E2")
        a(f"buffer_load_dwordx4 {vr(16+8*r,4)}, v{vT16}, {sr(sDST,4)}, s{sA} offen")
        a(f"buffer_load_dwordx4 {vr(20+8*r,4)}, v{vT16}, {sr(sSRC,4)}, s{sA} offen")
        if r < 2:
            a(f"s_add_u32 s{sA}, s{sA}, 8192")
    a.label("P_E2")
    vm.issue("edges")
    srd(a, sW2, 88, 256 * 1024)
    srd(a, sDBG, 6, 256)
    srd(a, sWS, 100, CELLS_BYTES)
    a(f"s_or_b32 s{sNode}, s96, 1")
    stamp_setup()
    st(0)
    a(f"s_cmp_eq_u32 s{sW}, 0")
    a("s_cbranch_scc0 P_N")
    a(f"v_mov_b32 v{vT0}, s{sNode}")
    a(f"s_lshl_b32 s{sA}, s2, 2")
    a(f"v_mov_b32 v{vT1}, s{sA}")
    a(f"v_mov_b32 v{vOff}, {NONCE}")
    a("s_mov_b64 exec, 1")
    a(f"buffer_store_dword v{vT0}, v{vT1}, {sr(sDBG,4)}, 0 offen sc1")
    a(f"ds_write_b32 v{vOff}, v{vT0}")
    a("s_mov_b64 exec, -1")
    a.label("P_N")
    a(f"v_mov_b32 v40, {EMPTY}")
    a("v_mov_b32 v41, v40")
    a("v_mov_b32 v42, v40")
    a("v_mov_b32 v43, v40")
    for i in range(7):
        a(f"ds_write_b128 v{vT16}, v[40:43] offset:{IMG + i*8192}")
    a(f"v_lshlrev_b32 v{vT0}, 2, v0")
    a(f"v_mov_b32 v{vT1}, 0")
    a(f"ds_write_b32 v{vT0}, v{vT1} offset:{PCNT}")
    a("v_mov_b32 v44, 1")
    a(f"v_mov_b32 v45, {PCNT + 2040}")
    a(f"s_movk_i32 s{sT}, -48")
    a(f"s_mov_b32 s{sId}, {MHI}")
    a("v_lshrrev_b32 v46, 4, v0")
    a("v_and_b32 v47, 15, v0")
    a("v_lshlrev_b32 v48, 8, v46")
    a("v_lshl_or_b32 v48, v47, 3, v48")
    a("v_lshlrev_b32 v49, 2, v46")
    a("v_lshlrev_b32 v50, 14, v46")
    a("v_lshl_or_b32 v50, v47, 4, v50")
    a(f"s_lshl_b32 s4, s2, 8")
    a(f"v_add_u32 v50, s4, v50")
    a(f"v_mov_b32 v51, {NONCE}")
    a(f"v_mov_b32 v52, {MARK}")
    a("s_waitcnt lgkmcnt(0)")
    a("s_barrier")
    if opt.get('w2touch', 1):
        a(f"s_lshl_b32 s{sA}, s{sB}, 16")
        a(f"v_lshlrev_b32 v{vT0}, 7, v0")
        a(f"buffer_load_dword v60, v{vT0}, {sr(sW2,4)}, s{sA} offen")
        vm.issue("touch")
    a(f"s_mov_b32 s{sA}, 43691")
    a(f"s_lshl_b32 s{sB}, s{sB}, 9")
    a(f"s_add_u32 s{sPI}, s{sPI}, s{sB}")
    a(f"v_add_u32 v{vSeq}, s{sPI}, v0")
    a("ds_read_b32 v53, v51")
    for i in range(7):
        a(f"v_add_u32 v{72+i}, {i*32*16384}, v50")
    a("s_waitcnt lgkmcnt(0)")
    Q1, Q2 = 128, 160
    for i in range(7):
        for q in (Q1, Q2):
            a(f"v_mov_b32 v{q+4*i+1}, v53")
            a(f"v_mov_b32 v{q+4*i+3}, v53")
    wait(vtag="edges")
    st(14)
    def bin_a(r):
        vd, vs, vb, va, vrk = 16 + 8 * r, 20 + 8 * r, 192 + 4 * r, 204 + 4 * r, 216 + 4 * r
        for k in range(4):
            a(f"v_mul_u32_u24 v{vb+k}, s{sA}, v{vd+k}")
            a(f"v_lshrrev_b32 v{vb+k}, 21, v{vb+k}")
            a(f"v_lshlrev_b32 v{va+k}, 2, v{vb+k}")
            a(f"ds_add_rtn_u32 v{vrk+k}, v{va+k}, v44 offset:{PCNT}")
    def bin_a2(r):
        vd, vs, vb, va, vrk = 16 + 8 * r, 20 + 8 * r, 192 + 4 * r, 204 + 4 * r, 216 + 4 * r
        for k in range(4):
            a(f"v_mad_i32_i24 v{vd+k}, v{vb+k}, s{sT}, v{vd+k}")
            a(f"v_lshl_or_b32 v{vs+k}, v{vd+k}, 14, v{vs+k}")
            a(f"v_or_b32 v{vs+k}, s{sId}, v{vs+k}")
            a(f"v_lshlrev_b32 v{vb+k}, 8, v{vb+k}")
    def bin_b(r):
        vd, vs, vb, va, vrk = 16 + 8 * r, 20 + 8 * r, 192 + 4 * r, 204 + 4 * r, 216 + 4 * r
        for k in range(4):
            a(f"v_cmp_gt_u32 vcc, 64, v{vrk+k}")
            a(f"v_lshl_add_u32 v{vb+k}, v{vrk+k}, 2, v{vb+k}")
            a("s_nop 0")
            a(f"v_cndmask_b32 v{vb+k}, v45, v{vb+k}, vcc")
            a(f"ds_write_b32 v{vb+k}, v{vs+k} offset:{IMG}")
    bin_a(0)
    bin_a(1)
    a(f"s_cmp_lt_u32 s{sW}, 4")
    a("s_cbranch_scc0 P_R2")
    a(f"v_cmp_gt_u32 vcc, {CH//4 - 1024}, v0")
    a("s_and_saveexec_b64 s[4:5], vcc")
    bin_a(2)
    bin_a2(2)
    a("s_waitcnt lgkmcnt(0)")
    bin_b(2)
    a("s_mov_b64 exec, s[4:5]")
    a.label("P_R2")
    bin_a2(0)
    bin_a2(1)
    a("s_waitcnt lgkmcnt(0)")
    bin_b(0)
    bin_b(1)
    a("s_waitcnt lgkmcnt(0)")
    a("s_barrier")
    if opt.get('dly_p'):
        a(f"s_sleep {opt['dly_p']}")
    st(15)
    for i in range(7):
        a(f"ds_read_b64 {vr(16+2*i,2)}, v48 offset:{IMG + i*8192}")
        lg.issue(f"c{i}")
    for i in range(7):
        a(f"ds_read_b32 v{64+i}, v49 offset:{PCNT + i*128}")
        lg.issue(f"n{i}")
    for i in range(7):
        d = Q1 + 4 * i
        wait(ltag=f"c{i}")
        a(f"v_mov_b32 v{d}, v{16+2*i}")
        a(f"v_mov_b32 v{d+2}, v{17+2*i}")
        a(f"buffer_store_dwordx4 {vr(d,4)}, v{72+i}, {sr(sWS,4)}, 0 offen sc1")
        a(f"ds_read_b64 {vr(96+2*i,2)}, v48 offset:{IMG + i*8192 + 128}")
        lg.issue(f"d{i}")
    a("s_movk_i32 s6, 0x2000")
    for i in range(7):
        d = Q2 + 4 * i
        wait(ltag=f"d{i}")
        a(f"v_cmp_lt_u32 vcc, 64, v{64+i}")
        a(f"v_mov_b32 v{d+2}, v{97+2*i}")
        a("s_nop 0")
        a(f"v_cndmask_b32 v{d}, v{96+2*i}, v52, vcc")
        a(f"v_cmp_le_u32 vcc, 32, v{64+i}")
        a("s_and_b64 exec, exec, vcc")
        a(f"s_cbranch_scc0 P_SK{i}")
        a(f"buffer_store_dwordx4 {vr(d,4)}, v{72+i}, {sr(sWS,4)}, s6 offen sc1")
        a.label(f"P_SK{i}")
        a("s_mov_b64 exec, -1")
    if STAMP:
        st(1)
        a("s_waitcnt vmcnt(0)")
        st(2)
    a("s_barrier")
    xpf(NH * 1024, 2048, NP, 16)
    if STAMP:
        a("s_waitcnt vmcnt(0)")
        st(13)
    a.label("M_END")
    a("s_endpgm")
    return LDS_TOTAL, bars


def build(opt):
    name = "gather_scatter__isomorphism_gin_2__graph_kernel"
    _, bars = gen_main(Asm(), dict(opt, verbose=0), name)
    b = Asm()
    lds, bars2 = gen_main(b, opt, name, bars)
    assert bars == bars2
    a = Asm()
    a.raw(HEADER.rstrip())
    a.raw(f"; @launch grid=(256,1,1) block=(512,1,1) lds={lds}")
    a.raw('.amdgcn_target "amdgcn-amd-amdhsa--gfx950"')
    a.raw(".text")
    a.l += b.l
    a.raw('.section .rodata,"a"')
    a.raw(kd(name, 256, 102))
    return a.text()

if __name__ == "__main__":
    out = sys.argv[1]
    opt = {}
    for kv in sys.argv[2:]:
        k, v = kv.split("=")
        opt[k] = int(v)
    open(out, "w").write(build(opt))
```

```python
import sys
from gen2 import Asm, Ctr, vr, sr, srd, kd, HEADER

N = 10000
E = 160000
BN = 48
NBLK = 209
NPROD = 32
NHELP = 15
C0 = NPROD + NHELP
CH = E // NPROD
CELLS_BYTES = NBLK * 16384
STAMP_OFF = 0x400000
MAGIC = 0xA5B
MHI = MAGIC << 20
EMPTY = MHI | (63 << 14)
MARK = MHI | (62 << 14)
NPW = 6


def gen_main(a, opt, name, bars_hint=None):
    D = opt.get('depth', 8)
    NH = opt.get('nh', 8)
    NP = opt.get('np', 4)
    STAMP = opt.get('stamp')
    assert D <= 8
    HH = 0
    ACT = 24576
    WST = 73728
    LIST = 65536
    CNT = LIST + 6144
    FLAG = CNT + 56 * 4
    BIAS = WST + 65536
    LDS_TOTAL = BIAS + 3072
    IMG = 0
    PCNT = 57344
    NONCE = PCNT + 2048
    vLane, vC16, vSh, vSeq, vT0, vT1, vOff, vFl = 1, 2, 3, 4, 5, 6, 7, 8
    vAcc = 10
    RING = 16
    vA1, vAS = 48, 52
    vS2, vT16, vLB, vTB = 56, 57, 58, 63
    W2R = 64
    W = 128
    vS1 = 16
    vTR = 20
    vTR2 = 29
    vBI = 44
    sX, sWS, sOUT, sSRC, sDST, sB1, sB2, sW1, sW2, sDBG = 8, 12, 16, 20, 24, 28, 32, 64, 68, 72
    sW, sWB, sA, sB = 36, 37, 38, 39
    sLB, sRot, sWL, sV = 46, 47, 48, 49
    sPC, sPI, sT, sXor, sNode, sId = 50, 51, 52, 53, 54, 55
    sMask = 56
    sM = 76
    sST = 92

    vm = Ctr(63)
    lg = Ctr(15)
    aux = [False]

    def st(idx):
        amp = opt.get('amp')
        if amp is not None and not aux[0]:
            if idx == 0 or idx == amp:
                a("s_memrealtime s[96:97]")
                a("s_waitcnt lgkmcnt(0)")
                lg.clear()
                a(f"s_mov_b32 s{98 if idx == 0 else 99}, s96")
                if amp == 30:
                    a("s_mov_b32 s99, s96")
                    a("s_mov_b32 s98, s94")
            if idx == 2 and amp in (20, 21):
                for i in range(4):
                    a(f"v_readlane_b32 s{92+i}, v40, {16*i}")
                a("s_nop 3")
                op = "s_min_u32" if amp == 20 else "s_max_u32"
                a(f"{op} s92, s92, s93")
                a(f"{op} s94, s94, s95")
                a(f"{op} s92, s92, s94")
                if amp == 20:
                    a("s_mov_b32 s99, s98")
                    a("s_min_u32 s98, s92, s98")
                else:
                    a("s_max_u32 s99, s92, s98")
        if STAMP:
            a("s_memrealtime s[96:97]" if not opt.get('cyc') else "s_memtime s[96:97]")
            a("s_waitcnt lgkmcnt(0)")
            lg.clear()
            a("v_mov_b32 v14, s96")
            a("v_mov_b32 v15, s97")
            a("s_mov_b64 s[98:99], exec")
            a("s_mov_b64 exec, 1")
            a(f"buffer_store_dwordx2 v[14:15], v9, {sr(sST,4)}, 0 offen offset:{idx*8}")
            vm.issue('st')
            a("s_mov_b64 exec, s[98:99]")

    def wait(vtag=None, ltag=None):
        p = []
        if vtag is not None:
            n = vm.need(vtag)
            if n is not None:
                p.append(f"vmcnt({n})")
        if ltag is not None:
            tags = ltag if isinstance(ltag, (list, tuple)) else [ltag]
            ns = [lg.need(t) for t in tags]
            ns = [n for n in ns if n is not None]
            if ns:
                p.append(f"lgkmcnt({min(ns)})")
        if p:
            a("s_waitcnt " + " ".join(p))
            return True
        return False

    def stamp_setup():
        if STAMP:
            srd(a, sST, 100, 0x1000000)
            a("s_lshl_b32 s96, s2, 4")
            a(f"s_add_u32 s96, s96, s{sW}")
            a("s_lshl_b32 s96, s96, 7")
            a(f"s_add_u32 s96, s96, {STAMP_OFF}")
            a("v_mov_b32 v9, s96")

    a.raw(f".globl {name}")
    a.raw(".p2align 8")
    a.raw(f".type {name},@function")
    a.label(name)
    if opt.get('amp') == 30:
        a("s_memrealtime s[94:95]")
    a("s_cmp_ge_u32 s2, 256")
    a("s_cbranch_scc1 M_END")
    a("s_load_dwordx16 s[76:91], s[0:1], 0")
    a("s_load_dwordx4 s[4:7], s[0:1], 64")
    a("s_load_dwordx2 s[100:101], s[0:1], 80")
    a(f"v_and_b32 v{vLane}, 63, v0")
    a(f"v_lshrrev_b32 v{vT0}, 6, v0")
    a(f"v_lshlrev_b32 v{vT16}, 4, v0")
    a(f"v_readfirstlane_b32 s{sW}, v{vT0}")
    a(f"s_cmp_lt_u32 s2, {C0}")
    a("s_cbranch_scc1 AUX")

    a(f"s_sub_u32 s3, s2, {C0}")
    a(f"s_lshl_b32 s{sLB}, s3, 14")
    a(f"s_mul_i32 s3, s3, {BN}")
    a(f"v_mov_b32 v{vLB}, {LIST}")
    a(f"v_lshrrev_b32 v{vT0}, 3, v0")
    a(f"v_add_u32 v{vT0}, s3, v{vT0}")
    a(f"v_or_b32 v{vT0}, 0xffff0000, v{vT0}")
    a(f"v_and_b32 v{vT1}, 7, v0")
    a(f"v_cmp_eq_u32 vcc, 0, v{vT1}")
    a("v_mov_b32 v37, -1")
    a(f"v_add_u32 v{vOff}, v{vLB}, v{vT16}")
    a(f"v_cndmask_b32 v36, v37, v{vT0}, vcc")
    a("v_cmp_le_u32 vcc, 384, v0")
    a("v_mov_b32 v40, 1")
    a("s_nop 0")
    a("v_cndmask_b32 v36, v36, v40, vcc")
    a("v_cndmask_b32 v37, v37, v40, vcc")
    a("v_cmp_eq_u32 vcc, 398, v0")
    a("v_mov_b32 v38, v37")
    a("v_mov_b32 v39, v37")
    a("v_cndmask_b32 v36, v36, 0, vcc")
    a(f"ds_write_b128 v{vOff}, v[36:39]")
    a(f"s_lshr_b32 s{sRot}, s2, 3")
    a(f"s_and_b32 s{sRot}, s{sRot}, 7")
    a(f"s_lshr_b32 s{sV}, s2, 4")
    a(f"s_and_b32 s{sV}, s{sV}, 4")
    a(f"s_and_b32 s{sA}, s{sRot}, 3")
    a(f"s_or_b32 s{sV}, s{sV}, s{sA}")
    a(f"s_xor_b32 s{sV}, s{sW}, s{sV}")
    a(f"v_bfe_u32 v{vT0}, v{vLane}, 1, 2")
    a(f"v_bfe_u32 v{vT1}, v{vLane}, 4, 1")
    a(f"v_xor_b32 v{vT0}, v{vT0}, v{vT1}")
    a(f"v_lshrrev_b32 v{vT1}, 3, v{vLane}")
    a(f"v_lshlrev_b32 v{vT1}, 10, v{vT1}")
    a(f"v_and_b32 v{vOff}, 1, v{vLane}")
    a(f"v_lshl_or_b32 v{vT1}, v{vOff}, 4, v{vT1}")
    a(f"s_lshl_b32 s{sA}, s{sV}, 7")
    a(f"v_or_b32 v{vT1}, s{sA}, v{vT1}")
    a(f"v_lshl_or_b32 v{vS1}, v{vT0}, 5, v{vT1}")
    a(f"v_xor_b32 v{vS1+1}, 64, v{vS1}")
    a(f"s_lshl_b32 s{sWL}, s{sW}, 13")
    a(f"s_add_u32 s{sWB}, s{sWL}, {WST}")
    a(f"s_lshl_b32 s{sB}, s{sRot}, 15")
    a("s_waitcnt lgkmcnt(0)")
    srd(a, sW1, 84, 256 * 1024)
    a("s_barrier")

    def slot_base(sl):
        return (sWB if sl < 2 else sWL), (sl % 2) * 4096

    def dma_unit(u):
        sb, off = slot_base(u % 4)
        for i in range(4):
            a(f"s_add_u32 m0, s{sb}, {off + i * 1024}")
            if u < 8:
                a(f"s_xor_b32 s{sA}, s{sB}, {(u * 32 + i * 8) * 1024}")
                a(f"buffer_load_dwordx4 v{vS1 + i % 2}, {sr(sW1,4)}, s{sA} offen lds")
            else:
                a(f"s_mov_b32 s{sA}, {((u - 8) * 32 + i * 8) * 512}")
                a(f"buffer_load_dwordx4 v{vS2}, {sr(sW2,4)}, s{sA} offen lds")
            vm.issue(f"u{u}")

    NINF = opt.get('ninf', 3)
    PPRIO = opt.get('pprio', 1)
    stamp_setup()
    st(0)
    if opt.get('dly_c'):
        a(f"s_sleep {opt['dly_c']}")
    if PPRIO:
        a("s_setprio 3")
    dma_unit(0)
    if PPRIO:
        a("s_setprio 2")
    a("s_load_dword s45, s[82:83], 0")
    for u in range(1, NINF):
        dma_unit(u)
    srd(a, sB1, 86, 1024)
    srd(a, sB2, 90, 512)
    a(f"v_lshlrev_b32 v{vC16}, 4, v{vLane}")
    a(f"s_cmp_eq_u32 s{sW}, 2")
    a("s_cbranch_scc0 C_SL2")
    a(f"buffer_load_dwordx4 {vr(vBI,4)}, v{vC16}, {sr(sB1,4)}, 0 offen")
    a.label("C_SL2")
    a(f"s_cmp_eq_u32 s{sW}, 3")
    a("s_cbranch_scc0 C_SL3")
    a(f"buffer_load_dwordx4 {vr(vBI,4)}, v{vC16}, {sr(sB2,4)}, 0 offen")
    a.label("C_SL3")
    a(f"v_lshrrev_b32 v{vT0}, 4, v{vLane}")
    a(f"v_lshlrev_b32 v{vT0}, 10, v{vT0}")
    a(f"v_bfe_u32 v{vT1}, v{vLane}, 2, 2")
    a(f"v_lshl_or_b32 v{vT0}, v{vT1}, 7, v{vT0}")
    a(f"v_and_b32 v{vT1}, 3, v{vLane}")
    a(f"v_lshl_or_b32 v{vT0}, v{vT1}, 3, v{vT0}")
    a(f"v_bfe_u32 v{vT1}, v{vLane}, 3, 2")
    for mt in range(4):
        a(f"v_xor_b32 v{vOff}, {mt}, v{vT1}")
        a(f"v_lshl_add_u32 v{vOff}, v{vOff}, 5, v{vT0}")
        a(f"v_add_u32 v{vTR+mt}, s{sWB}, v{vOff}")
        a(f"v_add_u32 v{vTR+4+mt}, s{sWL}, v{vOff}")

    def setup_a():
        a(f"v_bfe_u32 v{vT1}, v{vLane}, 3, 2")
        a(f"s_and_b32 s{sA}, s{sV}, 1")
        a(f"s_lshl_b32 s{sA}, s{sA}, 1")
        a(f"v_xor_b32 v{vT1}, s{sA}, v{vT1}")
        a(f"v_lshrrev_b32 v{vT0}, 2, v{vLane}")
        a(f"v_lshlrev_b32 v{vT0}, 7, v{vT0}")
        a(f"v_lshl_or_b32 v{vT0}, v{vT1}, 5, v{vT0}")
        a(f"v_and_b32 v{vT1}, 3, v{vLane}")
        a(f"v_lshl_or_b32 v{vT0}, v{vT1}, 3, v{vT0}")
        a(f"v_add_u32 v{vTB}, s{sWB}, v{vT0}")
        a(f"v_add_u32 v{vTR2}, s{sWL}, v{vT0}")
        srd(a, sW2, 88, 256 * 1024)
        a(f"v_bfe_u32 v{vT0}, v{vLane}, 1, 2")
        a(f"v_lshrrev_b32 v{vT1}, 4, v{vLane}")
        a(f"v_xor_b32 v{vT0}, v{vT0}, v{vT1}")
        a(f"v_lshrrev_b32 v{vT1}, 3, v{vLane}")
        a(f"v_lshlrev_b32 v{vT1}, 9, v{vT1}")
        a(f"v_lshl_or_b32 v{vT0}, v{vT0}, 5, v{vT1}")
        a(f"v_and_b32 v{vT1}, 1, v{vLane}")
        a(f"v_lshl_or_b32 v{vT0}, v{vT1}, 4, v{vT0}")
        a(f"s_lshr_b32 s{sA}, s{sV}, 1")
        a(f"s_lshl_b32 s{sA}, s{sA}, 7")
        a(f"s_and_b32 s44, s{sV}, 1")
        a(f"s_lshl_b32 s44, s44, 17")
        a(f"s_or_b32 s{sA}, s{sA}, s44")
        a(f"v_or_b32 v{vS2}, s{sA}, v{vT0}")

    def setup_b():
        srd(a, sX, 76, N * 512)
        srd(a, sDBG, 6, 256)
        srd(a, sWS, 100, CELLS_BYTES)
        srd(a, sOUT, 4, N * 512)
        srd(a, sDST, 80, E * 4)
        srd(a, sSRC, 78, E * 4)

    def setup_c():
        a(f"v_lshrrev_b32 v{vT0}, 4, v{vLane}")
        a(f"v_lshrrev_b32 v{vT1}, 3, v{vLane}")
        a(f"v_xor_b32 v{vT0}, v{vT0}, v{vT1}")
        a(f"v_and_b32 v{vT0}, 1, v{vT0}")
        a(f"v_bfe_u32 v{vT1}, v{vLane}, 1, 2")
        a(f"v_lshl_or_b32 v{vT0}, v{vT0}, 2, v{vT1}")
        a(f"v_and_b32 v{vT1}, 1, v{vLane}")
        a(f"v_lshlrev_b32 v{vT1}, 4, v{vT1}")
        a("s_lshl_b32 s45, s45, 16")
        a("v_mov_b32 v40, s45")
        a("v_add_f32 v40, 1.0, v40")
        a("v_cvt_pk_bf16_f32 v40, v40, v40")
        a("v_and_b32 v40, 0xffff, v40")
        a("v_mov_b32 v41, 0x3f80")
        a(f"v_cmp_gt_u32 vcc, 32, v{vLane}")
        a("s_nop 1")
        a("v_cndmask_b32 v40, v41, v40, vcc")
        a(f"v_lshlrev_b32 v40, v{vT1}, v40")
        a(f"v_lshlrev_b32 v41, v{vT1}, v41")
        for p in range(4):
            a(f"v_cmp_eq_u32 vcc, {p}, v{vT0}")
            a("s_nop 1")
            a(f"v_cndmask_b32 v{vA1+p}, 0, v41, vcc")
            a(f"v_cndmask_b32 v{vAS+p}, 0, v40, vcc")

    def setup_d():
        a(f"v_lshrrev_b32 v{vSh}, 5, v{vLane}")
        a(f"v_lshlrev_b32 v{vSh}, 4, v{vSh}")
        a(f"v_and_b32 v{vT0}, 15, v{vLane}")
        a(f"v_lshlrev_b32 v{vFl}, 4, v{vT0}")
        a(f"v_lshl_or_b32 v{vFl}, v{vSh}, 4, v{vFl}")
        a(f"v_bfe_u32 v{vT0}, v{vLane}, 4, 1")
        a(f"v_lshl_or_b32 v{vFl}, v{vT0}, 3, v{vFl}")
        a(f"v_and_b32 v{vC16}, 31, v{vLane}")
        a(f"v_lshlrev_b32 v{vC16}, 4, v{vC16}")
        a("v_lshrrev_b32 v42, 4, v0")
        a("v_lshlrev_b32 v42, 2, v42")
        a(f"s_add_u32 s{sPI}, s{sLB}, 8192")
        a(f"s_mov_b32 s{sPC}, 0")
        a(f"s_mov_b32 s{sId}, {MHI}")
        a(f"s_mov_b32 s{sT}, {EMPTY}")
        a(f"v_lshrrev_b32 v{vT0}, 1, v{vLane}")
        a(f"v_lshlrev_b32 v{vT0}, 4, v{vT0}")
        a(f"v_and_b32 v{vT1}, 1, v{vLane}")
        a(f"v_or_b32 v{vT0}, v{vT0}, v{vT1}")
        a(f"s_lshl_b32 s{sNode}, s{sW}, 1")
        a(f"v_add_u32 v{vT0}, s{sNode}, v{vT0}")
        a(f"v_cmp_gt_u32 vcc, 6, v{vLane}")
        a(f"v_mov_b32 v{vT1}, 56")
        a("v_mov_b32 v62, 64")
        a(f"v_cndmask_b32 v{vT0}, v{vT1}, v{vT0}, vcc")
        a(f"v_lshl_add_u32 v61, v{vT0}, 2, v{vLB}")
        a(f"s_lshl_b32 s{sA}, s{sW}, 8")
        a(f"v_lshl_add_u32 v{vT1}, v{vLane}, 2, v{vLB}")
        a(f"v_add_u32 v60, s{sA}, v{vT1}")
        a("v_cndmask_b32 v62, 0, v62, vcc")
        set_xor()

    def set_xor():
        a(f"s_lshl_b32 s{sXor}, s{sNode}, 9")
        a(f"s_and_b32 s44, s{sNode}, 15")
        a("s_lshl_b32 s44, s44, 4")
        a(f"s_or_b32 s{sXor}, s{sXor}, s44")

    def bias_to_lds():
        a(f"s_sub_u32 s{sA}, s{sW}, 2")
        a(f"s_cmp_lt_u32 s{sA}, 2")
        a("s_cbranch_scc0 C_NB")
        for x in range(4):
            a(f"v_lshlrev_b32 v{32+2*x}, 16, v{vBI+x}")
            a(f"v_and_b32 v{33+2*x}, 0xffff0000, v{vBI+x}")
        a(f"s_lshl_b32 s{sA}, s{sA}, 11")
        a(f"s_add_u32 s{sA}, s{sA}, {BIAS}")
        a(f"v_lshl_add_u32 v{vOff}, v{vLane}, 5, s{sA}")
        a(f"s_cmp_eq_u32 s{sW}, 3")
        a("s_cbranch_scc0 C_NB2")
        a("s_mov_b64 exec, 0xffffffff")
        a.label("C_NB2")
        a(f"ds_write_b128 v{vOff}, v[32:35]")
        a(f"ds_write_b128 v{vOff}, v[36:39] offset:16")
        a("s_mov_b64 exec, -1")
        a("s_waitcnt lgkmcnt(0)")
        a.label("C_NB")

    def tr_w2_ops(dst, vbase, off, tag, scr):
        ops = []
        for mt in range(4):
            if mt == 0:
                ad = vbase
            else:
                ad = scr[mt % len(scr)]
                ops.append(f"v_xor_b32 v{ad}, {32*mt}, v{vbase}")
            for hf in range(2):
                ops.append(("ds", f"ds_read_b64_tr_b16 {vr(dst+4*mt+2*hf,2)}, v{ad} offset:{off + hf*2048}", tag))
        return ops

    def dma_w2l_ops(k, slot):
        ops = []
        for i in range(4):
            ops.append(("dma", [f"s_add_u32 m0, s{sWB}, {slot * 4096 + i * 1024}",
                                f"s_mov_b32 s{sA}, {(k * 32 + i * 8) * 512}",
                                f"buffer_load_dwordx4 v{vS2}, {sr(sW2,4)}, s{sA} offen lds"], f"w2_{k}"))
        return ops

    bars = []
    cur_q = [0]
    def emit(op):
        if isinstance(op, tuple):
            k = op[0]
            if k == "ds":
                a(op[1]); lg.issue(op[2]); return 1
            if k == "vm":
                a(op[1]); vm.issue(op[2]); return 1
            if k == "dma":
                for l in op[1]:
                    a(l)
                vm.issue(op[2]); return 2
            if k == "skip":
                return 2
            if k == "wl":
                return 1 if wait(ltag=op[1]) else 0
            if k == "wv":
                return 1 if wait(vtag=op[1]) else 0
            if k == "bar":
                wait(ltag=op[1])
                a("s_barrier")
                bars.append(cur_q[0])
                return 2
            raise ValueError(op)
        a(op)
        return 1

    def poll_issue():
        a(f"buffer_load_dword v40, v42, {sr(sDBG,4)}, 0 offen sc1")
        a(f"buffer_load_dwordx4 v[32:35], v{vT16}, {sr(sWS,4)}, s{sLB} offen sc1")
        a(f"buffer_load_dwordx4 v[36:39], v{vT16}, {sr(sWS,4)}, s{sPI} offen sc1")

    def unit_step(u):
        sl = u % 4
        hi = 0 if sl < 2 else 1
        off = (sl % 2) * 4096
        if not opt.get('nowait'):
            wait(vtag=f"u{u}")
        if opt.get('notr'):
            pass
        elif u < 8:
            for mt in range(4):
                for hf in range(2):
                    a(f"ds_read_b64_tr_b16 {vr(W+16*u+4*mt+2*hf,2)}, v{vTR+4*hi+mt} offset:{off + hf*512}")
                    lg.issue(f"t{u}")
        else:
            for op in tr_w2_ops(W2R + 16 * (u - 8), vTB if hi == 0 else vTR2, off, f"t{u}", [30, 31]):
                emit(op)
        nx = u + NINF
        if nx < 12:
            if nx - 4 >= 0:
                wait(ltag=f"t{nx-4}")
            dma_unit(nx)

    DEFER = opt.get('defer', 1)
    a("s_waitcnt lgkmcnt(0)")
    if not DEFER:
        setup_a()
        setup_b()
        setup_c()
        setup_d()
    if opt.get('sync0'):
        a("s_waitcnt vmcnt(0)")
        a("s_barrier")
    PU = opt.get('pu', 9)
    for u in range(12):
        if opt.get('pst') and u in (0, 1, 4, 8):
            st({0: 8, 1: 9, 4: 11, 8: 12}[u])
        if PPRIO and u in (3, 7):
            a(f"s_setprio {1 if u == 3 else 0}")
        unit_step(u)
        if DEFER:
            {0: setup_a, 1: setup_b, 2: setup_c, 5: setup_d}.get(u, lambda: None)()
        if u == NINF:
            bias_to_lds()
        if u == PU:
            poll_issue()
            vm.issue("poll"); vm.issue("poll"); vm.issue("poll")
        if opt.get('latel', 1):
            continue
        if u == 9:
            wait(ltag="t8")
            for op in dma_w2l_ops(4, 0):
                emit(op)
        if u == 10:
            wait(ltag="t9")
            for op in dma_w2l_ops(5, 1):
                emit(op)
    st(1)
    wait(vtag="poll")
    a.label("POLL_CHK")
    for h in range(2):
        b = 32 + 4 * h
        a(f"v_xor_b32 v16, s{sId}, v{b}")
        a(f"v_xor_b32 v17, s{sId}, v{b+2}")
        a("v_or_b32 v16, v16, v17")
        a("v_lshrrev_b32 v16, 20, v16")
        a(f"v_xor_b32 v17, v40, v{b+1}")
        a(f"v_xor_b32 v18, v40, v{b+3}")
        a(f"v_or3_b32 v{20+h}, v16, v17, v18")
    a(f"v_cmp_ne_u32 {sr(sM,2)}, 0, v20")
    a("v_cmp_eq_u32 vcc, 0, v40")
    a(f"s_or_b64 {sr(sM,2)}, {sr(sM,2)}, vcc")
    a(f"v_cmp_ne_u32 {sr(sM+2,2)}, 0, v21")
    a(f"v_cmp_ne_u32 vcc, s{sT}, v34")
    a(f"s_and_b32 s4, vcc_lo, 0x80008000")
    a(f"s_and_b32 s5, vcc_hi, 0x80008000")
    a("s_lshr_b32 s4, s4, 15")
    a("s_lshr_b32 s5, s5, 15")
    a("s_mul_i32 s4, s4, 0xffff")
    a("s_mul_i32 s5, s5, 0xffff")
    a(f"s_and_b64 {sr(sM+2,2)}, {sr(sM+2,2)}, s[4:5]")
    a(f"s_or_b64 {sr(sM,2)}, {sr(sM,2)}, {sr(sM+2,2)}")
    a("s_cbranch_scc1 POLL_RETRY")
    a.label("POLL_OK")
    vm.clear()
    st(2)
    a(f"v_mov_b32 v16, s{sT}")
    a("v_cndmask_b32 v36, v16, v36, s[4:5]")
    a("v_cndmask_b32 v38, v16, v38, s[4:5]")
    a(f"s_mov_b32 s4, {MARK}")
    a("v_mov_b32 v41, 1")
    ent = [32, 34, 36, 38]
    for k in range(4):
        a(f"v_bfe_u32 v{ent[k]+1}, v{ent[k]}, 14, 6")
        a(f"v_lshl_add_u32 v{16+k}, v{ent[k]+1}, 2, v{vLB}")
    for k in range(4):
        if k == 2:
            a("s_mov_b64 exec, -1")
        a(f"v_cmpx_gt_u32 vcc, s4, v{ent[k]}")
        a(f"ds_add_rtn_u32 v{16+k}, v{16+k}, v41 offset:{CNT-LIST}")
        a(f"s_mov_b64 {sr(sM+2*k,2)}, exec")
    a("s_mov_b64 exec, -1")
    a("v_cmp_eq_u32 vcc, s4, v36")
    a("s_and_saveexec_b64 s[6:7], vcc")
    a(f"ds_write_b32 v{vLB}, v41 offset:{FLAG-LIST}")
    a("s_mov_b64 exec, -1")
    for k in range(4):
        a(f"v_and_b32 v{ent[k]}, 0x3fff, v{ent[k]}")
        a(f"v_lshl_add_u32 v{ent[k]+1}, v{ent[k]+1}, 7, v{vLB}")
    a("s_waitcnt lgkmcnt(0)")
    for k in range(4):
        a(f"v_min_u32 v{16+k}, 63, v{16+k}")
        a(f"v_lshl_add_u32 v{ent[k]+1}, v{16+k}, 1, v{ent[k]+1}")
    for k in range(4):
        a(f"s_mov_b64 exec, {sr(sM+2*k,2)}")
        a(f"ds_write_b16 v{ent[k]+1}, v{ent[k]}")
    a("s_mov_b64 exec, -1")
    lg.clear()
    vL = [vSeq, 59, 60]
    vCnt = 61
    sFlush, sJ, sEnd, sLeft = sMask, sMask + 1, sT, sPC
    a(f"s_mov_b32 s{sFlush}, 0")
    a(f"s_mov_b32 s{sJ}, 0")
    a(f"s_mov_b32 s{sPI}, 0")
    a(f"s_mov_b32 s{sLeft}, {NPW}")
    a("s_waitcnt lgkmcnt(0)")
    a("s_barrier")
    a(f"ds_read_b32 v{vCnt}, v61 offset:{CNT-LIST}")
    for i in range(3):
        a(f"ds_read_b32 v{vL[i]}, v60 offset:{2048*i}")
    GPRIO = opt.get('gprio', 1)
    if GPRIO:
        a("s_setprio 3")
    a("s_waitcnt lgkmcnt(2)")
    a(f"v_cmp_gt_u32 vcc, v{vCnt}, v62")
    a(f"v_add_u32 v{vCnt}, 1, v{vCnt}")
    a(f"v_lshrrev_b32 v{vCnt}, 1, v{vCnt}")
    a("s_cmp_lg_u64 vcc, 0")
    a("s_cbranch_scc1 M_SLOW")
    a(f"v_readlane_b32 s{sEnd}, v{vCnt}, 0")
    a("s_waitcnt lgkmcnt(0)")
    st(3)

    def flush():
        a(f"v_xor_b32 v{vT0}, s{sXor}, v{vFl}")
        a(f"v_cvt_pk_bf16_f32 v14, v{vAcc}, v{vAcc+1}")
        a(f"v_cvt_pk_bf16_f32 v15, v{vAcc+2}, v{vAcc+3}")
        a(f"ds_write_b64 v{vT0}, v[14:15] offset:{HH}")
        a(f"s_and_b32 s4, s{sNode}, 1")
        a("s_mul_i32 s4, s4, 14")
        a(f"s_add_u32 s{sNode}, s{sNode}, s4")
        a(f"s_add_u32 s{sNode}, s{sNode}, 1")
        set_xor()

    acc = vr(vAcc, 4)
    def mf_norm(s):
        a(f"v_mfma_f32_16x16x32_bf16 {acc}, {vr(vA1,4)}, {vr(RING+4*s,4)}, {acc}")
    def mf_first(s):
        a(f"v_mfma_f32_16x16x32_bf16 {acc}, {vr(vAS,4)}, {vr(RING+4*s,4)}, 0")
    def issue(s):
        a(f"v_bfe_u32 v{vOff}, s{sId}, v{vSh}, 16")
        a(f"v_lshl_add_u32 v{vOff}, v{vOff}, 9, v{vC16}")
        a(f"buffer_load_dwordx4 {vr(RING+4*s,4)}, v{vOff}, {sr(sX,4)}, 0 offen")
    swn = [0]
    def switch(s, lab_exit):
        a(f"s_bitset1_b32 s{sFlush}, {s}")
        a(f"s_add_u32 s{sJ}, s{sJ}, 1")
        a(f"s_cmp_eq_u32 s{sJ}, {NPW}")
        a(f"s_cbranch_scc1 {lab_exit}")
        a(f"v_readlane_b32 s{sEnd}, v{vCnt}, s{sJ}")
        a(f"s_and_b32 s{sPI}, s{sJ}, 1")
        a(f"s_cselect_b32 s4, 0, -1")
        a(f"s_mov_b32 s5, s4")
        a(f"s_lshl_b32 s{sPI}, s{sPI}, 5")
        a(f"v_cndmask_b32 v{vL[0]}, v{vL[0]}, v{vL[1]}, s[4:5]")
        a(f"v_cndmask_b32 v{vL[1]}, v{vL[1]}, v{vL[2]}, s[4:5]")
        a(f"s_add_u32 s{sEnd}, s{sEnd}, s{sPI}")
        if GPRIO:
            k = swn[0]; swn[0] += 1
            a(f"s_cmp_lt_u32 s{sJ}, 3")
            a(f"s_cbranch_scc1 SWP{k}")
            a("s_setprio 2")
            a(f"s_cmp_lt_u32 s{sJ}, 4")
            a(f"s_cbranch_scc1 SWP{k}")
            a("s_setprio 1")
            a(f"s_cmp_lt_u32 s{sJ}, 5")
            a(f"s_cbranch_scc1 SWP{k}")
            a("s_setprio 0")
            a.label(f"SWP{k}")

    for s in range(D):
        a.label(f"F_{s}")
        a(f"v_readlane_b32 s{sId}, v{vL[0]}, s{sPI}")
        a(f"s_add_u32 s{sPI}, s{sPI}, 1")
        a(f"s_cmp_eq_u32 s{sPI}, s{sEnd}")
        issue(s)
        a(f"s_cbranch_scc1 F_SW{s}")
    a("s_branch G_F0")
    for s in range(D):
        a.label(f"F_SW{s}")
        switch(s, "X_F0")
        a(f"s_branch {'F_%d' % (s+1) if s + 1 < D else 'G_F0'}")
    for s in range(D):
        n = (s + 1) % D
        a.label(f"G_N{s}")
        a(f"s_waitcnt vmcnt({D-1})")
        a(f"v_readlane_b32 s{sId}, v{vL[0]}, s{sPI}")
        mf_norm(s)
        a.label(f"G_C{s}")
        a(f"s_add_u32 s{sPI}, s{sPI}, 1")
        a(f"s_bitcmp1_b32 s{sFlush}, {s}")
        issue(s)
        a(f"s_cbranch_scc1 G_FL{s}")
        a(f"s_cmp_eq_u32 s{sPI}, s{sEnd}")
        a(f"s_cbranch_scc1 G_SN{s}")
        if n == 0:
            a("s_branch G_N0")
    for s in range(D):
        n = (s + 1) % D
        a.label(f"G_SN{s}")
        switch(s, f"X_N{n}")
        a(f"s_branch G_N{n}")
    for s in range(D):
        n = (s + 1) % D
        a.label(f"G_FL{s}")
        a(f"s_bitset0_b32 s{sFlush}, {s}")
        a(f"s_sub_u32 s{sLeft}, s{sLeft}, 1")
        a("s_nop 0")
        flush()
        a(f"s_cmp_eq_u32 s{sPI}, s{sEnd}")
        a(f"s_cbranch_scc0 G_F{n}")
        switch(s, f"X_F{n}")
        a.label(f"G_F{n}")
        a(f"s_waitcnt vmcnt({D-1})")
        a(f"v_readlane_b32 s{sId}, v{vL[0]}, s{sPI}")
        mf_first(n)
        a(f"s_branch G_C{n}")
    for s in range(D):
        a.label(f"X_N{s}")
        a("s_waitcnt vmcnt(0)")
        a(f"s_branch T_N{s}")
        a.label(f"X_F{s}")
        a("s_waitcnt vmcnt(0)")
        a(f"s_branch T_F{s}")
    for s in range(D):
        n = (s + 1) % D
        a.label(f"T_N{s}")
        mf_norm(s)
        a.label(f"T_C{s}")
        a(f"s_bitcmp1_b32 s{sFlush}, {s}")
        a(f"s_cbranch_scc1 T_FL{s}")
        if n == 0:
            a(f"s_cmp_eq_u32 s{sFlush}, 0")
            a("s_cbranch_scc1 M_GDONE")
            a("s_branch T_N0")
    for s in range(D):
        n = (s + 1) % D
        a.label(f"T_FL{s}")
        a(f"s_bitset0_b32 s{sFlush}, {s}")
        a(f"s_sub_u32 s{sLeft}, s{sLeft}, 1")
        a("s_nop 4")
        flush()
        a(f"s_cmp_eq_u32 s{sLeft}, 0")
        a(f"s_cbranch_scc1 M_GDONE")
        a.label(f"T_F{n}")
        mf_first(n)
        a(f"s_branch T_C{n}")

    a.label("POLL_RETRY")
    a(f"s_add_u32 s{sPC}, s{sPC}, 1")
    a(f"s_cmp_lt_u32 s{sPC}, {opt.get('spin', 30000)}")
    a("s_cbranch_scc0 POLL_GIVEUP")
    a(f"s_cmp_eq_u32 s{sPC}, 1")
    a("s_cbranch_scc1 POLL_NOSLEEP")
    a(f"s_sleep {opt.get('psleep', 4)}")
    a.label("POLL_NOSLEEP")
    poll_issue()
    a("s_waitcnt vmcnt(0)")
    a("s_branch POLL_CHK")
    a.label("POLL_GIVEUP")
    a(f"v_mov_b32 v32, {EMPTY}")
    a("v_mov_b32 v34, v32")
    a(f"v_mov_b32 v36, {MARK}")
    a("v_mov_b32 v38, v32")
    a("s_mov_b64 s[4:5], -1")
    a("s_branch POLL_OK")

    a.label("M_SLOW")
    SA = RING + 8
    a("s_waitcnt vmcnt(0) lgkmcnt(0)")
    a(f"v_mov_b32 v{vT0}, 0x7f000000")
    a(f"v_cmp_gt_u32 vcc, 32, v{vLane}")
    a("s_nop 1")
    a(f"v_cndmask_b32 v{vSeq}, v{vT0}, v{vC16}, vcc")
    a(f"s_add_u32 s40, s3, s{sNode}")
    for j in range(NPW):
        a(f"s_add_u32 s4, s40, {16*(j//2) + j%2}")
        a("s_lshl_b32 s4, s4, 9")
        a(f"v_add_u32 v{vOff}, s4, v{vSeq}")
        a(f"buffer_load_dwordx4 {vr(RING,4)}, v{vOff}, {sr(sX,4)}, 0 offen")
        a("s_waitcnt vmcnt(0)")
        a(f"v_mfma_f32_16x16x32_bf16 {vr(SA+4*j,4)}, {vr(vAS,4)}, {vr(RING,4)}, 0")
        a("s_nop 7")
    a(f"v_lshlrev_b32 v{vT0}, 2, v{vLane}")
    a("s_mov_b32 s41, 0")
    a.label("S_LOOP")
    a(f"buffer_load_dword v{RING+4}, v{vT0}, {sr(sDST,4)}, s41 offen")
    a(f"buffer_load_dword v{RING+5}, v{vT0}, {sr(sSRC,4)}, s41 offen")
    a("s_waitcnt vmcnt(0)")
    a(f"v_subrev_u32 v{RING+4}, s40, v{RING+4}")
    a(f"v_and_b32 v{RING+6}, 0xffffffce, v{RING+4}")
    a(f"v_cmp_eq_u32 vcc, 0, v{RING+6}")
    a(f"v_cmp_gt_u32 s[42:43], 48, v{RING+4}")
    a("s_nop 3")
    a("s_and_b64 s[42:43], s[42:43], vcc")
    a.label("S_IN")
    a("s_cmp_eq_u64 s[42:43], 0")
    a("s_cbranch_scc1 S_NEXT")
    a("s_ff1_i32_b64 s44, s[42:43]")
    a("s_bitset0_b64 s[42:43], s44")
    a(f"v_readlane_b32 s45, v{RING+4}, s44")
    a(f"v_readlane_b32 s46, v{RING+5}, s44")
    a("s_nop 3")
    a("s_lshl_b32 s46, s46, 9")
    a(f"v_add_u32 v{vOff}, s46, v{vSeq}")
    a(f"buffer_load_dwordx4 {vr(RING,4)}, v{vOff}, {sr(sX,4)}, 0 offen")
    a("s_waitcnt vmcnt(0)")
    for j in range(NPW):
        if j < NPW - 1:
            a(f"s_cmp_eq_u32 s45, {16*(j//2) + j%2}")
            a(f"s_cbranch_scc0 S_J{j+1}")
        a(f"v_mfma_f32_16x16x32_bf16 {vr(SA+4*j,4)}, {vr(vA1,4)}, {vr(RING,4)}, {vr(SA+4*j,4)}")
        a("s_nop 7")
        a("s_branch S_IN")
        if j < NPW - 1:
            a.label(f"S_J{j+1}")
    a.label("S_NEXT")
    a("s_add_u32 s41, s41, 256")
    a(f"s_cmp_lt_u32 s41, {E*4}")
    a("s_cbranch_scc1 S_LOOP")
    for j in range(NPW):
        for r in range(4):
            a(f"v_mov_b32 v{vAcc+r}, v{SA+4*j+r}")
        flush()

    a.label("M_GDONE")
    vm.clear(); lg.clear()
    st(4)
    ACP = [16, 32, 16, W + 64, W + 80, W + 96]
    if STAMP:
        BFR = [48, 52, 58]
        vRd = [2, 3, 4, 7, 8, 10, 11, 12]
        vBA, vWr, vRB2, vXW, vOut, vBA2 = 13, 57, 62, 0, 5, 6
        tJ, tQ = 48, 49
    else:
        BFR = [48, 52, 58, 10]
        vRd = [2, 3, 4, 7, 8, 9, 14, 15]
        vBA, vWr, vRB2, vXW, vOut, vBA2 = 1, 57, 62, 0, 5, 6
        tJ, tQ = 48, 49
    NBF = len(BFR)
    PRE = NBF - 1
    XB = [0, ACT]
    a(f"v_and_b32 v{tJ}, 15, v{vLane}")
    a(f"v_lshrrev_b32 v{tQ}, 4, v{vLane}")
    a(f"s_lshl_b32 s4, s{sV}, 11")
    a(f"v_lshl_add_u32 v{vXW}, v{vLane}, 4, s4")
    a(f"s_lshl_b32 s4, s{sV}, 8")
    a(f"s_add_u32 s4, s4, {BIAS}")
    a(f"v_lshl_add_u32 v{vBA}, v{tQ}, 4, s4")
    def bias_ops(p):
        A = ACP[p]
        if p < 3:
            return [("ds", f"ds_read_b128 {vr(A+4*mt,4)}, v{vBA} offset:{64*mt}", f"bias{p}") for mt in range(4)]
        return [("ds", f"ds_read_b128 {vr(A+4*mt,4)}, v{vBA2} offset:{64*mt}", f"bias{p}") for mt in range(2)]
    for op in bias_ops(0) + bias_ops(1):
        emit(op)
    a(f"s_lshl_b32 s4, s{sRot}, 2")
    a(f"v_xor_b32 v{vRB2}, v{tQ}, v{tJ}")
    a(f"v_xor_b32 v{vRd[0]}, s4, v{vRB2}")
    a(f"v_lshlrev_b32 v{vRd[0]}, 4, v{vRd[0]}")
    a(f"v_lshl_or_b32 v{vRd[0]}, v{tJ}, 9, v{vRd[0]}")
    for k in range(1, 8):
        a(f"v_xor_b32 v{vRd[k]}, {64*k}, v{vRd[0]}")
    a(f"v_lshlrev_b32 v{vRB2}, 4, v{vRB2}")
    a(f"v_lshl_or_b32 v{vRB2}, v{tJ}, 10, v{vRB2}")
    a(f"s_and_b32 s4, s{sV}, 1")
    a("s_lshl_b32 s4, s4, 9")
    a(f"v_or_b32 v{vRB2}, s4, v{vRB2}")
    a(f"s_lshl_b32 s4, s{sV}, 3")
    a(f"v_or_b32 v{vWr}, s4, v{tQ}")
    a(f"v_xor_b32 v{vWr}, v{vWr}, v{tJ}")
    a(f"v_lshlrev_b32 v{vWr}, 4, v{vWr}")
    a(f"v_lshl_or_b32 v{vWr}, v{tJ}, 10, v{vWr}")
    a(f"s_lshl_b32 s4, s{sV}, 7")
    a(f"s_add_u32 s4, s4, {BIAS + 2048}")
    a(f"v_lshl_add_u32 v{vBA2}, v{tQ}, 4, s4")
    a("s_lshl_b32 s6, s3, 9")
    a(f"s_lshl_b32 s7, s{sV}, 6")
    a("s_add_u32 s6, s6, s7")
    a(f"v_and_b32 v{vOut}, 1, v{tQ}")
    a(f"v_lshlrev_b32 v{vOut}, 5, v{vOut}")
    a(f"v_lshl_or_b32 v{vOut}, v{tJ}, 9, v{vOut}")
    a(f"v_lshrrev_b32 v{tQ}, 1, v{tQ}")
    a(f"v_lshl_or_b32 v{vOut}, v{tQ}, 4, v{vOut}")
    a(f"v_add_u32 v{vOut}, s6, v{vOut}")
    a("s_movk_i32 s6, 0x2000")
    a("s_movk_i32 s7, 0x4000")
    a("s_waitcnt lgkmcnt(0)")
    lg.clear()
    a("s_barrier")
    st(5)

    steps = [(p, s) for p in range(6) for s in range(8)]
    vR2 = [vRB2, vRd[0], vRd[1], vRd[2]]
    SCR = [vRd[3], vRd[4]]
    vXR = W + 112
    def rd_op(i):
        p, s = steps[i]
        if p < 3:
            return ("ds", f"ds_read_b128 {vr(BFR[i%NBF],4)}, v{vRd[s]} offset:{HH + p*8192}", f"b_{i}")
        return ("ds", f"ds_read_b128 {vr(BFR[i%NBF],4)}, v{vR2[s%4]} offset:{ACT + (p-3)*16384 + (s//4)*256}", f"b_{i}")
    def w2reg(k):
        return W2R + 16 * k if k < 4 else W + 16 * (k - 4)
    def areg(p, s, mt):
        return (W + 16 * s if p < 3 else w2reg(s)) + 4 * mt
    def epi_a(p):
        A = ACP[p]
        ops = []
        if p < 3:
            for aa in range(2):
                m = A + 8 * aa
                ops.append(f"v_cvt_pk_bf16_f32 v{m}, v{m}, v{m+1}")
                ops.append(f"v_cvt_pk_bf16_f32 v{m+1}, v{m+2}, v{m+3}")
                ops.append(f"v_cvt_pk_bf16_f32 v{m+2}, v{m+4}, v{m+5}")
                ops.append(f"v_cvt_pk_bf16_f32 v{m+3}, v{m+6}, v{m+7}")
                for x in range(4):
                    ops.append(f"v_pk_max_i16 v{m+x}, v{m+x}, 0")
                if aa == 1:
                    ops.append(f"v_xor_b32 v{m+4}, 64, v{vWr}")
                    ops.append(("ds", f"ds_write_b128 v{m+4}, {vr(m,4)} offset:{ACT + p*16384}", f"aw{p}"))
                else:
                    ops.append(("ds", f"ds_write_b128 v{vWr}, {vr(m,4)} offset:{ACT + p*16384}", f"aw{p}"))
        else:
            for x in range(2):
                ops.append(("ds", f"ds_write_b128 v{vXW}, {vr(A+8+4*x,4)} offset:{XB[(p-3)%2] + 1024*x}", f"aw{p}"))
        return ops
    def epi_b1(p):
        A = ACP[p]
        return [("ds", f"ds_read_b128 {vr(A+8+4*x,4)}, v{vXR} offset:{XB[(p-3)%2] + 1024*x}", f"xr{p}") for x in range(2)]
    def epi_b2(p):
        A = ACP[p]
        ops = [("wl", f"xr{p}")]
        for x in range(8):
            ops.append(f"v_add_f32 v{A+x}, v{A+x}, v{A+8+x}")
        for x in range(4):
            ops.append(f"v_cvt_pk_bf16_f32 v{A+8+x}, v{A+2*x}, v{A+2*x+1}")
        ops.append("s_nop 1")
        ops.append(f"v_permlane16_swap_b32 v{A+8}, v{A+10}")
        ops.append(f"v_permlane16_swap_b32 v{A+9}, v{A+11}")
        if p > 3:
            ops.append(f"v_add_u32 v{vOut}, 8192, v{vOut}")
        ops.append(("vm", f"buffer_store_dwordx4 {vr(A+8,4)}, v{vOut}, {sr(sOUT,4)}, 0 offen" + ["", " sc1", " nt", " sc0 sc1", " sc1 nt"][opt.get('ost', 0)], "out"))
        return ops

    G = lambda p, s, mt=0: (p * 8 + s) * 4 + mt
    streams = []
    def add(name, ops, start=0, dl=10**9, after=None):
        streams.append(dict(name=name, ops=list(ops), start=start, dl=dl, after=after or [], done=None))
    RDL = 8 - PRE
    if opt.get('latel', 1):
        ops = []
        for o in dma_w2l_ops(4, 0) + dma_w2l_ops(5, 1):
            ops += [o, ("skip",)]
        add("dmaL", ops, 1, G(1, 0, 3))
    add("e0", epi_a(0), G(1, 1, 2), G(1, 6, 3))
    add("bias2", [("wl", "aw0")] + bias_ops(2), 0, G(1, 7, 2), after=[("e0", 1)])
    add("bar0", [("bar", ["aw0"])], 0, G(2, RDL - 1, 3), after=[("bias2", 2)])
    add("e1", epi_a(1), G(2, 1, 2), G(3, RDL - 2, 3))
    add("bar1", [("bar", ["aw1"])], 0, G(3, RDL - 1, 3), after=[("e1", 3), ("bar0", 0)])
    add("a2", [f"v_xor_b32 v{vR2[k]}, {64*k}, v{vRB2}" for k in range(1, 4)], G(2, max(0, 2 - PRE) + 1), G(2, RDL - 1, 3))
    add("tr4", [("wv", "w2_4")] + tr_w2_ops(w2reg(4), vTB, 0, "t2_4", SCR), G(2, max(1, 4 - PRE + 1)), G(2, 4, 3))
    add("tr5", [("wv", "w2_5")] + tr_w2_ops(w2reg(5), vTB, 4096, "t2_5", SCR), G(2, 2), G(2, 6, 0), after=[("tr4", 0)])
    add("dma6", [("wl", "t2_4")] + dma_w2l_ops(6, 0), 0, G(2, 7, 0), after=[("tr4", 3)])
    add("dma7", [("wl", "t2_5")] + dma_w2l_ops(7, 1), 0, G(3, 0, 3), after=[("tr5", 3), ("dma6", 0)])
    add("bias3", bias_ops(3), G(2, 5, 1), G(2, 7, 1))
    add("tr6", [("wv", "w2_6")] + tr_w2_ops(w2reg(6), vTB, 0, "t2_6", SCR), G(3, 2), G(3, 5, 0), after=[("dma7", 0)])
    add("tr7", [("wv", "w2_7")] + tr_w2_ops(w2reg(7), vTB, 4096, "t2_7", SCR), G(3, 3), G(3, 6, 0), after=[("tr6", 0)])
    add("bias4", [f"v_xor_b32 v{vXR}, 2048, v{vXW}"] + bias_ops(4), G(3, 0, 1), G(3, 7, 1))
    add("e2", epi_a(2), G(3, 1, 2), G(4, 2, 3))
    add("bias5", bias_ops(5), G(3, 0, 1), G(4, 7, 1))
    add("e3", epi_a(3), G(4, 1, 2), G(4, 2, 3), after=[("bar1", 0)])
    add("bar2", [("bar", ["aw2", "aw3"])], 0, G(4, RDL - 1, 3), after=[("e2", 3), ("e3", 3), ("bar1", 0)])
    add("x3", epi_b1(3), 0, G(4, 6, 0), after=[("bar2", 0)])
    add("f3", epi_b2(3), 0, G(5, 3, 3), after=[("x3", 4)])
    add("e4", epi_a(4), G(5, 1, 2), G(5, 2, 3), after=[("bar2", 0)])
    add("bar3", [("bar", ["aw4", "xr3"])], 0, G(5, 4, 0), after=[("e4", 3), ("x3", 0)])
    add("x4", epi_b1(4), 0, G(5, 5, 0), after=[("bar3", 0)])
    add("f4", epi_b2(4), 0, G(5, 7, 3), after=[("x4", 4), ("f3", 0)])
    byname = {s_['name']: s_ for s_ in streams}

    def ready(s_, g, force=False):
        if not s_['ops']:
            return False
        if g < s_['start']:
            return False
        for nm, dly in s_['after']:
            d = byname[nm]['done']
            if d is None or (g < d + dly and not force):
                return False
        return True
    def force_finish(s_, g):
        for nm, _ in s_['after']:
            force_finish(byname[nm], g)
        if s_['ops']:
            assert g >= s_['start'], (s_['name'], g)
            while s_['ops']:
                emit(s_['ops'].pop(0))
            s_['done'] = g
    BUD = opt.get('bud', 3)
    for i in range(PRE):
        emit(rd_op(i))
    segs = None
    if bars_hint is not None and opt.get('mprio', 1):
        pts = [0] + [b + 1 for b in bars_hint] + [len(steps)]
        segs = {}
        for x, y in zip(pts[:-1], pts[1:]):
            L = y - x
            for k in range(4):
                segs.setdefault(x + k * L // 4, 3 - k)
                segs[x + k * L // 4] = min(segs[x + k * L // 4], 3 - k) if k and (x + k * L // 4) != x else segs[x + k * L // 4]
    for i, (p, s) in enumerate(steps):
        cur_q[0] = i
        if segs and i in segs:
            a(f"s_setprio {segs[i]}")
        tags = [f"b_{i}"]
        if s == 0:
            tags.append(f"bias{p}")
        if p == 3 and s >= 4:
            tags.append(f"t2_{s}")
        wait(ltag=tags)
        for mt in range(4):
            g = i * 4 + mt
            A = ACP[p] + 4 * mt
            c = "0" if (p >= 3 and s == 0 and mt >= 2) else vr(A, 4)
            a(f"v_mfma_f32_16x16x32_bf16 {vr(A,4)}, {vr(areg(p,s,mt),4)}, {vr(BFR[i%NBF],4)}, {c}")
            B_ = opt.get('bud23', 4) if p in (2, 3) else BUD
            bud = (B_ + (g % 2)) // 2
            if mt == 3:
                bud = min(bud, opt.get('bud3', 1))
            if mt == 0 and i + PRE < len(steps):
                bud -= emit(rd_op(i + PRE))
            while bud > 0:
                cand = [s_ for s_ in streams if ready(s_, g)]
                if not cand:
                    break
                s_ = min(cand, key=lambda z: z['dl'] - len(z['ops']))
                bud -= emit(s_['ops'].pop(0))
                if not s_['ops']:
                    s_['done'] = g
            for s_ in streams:
                if s_['ops'] and s_['dl'] <= g:
                    if opt.get('verbose'):
                        print("forced", s_['name'], len(s_['ops']), "ops at", p, s, mt, file=sys.stderr)
                    force_finish(s_, g)
        if p == 2 and s == 7:
            st(6)
    assert all(not s_['ops'] for s_ in streams)
    st(10)
    if opt.get('dly_e'):
        a(f"s_sleep {opt['dly_e']}")
    a("s_nop 7")
    for op in epi_a(5):
        emit(op)
    a("s_waitcnt lgkmcnt(0)")
    lg.clear()
    a("s_barrier")
    for op in epi_b1(5) + epi_b2(5):
        emit(op)
    if STAMP:
        a("s_waitcnt vmcnt(0)")
        st(7)
    if opt.get('amp') is not None:
        a("s_waitcnt vmcnt(0)")
        st(7)
        a("s_sub_u32 s99, s99, s98")
        a("s_lshl_b32 s99, s99, 3")
        a("s_min_u32 s99, s99, 100000")
        a("s_memrealtime s[96:97]")
        a("s_waitcnt lgkmcnt(0)")
        a("s_mov_b32 s98, s96")
        a.label("AMP_L")
        a("s_sleep 2")
        a("s_memrealtime s[96:97]")
        a("s_waitcnt lgkmcnt(0)")
        a("s_sub_u32 s96, s96, s98")
        a("s_cmp_lt_u32 s96, s99")
        a("s_cbranch_scc1 AMP_L")
    a("s_endpgm")

    a.label("AUX")
    aux[0] = True
    vm.clear(); lg.clear()
    a("s_memrealtime s[96:97]")
    a(f"s_and_b32 s{sA}, s2, 7")
    a(f"s_mul_i32 s{sPI}, s{sA}, 5000")
    a(f"s_lshr_b32 s{sB}, s2, 3")
    a("s_waitcnt lgkmcnt(0)")
    srd(a, sDST, 80, E * 4)
    srd(a, sSRC, 78, E * 4)
    srd(a, sX, 76, N * 512)

    def xpf(first, stride, n, vd):
        for r in range(n):
            a(f"v_add_u32 v{vT0}, {first + r*stride}, v{vSeq}")
            a(f"v_subrev_u32 v{vT1}, 40000, v{vT0}")
            a(f"v_min_u32 v{vT0}, v{vT0}, v{vT1}")
            a(f"v_lshlrev_b32 v{vT0}, 7, v{vT0}")
            a(f"buffer_load_dword v{vd+r}, v{vT0}, {sr(sX,4)}, 0 offen")

    a(f"s_cmp_lt_u32 s2, {NPROD}")
    a("s_cbranch_scc1 PROD")
    stamp_setup()
    st(0)
    a(f"s_sub_u32 s{sB}, s{sB}, 4")
    a(f"s_lshl_b32 s{sB}, s{sB}, 9")
    a(f"s_add_u32 s{sPI}, s{sPI}, s{sB}")
    a(f"v_add_u32 v{vSeq}, s{sPI}, v0")
    xpf(0, 1024, NH, 16)
    if STAMP:
        a("s_waitcnt vmcnt(0)")
        st(13)
    a("s_endpgm")
    a.label("PROD")
    a(f"s_mul_i32 s{sA}, s2, {CH*4}")
    for r in range(3):
        if r == 2:
            a(f"s_cmp_lt_u32 s{sW}, 4")
            a("s_cbranch_scc0 P_E2")
        a(f"buffer_load_dwordx4 {vr(16+8*r,4)}, v{vT16}, {sr(sDST,4)}, s{sA} offen")
        a(f"buffer_load_dwordx4 {vr(20+8*r,4)}, v{vT16}, {sr(sSRC,4)}, s{sA} offen")
        if r < 2:
            a(f"s_add_u32 s{sA}, s{sA}, 8192")
    a.label("P_E2")
    vm.issue("edges")
    srd(a, sW2, 88, 256 * 1024)
    srd(a, sDBG, 6, 256)
    srd(a, sWS, 100, CELLS_BYTES)
    a(f"s_or_b32 s{sNode}, s96, 1")
    stamp_setup()
    st(0)
    a(f"s_cmp_eq_u32 s{sW}, 0")
    a("s_cbranch_scc0 P_N")
    a(f"v_mov_b32 v{vT0}, s{sNode}")
    a(f"s_lshl_b32 s{sA}, s2, 2")
    a(f"v_mov_b32 v{vT1}, s{sA}")
    a(f"v_mov_b32 v{vOff}, {NONCE}")
    a("s_mov_b64 exec, 1")
    a(f"buffer_store_dword v{vT0}, v{vT1}, {sr(sDBG,4)}, 0 offen sc1")
    a(f"ds_write_b32 v{vOff}, v{vT0}")
    a("s_mov_b64 exec, -1")
    a.label("P_N")
    a(f"v_mov_b32 v40, {EMPTY}")
    a("v_mov_b32 v41, v40")
    a("v_mov_b32 v42, v40")
    a("v_mov_b32 v43, v40")
    for i in range(7):
        a(f"ds_write_b128 v{vT16}, v[40:43] offset:{IMG + i*8192}")
    a(f"v_lshlrev_b32 v{vT0}, 2, v0")
    a(f"v_mov_b32 v{vT1}, 0")
    a(f"ds_write_b32 v{vT0}, v{vT1} offset:{PCNT}")
    a("v_mov_b32 v44, 1")
    a(f"v_mov_b32 v45, {PCNT + 2040}")
    a(f"s_movk_i32 s{sT}, -48")
    a(f"s_mov_b32 s{sId}, {MHI}")
    a("v_lshrrev_b32 v46, 4, v0")
    a("v_and_b32 v47, 15, v0")
    a("v_lshlrev_b32 v48, 8, v46")
    a("v_lshl_or_b32 v48, v47, 3, v48")
    a("v_lshlrev_b32 v49, 2, v46")
    a("v_lshlrev_b32 v50, 14, v46")
    a("v_lshl_or_b32 v50, v47, 4, v50")
    a(f"s_lshl_b32 s4, s2, 8")
    a(f"v_add_u32 v50, s4, v50")
    a(f"v_mov_b32 v51, {NONCE}")
    a(f"v_mov_b32 v52, {MARK}")
    a("s_waitcnt lgkmcnt(0)")
    a("s_barrier")
    if opt.get('w2touch', 1):
        a(f"s_lshl_b32 s{sA}, s{sB}, 16")
        a(f"v_lshlrev_b32 v{vT0}, 7, v0")
        a(f"buffer_load_dword v60, v{vT0}, {sr(sW2,4)}, s{sA} offen")
        vm.issue("touch")
    a(f"s_mov_b32 s{sA}, 43691")
    a(f"s_lshl_b32 s{sB}, s{sB}, 9")
    a(f"s_add_u32 s{sPI}, s{sPI}, s{sB}")
    a(f"v_add_u32 v{vSeq}, s{sPI}, v0")
    a("ds_read_b32 v53, v51")
    for i in range(7):
        a(f"v_add_u32 v{72+i}, {i*32*16384}, v50")
    a("s_waitcnt lgkmcnt(0)")
    Q1, Q2 = 128, 160
    for i in range(7):
        for q in (Q1, Q2):
            a(f"v_mov_b32 v{q+4*i+1}, v53")
            a(f"v_mov_b32 v{q+4*i+3}, v53")
    wait(vtag="edges")
    st(14)
    def bin_a(r):
        vd, vs, vb, va, vrk = 16 + 8 * r, 20 + 8 * r, 192 + 4 * r, 204 + 4 * r, 216 + 4 * r
        for k in range(4):
            a(f"v_mul_u32_u24 v{vb+k}, s{sA}, v{vd+k}")
            a(f"v_lshrrev_b32 v{vb+k}, 21, v{vb+k}")
            a(f"v_lshlrev_b32 v{va+k}, 2, v{vb+k}")
            a(f"ds_add_rtn_u32 v{vrk+k}, v{va+k}, v44 offset:{PCNT}")
    def bin_a2(r):
        vd, vs, vb, va, vrk = 16 + 8 * r, 20 + 8 * r, 192 + 4 * r, 204 + 4 * r, 216 + 4 * r
        for k in range(4):
            a(f"v_mad_i32_i24 v{vd+k}, v{vb+k}, s{sT}, v{vd+k}")
            a(f"v_lshl_or_b32 v{vs+k}, v{vd+k}, 14, v{vs+k}")
            a(f"v_or_b32 v{vs+k}, s{sId}, v{vs+k}")
            a(f"v_lshlrev_b32 v{vb+k}, 8, v{vb+k}")
    def bin_b(r):
        vd, vs, vb, va, vrk = 16 + 8 * r, 20 + 8 * r, 192 + 4 * r, 204 + 4 * r, 216 + 4 * r
        for k in range(4):
            a(f"v_cmp_gt_u32 vcc, 64, v{vrk+k}")
            a(f"v_lshl_add_u32 v{vb+k}, v{vrk+k}, 2, v{vb+k}")
            a("s_nop 0")
            a(f"v_cndmask_b32 v{vb+k}, v45, v{vb+k}, vcc")
            a(f"ds_write_b32 v{vb+k}, v{vs+k} offset:{IMG}")
    bin_a(0)
    bin_a(1)
    a(f"s_cmp_lt_u32 s{sW}, 4")
    a("s_cbranch_scc0 P_R2")
    a(f"v_cmp_gt_u32 vcc, {CH//4 - 1024}, v0")
    a("s_and_saveexec_b64 s[4:5], vcc")
    bin_a(2)
    bin_a2(2)
    a("s_waitcnt lgkmcnt(0)")
    bin_b(2)
    a("s_mov_b64 exec, s[4:5]")
    a.label("P_R2")
    bin_a2(0)
    bin_a2(1)
    a("s_waitcnt lgkmcnt(0)")
    bin_b(0)
    bin_b(1)
    a("s_waitcnt lgkmcnt(0)")
    a("s_barrier")
    if opt.get('dly_p'):
        a(f"s_sleep {opt['dly_p']}")
    st(15)
    for i in range(7):
        a(f"ds_read_b64 {vr(16+2*i,2)}, v48 offset:{IMG + i*8192}")
        lg.issue(f"c{i}")
    for i in range(7):
        a(f"ds_read_b32 v{64+i}, v49 offset:{PCNT + i*128}")
        lg.issue(f"n{i}")
    for i in range(7):
        d = Q1 + 4 * i
        wait(ltag=f"c{i}")
        a(f"v_mov_b32 v{d}, v{16+2*i}")
        a(f"v_mov_b32 v{d+2}, v{17+2*i}")
        a(f"buffer_store_dwordx4 {vr(d,4)}, v{72+i}, {sr(sWS,4)}, 0 offen sc1")
        a(f"ds_read_b64 {vr(96+2*i,2)}, v48 offset:{IMG + i*8192 + 128}")
        lg.issue(f"d{i}")
    a("s_movk_i32 s6, 0x2000")
    for i in range(7):
        d = Q2 + 4 * i
        wait(ltag=f"d{i}")
        a(f"v_cmp_lt_u32 vcc, 64, v{64+i}")
        a(f"v_mov_b32 v{d+2}, v{97+2*i}")
        a("s_nop 0")
        a(f"v_cndmask_b32 v{d}, v{96+2*i}, v52, vcc")
        a(f"v_cmp_le_u32 vcc, 32, v{64+i}")
        a("s_and_b64 exec, exec, vcc")
        a(f"s_cbranch_scc0 P_SK{i}")
        a(f"buffer_store_dwordx4 {vr(d,4)}, v{72+i}, {sr(sWS,4)}, s6 offen sc1")
        a.label(f"P_SK{i}")
        a("s_mov_b64 exec, -1")
    if STAMP:
        st(1)
        a("s_waitcnt vmcnt(0)")
        st(2)
    a("s_barrier")
    xpf(NH * 1024, 2048, NP, 16)
    if STAMP:
        a("s_waitcnt vmcnt(0)")
        st(13)
    a.label("M_END")
    a("s_endpgm")
    return LDS_TOTAL, bars


def build(opt):
    name = "gather_scatter__isomorphism_gin_2__graph_kernel"
    _, bars = gen_main(Asm(), dict(opt, verbose=0), name)
    b = Asm()
    lds, bars2 = gen_main(b, opt, name, bars)
    assert bars == bars2
    a = Asm()
    a.raw(HEADER.rstrip())
    a.raw(f"; @launch grid=(256,1,1) block=(512,1,1) lds={lds}")
    a.raw('.amdgcn_target "amdgcn-amd-amdhsa--gfx950"')
    a.raw(".text")
    a.l += b.l
    a.raw('.section .rodata,"a"')
    a.raw(kd(name, 256, 102))
    return a.text()

if __name__ == "__main__":
    out = sys.argv[1]
    opt = {}
    for kv in sys.argv[2:]:
        k, v = kv.split("=")
        opt[k] = int(v)
    open(out, "w").write(build(opt))
```

```python
import sys
from gen2 import Asm, Ctr, vr, sr, srd, kd, HEADER

N = 10000
E = 160000
BN = 48
NBLK = 209
NPROD = 32
NHELP = 15
C0 = NPROD + NHELP
CH = E // NPROD
CELLS_BYTES = NBLK * 16384
STAMP_OFF = 0x400000
MAGIC = 0xA5B
MHI = MAGIC << 20
EMPTY = MHI | (63 << 14)
MARK = MHI | (62 << 14)
NPW = 6


def gen_main(a, opt, name, bars_hint=None):
    D = opt.get('depth', 8)
    NH = opt.get('nh', 8)
    NP = opt.get('np', 4)
    STAMP = opt.get('stamp')
    assert D <= 8
    HH = 0
    ACT = 24576
    WST = 73728
    LIST = 65536
    CNT = LIST + 6144
    FLAG = CNT + 56 * 4
    BIAS = WST + 65536
    LDS_TOTAL = BIAS + 3072
    IMG = 0
    PCNT = 57344
    NONCE = PCNT + 2048
    vLane, vC16, vSh, vSeq, vT0, vT1, vOff, vFl = 1, 2, 3, 4, 5, 6, 7, 8
    vAcc = 10
    RING = 16
    vA1, vAS = 48, 52
    vS2, vT16, vLB, vTB = 56, 57, 58, 63
    W2R = 64
    W = 128
    vS1 = 16
    vTR = 20
    vTR2 = 29
    vBI = 44
    sX, sWS, sOUT, sSRC, sDST, sB1, sB2, sW1, sW2, sDBG = 8, 12, 16, 20, 24, 28, 32, 64, 68, 72
    sW, sWB, sA, sB = 36, 37, 38, 39
    sLB, sRot, sWL, sV = 46, 47, 48, 49
    sPC, sPI, sT, sXor, sNode, sId = 50, 51, 52, 53, 54, 55
    sMask = 56
    sM = 76
    sST = 92

    vm = Ctr(63)
    lg = Ctr(15)
    aux = [False]

    def st(idx):
        amp = opt.get('amp')
        pamp = opt.get('pamp')
        if pamp is not None and aux[0] and (idx == 0 or idx == pamp):
            a("s_memrealtime s[94:95]")
            a("s_waitcnt lgkmcnt(0)")
            lg.clear()
            a(f"s_mov_b32 s{98 if idx == 0 else 99}, s94")
        if amp is not None and not aux[0]:
            if idx == 0 or idx == amp:
                a("s_memrealtime s[96:97]")
                a("s_waitcnt lgkmcnt(0)")
                lg.clear()
                a(f"s_mov_b32 s{98 if idx == 0 else 99}, s96")
                if amp == 30:
                    a("s_mov_b32 s99, s96")
                    a("s_mov_b32 s98, s94")
            if idx == 2 and amp in (20, 21):
                for i in range(4):
                    a(f"v_readlane_b32 s{92+i}, v40, {16*i}")
                a("s_nop 3")
                op = "s_min_u32" if amp == 20 else "s_max_u32"
                a(f"{op} s92, s92, s93")
                a(f"{op} s94, s94, s95")
                a(f"{op} s92, s92, s94")
                if amp == 20:
                    a("s_mov_b32 s99, s98")
                    a("s_min_u32 s98, s92, s98")
                else:
                    a("s_max_u32 s99, s92, s98")
        if STAMP:
            a("s_memrealtime s[96:97]" if not opt.get('cyc') else "s_memtime s[96:97]")
            a("s_waitcnt lgkmcnt(0)")
            lg.clear()
            a("v_mov_b32 v14, s96")
            a("v_mov_b32 v15, s97")
            a("s_mov_b64 s[98:99], exec")
            a("s_mov_b64 exec, 1")
            a(f"buffer_store_dwordx2 v[14:15], v9, {sr(sST,4)}, 0 offen offset:{idx*8}")
            vm.issue('st')
            a("s_mov_b64 exec, s[98:99]")

    def wait(vtag=None, ltag=None):
        p = []
        if vtag is not None:
            n = vm.need(vtag)
            if n is not None:
                p.append(f"vmcnt({n})")
        if ltag is not None:
            tags = ltag if isinstance(ltag, (list, tuple)) else [ltag]
            ns = [lg.need(t) for t in tags]
            ns = [n for n in ns if n is not None]
            if ns:
                p.append(f"lgkmcnt({min(ns)})")
        if p:
            a("s_waitcnt " + " ".join(p))
            return True
        return False

    def stamp_setup():
        if STAMP:
            srd(a, sST, 100, 0x1000000)
            a("s_lshl_b32 s96, s2, 4")
            a(f"s_add_u32 s96, s96, s{sW}")
            a("s_lshl_b32 s96, s96, 7")
            a(f"s_add_u32 s96, s96, {STAMP_OFF}")
            a("v_mov_b32 v9, s96")

    a.raw(f".globl {name}")
    a.raw(".p2align 8")
    a.raw(f".type {name},@function")
    a.label(name)
    if opt.get('amp') == 30:
        a("s_memrealtime s[94:95]")
    a("s_cmp_ge_u32 s2, 256")
    a("s_cbranch_scc1 M_END")
    a("s_load_dwordx16 s[76:91], s[0:1], 0")
    a("s_load_dwordx4 s[4:7], s[0:1], 64")
    a("s_load_dwordx2 s[100:101], s[0:1], 80")
    a(f"v_and_b32 v{vLane}, 63, v0")
    a(f"v_lshrrev_b32 v{vT0}, 6, v0")
    a(f"v_lshlrev_b32 v{vT16}, 4, v0")
    a(f"v_readfirstlane_b32 s{sW}, v{vT0}")
    a(f"s_cmp_lt_u32 s2, {C0}")
    a("s_cbranch_scc1 AUX")

    a(f"s_sub_u32 s3, s2, {C0}")
    a(f"s_lshl_b32 s{sLB}, s3, 14")
    a(f"s_mul_i32 s3, s3, {BN}")
    a(f"v_mov_b32 v{vLB}, {LIST}")
    a(f"v_lshrrev_b32 v{vT0}, 3, v0")
    a(f"v_add_u32 v{vT0}, s3, v{vT0}")
    a(f"v_or_b32 v{vT0}, 0xffff0000, v{vT0}")
    a(f"v_and_b32 v{vT1}, 7, v0")
    a(f"v_cmp_eq_u32 vcc, 0, v{vT1}")
    a("v_mov_b32 v37, -1")
    a(f"v_add_u32 v{vOff}, v{vLB}, v{vT16}")
    a(f"v_cndmask_b32 v36, v37, v{vT0}, vcc")
    a("v_cmp_le_u32 vcc, 384, v0")
    a("v_mov_b32 v40, 1")
    a("s_nop 0")
    a("v_cndmask_b32 v36, v36, v40, vcc")
    a("v_cndmask_b32 v37, v37, v40, vcc")
    a("v_cmp_eq_u32 vcc, 398, v0")
    a("v_mov_b32 v38, v37")
    a("v_mov_b32 v39, v37")
    a("v_cndmask_b32 v36, v36, 0, vcc")
    a(f"ds_write_b128 v{vOff}, v[36:39]")
    a(f"s_lshr_b32 s{sRot}, s2, 3")
    a(f"s_and_b32 s{sRot}, s{sRot}, 7")
    a(f"s_lshr_b32 s{sV}, s2, 4")
    a(f"s_and_b32 s{sV}, s{sV}, 4")
    a(f"s_and_b32 s{sA}, s{sRot}, 3")
    a(f"s_or_b32 s{sV}, s{sV}, s{sA}")
    a(f"s_xor_b32 s{sV}, s{sW}, s{sV}")
    a(f"v_bfe_u32 v{vT0}, v{vLane}, 1, 2")
    a(f"v_bfe_u32 v{vT1}, v{vLane}, 4, 1")
    a(f"v_xor_b32 v{vT0}, v{vT0}, v{vT1}")
    a(f"v_lshrrev_b32 v{vT1}, 3, v{vLane}")
    a(f"v_lshlrev_b32 v{vT1}, 10, v{vT1}")
    a(f"v_and_b32 v{vOff}, 1, v{vLane}")
    a(f"v_lshl_or_b32 v{vT1}, v{vOff}, 4, v{vT1}")
    a(f"s_lshl_b32 s{sA}, s{sV}, 7")
    a(f"v_or_b32 v{vT1}, s{sA}, v{vT1}")
    a(f"v_lshl_or_b32 v{vS1}, v{vT0}, 5, v{vT1}")
    a(f"v_xor_b32 v{vS1+1}, 64, v{vS1}")
    a(f"s_lshl_b32 s{sWL}, s{sW}, 13")
    a(f"s_add_u32 s{sWB}, s{sWL}, {WST}")
    a(f"s_lshl_b32 s{sB}, s{sRot}, 15")
    a("s_waitcnt lgkmcnt(0)")
    srd(a, sW1, 84, 256 * 1024)
    a("s_barrier")

    def slot_base(sl):
        return (sWB if sl < 2 else sWL), (sl % 2) * 4096

    def dma_unit(u):
        sb, off = slot_base(u % 4)
        for i in range(4):
            a(f"s_add_u32 m0, s{sb}, {off + i * 1024}")
            if u < 8:
                a(f"s_xor_b32 s{sA}, s{sB}, {(u * 32 + i * 8) * 1024}")
                a(f"buffer_load_dwordx4 v{vS1 + i % 2}, {sr(sW1,4)}, s{sA} offen lds")
            else:
                a(f"s_mov_b32 s{sA}, {((u - 8) * 32 + i * 8) * 512}")
                a(f"buffer_load_dwordx4 v{vS2}, {sr(sW2,4)}, s{sA} offen lds")
            vm.issue(f"u{u}")

    NINF = opt.get('ninf', 3)
    PPRIO = opt.get('pprio', 1)
    stamp_setup()
    st(0)
    if opt.get('dly_c'):
        a(f"s_sleep {opt['dly_c']}")
    if PPRIO:
        a("s_setprio 3")
    dma_unit(0)
    if PPRIO:
        a("s_setprio 2")
    a("s_load_dword s45, s[82:83], 0")
    for u in range(1, NINF):
        dma_unit(u)
    srd(a, sB1, 86, 1024)
    srd(a, sB2, 90, 512)
    a(f"v_lshlrev_b32 v{vC16}, 4, v{vLane}")
    a(f"s_cmp_eq_u32 s{sW}, 2")
    a("s_cbranch_scc0 C_SL2")
    a(f"buffer_load_dwordx4 {vr(vBI,4)}, v{vC16}, {sr(sB1,4)}, 0 offen")
    a.label("C_SL2")
    a(f"s_cmp_eq_u32 s{sW}, 3")
    a("s_cbranch_scc0 C_SL3")
    a(f"buffer_load_dwordx4 {vr(vBI,4)}, v{vC16}, {sr(sB2,4)}, 0 offen")
    a.label("C_SL3")
    a(f"v_lshrrev_b32 v{vT0}, 4, v{vLane}")
    a(f"v_lshlrev_b32 v{vT0}, 10, v{vT0}")
    a(f"v_bfe_u32 v{vT1}, v{vLane}, 2, 2")
    a(f"v_lshl_or_b32 v{vT0}, v{vT1}, 7, v{vT0}")
    a(f"v_and_b32 v{vT1}, 3, v{vLane}")
    a(f"v_lshl_or_b32 v{vT0}, v{vT1}, 3, v{vT0}")
    a(f"v_bfe_u32 v{vT1}, v{vLane}, 3, 2")
    for mt in range(4):
        a(f"v_xor_b32 v{vOff}, {mt}, v{vT1}")
        a(f"v_lshl_add_u32 v{vOff}, v{vOff}, 5, v{vT0}")
        a(f"v_add_u32 v{vTR+mt}, s{sWB}, v{vOff}")
        a(f"v_add_u32 v{vTR+4+mt}, s{sWL}, v{vOff}")

    def setup_a():
        a(f"v_bfe_u32 v{vT1}, v{vLane}, 3, 2")
        a(f"s_and_b32 s{sA}, s{sV}, 1")
        a(f"s_lshl_b32 s{sA}, s{sA}, 1")
        a(f"v_xor_b32 v{vT1}, s{sA}, v{vT1}")
        a(f"v_lshrrev_b32 v{vT0}, 2, v{vLane}")
        a(f"v_lshlrev_b32 v{vT0}, 7, v{vT0}")
        a(f"v_lshl_or_b32 v{vT0}, v{vT1}, 5, v{vT0}")
        a(f"v_and_b32 v{vT1}, 3, v{vLane}")
        a(f"v_lshl_or_b32 v{vT0}, v{vT1}, 3, v{vT0}")
        a(f"v_add_u32 v{vTB}, s{sWB}, v{vT0}")
        a(f"v_add_u32 v{vTR2}, s{sWL}, v{vT0}")
        srd(a, sW2, 88, 256 * 1024)
        a(f"v_bfe_u32 v{vT0}, v{vLane}, 1, 2")
        a(f"v_lshrrev_b32 v{vT1}, 4, v{vLane}")
        a(f"v_xor_b32 v{vT0}, v{vT0}, v{vT1}")
        a(f"v_lshrrev_b32 v{vT1}, 3, v{vLane}")
        a(f"v_lshlrev_b32 v{vT1}, 9, v{vT1}")
        a(f"v_lshl_or_b32 v{vT0}, v{vT0}, 5, v{vT1}")
        a(f"v_and_b32 v{vT1}, 1, v{vLane}")
        a(f"v_lshl_or_b32 v{vT0}, v{vT1}, 4, v{vT0}")
        a(f"s_lshr_b32 s{sA}, s{sV}, 1")
        a(f"s_lshl_b32 s{sA}, s{sA}, 7")
        a(f"s_and_b32 s44, s{sV}, 1")
        a(f"s_lshl_b32 s44, s44, 17")
        a(f"s_or_b32 s{sA}, s{sA}, s44")
        a(f"v_or_b32 v{vS2}, s{sA}, v{vT0}")

    def setup_b():
        srd(a, sX, 76, N * 512)
        srd(a, sDBG, 6, 256)
        srd(a, sWS, 100, CELLS_BYTES)
        srd(a, sOUT, 4, N * 512)
        srd(a, sDST, 80, E * 4)
        srd(a, sSRC, 78, E * 4)

    def setup_c():
        a(f"v_lshrrev_b32 v{vT0}, 4, v{vLane}")
        a(f"v_lshrrev_b32 v{vT1}, 3, v{vLane}")
        a(f"v_xor_b32 v{vT0}, v{vT0}, v{vT1}")
        a(f"v_and_b32 v{vT0}, 1, v{vT0}")
        a(f"v_bfe_u32 v{vT1}, v{vLane}, 1, 2")
        a(f"v_lshl_or_b32 v{vT0}, v{vT0}, 2, v{vT1}")
        a(f"v_and_b32 v{vT1}, 1, v{vLane}")
        a(f"v_lshlrev_b32 v{vT1}, 4, v{vT1}")
        a("s_lshl_b32 s45, s45, 16")
        a("v_mov_b32 v40, s45")
        a("v_add_f32 v40, 1.0, v40")
        a("v_cvt_pk_bf16_f32 v40, v40, v40")
        a("v_and_b32 v40, 0xffff, v40")
        a("v_mov_b32 v41, 0x3f80")
        a(f"v_cmp_gt_u32 vcc, 32, v{vLane}")
        a("s_nop 1")
        a("v_cndmask_b32 v40, v41, v40, vcc")
        a(f"v_lshlrev_b32 v40, v{vT1}, v40")
        a(f"v_lshlrev_b32 v41, v{vT1}, v41")
        for p in range(4):
            a(f"v_cmp_eq_u32 vcc, {p}, v{vT0}")
            a("s_nop 1")
            a(f"v_cndmask_b32 v{vA1+p}, 0, v41, vcc")
            a(f"v_cndmask_b32 v{vAS+p}, 0, v40, vcc")

    def setup_d():
        a(f"v_lshrrev_b32 v{vSh}, 5, v{vLane}")
        a(f"v_lshlrev_b32 v{vSh}, 4, v{vSh}")
        a(f"v_and_b32 v{vT0}, 15, v{vLane}")
        a(f"v_lshlrev_b32 v{vFl}, 4, v{vT0}")
        a(f"v_lshl_or_b32 v{vFl}, v{vSh}, 4, v{vFl}")
        a(f"v_bfe_u32 v{vT0}, v{vLane}, 4, 1")
        a(f"v_lshl_or_b32 v{vFl}, v{vT0}, 3, v{vFl}")
        a(f"v_and_b32 v{vC16}, 31, v{vLane}")
        a(f"v_lshlrev_b32 v{vC16}, 4, v{vC16}")
        a("v_lshrrev_b32 v42, 4, v0")
        a("v_lshlrev_b32 v42, 2, v42")
        a(f"s_add_u32 s{sPI}, s{sLB}, 8192")
        a(f"s_mov_b32 s{sPC}, 0")
        a(f"s_mov_b32 s{sId}, {MHI}")
        a(f"s_mov_b32 s{sT}, {EMPTY}")
        a(f"v_lshrrev_b32 v{vT0}, 1, v{vLane}")
        a(f"v_lshlrev_b32 v{vT0}, 4, v{vT0}")
        a(f"v_and_b32 v{vT1}, 1, v{vLane}")
        a(f"v_or_b32 v{vT0}, v{vT0}, v{vT1}")
        a(f"s_lshl_b32 s{sNode}, s{sW}, 1")
        a(f"v_add_u32 v{vT0}, s{sNode}, v{vT0}")
        a(f"v_cmp_gt_u32 vcc, 6, v{vLane}")
        a(f"v_mov_b32 v{vT1}, 56")
        a("v_mov_b32 v62, 64")
        a(f"v_cndmask_b32 v{vT0}, v{vT1}, v{vT0}, vcc")
        a(f"v_lshl_add_u32 v61, v{vT0}, 2, v{vLB}")
        a(f"s_lshl_b32 s{sA}, s{sW}, 8")
        a(f"v_lshl_add_u32 v{vT1}, v{vLane}, 2, v{vLB}")
        a(f"v_add_u32 v60, s{sA}, v{vT1}")
        a("v_cndmask_b32 v62, 0, v62, vcc")
        set_xor()

    def set_xor():
        a(f"s_lshl_b32 s{sXor}, s{sNode}, 9")
        a(f"s_and_b32 s44, s{sNode}, 15")
        a("s_lshl_b32 s44, s44, 4")
        a(f"s_or_b32 s{sXor}, s{sXor}, s44")

    def bias_to_lds():
        a(f"s_sub_u32 s{sA}, s{sW}, 2")
        a(f"s_cmp_lt_u32 s{sA}, 2")
        a("s_cbranch_scc0 C_NB")
        for x in range(4):
            a(f"v_lshlrev_b32 v{32+2*x}, 16, v{vBI+x}")
            a(f"v_and_b32 v{33+2*x}, 0xffff0000, v{vBI+x}")
        a(f"s_lshl_b32 s{sA}, s{sA}, 11")
        a(f"s_add_u32 s{sA}, s{sA}, {BIAS}")
        a(f"v_lshl_add_u32 v{vOff}, v{vLane}, 5, s{sA}")
        a(f"s_cmp_eq_u32 s{sW}, 3")
        a("s_cbranch_scc0 C_NB2")
        a("s_mov_b64 exec, 0xffffffff")
        a.label("C_NB2")
        a(f"ds_write_b128 v{vOff}, v[32:35]")
        a(f"ds_write_b128 v{vOff}, v[36:39] offset:16")
        a("s_mov_b64 exec, -1")
        a("s_waitcnt lgkmcnt(0)")
        a.label("C_NB")

    def tr_w2_ops(dst, vbase, off, tag, scr):
        ops = []
        for mt in range(4):
            if mt == 0:
                ad = vbase
            else:
                ad = scr[mt % len(scr)]
                ops.append(f"v_xor_b32 v{ad}, {32*mt}, v{vbase}")
            for hf in range(2):
                ops.append(("ds", f"ds_read_b64_tr_b16 {vr(dst+4*mt+2*hf,2)}, v{ad} offset:{off + hf*2048}", tag))
        return ops

    def dma_w2l_ops(k, slot):
        ops = []
        for i in range(4):
            ops.append(("dma", [f"s_add_u32 m0, s{sWB}, {slot * 4096 + i * 1024}",
                                f"s_mov_b32 s{sA}, {(k * 32 + i * 8) * 512}",
                                f"buffer_load_dwordx4 v{vS2}, {sr(sW2,4)}, s{sA} offen lds"], f"w2_{k}"))
        return ops

    bars = []
    cur_q = [0]
    def emit(op):
        if isinstance(op, tuple):
            k = op[0]
            if k == "ds":
                a(op[1]); lg.issue(op[2]); return 1
            if k == "vm":
                a(op[1]); vm.issue(op[2]); return 1
            if k == "dma":
                for l in op[1]:
                    a(l)
                vm.issue(op[2]); return 2
            if k == "skip":
                return 2
            if k == "wl":
                return 1 if wait(ltag=op[1]) else 0
            if k == "wv":
                return 1 if wait(vtag=op[1]) else 0
            if k == "bar":
                wait(ltag=op[1])
                a("s_barrier")
                bars.append(cur_q[0])
                return 2
            raise ValueError(op)
        a(op)
        return 1

    def poll_issue():
        a(f"buffer_load_dword v40, v42, {sr(sDBG,4)}, 0 offen sc1")
        a(f"buffer_load_dwordx4 v[32:35], v{vT16}, {sr(sWS,4)}, s{sLB} offen sc1")
        a(f"buffer_load_dwordx4 v[36:39], v{vT16}, {sr(sWS,4)}, s{sPI} offen sc1")

    def unit_step(u):
        sl = u % 4
        hi = 0 if sl < 2 else 1
        off = (sl % 2) * 4096
        if not opt.get('nowait'):
            wait(vtag=f"u{u}")
        if opt.get('notr'):
            pass
        elif u < 8:
            for mt in range(4):
                for hf in range(2):
                    a(f"ds_read_b64_tr_b16 {vr(W+16*u+4*mt+2*hf,2)}, v{vTR+4*hi+mt} offset:{off + hf*512}")
                    lg.issue(f"t{u}")
        else:
            for op in tr_w2_ops(W2R + 16 * (u - 8), vTB if hi == 0 else vTR2, off, f"t{u}", [30, 31]):
                emit(op)
        nx = u + NINF
        if nx < 12:
            if nx - 4 >= 0:
                wait(ltag=f"t{nx-4}")
            dma_unit(nx)

    DEFER = opt.get('defer', 1)
    a("s_waitcnt lgkmcnt(0)")
    if not DEFER:
        setup_a()
        setup_b()
        setup_c()
        setup_d()
    if opt.get('sync0'):
        a("s_waitcnt vmcnt(0)")
        a("s_barrier")
    PU = opt.get('pu', 9)
    for u in range(12):
        if opt.get('pst') and u in (0, 1, 4, 8):
            st({0: 8, 1: 9, 4: 11, 8: 12}[u])
        if PPRIO and u in (3, 7):
            a(f"s_setprio {1 if u == 3 else 0}")
        unit_step(u)
        if DEFER:
            {0: setup_a, 1: setup_b, 2: setup_c, 5: setup_d}.get(u, lambda: None)()
        if u == NINF:
            bias_to_lds()
        if u == PU:
            poll_issue()
            vm.issue("poll"); vm.issue("poll"); vm.issue("poll")
        if opt.get('latel', 1):
            continue
        if u == 9:
            wait(ltag="t8")
            for op in dma_w2l_ops(4, 0):
                emit(op)
        if u == 10:
            wait(ltag="t9")
            for op in dma_w2l_ops(5, 1):
                emit(op)
    st(1)
    wait(vtag="poll")
    a.label("POLL_CHK")
    for h in range(2):
        b = 32 + 4 * h
        a(f"v_xor_b32 v16, s{sId}, v{b}")
        a(f"v_xor_b32 v17, s{sId}, v{b+2}")
        a("v_or_b32 v16, v16, v17")
        a("v_lshrrev_b32 v16, 20, v16")
        a(f"v_xor_b32 v17, v40, v{b+1}")
        a(f"v_xor_b32 v18, v40, v{b+3}")
        a(f"v_or3_b32 v{20+h}, v16, v17, v18")
    a(f"v_cmp_ne_u32 {sr(sM,2)}, 0, v20")
    a("v_cmp_eq_u32 vcc, 0, v40")
    a(f"s_or_b64 {sr(sM,2)}, {sr(sM,2)}, vcc")
    a(f"v_cmp_ne_u32 {sr(sM+2,2)}, 0, v21")
    a(f"v_cmp_ne_u32 vcc, s{sT}, v34")
    a(f"s_and_b32 s4, vcc_lo, 0x80008000")
    a(f"s_and_b32 s5, vcc_hi, 0x80008000")
    a("s_lshr_b32 s4, s4, 15")
    a("s_lshr_b32 s5, s5, 15")
    a("s_mul_i32 s4, s4, 0xffff")
    a("s_mul_i32 s5, s5, 0xffff")
    a(f"s_and_b64 {sr(sM+2,2)}, {sr(sM+2,2)}, s[4:5]")
    a(f"s_or_b64 {sr(sM,2)}, {sr(sM,2)}, {sr(sM+2,2)}")
    a("s_cbranch_scc1 POLL_RETRY")
    a.label("POLL_OK")
    vm.clear()
    st(2)
    a(f"v_mov_b32 v16, s{sT}")
    a("v_cndmask_b32 v36, v16, v36, s[4:5]")
    a("v_cndmask_b32 v38, v16, v38, s[4:5]")
    a(f"s_mov_b32 s4, {MARK}")
    a("v_mov_b32 v41, 1")
    ent = [32, 34, 36, 38]
    for k in range(4):
        a(f"v_bfe_u32 v{ent[k]+1}, v{ent[k]}, 14, 6")
        a(f"v_lshl_add_u32 v{16+k}, v{ent[k]+1}, 2, v{vLB}")
    for k in range(4):
        if k == 2:
            a("s_mov_b64 exec, -1")
        a(f"v_cmpx_gt_u32 vcc, s4, v{ent[k]}")
        a(f"ds_add_rtn_u32 v{16+k}, v{16+k}, v41 offset:{CNT-LIST}")
        a(f"s_mov_b64 {sr(sM+2*k,2)}, exec")
    a("s_mov_b64 exec, -1")
    a("v_cmp_eq_u32 vcc, s4, v36")
    a("s_and_saveexec_b64 s[6:7], vcc")
    a(f"ds_write_b32 v{vLB}, v41 offset:{FLAG-LIST}")
    a("s_mov_b64 exec, -1")
    for k in range(4):
        a(f"v_and_b32 v{ent[k]}, 0x3fff, v{ent[k]}")
        a(f"v_lshl_add_u32 v{ent[k]+1}, v{ent[k]+1}, 7, v{vLB}")
    a("s_waitcnt lgkmcnt(0)")
    for k in range(4):
        a(f"v_min_u32 v{16+k}, 63, v{16+k}")
        a(f"v_lshl_add_u32 v{ent[k]+1}, v{16+k}, 1, v{ent[k]+1}")
    for k in range(4):
        a(f"s_mov_b64 exec, {sr(sM+2*k,2)}")
        a(f"ds_write_b16 v{ent[k]+1}, v{ent[k]}")
    a("s_mov_b64 exec, -1")
    lg.clear()
    vL = [vSeq, 59, 60]
    vCnt = 61
    sFlush, sJ, sEnd, sLeft = sMask, sMask + 1, sT, sPC
    a(f"s_mov_b32 s{sFlush}, 0")
    a(f"s_mov_b32 s{sJ}, 0")
    a(f"s_mov_b32 s{sPI}, 0")
    a(f"s_mov_b32 s{sLeft}, {NPW}")
    a("s_waitcnt lgkmcnt(0)")
    a("s_barrier")
    a(f"ds_read_b32 v{vCnt}, v61 offset:{CNT-LIST}")
    for i in range(3):
        a(f"ds_read_b32 v{vL[i]}, v60 offset:{2048*i}")
    GPRIO = opt.get('gprio', 1)
    if GPRIO:
        a("s_setprio 3")
    a("s_waitcnt lgkmcnt(2)")
    a(f"v_cmp_gt_u32 vcc, v{vCnt}, v62")
    a(f"v_add_u32 v{vCnt}, 1, v{vCnt}")
    a(f"v_lshrrev_b32 v{vCnt}, 1, v{vCnt}")
    a("s_cmp_lg_u64 vcc, 0")
    a("s_cbranch_scc1 M_SLOW")
    a(f"v_readlane_b32 s{sEnd}, v{vCnt}, 0")
    a("s_waitcnt lgkmcnt(0)")
    st(3)

    def flush():
        a(f"v_xor_b32 v{vT0}, s{sXor}, v{vFl}")
        a(f"v_cvt_pk_bf16_f32 v14, v{vAcc}, v{vAcc+1}")
        a(f"v_cvt_pk_bf16_f32 v15, v{vAcc+2}, v{vAcc+3}")
        a(f"ds_write_b64 v{vT0}, v[14:15] offset:{HH}")
        a(f"s_and_b32 s4, s{sNode}, 1")
        a("s_mul_i32 s4, s4, 14")
        a(f"s_add_u32 s{sNode}, s{sNode}, s4")
        a(f"s_add_u32 s{sNode}, s{sNode}, 1")
        set_xor()

    acc = vr(vAcc, 4)
    def mf_norm(s):
        a(f"v_mfma_f32_16x16x32_bf16 {acc}, {vr(vA1,4)}, {vr(RING+4*s,4)}, {acc}")
    def mf_first(s):
        a(f"v_mfma_f32_16x16x32_bf16 {acc}, {vr(vAS,4)}, {vr(RING+4*s,4)}, 0")
    def issue(s):
        a(f"v_bfe_u32 v{vOff}, s{sId}, v{vSh}, 16")
        a(f"v_lshl_add_u32 v{vOff}, v{vOff}, 9, v{vC16}")
        a(f"buffer_load_dwordx4 {vr(RING+4*s,4)}, v{vOff}, {sr(sX,4)}, 0 offen")
    swn = [0]
    def switch(s, lab_exit):
        a(f"s_bitset1_b32 s{sFlush}, {s}")
        a(f"s_add_u32 s{sJ}, s{sJ}, 1")
        a(f"s_cmp_eq_u32 s{sJ}, {NPW}")
        a(f"s_cbranch_scc1 {lab_exit}")
        a(f"v_readlane_b32 s{sEnd}, v{vCnt}, s{sJ}")
        a(f"s_and_b32 s{sPI}, s{sJ}, 1")
        a(f"s_cselect_b32 s4, 0, -1")
        a(f"s_mov_b32 s5, s4")
        a(f"s_lshl_b32 s{sPI}, s{sPI}, 5")
        a(f"v_cndmask_b32 v{vL[0]}, v{vL[0]}, v{vL[1]}, s[4:5]")
        a(f"v_cndmask_b32 v{vL[1]}, v{vL[1]}, v{vL[2]}, s[4:5]")
        a(f"s_add_u32 s{sEnd}, s{sEnd}, s{sPI}")
        if GPRIO:
            k = swn[0]; swn[0] += 1
            a(f"s_cmp_lt_u32 s{sJ}, 3")
            a(f"s_cbranch_scc1 SWP{k}")
            a("s_setprio 2")
            a(f"s_cmp_lt_u32 s{sJ}, 4")
            a(f"s_cbranch_scc1 SWP{k}")
            a("s_setprio 1")
            a(f"s_cmp_lt_u32 s{sJ}, 5")
            a(f"s_cbranch_scc1 SWP{k}")
            a("s_setprio 0")
            a.label(f"SWP{k}")

    for s in range(D):
        a.label(f"F_{s}")
        a(f"v_readlane_b32 s{sId}, v{vL[0]}, s{sPI}")
        a(f"s_add_u32 s{sPI}, s{sPI}, 1")
        a(f"s_cmp_eq_u32 s{sPI}, s{sEnd}")
        issue(s)
        a(f"s_cbranch_scc1 F_SW{s}")
    a("s_branch G_F0")
    for s in range(D):
        a.label(f"F_SW{s}")
        switch(s, "X_F0")
        a(f"s_branch {'F_%d' % (s+1) if s + 1 < D else 'G_F0'}")
    for s in range(D):
        n = (s + 1) % D
        a.label(f"G_N{s}")
        a(f"s_waitcnt vmcnt({D-1})")
        a(f"v_readlane_b32 s{sId}, v{vL[0]}, s{sPI}")
        mf_norm(s)
        a.label(f"G_C{s}")
        a(f"s_add_u32 s{sPI}, s{sPI}, 1")
        a(f"s_bitcmp1_b32 s{sFlush}, {s}")
        issue(s)
        a(f"s_cbranch_scc1 G_FL{s}")
        a(f"s_cmp_eq_u32 s{sPI}, s{sEnd}")
        a(f"s_cbranch_scc1 G_SN{s}")
        if n == 0:
            a("s_branch G_N0")
    for s in range(D):
        n = (s + 1) % D
        a.label(f"G_SN{s}")
        switch(s, f"X_N{n}")
        a(f"s_branch G_N{n}")
    for s in range(D):
        n = (s + 1) % D
        a.label(f"G_FL{s}")
        a(f"s_bitset0_b32 s{sFlush}, {s}")
        a(f"s_sub_u32 s{sLeft}, s{sLeft}, 1")
        a("s_nop 0")
        flush()
        a(f"s_cmp_eq_u32 s{sPI}, s{sEnd}")
        a(f"s_cbranch_scc0 G_F{n}")
        switch(s, f"X_F{n}")
        a.label(f"G_F{n}")
        a(f"s_waitcnt vmcnt({D-1})")
        a(f"v_readlane_b32 s{sId}, v{vL[0]}, s{sPI}")
        mf_first(n)
        a(f"s_branch G_C{n}")
    for s in range(D):
        a.label(f"X_N{s}")
        a("s_waitcnt vmcnt(0)")
        a(f"s_branch T_N{s}")
        a.label(f"X_F{s}")
        a("s_waitcnt vmcnt(0)")
        a(f"s_branch T_F{s}")
    for s in range(D):
        n = (s + 1) % D
        a.label(f"T_N{s}")
        mf_norm(s)
        a.label(f"T_C{s}")
        a(f"s_bitcmp1_b32 s{sFlush}, {s}")
        a(f"s_cbranch_scc1 T_FL{s}")
        if n == 0:
            a(f"s_cmp_eq_u32 s{sFlush}, 0")
            a("s_cbranch_scc1 M_GDONE")
            a("s_branch T_N0")
    for s in range(D):
        n = (s + 1) % D
        a.label(f"T_FL{s}")
        a(f"s_bitset0_b32 s{sFlush}, {s}")
        a(f"s_sub_u32 s{sLeft}, s{sLeft}, 1")
        a("s_nop 4")
        flush()
        a(f"s_cmp_eq_u32 s{sLeft}, 0")
        a(f"s_cbranch_scc1 M_GDONE")
        a.label(f"T_F{n}")
        mf_first(n)
        a(f"s_branch T_C{n}")

    a.label("POLL_RETRY")
    a(f"s_add_u32 s{sPC}, s{sPC}, 1")
    a(f"s_cmp_lt_u32 s{sPC}, {opt.get('spin', 30000)}")
    a("s_cbranch_scc0 POLL_GIVEUP")
    a(f"s_cmp_eq_u32 s{sPC}, 1")
    a("s_cbranch_scc1 POLL_NOSLEEP")
    a(f"s_sleep {opt.get('psleep', 4)}")
    a.label("POLL_NOSLEEP")
    poll_issue()
    a("s_waitcnt vmcnt(0)")
    a("s_branch POLL_CHK")
    a.label("POLL_GIVEUP")
    a(f"v_mov_b32 v32, {EMPTY}")
    a("v_mov_b32 v34, v32")
    a(f"v_mov_b32 v36, {MARK}")
    a("v_mov_b32 v38, v32")
    a("s_mov_b64 s[4:5], -1")
    a("s_branch POLL_OK")

    a.label("M_SLOW")
    SA = RING + 8
    a("s_waitcnt vmcnt(0) lgkmcnt(0)")
    a(f"v_mov_b32 v{vT0}, 0x7f000000")
    a(f"v_cmp_gt_u32 vcc, 32, v{vLane}")
    a("s_nop 1")
    a(f"v_cndmask_b32 v{vSeq}, v{vT0}, v{vC16}, vcc")
    a(f"s_add_u32 s40, s3, s{sNode}")
    for j in range(NPW):
        a(f"s_add_u32 s4, s40, {16*(j//2) + j%2}")
        a("s_lshl_b32 s4, s4, 9")
        a(f"v_add_u32 v{vOff}, s4, v{vSeq}")
        a(f"buffer_load_dwordx4 {vr(RING,4)}, v{vOff}, {sr(sX,4)}, 0 offen")
        a("s_waitcnt vmcnt(0)")
        a(f"v_mfma_f32_16x16x32_bf16 {vr(SA+4*j,4)}, {vr(vAS,4)}, {vr(RING,4)}, 0")
        a("s_nop 7")
    a(f"v_lshlrev_b32 v{vT0}, 2, v{vLane}")
    a("s_mov_b32 s41, 0")
    a.label("S_LOOP")
    a(f"buffer_load_dword v{RING+4}, v{vT0}, {sr(sDST,4)}, s41 offen")
    a(f"buffer_load_dword v{RING+5}, v{vT0}, {sr(sSRC,4)}, s41 offen")
    a("s_waitcnt vmcnt(0)")
    a(f"v_subrev_u32 v{RING+4}, s40, v{RING+4}")
    a(f"v_and_b32 v{RING+6}, 0xffffffce, v{RING+4}")
    a(f"v_cmp_eq_u32 vcc, 0, v{RING+6}")
    a(f"v_cmp_gt_u32 s[42:43], 48, v{RING+4}")
    a("s_nop 3")
    a("s_and_b64 s[42:43], s[42:43], vcc")
    a.label("S_IN")
    a("s_cmp_eq_u64 s[42:43], 0")
    a("s_cbranch_scc1 S_NEXT")
    a("s_ff1_i32_b64 s44, s[42:43]")
    a("s_bitset0_b64 s[42:43], s44")
    a(f"v_readlane_b32 s45, v{RING+4}, s44")
    a(f"v_readlane_b32 s46, v{RING+5}, s44")
    a("s_nop 3")
    a("s_lshl_b32 s46, s46, 9")
    a(f"v_add_u32 v{vOff}, s46, v{vSeq}")
    a(f"buffer_load_dwordx4 {vr(RING,4)}, v{vOff}, {sr(sX,4)}, 0 offen")
    a("s_waitcnt vmcnt(0)")
    for j in range(NPW):
        if j < NPW - 1:
            a(f"s_cmp_eq_u32 s45, {16*(j//2) + j%2}")
            a(f"s_cbranch_scc0 S_J{j+1}")
        a(f"v_mfma_f32_16x16x32_bf16 {vr(SA+4*j,4)}, {vr(vA1,4)}, {vr(RING,4)}, {vr(SA+4*j,4)}")
        a("s_nop 7")
        a("s_branch S_IN")
        if j < NPW - 1:
            a.label(f"S_J{j+1}")
    a.label("S_NEXT")
    a("s_add_u32 s41, s41, 256")
    a(f"s_cmp_lt_u32 s41, {E*4}")
    a("s_cbranch_scc1 S_LOOP")
    for j in range(NPW):
        for r in range(4):
            a(f"v_mov_b32 v{vAcc+r}, v{SA+4*j+r}")
        flush()

    a.label("M_GDONE")
    vm.clear(); lg.clear()
    st(4)
    ACP = [16, 32, 16, W + 64, W + 80, W + 96]
    if STAMP:
        BFR = [48, 52, 58]
        vRd = [2, 3, 4, 7, 8, 10, 11, 12]
        vBA, vWr, vRB2, vXW, vOut, vBA2 = 13, 57, 62, 0, 5, 6
        tJ, tQ = 48, 49
    else:
        BFR = [48, 52, 58, 10]
        vRd = [2, 3, 4, 7, 8, 9, 14, 15]
        vBA, vWr, vRB2, vXW, vOut, vBA2 = 1, 57, 62, 0, 5, 6
        tJ, tQ = 48, 49
    NBF = len(BFR)
    PRE = NBF - 1
    XB = [0, ACT]
    a(f"v_and_b32 v{tJ}, 15, v{vLane}")
    a(f"v_lshrrev_b32 v{tQ}, 4, v{vLane}")
    a(f"s_lshl_b32 s4, s{sV}, 11")
    a(f"v_lshl_add_u32 v{vXW}, v{vLane}, 4, s4")
    a(f"s_lshl_b32 s4, s{sV}, 8")
    a(f"s_add_u32 s4, s4, {BIAS}")
    a(f"v_lshl_add_u32 v{vBA}, v{tQ}, 4, s4")
    def bias_ops(p):
        A = ACP[p]
        if p < 3:
            return [("ds", f"ds_read_b128 {vr(A+4*mt,4)}, v{vBA} offset:{64*mt}", f"bias{p}") for mt in range(4)]
        return [("ds", f"ds_read_b128 {vr(A+4*mt,4)}, v{vBA2} offset:{64*mt}", f"bias{p}") for mt in range(2)]
    for op in bias_ops(0) + bias_ops(1):
        emit(op)
    a(f"s_lshl_b32 s4, s{sRot}, 2")
    a(f"v_xor_b32 v{vRB2}, v{tQ}, v{tJ}")
    a(f"v_xor_b32 v{vRd[0]}, s4, v{vRB2}")
    a(f"v_lshlrev_b32 v{vRd[0]}, 4, v{vRd[0]}")
    a(f"v_lshl_or_b32 v{vRd[0]}, v{tJ}, 9, v{vRd[0]}")
    for k in range(1, 8):
        a(f"v_xor_b32 v{vRd[k]}, {64*k}, v{vRd[0]}")
    a(f"v_lshlrev_b32 v{vRB2}, 4, v{vRB2}")
    a(f"v_lshl_or_b32 v{vRB2}, v{tJ}, 10, v{vRB2}")
    a(f"s_and_b32 s4, s{sV}, 1")
    a("s_lshl_b32 s4, s4, 9")
    a(f"v_or_b32 v{vRB2}, s4, v{vRB2}")
    a(f"s_lshl_b32 s4, s{sV}, 3")
    a(f"v_or_b32 v{vWr}, s4, v{tQ}")
    a(f"v_xor_b32 v{vWr}, v{vWr}, v{tJ}")
    a(f"v_lshlrev_b32 v{vWr}, 4, v{vWr}")
    a(f"v_lshl_or_b32 v{vWr}, v{tJ}, 10, v{vWr}")
    a(f"s_lshl_b32 s4, s{sV}, 7")
    a(f"s_add_u32 s4, s4, {BIAS + 2048}")
    a(f"v_lshl_add_u32 v{vBA2}, v{tQ}, 4, s4")
    a("s_lshl_b32 s6, s3, 9")
    a(f"s_lshl_b32 s7, s{sV}, 6")
    a("s_add_u32 s6, s6, s7")
    a(f"v_and_b32 v{vOut}, 1, v{tQ}")
    a(f"v_lshlrev_b32 v{vOut}, 5, v{vOut}")
    a(f"v_lshl_or_b32 v{vOut}, v{tJ}, 9, v{vOut}")
    a(f"v_lshrrev_b32 v{tQ}, 1, v{tQ}")
    a(f"v_lshl_or_b32 v{vOut}, v{tQ}, 4, v{vOut}")
    a(f"v_add_u32 v{vOut}, s6, v{vOut}")
    a("s_movk_i32 s6, 0x2000")
    a("s_movk_i32 s7, 0x4000")
    a("s_waitcnt lgkmcnt(0)")
    lg.clear()
    a("s_barrier")
    st(5)

    steps = [(p, s) for p in range(6) for s in range(8)]
    vR2 = [vRB2, vRd[0], vRd[1], vRd[2]]
    SCR = [vRd[3], vRd[4]]
    vXR = W + 112
    def rd_op(i):
        p, s = steps[i]
        if p < 3:
            return ("ds", f"ds_read_b128 {vr(BFR[i%NBF],4)}, v{vRd[s]} offset:{HH + p*8192}", f"b_{i}")
        return ("ds", f"ds_read_b128 {vr(BFR[i%NBF],4)}, v{vR2[s%4]} offset:{ACT + (p-3)*16384 + (s//4)*256}", f"b_{i}")
    def w2reg(k):
        return W2R + 16 * k if k < 4 else W + 16 * (k - 4)
    def areg(p, s, mt):
        return (W + 16 * s if p < 3 else w2reg(s)) + 4 * mt
    def epi_a(p):
        A = ACP[p]
        ops = []
        if p < 3:
            for aa in range(2):
                m = A + 8 * aa
                ops.append(f"v_cvt_pk_bf16_f32 v{m}, v{m}, v{m+1}")
                ops.append(f"v_cvt_pk_bf16_f32 v{m+1}, v{m+2}, v{m+3}")
                ops.append(f"v_cvt_pk_bf16_f32 v{m+2}, v{m+4}, v{m+5}")
                ops.append(f"v_cvt_pk_bf16_f32 v{m+3}, v{m+6}, v{m+7}")
                for x in range(4):
                    ops.append(f"v_pk_max_i16 v{m+x}, v{m+x}, 0")
                if aa == 1:
                    ops.append(f"v_xor_b32 v{m+4}, 64, v{vWr}")
                    ops.append(("ds", f"ds_write_b128 v{m+4}, {vr(m,4)} offset:{ACT + p*16384}", f"aw{p}"))
                else:
                    ops.append(("ds", f"ds_write_b128 v{vWr}, {vr(m,4)} offset:{ACT + p*16384}", f"aw{p}"))
        else:
            for x in range(2):
                ops.append(("ds", f"ds_write_b128 v{vXW}, {vr(A+8+4*x,4)} offset:{XB[(p-3)%2] + 1024*x}", f"aw{p}"))
        return ops
    def epi_b1(p):
        A = ACP[p]
        return [("ds", f"ds_read_b128 {vr(A+8+4*x,4)}, v{vXR} offset:{XB[(p-3)%2] + 1024*x}", f"xr{p}") for x in range(2)]
    def epi_b2(p):
        A = ACP[p]
        ops = [("wl", f"xr{p}")]
        for x in range(8):
            ops.append(f"v_add_f32 v{A+x}, v{A+x}, v{A+8+x}")
        for x in range(4):
            ops.append(f"v_cvt_pk_bf16_f32 v{A+8+x}, v{A+2*x}, v{A+2*x+1}")
        ops.append("s_nop 1")
        ops.append(f"v_permlane16_swap_b32 v{A+8}, v{A+10}")
        ops.append(f"v_permlane16_swap_b32 v{A+9}, v{A+11}")
        if p > 3:
            ops.append(f"v_add_u32 v{vOut}, 8192, v{vOut}")
        ops.append(("vm", f"buffer_store_dwordx4 {vr(A+8,4)}, v{vOut}, {sr(sOUT,4)}, 0 offen" + ["", " sc1", " nt", " sc0 sc1", " sc1 nt"][opt.get('ost', 0)], "out"))
        return ops

    G = lambda p, s, mt=0: (p * 8 + s) * 4 + mt
    streams = []
    def add(name, ops, start=0, dl=10**9, after=None):
        streams.append(dict(name=name, ops=list(ops), start=start, dl=dl, after=after or [], done=None))
    RDL = 8 - PRE
    if opt.get('latel', 1):
        ops = []
        for o in dma_w2l_ops(4, 0) + dma_w2l_ops(5, 1):
            ops += [o, ("skip",)]
        add("dmaL", ops, 1, G(1, 0, 3))
    add("e0", epi_a(0), G(1, 1, 2), G(1, 6, 3))
    add("bias2", [("wl", "aw0")] + bias_ops(2), 0, G(1, 7, 2), after=[("e0", 1)])
    add("bar0", [("bar", ["aw0"])], 0, G(2, RDL - 1, 3), after=[("bias2", 2)])
    add("e1", epi_a(1), G(2, 1, 2), G(3, RDL - 2, 3))
    add("bar1", [("bar", ["aw1"])], 0, G(3, RDL - 1, 3), after=[("e1", 3), ("bar0", 0)])
    add("a2", [f"v_xor_b32 v{vR2[k]}, {64*k}, v{vRB2}" for k in range(1, 4)], G(2, max(0, 2 - PRE) + 1), G(2, RDL - 1, 3))
    add("tr4", [("wv", "w2_4")] + tr_w2_ops(w2reg(4), vTB, 0, "t2_4", SCR), G(2, max(1, 4 - PRE + 1)), G(2, 4, 3))
    add("tr5", [("wv", "w2_5")] + tr_w2_ops(w2reg(5), vTB, 4096, "t2_5", SCR), G(2, 2), G(2, 6, 0), after=[("tr4", 0)])
    add("dma6", [("wl", "t2_4")] + dma_w2l_ops(6, 0), 0, G(2, 7, 0), after=[("tr4", 3)])
    add("dma7", [("wl", "t2_5")] + dma_w2l_ops(7, 1), 0, G(3, 0, 3), after=[("tr5", 3), ("dma6", 0)])
    add("bias3", bias_ops(3), G(2, 5, 1), G(2, 7, 1))
    add("tr6", [("wv", "w2_6")] + tr_w2_ops(w2reg(6), vTB, 0, "t2_6", SCR), G(3, 2), G(3, 5, 0), after=[("dma7", 0)])
    add("tr7", [("wv", "w2_7")] + tr_w2_ops(w2reg(7), vTB, 4096, "t2_7", SCR), G(3, 3), G(3, 6, 0), after=[("tr6", 0)])
    add("bias4", [f"v_xor_b32 v{vXR}, 2048, v{vXW}"] + bias_ops(4), G(3, 0, 1), G(3, 7, 1))
    add("e2", epi_a(2), G(3, 1, 2), G(4, 2, 3))
    add("bias5", bias_ops(5), G(3, 0, 1), G(4, 7, 1))
    add("e3", epi_a(3), G(4, 1, 2), G(4, 2, 3), after=[("bar1", 0)])
    add("bar2", [("bar", ["aw2", "aw3"])], 0, G(4, RDL - 1, 3), after=[("e2", 3), ("e3", 3), ("bar1", 0)])
    add("x3", epi_b1(3), 0, G(4, 6, 0), after=[("bar2", 0)])
    add("f3", epi_b2(3), 0, G(5, 3, 3), after=[("x3", 4)])
    add("e4", epi_a(4), G(5, 1, 2), G(5, 2, 3), after=[("bar2", 0)])
    add("bar3", [("bar", ["aw4", "xr3"])], 0, G(5, 4, 0), after=[("e4", 3), ("x3", 0)])
    add("x4", epi_b1(4), 0, G(5, 5, 0), after=[("bar3", 0)])
    add("f4", epi_b2(4), 0, G(5, 7, 3), after=[("x4", 4), ("f3", 0)])
    byname = {s_['name']: s_ for s_ in streams}

    def ready(s_, g, force=False):
        if not s_['ops']:
            return False
        if g < s_['start']:
            return False
        for nm, dly in s_['after']:
            d = byname[nm]['done']
            if d is None or (g < d + dly and not force):
                return False
        return True
    def force_finish(s_, g):
        for nm, _ in s_['after']:
            force_finish(byname[nm], g)
        if s_['ops']:
            assert g >= s_['start'], (s_['name'], g)
            while s_['ops']:
                emit(s_['ops'].pop(0))
            s_['done'] = g
    BUD = opt.get('bud', 3)
    for i in range(PRE):
        emit(rd_op(i))
    segs = None
    if bars_hint is not None and opt.get('mprio', 1):
        pts = [0] + [b + 1 for b in bars_hint] + [len(steps)]
        segs = {}
        for x, y in zip(pts[:-1], pts[1:]):
            L = y - x
            for k in range(4):
                segs.setdefault(x + k * L // 4, 3 - k)
                segs[x + k * L // 4] = min(segs[x + k * L // 4], 3 - k) if k and (x + k * L // 4) != x else segs[x + k * L // 4]
    for i, (p, s) in enumerate(steps):
        cur_q[0] = i
        if segs and i in segs:
            a(f"s_setprio {segs[i]}")
        tags = [f"b_{i}"]
        if s == 0:
            tags.append(f"bias{p}")
        if p == 3 and s >= 4:
            tags.append(f"t2_{s}")
        wait(ltag=tags)
        for mt in range(4):
            g = i * 4 + mt
            A = ACP[p] + 4 * mt
            c = "0" if (p >= 3 and s == 0 and mt >= 2) else vr(A, 4)
            a(f"v_mfma_f32_16x16x32_bf16 {vr(A,4)}, {vr(areg(p,s,mt),4)}, {vr(BFR[i%NBF],4)}, {c}")
            B_ = opt.get('bud23', 4) if p in (2, 3) else BUD
            bud = (B_ + (g % 2)) // 2
            if mt == 3:
                bud = min(bud, opt.get('bud3', 1))
            if mt == 0 and i + PRE < len(steps):
                bud -= emit(rd_op(i + PRE))
            while bud > 0:
                cand = [s_ for s_ in streams if ready(s_, g)]
                if not cand:
                    break
                s_ = min(cand, key=lambda z: z['dl'] - len(z['ops']))
                bud -= emit(s_['ops'].pop(0))
                if not s_['ops']:
                    s_['done'] = g
            for s_ in streams:
                if s_['ops'] and s_['dl'] <= g:
                    if opt.get('verbose'):
                        print("forced", s_['name'], len(s_['ops']), "ops at", p, s, mt, file=sys.stderr)
                    force_finish(s_, g)
        if p == 2 and s == 7:
            st(6)
    assert all(not s_['ops'] for s_ in streams)
    st(10)
    if opt.get('dly_e'):
        a(f"s_sleep {opt['dly_e']}")
    a("s_nop 7")
    for op in epi_a(5):
        emit(op)
    a("s_waitcnt lgkmcnt(0)")
    lg.clear()
    a("s_barrier")
    for op in epi_b1(5) + epi_b2(5):
        emit(op)
    if STAMP:
        a("s_waitcnt vmcnt(0)")
        st(7)
    if opt.get('amp') is not None:
        a("s_waitcnt vmcnt(0)")
        st(7)
        a("s_sub_u32 s99, s99, s98")
        a("s_lshl_b32 s99, s99, 3")
        a("s_min_u32 s99, s99, 100000")
        a("s_memrealtime s[96:97]")
        a("s_waitcnt lgkmcnt(0)")
        a("s_mov_b32 s98, s96")
        a.label("AMP_L")
        a("s_sleep 2")
        a("s_memrealtime s[96:97]")
        a("s_waitcnt lgkmcnt(0)")
        a("s_sub_u32 s96, s96, s98")
        a("s_cmp_lt_u32 s96, s99")
        a("s_cbranch_scc1 AMP_L")
    a("s_endpgm")

    a.label("AUX")
    aux[0] = True
    vm.clear(); lg.clear()
    a("s_memrealtime s[96:97]")
    a(f"s_and_b32 s{sA}, s2, 7")
    a(f"s_mul_i32 s{sPI}, s{sA}, 5000")
    a(f"s_lshr_b32 s{sB}, s2, 3")
    a("s_waitcnt lgkmcnt(0)")
    srd(a, sDST, 80, E * 4)
    srd(a, sSRC, 78, E * 4)
    srd(a, sX, 76, N * 512)

    def xpf(first, stride, n, vd):
        for r in range(n):
            a(f"v_add_u32 v{vT0}, {first + r*stride}, v{vSeq}")
            a(f"v_subrev_u32 v{vT1}, 40000, v{vT0}")
            a(f"v_min_u32 v{vT0}, v{vT0}, v{vT1}")
            a(f"v_lshlrev_b32 v{vT0}, 7, v{vT0}")
            a(f"buffer_load_dword v{vd+r}, v{vT0}, {sr(sX,4)}, 0 offen")

    a(f"s_cmp_lt_u32 s2, {NPROD}")
    a("s_cbranch_scc1 PROD")
    stamp_setup()
    st(0)
    a(f"s_sub_u32 s{sB}, s{sB}, 4")
    a(f"s_lshl_b32 s{sB}, s{sB}, 9")
    a(f"s_add_u32 s{sPI}, s{sPI}, s{sB}")
    a(f"v_add_u32 v{vSeq}, s{sPI}, v0")
    xpf(0, 1024, NH, 16)
    if STAMP:
        a("s_waitcnt vmcnt(0)")
        st(13)
    a("s_endpgm")
    a.label("PROD")
    a(f"s_mul_i32 s{sA}, s2, {CH*4}")
    for r in range(3):
        if r == 2:
            a(f"s_cmp_lt_u32 s{sW}, 4")
            a("s_cbranch_scc0 P_E2")
        a(f"buffer_load_dwordx4 {vr(16+8*r,4)}, v{vT16}, {sr(sDST,4)}, s{sA} offen")
        a(f"buffer_load_dwordx4 {vr(20+8*r,4)}, v{vT16}, {sr(sSRC,4)}, s{sA} offen")
        if r < 2:
            a(f"s_add_u32 s{sA}, s{sA}, 8192")
    a.label("P_E2")
    vm.issue("edges")
    srd(a, sW2, 88, 256 * 1024)
    srd(a, sDBG, 6, 256)
    srd(a, sWS, 100, CELLS_BYTES)
    a(f"s_or_b32 s{sNode}, s96, 1")
    stamp_setup()
    st(0)
    a(f"s_cmp_eq_u32 s{sW}, 0")
    a("s_cbranch_scc0 P_N")
    a(f"v_mov_b32 v{vT0}, s{sNode}")
    a(f"s_lshl_b32 s{sA}, s2, 2")
    a(f"v_mov_b32 v{vT1}, s{sA}")
    a(f"v_mov_b32 v{vOff}, {NONCE}")
    a("s_mov_b64 exec, 1")
    a(f"buffer_store_dword v{vT0}, v{vT1}, {sr(sDBG,4)}, 0 offen sc1")
    a(f"ds_write_b32 v{vOff}, v{vT0}")
    a("s_mov_b64 exec, -1")
    a.label("P_N")
    a(f"v_mov_b32 v40, {EMPTY}")
    a("v_mov_b32 v41, v40")
    a("v_mov_b32 v42, v40")
    a("v_mov_b32 v43, v40")
    for i in range(7):
        a(f"ds_write_b128 v{vT16}, v[40:43] offset:{IMG + i*8192}")
    a(f"v_lshlrev_b32 v{vT0}, 2, v0")
    a(f"v_mov_b32 v{vT1}, 0")
    a(f"ds_write_b32 v{vT0}, v{vT1} offset:{PCNT}")
    a("v_mov_b32 v44, 1")
    a(f"v_mov_b32 v45, {PCNT + 2040}")
    a(f"s_movk_i32 s{sT}, -48")
    a(f"s_mov_b32 s{sId}, {MHI}")
    a("v_lshrrev_b32 v46, 4, v0")
    a("v_and_b32 v47, 15, v0")
    a("v_lshlrev_b32 v48, 8, v46")
    a("v_lshl_or_b32 v48, v47, 3, v48")
    a("v_lshlrev_b32 v49, 2, v46")
    a("v_lshlrev_b32 v50, 14, v46")
    a("v_lshl_or_b32 v50, v47, 4, v50")
    a(f"s_lshl_b32 s4, s2, 8")
    a(f"v_add_u32 v50, s4, v50")
    a(f"v_mov_b32 v51, {NONCE}")
    a(f"v_mov_b32 v52, {MARK}")
    a("s_waitcnt lgkmcnt(0)")
    a("s_barrier")
    if opt.get('w2touch', 1):
        a(f"s_lshl_b32 s{sA}, s{sB}, 16")
        a(f"v_lshlrev_b32 v{vT0}, 7, v0")
        a(f"buffer_load_dword v60, v{vT0}, {sr(sW2,4)}, s{sA} offen")
        vm.issue("touch")
    a(f"s_mov_b32 s{sA}, 43691")
    a(f"s_lshl_b32 s{sB}, s{sB}, 9")
    a(f"s_add_u32 s{sPI}, s{sPI}, s{sB}")
    a(f"v_add_u32 v{vSeq}, s{sPI}, v0")
    a("ds_read_b32 v53, v51")
    for i in range(7):
        a(f"v_add_u32 v{72+i}, {i*32*16384}, v50")
    a("s_waitcnt lgkmcnt(0)")
    Q1, Q2 = 128, 160
    for i in range(7):
        for q in (Q1, Q2):
            a(f"v_mov_b32 v{q+4*i+1}, v53")
            a(f"v_mov_b32 v{q+4*i+3}, v53")
    wait(vtag="edges")
    st(14)
    def bin_a(r):
        vd, vs, vb, va, vrk = 16 + 8 * r, 20 + 8 * r, 192 + 4 * r, 204 + 4 * r, 216 + 4 * r
        for k in range(4):
            a(f"v_mul_u32_u24 v{vb+k}, s{sA}, v{vd+k}")
            a(f"v_lshrrev_b32 v{vb+k}, 21, v{vb+k}")
            a(f"v_lshlrev_b32 v{va+k}, 2, v{vb+k}")
            a(f"ds_add_rtn_u32 v{vrk+k}, v{va+k}, v44 offset:{PCNT}")
    def bin_a2(r):
        vd, vs, vb, va, vrk = 16 + 8 * r, 20 + 8 * r, 192 + 4 * r, 204 + 4 * r, 216 + 4 * r
        for k in range(4):
            a(f"v_mad_i32_i24 v{vd+k}, v{vb+k}, s{sT}, v{vd+k}")
            a(f"v_lshl_or_b32 v{vs+k}, v{vd+k}, 14, v{vs+k}")
            a(f"v_or_b32 v{vs+k}, s{sId}, v{vs+k}")
            a(f"v_lshlrev_b32 v{vb+k}, 8, v{vb+k}")
    def bin_b(r):
        vd, vs, vb, va, vrk = 16 + 8 * r, 20 + 8 * r, 192 + 4 * r, 204 + 4 * r, 216 + 4 * r
        for k in range(4):
            a(f"v_cmp_gt_u32 vcc, 64, v{vrk+k}")
            a(f"v_lshl_add_u32 v{vb+k}, v{vrk+k}, 2, v{vb+k}")
            a("s_nop 0")
            a(f"v_cndmask_b32 v{vb+k}, v45, v{vb+k}, vcc")
            a(f"ds_write_b32 v{vb+k}, v{vs+k} offset:{IMG}")
    bin_a(0)
    bin_a(1)
    a(f"s_cmp_lt_u32 s{sW}, 4")
    a("s_cbranch_scc0 P_R2")
    a(f"v_cmp_gt_u32 vcc, {CH//4 - 1024}, v0")
    a("s_and_saveexec_b64 s[4:5], vcc")
    bin_a(2)
    bin_a2(2)
    a("s_waitcnt lgkmcnt(0)")
    bin_b(2)
    a("s_mov_b64 exec, s[4:5]")
    a.label("P_R2")
    bin_a2(0)
    bin_a2(1)
    a("s_waitcnt lgkmcnt(0)")
    bin_b(0)
    bin_b(1)
    a("s_waitcnt lgkmcnt(0)")
    a("s_barrier")
    if opt.get('dly_p'):
        a(f"s_sleep {opt['dly_p']}")
    st(15)
    for i in range(7):
        a(f"ds_read_b64 {vr(16+2*i,2)}, v48 offset:{IMG + i*8192}")
        lg.issue(f"c{i}")
    for i in range(7):
        a(f"ds_read_b32 v{64+i}, v49 offset:{PCNT + i*128}")
        lg.issue(f"n{i}")
    for i in range(7):
        d = Q1 + 4 * i
        wait(ltag=f"c{i}")
        a(f"v_mov_b32 v{d}, v{16+2*i}")
        a(f"v_mov_b32 v{d+2}, v{17+2*i}")
        a(f"buffer_store_dwordx4 {vr(d,4)}, v{72+i}, {sr(sWS,4)}, 0 offen sc1")
        a(f"ds_read_b64 {vr(96+2*i,2)}, v48 offset:{IMG + i*8192 + 128}")
        lg.issue(f"d{i}")
    a("s_movk_i32 s6, 0x2000")
    for i in range(7):
        d = Q2 + 4 * i
        wait(ltag=f"d{i}")
        a(f"v_cmp_lt_u32 vcc, 64, v{64+i}")
        a(f"v_mov_b32 v{d+2}, v{97+2*i}")
        a("s_nop 0")
        a(f"v_cndmask_b32 v{d}, v{96+2*i}, v52, vcc")
        a(f"v_cmp_le_u32 vcc, 32, v{64+i}")
        a("s_and_b64 exec, exec, vcc")
        a(f"s_cbranch_scc0 P_SK{i}")
        a(f"buffer_store_dwordx4 {vr(d,4)}, v{72+i}, {sr(sWS,4)}, s6 offen sc1")
        a.label(f"P_SK{i}")
        a("s_mov_b64 exec, -1")
    if STAMP or opt.get('pamp') is not None:
        st(1)
        if STAMP or opt.get('pamp') == 2:
            a("s_waitcnt vmcnt(0)")
            st(2)
    a("s_barrier")
    xpf(NH * 1024, 2048, NP, 16)
    if opt.get('pamp') is not None:
        a("s_sub_u32 s99, s99, s98")
        a("s_lshl_b32 s99, s99, 4")
        a("s_min_u32 s99, s99, 100000")
        a.label("PAMP_L")
        a("s_sleep 2")
        a("s_memrealtime s[96:97]")
        a("s_waitcnt lgkmcnt(0)")
        a("s_sub_u32 s96, s96, s98")
        a("s_cmp_lt_u32 s96, s99")
        a("s_cbranch_scc1 PAMP_L")
    if STAMP:
        a("s_waitcnt vmcnt(0)")
        st(13)
    a.label("M_END")
    a("s_endpgm")
    return LDS_TOTAL, bars


def build(opt):
    name = "gather_scatter__isomorphism_gin_2__graph_kernel"
    _, bars = gen_main(Asm(), dict(opt, verbose=0), name)
    b = Asm()
    lds, bars2 = gen_main(b, opt, name, bars)
    assert bars == bars2
    a = Asm()
    a.raw(HEADER.rstrip())
    a.raw(f"; @launch grid=(256,1,1) block=(512,1,1) lds={lds}")
    a.raw('.amdgcn_target "amdgcn-amd-amdhsa--gfx950"')
    a.raw(".text")
    a.l += b.l
    a.raw('.section .rodata,"a"')
    a.raw(kd(name, 256, 102))
    return a.text()

if __name__ == "__main__":
    out = sys.argv[1]
    opt = {}
    for kv in sys.argv[2:]:
        k, v = kv.split("=")
        opt[k] = int(v)
    open(out, "w").write(build(opt))
```

```python
import sys
from gen2 import Asm, Ctr, vr, sr, srd, kd, HEADER

N = 10000
E = 160000
BN = 48
NBLK = 209
NPROD = 32
NHELP = 15
C0 = NPROD + NHELP
CH = E // NPROD
CELLS_BYTES = NBLK * 16384
STAMP_OFF = 0x400000
MAGIC = 0xA5B
MHI = MAGIC << 20
EMPTY = MHI | (63 << 14)
MARK = MHI | (62 << 14)
NPW = 6


def gen_main(a, opt, name, bars_hint=None):
    D = opt.get('depth', 8)
    NH = opt.get('nh', 8)
    NP = opt.get('np', 4)
    STAMP = opt.get('stamp')
    assert D <= 8
    HH = 0
    ACT = 24576
    WST = 73728
    LIST = 65536
    CNT = LIST + 6144
    FLAG = CNT + 56 * 4
    BIAS = WST + 65536
    LDS_TOTAL = BIAS + 3072
    IMG = 0
    PCNT = 57344
    NONCE = PCNT + 2048
    vLane, vC16, vSh, vSeq, vT0, vT1, vOff, vFl = 1, 2, 3, 4, 5, 6, 7, 8
    vAcc = 10
    RING = 16
    vA1, vAS = 48, 52
    vS2, vT16, vLB, vTB = 56, 57, 58, 63
    W2R = 64
    W = 128
    vS1 = 16
    vTR = 20
    vTR2 = 29
    vBI = 44
    sX, sWS, sOUT, sSRC, sDST, sB1, sB2, sW1, sW2, sDBG = 8, 12, 16, 20, 24, 28, 32, 64, 68, 72
    sW, sWB, sA, sB = 36, 37, 38, 39
    sLB, sRot, sWL, sV = 46, 47, 48, 49
    sPC, sPI, sT, sXor, sNode, sId = 50, 51, 52, 53, 54, 55
    sMask = 56
    sM = 76
    sST = 92

    vm = Ctr(63)
    lg = Ctr(15)
    aux = [False]

    def st(idx):
        amp = opt.get('amp')
        pamp = opt.get('pamp')
        if pamp is not None and aux[0] and (idx == 0 or idx == pamp):
            a("s_memrealtime s[94:95]")
            a("s_waitcnt lgkmcnt(0)")
            lg.clear()
            a(f"s_mov_b32 s{98 if idx == 0 else 99}, s94")
        if amp is not None and not aux[0]:
            if idx == 0 or idx == amp:
                a("s_memrealtime s[96:97]")
                a("s_waitcnt lgkmcnt(0)")
                lg.clear()
                a(f"s_mov_b32 s{98 if idx == 0 else 99}, s96")
                if amp == 30:
                    a("s_mov_b32 s99, s96")
                    a("s_mov_b32 s98, s94")
            if idx == 2 and amp in (20, 21):
                for i in range(4):
                    a(f"v_readlane_b32 s{92+i}, v40, {16*i}")
                a("s_nop 3")
                op = "s_min_u32" if amp == 20 else "s_max_u32"
                a(f"{op} s92, s92, s93")
                a(f"{op} s94, s94, s95")
                a(f"{op} s92, s92, s94")
                if amp == 20:
                    a("s_mov_b32 s99, s98")
                    a("s_min_u32 s98, s92, s98")
                else:
                    a("s_max_u32 s99, s92, s98")
        if STAMP:
            a("s_memrealtime s[96:97]" if not opt.get('cyc') else "s_memtime s[96:97]")
            a("s_waitcnt lgkmcnt(0)")
            lg.clear()
            a("v_mov_b32 v14, s96")
            a("v_mov_b32 v15, s97")
            a("s_mov_b64 s[98:99], exec")
            a("s_mov_b64 exec, 1")
            a(f"buffer_store_dwordx2 v[14:15], v9, {sr(sST,4)}, 0 offen offset:{idx*8}")
            vm.issue('st')
            a("s_mov_b64 exec, s[98:99]")

    def wait(vtag=None, ltag=None):
        p = []
        if vtag is not None:
            n = vm.need(vtag)
            if n is not None:
                p.append(f"vmcnt({n})")
        if ltag is not None:
            tags = ltag if isinstance(ltag, (list, tuple)) else [ltag]
            ns = [lg.need(t) for t in tags]
            ns = [n for n in ns if n is not None]
            if ns:
                p.append(f"lgkmcnt({min(ns)})")
        if p:
            a("s_waitcnt " + " ".join(p))
            return True
        return False

    def stamp_setup():
        if STAMP:
            srd(a, sST, 100, 0x1000000)
            a("s_lshl_b32 s96, s2, 4")
            a(f"s_add_u32 s96, s96, s{sW}")
            a("s_lshl_b32 s96, s96, 7")
            a(f"s_add_u32 s96, s96, {STAMP_OFF}")
            a("v_mov_b32 v9, s96")

    a.raw(f".globl {name}")
    a.raw(".p2align 8")
    a.raw(f".type {name},@function")
    a.label(name)
    if opt.get('amp') == 30:
        a("s_memrealtime s[94:95]")
    a("s_cmp_ge_u32 s2, 256")
    a("s_cbranch_scc1 M_END")
    a("s_load_dwordx16 s[76:91], s[0:1], 0")
    a("s_load_dwordx4 s[4:7], s[0:1], 64")
    a("s_load_dwordx2 s[100:101], s[0:1], 80")
    a(f"v_and_b32 v{vLane}, 63, v0")
    a(f"v_lshrrev_b32 v{vT0}, 6, v0")
    a(f"v_lshlrev_b32 v{vT16}, 4, v0")
    a(f"v_readfirstlane_b32 s{sW}, v{vT0}")
    a(f"s_cmp_lt_u32 s2, {C0}")
    a("s_cbranch_scc1 AUX")

    a(f"s_sub_u32 s3, s2, {C0}")
    a(f"s_lshl_b32 s{sLB}, s3, 14")
    a(f"s_mul_i32 s3, s3, {BN}")
    a(f"v_mov_b32 v{vLB}, {LIST}")
    a(f"v_lshrrev_b32 v{vT0}, 3, v0")
    a(f"v_add_u32 v{vT0}, s3, v{vT0}")
    a(f"v_or_b32 v{vT0}, 0xffff0000, v{vT0}")
    a(f"v_and_b32 v{vT1}, 7, v0")
    a(f"v_cmp_eq_u32 vcc, 0, v{vT1}")
    a("v_mov_b32 v37, -1")
    a(f"v_add_u32 v{vOff}, v{vLB}, v{vT16}")
    a(f"v_cndmask_b32 v36, v37, v{vT0}, vcc")
    a("v_cmp_le_u32 vcc, 384, v0")
    a("v_mov_b32 v40, 1")
    a("s_nop 0")
    a("v_cndmask_b32 v36, v36, v40, vcc")
    a("v_cndmask_b32 v37, v37, v40, vcc")
    a("v_cmp_eq_u32 vcc, 398, v0")
    a("v_mov_b32 v38, v37")
    a("v_mov_b32 v39, v37")
    a("v_cndmask_b32 v36, v36, 0, vcc")
    a(f"ds_write_b128 v{vOff}, v[36:39]")
    a(f"s_lshr_b32 s{sRot}, s2, 3")
    a(f"s_and_b32 s{sRot}, s{sRot}, 7")
    a(f"s_lshr_b32 s{sV}, s2, 4")
    a(f"s_and_b32 s{sV}, s{sV}, 4")
    a(f"s_and_b32 s{sA}, s{sRot}, 3")
    a(f"s_or_b32 s{sV}, s{sV}, s{sA}")
    a(f"s_xor_b32 s{sV}, s{sW}, s{sV}")
    a(f"v_bfe_u32 v{vT0}, v{vLane}, 1, 2")
    a(f"v_bfe_u32 v{vT1}, v{vLane}, 4, 1")
    a(f"v_xor_b32 v{vT0}, v{vT0}, v{vT1}")
    a(f"v_lshrrev_b32 v{vT1}, 3, v{vLane}")
    a(f"v_lshlrev_b32 v{vT1}, 10, v{vT1}")
    a(f"v_and_b32 v{vOff}, 1, v{vLane}")
    a(f"v_lshl_or_b32 v{vT1}, v{vOff}, 4, v{vT1}")
    a(f"s_lshl_b32 s{sA}, s{sV}, 7")
    a(f"v_or_b32 v{vT1}, s{sA}, v{vT1}")
    a(f"v_lshl_or_b32 v{vS1}, v{vT0}, 5, v{vT1}")
    a(f"v_xor_b32 v{vS1+1}, 64, v{vS1}")
    a(f"s_lshl_b32 s{sWL}, s{sW}, 13")
    a(f"s_add_u32 s{sWB}, s{sWL}, {WST}")
    a(f"s_lshl_b32 s{sB}, s{sRot}, 15")
    a("s_waitcnt lgkmcnt(0)")
    srd(a, sW1, 84, 256 * 1024)
    a("s_barrier")

    def slot_base(sl):
        return (sWB if sl < 2 else sWL), (sl % 2) * 4096

    def dma_unit(u):
        sb, off = slot_base(u % 4)
        for i in range(4):
            a(f"s_add_u32 m0, s{sb}, {off + i * 1024}")
            if u < 8:
                a(f"s_xor_b32 s{sA}, s{sB}, {(u * 32 + i * 8) * 1024}")
                a(f"buffer_load_dwordx4 v{vS1 + i % 2}, {sr(sW1,4)}, s{sA} offen lds")
            else:
                a(f"s_mov_b32 s{sA}, {((u - 8) * 32 + i * 8) * 512}")
                a(f"buffer_load_dwordx4 v{vS2}, {sr(sW2,4)}, s{sA} offen lds")
            vm.issue(f"u{u}")

    NR = opt.get('nr', 2)
    NU = 8 + NR
    NINF = opt.get('ninf', 3)
    PPRIO = opt.get('pprio', 1)
    stamp_setup()
    st(0)
    if opt.get('dly_c'):
        a(f"s_sleep {opt['dly_c']}")
    if PPRIO:
        a("s_setprio 3")
    dma_unit(0)
    if PPRIO:
        a("s_setprio 2")
    a("s_load_dword s45, s[82:83], 0")
    for u in range(1, NINF):
        dma_unit(u)
    srd(a, sB1, 86, 1024)
    srd(a, sB2, 90, 512)
    a(f"v_lshlrev_b32 v{vC16}, 4, v{vLane}")
    a(f"s_cmp_eq_u32 s{sW}, 2")
    a("s_cbranch_scc0 C_SL2")
    a(f"buffer_load_dwordx4 {vr(vBI,4)}, v{vC16}, {sr(sB1,4)}, 0 offen")
    a.label("C_SL2")
    a(f"s_cmp_eq_u32 s{sW}, 3")
    a("s_cbranch_scc0 C_SL3")
    a(f"buffer_load_dwordx4 {vr(vBI,4)}, v{vC16}, {sr(sB2,4)}, 0 offen")
    a.label("C_SL3")
    a(f"v_lshrrev_b32 v{vT0}, 4, v{vLane}")
    a(f"v_lshlrev_b32 v{vT0}, 10, v{vT0}")
    a(f"v_bfe_u32 v{vT1}, v{vLane}, 2, 2")
    a(f"v_lshl_or_b32 v{vT0}, v{vT1}, 7, v{vT0}")
    a(f"v_and_b32 v{vT1}, 3, v{vLane}")
    a(f"v_lshl_or_b32 v{vT0}, v{vT1}, 3, v{vT0}")
    a(f"v_bfe_u32 v{vT1}, v{vLane}, 3, 2")
    for mt in range(4):
        a(f"v_xor_b32 v{vOff}, {mt}, v{vT1}")
        a(f"v_lshl_add_u32 v{vOff}, v{vOff}, 5, v{vT0}")
        a(f"v_add_u32 v{vTR+mt}, s{sWB}, v{vOff}")
        a(f"v_add_u32 v{vTR+4+mt}, s{sWL}, v{vOff}")

    def setup_a():
        a(f"v_bfe_u32 v{vT1}, v{vLane}, 3, 2")
        a(f"s_and_b32 s{sA}, s{sV}, 1")
        a(f"s_lshl_b32 s{sA}, s{sA}, 1")
        a(f"v_xor_b32 v{vT1}, s{sA}, v{vT1}")
        a(f"v_lshrrev_b32 v{vT0}, 2, v{vLane}")
        a(f"v_lshlrev_b32 v{vT0}, 7, v{vT0}")
        a(f"v_lshl_or_b32 v{vT0}, v{vT1}, 5, v{vT0}")
        a(f"v_and_b32 v{vT1}, 3, v{vLane}")
        a(f"v_lshl_or_b32 v{vT0}, v{vT1}, 3, v{vT0}")
        a(f"v_add_u32 v{vTB}, s{sWB}, v{vT0}")
        a(f"v_add_u32 v{vTR2}, s{sWL}, v{vT0}")
        srd(a, sW2, 88, 256 * 1024)
        a(f"v_bfe_u32 v{vT0}, v{vLane}, 1, 2")
        a(f"v_lshrrev_b32 v{vT1}, 4, v{vLane}")
        a(f"v_xor_b32 v{vT0}, v{vT0}, v{vT1}")
        a(f"v_lshrrev_b32 v{vT1}, 3, v{vLane}")
        a(f"v_lshlrev_b32 v{vT1}, 9, v{vT1}")
        a(f"v_lshl_or_b32 v{vT0}, v{vT0}, 5, v{vT1}")
        a(f"v_and_b32 v{vT1}, 1, v{vLane}")
        a(f"v_lshl_or_b32 v{vT0}, v{vT1}, 4, v{vT0}")
        a(f"s_lshr_b32 s{sA}, s{sV}, 1")
        a(f"s_lshl_b32 s{sA}, s{sA}, 7")
        a(f"s_and_b32 s44, s{sV}, 1")
        a(f"s_lshl_b32 s44, s44, 17")
        a(f"s_or_b32 s{sA}, s{sA}, s44")
        a(f"v_or_b32 v{vS2}, s{sA}, v{vT0}")

    def setup_b():
        srd(a, sX, 76, N * 512)
        srd(a, sDBG, 6, 256)
        srd(a, sWS, 100, CELLS_BYTES)
        srd(a, sOUT, 4, N * 512)
        srd(a, sDST, 80, E * 4)
        srd(a, sSRC, 78, E * 4)

    def setup_c():
        a(f"v_lshrrev_b32 v{vT0}, 4, v{vLane}")
        a(f"v_lshrrev_b32 v{vT1}, 3, v{vLane}")
        a(f"v_xor_b32 v{vT0}, v{vT0}, v{vT1}")
        a(f"v_and_b32 v{vT0}, 1, v{vT0}")
        a(f"v_bfe_u32 v{vT1}, v{vLane}, 1, 2")
        a(f"v_lshl_or_b32 v{vT0}, v{vT0}, 2, v{vT1}")
        a(f"v_and_b32 v{vT1}, 1, v{vLane}")
        a(f"v_lshlrev_b32 v{vT1}, 4, v{vT1}")
        a("s_lshl_b32 s45, s45, 16")
        a("v_mov_b32 v40, s45")
        a("v_add_f32 v40, 1.0, v40")
        a("v_cvt_pk_bf16_f32 v40, v40, v40")
        a("v_and_b32 v40, 0xffff, v40")
        a("v_mov_b32 v41, 0x3f80")
        a(f"v_cmp_gt_u32 vcc, 32, v{vLane}")
        a("s_nop 1")
        a("v_cndmask_b32 v40, v41, v40, vcc")
        a(f"v_lshlrev_b32 v40, v{vT1}, v40")
        a(f"v_lshlrev_b32 v41, v{vT1}, v41")
        for p in range(4):
            a(f"v_cmp_eq_u32 vcc, {p}, v{vT0}")
            a("s_nop 1")
            a(f"v_cndmask_b32 v{vA1+p}, 0, v41, vcc")
            a(f"v_cndmask_b32 v{vAS+p}, 0, v40, vcc")

    def setup_d():
        a(f"v_lshrrev_b32 v{vSh}, 5, v{vLane}")
        a(f"v_lshlrev_b32 v{vSh}, 4, v{vSh}")
        a(f"v_and_b32 v{vT0}, 15, v{vLane}")
        a(f"v_lshlrev_b32 v{vFl}, 4, v{vT0}")
        a(f"v_lshl_or_b32 v{vFl}, v{vSh}, 4, v{vFl}")
        a(f"v_bfe_u32 v{vT0}, v{vLane}, 4, 1")
        a(f"v_lshl_or_b32 v{vFl}, v{vT0}, 3, v{vFl}")
        a(f"v_and_b32 v{vC16}, 31, v{vLane}")
        a(f"v_lshlrev_b32 v{vC16}, 4, v{vC16}")
        a("v_lshrrev_b32 v42, 4, v0")
        a("v_lshlrev_b32 v42, 2, v42")
        a(f"s_add_u32 s{sPI}, s{sLB}, 8192")
        a(f"s_mov_b32 s{sPC}, 0")
        a(f"s_mov_b32 s{sId}, {MHI}")
        a(f"s_mov_b32 s{sT}, {EMPTY}")
        a(f"v_lshrrev_b32 v{vT0}, 1, v{vLane}")
        a(f"v_lshlrev_b32 v{vT0}, 4, v{vT0}")
        a(f"v_and_b32 v{vT1}, 1, v{vLane}")
        a(f"v_or_b32 v{vT0}, v{vT0}, v{vT1}")
        a(f"s_lshl_b32 s{sNode}, s{sW}, 1")
        a(f"v_add_u32 v{vT0}, s{sNode}, v{vT0}")
        a(f"v_cmp_gt_u32 vcc, 6, v{vLane}")
        a(f"v_mov_b32 v{vT1}, 56")
        a("v_mov_b32 v62, 64")
        a(f"v_cndmask_b32 v{vT0}, v{vT1}, v{vT0}, vcc")
        a(f"v_lshl_add_u32 v61, v{vT0}, 2, v{vLB}")
        a(f"s_lshl_b32 s{sA}, s{sW}, 8")
        a(f"v_lshl_add_u32 v{vT1}, v{vLane}, 2, v{vLB}")
        a(f"v_add_u32 v60, s{sA}, v{vT1}")
        a("v_cndmask_b32 v62, 0, v62, vcc")
        set_xor()

    def set_xor():
        a(f"s_lshl_b32 s{sXor}, s{sNode}, 9")
        a(f"s_and_b32 s44, s{sNode}, 15")
        a("s_lshl_b32 s44, s44, 4")
        a(f"s_or_b32 s{sXor}, s{sXor}, s44")

    def bias_to_lds():
        a(f"s_sub_u32 s{sA}, s{sW}, 2")
        a(f"s_cmp_lt_u32 s{sA}, 2")
        a("s_cbranch_scc0 C_NB")
        for x in range(4):
            a(f"v_lshlrev_b32 v{32+2*x}, 16, v{vBI+x}")
            a(f"v_and_b32 v{33+2*x}, 0xffff0000, v{vBI+x}")
        a(f"s_lshl_b32 s{sA}, s{sA}, 11")
        a(f"s_add_u32 s{sA}, s{sA}, {BIAS}")
        a(f"v_lshl_add_u32 v{vOff}, v{vLane}, 5, s{sA}")
        a(f"s_cmp_eq_u32 s{sW}, 3")
        a("s_cbranch_scc0 C_NB2")
        a("s_mov_b64 exec, 0xffffffff")
        a.label("C_NB2")
        a(f"ds_write_b128 v{vOff}, v[32:35]")
        a(f"ds_write_b128 v{vOff}, v[36:39] offset:16")
        a("s_mov_b64 exec, -1")
        a("s_waitcnt lgkmcnt(0)")
        a.label("C_NB")

    def tr_w2_ops(dst, vbase, off, tag, scr):
        ops = []
        for mt in range(4):
            if mt == 0:
                ad = vbase
            else:
                ad = scr[mt % len(scr)]
                ops.append(f"v_xor_b32 v{ad}, {32*mt}, v{vbase}")
            for hf in range(2):
                ops.append(("ds", f"ds_read_b64_tr_b16 {vr(dst+4*mt+2*hf,2)}, v{ad} offset:{off + hf*2048}", tag))
        return ops

    def dma_w2l_ops(k, slot):
        ops = []
        for i in range(4):
            ops.append(("dma", [f"s_add_u32 m0, s{sWB}, {slot * 4096 + i * 1024}",
                                f"s_mov_b32 s{sA}, {(k * 32 + i * 8) * 512}",
                                f"buffer_load_dwordx4 v{vS2}, {sr(sW2,4)}, s{sA} offen lds"], f"w2_{k}"))
        return ops

    bars = []
    cur_q = [0]
    def emit(op):
        if isinstance(op, tuple):
            k = op[0]
            if k == "ds":
                a(op[1]); lg.issue(op[2]); return 1
            if k == "vm":
                a(op[1]); vm.issue(op[2]); return 1
            if k == "dma":
                for l in op[1]:
                    a(l)
                vm.issue(op[2]); return 2
            if k == "skip":
                return 2
            if k == "wl":
                return 1 if wait(ltag=op[1]) else 0
            if k == "wv":
                return 1 if wait(vtag=op[1]) else 0
            if k == "bar":
                wait(ltag=op[1])
                a("s_barrier")
                bars.append(cur_q[0])
                return 2
            raise ValueError(op)
        a(op)
        return 1

    def poll_issue():
        a(f"buffer_load_dword v40, v42, {sr(sDBG,4)}, 0 offen sc1")
        a(f"buffer_load_dwordx4 v[32:35], v{vT16}, {sr(sWS,4)}, s{sLB} offen sc1")
        a(f"buffer_load_dwordx4 v[36:39], v{vT16}, {sr(sWS,4)}, s{sPI} offen sc1")

    def unit_step(u):
        sl = u % 4
        hi = 0 if sl < 2 else 1
        off = (sl % 2) * 4096
        if not opt.get('nowait'):
            wait(vtag=f"u{u}")
        if opt.get('notr'):
            pass
        elif u < 8:
            for mt in range(4):
                for hf in range(2):
                    a(f"ds_read_b64_tr_b16 {vr(W+16*u+4*mt+2*hf,2)}, v{vTR+4*hi+mt} offset:{off + hf*512}")
                    lg.issue(f"t{u}")
        else:
            for op in tr_w2_ops(W2R + 16 * (u - 8), vTB if hi == 0 else vTR2, off, f"t{u}", [30, 31]):
                emit(op)
        nx = u + NINF
        if nx < NU:
            if nx - 4 >= 0:
                wait(ltag=f"t{nx-4}")
            dma_unit(nx)

    DEFER = opt.get('defer', 1)
    a("s_waitcnt lgkmcnt(0)")
    if not DEFER:
        setup_a()
        setup_b()
        setup_c()
        setup_d()
    if opt.get('sync0'):
        a("s_waitcnt vmcnt(0)")
        a("s_barrier")
    PU = opt.get('pu', 9)
    for u in range(NU):
        if opt.get('pst') and u in (0, 1, 4, 8):
            st({0: 8, 1: 9, 4: 11, 8: 12}[u])
        if PPRIO and u in (NU // 4, NU // 2 + 1):
            a(f"s_setprio {1 if u == NU // 4 else 0}")
        unit_step(u)
        if DEFER:
            {0: setup_a, 1: setup_b, 2: setup_c, 5: setup_d}.get(u, lambda: None)()
        if u == NINF:
            bias_to_lds()
        if u == PU:
            poll_issue()
            vm.issue("poll"); vm.issue("poll"); vm.issue("poll")
        if opt.get('latel', 1):
            continue
        if u == 9:
            wait(ltag="t8")
            for op in dma_w2l_ops(4, 0):
                emit(op)
        if u == 10:
            wait(ltag="t9")
            for op in dma_w2l_ops(5, 1):
                emit(op)
    st(1)
    wait(vtag="poll")
    a.label("POLL_CHK")
    for h in range(2):
        b = 32 + 4 * h
        a(f"v_xor_b32 v16, s{sId}, v{b}")
        a(f"v_xor_b32 v17, s{sId}, v{b+2}")
        a("v_or_b32 v16, v16, v17")
        a("v_lshrrev_b32 v16, 20, v16")
        a(f"v_xor_b32 v17, v40, v{b+1}")
        a(f"v_xor_b32 v18, v40, v{b+3}")
        a(f"v_or3_b32 v{20+h}, v16, v17, v18")
    a(f"v_cmp_ne_u32 {sr(sM,2)}, 0, v20")
    a("v_cmp_eq_u32 vcc, 0, v40")
    a(f"s_or_b64 {sr(sM,2)}, {sr(sM,2)}, vcc")
    a(f"v_cmp_ne_u32 {sr(sM+2,2)}, 0, v21")
    a(f"v_cmp_ne_u32 vcc, s{sT}, v34")
    a(f"s_and_b32 s4, vcc_lo, 0x80008000")
    a(f"s_and_b32 s5, vcc_hi, 0x80008000")
    a("s_lshr_b32 s4, s4, 15")
    a("s_lshr_b32 s5, s5, 15")
    a("s_mul_i32 s4, s4, 0xffff")
    a("s_mul_i32 s5, s5, 0xffff")
    a(f"s_and_b64 {sr(sM+2,2)}, {sr(sM+2,2)}, s[4:5]")
    a(f"s_or_b64 {sr(sM,2)}, {sr(sM,2)}, {sr(sM+2,2)}")
    a("s_cbranch_scc1 POLL_RETRY")
    a.label("POLL_OK")
    vm.clear()
    st(2)
    a(f"v_mov_b32 v16, s{sT}")
    a("v_cndmask_b32 v36, v16, v36, s[4:5]")
    a("v_cndmask_b32 v38, v16, v38, s[4:5]")
    a(f"s_mov_b32 s4, {MARK}")
    a("v_mov_b32 v41, 1")
    ent = [32, 34, 36, 38]
    for k in range(4):
        a(f"v_bfe_u32 v{ent[k]+1}, v{ent[k]}, 14, 6")
        a(f"v_lshl_add_u32 v{16+k}, v{ent[k]+1}, 2, v{vLB}")
    for k in range(4):
        if k == 2:
            a("s_mov_b64 exec, -1")
        a(f"v_cmpx_gt_u32 vcc, s4, v{ent[k]}")
        a(f"ds_add_rtn_u32 v{16+k}, v{16+k}, v41 offset:{CNT-LIST}")
        a(f"s_mov_b64 {sr(sM+2*k,2)}, exec")
    a("s_mov_b64 exec, -1")
    a("v_cmp_eq_u32 vcc, s4, v36")
    a("s_and_saveexec_b64 s[6:7], vcc")
    a(f"ds_write_b32 v{vLB}, v41 offset:{FLAG-LIST}")
    a("s_mov_b64 exec, -1")
    for k in range(4):
        a(f"v_and_b32 v{ent[k]}, 0x3fff, v{ent[k]}")
        a(f"v_lshl_add_u32 v{ent[k]+1}, v{ent[k]+1}, 7, v{vLB}")
    a("s_waitcnt lgkmcnt(0)")
    for k in range(4):
        a(f"v_min_u32 v{16+k}, 63, v{16+k}")
        a(f"v_lshl_add_u32 v{ent[k]+1}, v{16+k}, 1, v{ent[k]+1}")
    for k in range(4):
        a(f"s_mov_b64 exec, {sr(sM+2*k,2)}")
        a(f"ds_write_b16 v{ent[k]+1}, v{ent[k]}")
    a("s_mov_b64 exec, -1")
    lg.clear()
    vL = [vSeq, 59, 60]
    vCnt = 61
    sFlush, sJ, sEnd, sLeft = sMask, sMask + 1, sT, sPC
    a(f"s_mov_b32 s{sFlush}, 0")
    a(f"s_mov_b32 s{sJ}, 0")
    a(f"s_mov_b32 s{sPI}, 0")
    a(f"s_mov_b32 s{sLeft}, {NPW}")
    a("s_waitcnt lgkmcnt(0)")
    a("s_barrier")
    a(f"ds_read_b32 v{vCnt}, v61 offset:{CNT-LIST}")
    for i in range(3):
        a(f"ds_read_b32 v{vL[i]}, v60 offset:{2048*i}")
    GPRIO = opt.get('gprio', 1)
    if GPRIO:
        a("s_setprio 3")
    a("s_waitcnt lgkmcnt(2)")
    a(f"v_cmp_gt_u32 vcc, v{vCnt}, v62")
    a(f"v_add_u32 v{vCnt}, 1, v{vCnt}")
    a(f"v_lshrrev_b32 v{vCnt}, 1, v{vCnt}")
    a("s_cmp_lg_u64 vcc, 0")
    a("s_cbranch_scc1 M_SLOW")
    a(f"v_readlane_b32 s{sEnd}, v{vCnt}, 0")
    a("s_waitcnt lgkmcnt(0)")
    st(3)

    def flush():
        a(f"v_xor_b32 v{vT0}, s{sXor}, v{vFl}")
        a(f"v_cvt_pk_bf16_f32 v14, v{vAcc}, v{vAcc+1}")
        a(f"v_cvt_pk_bf16_f32 v15, v{vAcc+2}, v{vAcc+3}")
        a(f"ds_write_b64 v{vT0}, v[14:15] offset:{HH}")
        a(f"s_and_b32 s4, s{sNode}, 1")
        a("s_mul_i32 s4, s4, 14")
        a(f"s_add_u32 s{sNode}, s{sNode}, s4")
        a(f"s_add_u32 s{sNode}, s{sNode}, 1")
        set_xor()

    acc = vr(vAcc, 4)
    def mf_norm(s):
        a(f"v_mfma_f32_16x16x32_bf16 {acc}, {vr(vA1,4)}, {vr(RING+4*s,4)}, {acc}")
    def mf_first(s):
        a(f"v_mfma_f32_16x16x32_bf16 {acc}, {vr(vAS,4)}, {vr(RING+4*s,4)}, 0")
    def issue(s):
        a(f"v_bfe_u32 v{vOff}, s{sId}, v{vSh}, 16")
        a(f"v_lshl_add_u32 v{vOff}, v{vOff}, 9, v{vC16}")
        a(f"buffer_load_dwordx4 {vr(RING+4*s,4)}, v{vOff}, {sr(sX,4)}, 0 offen")
    swn = [0]
    def switch(s, lab_exit):
        a(f"s_bitset1_b32 s{sFlush}, {s}")
        a(f"s_add_u32 s{sJ}, s{sJ}, 1")
        a(f"s_cmp_eq_u32 s{sJ}, {NPW}")
        a(f"s_cbranch_scc1 {lab_exit}")
        a(f"v_readlane_b32 s{sEnd}, v{vCnt}, s{sJ}")
        a(f"s_and_b32 s{sPI}, s{sJ}, 1")
        a(f"s_cselect_b32 s4, 0, -1")
        a(f"s_mov_b32 s5, s4")
        a(f"s_lshl_b32 s{sPI}, s{sPI}, 5")
        a(f"v_cndmask_b32 v{vL[0]}, v{vL[0]}, v{vL[1]}, s[4:5]")
        a(f"v_cndmask_b32 v{vL[1]}, v{vL[1]}, v{vL[2]}, s[4:5]")
        a(f"s_add_u32 s{sEnd}, s{sEnd}, s{sPI}")
        if GPRIO:
            k = swn[0]; swn[0] += 1
            a(f"s_cmp_lt_u32 s{sJ}, 3")
            a(f"s_cbranch_scc1 SWP{k}")
            a("s_setprio 2")
            a(f"s_cmp_lt_u32 s{sJ}, 4")
            a(f"s_cbranch_scc1 SWP{k}")
            a("s_setprio 1")
            a(f"s_cmp_lt_u32 s{sJ}, 5")
            a(f"s_cbranch_scc1 SWP{k}")
            a("s_setprio 0")
            a.label(f"SWP{k}")

    for s in range(D):
        a.label(f"F_{s}")
        a(f"v_readlane_b32 s{sId}, v{vL[0]}, s{sPI}")
        a(f"s_add_u32 s{sPI}, s{sPI}, 1")
        a(f"s_cmp_eq_u32 s{sPI}, s{sEnd}")
        issue(s)
        a(f"s_cbranch_scc1 F_SW{s}")
    a("s_branch G_F0")
    for s in range(D):
        a.label(f"F_SW{s}")
        switch(s, "X_F0")
        a(f"s_branch {'F_%d' % (s+1) if s + 1 < D else 'G_F0'}")
    for s in range(D):
        n = (s + 1) % D
        a.label(f"G_N{s}")
        a(f"s_waitcnt vmcnt({D-1})")
        a(f"v_readlane_b32 s{sId}, v{vL[0]}, s{sPI}")
        mf_norm(s)
        a.label(f"G_C{s}")
        a(f"s_add_u32 s{sPI}, s{sPI}, 1")
        a(f"s_bitcmp1_b32 s{sFlush}, {s}")
        issue(s)
        a(f"s_cbranch_scc1 G_FL{s}")
        a(f"s_cmp_eq_u32 s{sPI}, s{sEnd}")
        a(f"s_cbranch_scc1 G_SN{s}")
        if n == 0:
            a("s_branch G_N0")
    for s in range(D):
        n = (s + 1) % D
        a.label(f"G_SN{s}")
        switch(s, f"X_N{n}")
        a(f"s_branch G_N{n}")
    for s in range(D):
        n = (s + 1) % D
        a.label(f"G_FL{s}")
        a(f"s_bitset0_b32 s{sFlush}, {s}")
        a(f"s_sub_u32 s{sLeft}, s{sLeft}, 1")
        a("s_nop 0")
        flush()
        a(f"s_cmp_eq_u32 s{sPI}, s{sEnd}")
        a(f"s_cbranch_scc0 G_F{n}")
        switch(s, f"X_F{n}")
        a.label(f"G_F{n}")
        a(f"s_waitcnt vmcnt({D-1})")
        a(f"v_readlane_b32 s{sId}, v{vL[0]}, s{sPI}")
        mf_first(n)
        a(f"s_branch G_C{n}")
    for s in range(D):
        a.label(f"X_N{s}")
        a("s_waitcnt vmcnt(0)")
        a(f"s_branch T_N{s}")
        a.label(f"X_F{s}")
        a("s_waitcnt vmcnt(0)")
        a(f"s_branch T_F{s}")
    for s in range(D):
        n = (s + 1) % D
        a.label(f"T_N{s}")
        mf_norm(s)
        a.label(f"T_C{s}")
        a(f"s_bitcmp1_b32 s{sFlush}, {s}")
        a(f"s_cbranch_scc1 T_FL{s}")
        if n == 0:
            a(f"s_cmp_eq_u32 s{sFlush}, 0")
            a("s_cbranch_scc1 M_GDONE")
            a("s_branch T_N0")
    for s in range(D):
        n = (s + 1) % D
        a.label(f"T_FL{s}")
        a(f"s_bitset0_b32 s{sFlush}, {s}")
        a(f"s_sub_u32 s{sLeft}, s{sLeft}, 1")
        a("s_nop 4")
        flush()
        a(f"s_cmp_eq_u32 s{sLeft}, 0")
        a(f"s_cbranch_scc1 M_GDONE")
        a.label(f"T_F{n}")
        mf_first(n)
        a(f"s_branch T_C{n}")

    a.label("POLL_RETRY")
    a(f"s_add_u32 s{sPC}, s{sPC}, 1")
    a(f"s_cmp_lt_u32 s{sPC}, {opt.get('spin', 30000)}")
    a("s_cbranch_scc0 POLL_GIVEUP")
    a(f"s_cmp_eq_u32 s{sPC}, 1")
    a("s_cbranch_scc1 POLL_NOSLEEP")
    a(f"s_sleep {opt.get('psleep', 4)}")
    a.label("POLL_NOSLEEP")
    poll_issue()
    a("s_waitcnt vmcnt(0)")
    a("s_branch POLL_CHK")
    a.label("POLL_GIVEUP")
    a(f"v_mov_b32 v32, {EMPTY}")
    a("v_mov_b32 v34, v32")
    a(f"v_mov_b32 v36, {MARK}")
    a("v_mov_b32 v38, v32")
    a("s_mov_b64 s[4:5], -1")
    a("s_branch POLL_OK")

    a.label("M_SLOW")
    SA = RING + 8
    a("s_waitcnt vmcnt(0) lgkmcnt(0)")
    a(f"v_mov_b32 v{vT0}, 0x7f000000")
    a(f"v_cmp_gt_u32 vcc, 32, v{vLane}")
    a("s_nop 1")
    a(f"v_cndmask_b32 v{vSeq}, v{vT0}, v{vC16}, vcc")
    a(f"s_add_u32 s40, s3, s{sNode}")
    for j in range(NPW):
        a(f"s_add_u32 s4, s40, {16*(j//2) + j%2}")
        a("s_lshl_b32 s4, s4, 9")
        a(f"v_add_u32 v{vOff}, s4, v{vSeq}")
        a(f"buffer_load_dwordx4 {vr(RING,4)}, v{vOff}, {sr(sX,4)}, 0 offen")
        a("s_waitcnt vmcnt(0)")
        a(f"v_mfma_f32_16x16x32_bf16 {vr(SA+4*j,4)}, {vr(vAS,4)}, {vr(RING,4)}, 0")
        a("s_nop 7")
    a(f"v_lshlrev_b32 v{vT0}, 2, v{vLane}")
    a("s_mov_b32 s41, 0")
    a.label("S_LOOP")
    a(f"buffer_load_dword v{RING+4}, v{vT0}, {sr(sDST,4)}, s41 offen")
    a(f"buffer_load_dword v{RING+5}, v{vT0}, {sr(sSRC,4)}, s41 offen")
    a("s_waitcnt vmcnt(0)")
    a(f"v_subrev_u32 v{RING+4}, s40, v{RING+4}")
    a(f"v_and_b32 v{RING+6}, 0xffffffce, v{RING+4}")
    a(f"v_cmp_eq_u32 vcc, 0, v{RING+6}")
    a(f"v_cmp_gt_u32 s[42:43], 48, v{RING+4}")
    a("s_nop 3")
    a("s_and_b64 s[42:43], s[42:43], vcc")
    a.label("S_IN")
    a("s_cmp_eq_u64 s[42:43], 0")
    a("s_cbranch_scc1 S_NEXT")
    a("s_ff1_i32_b64 s44, s[42:43]")
    a("s_bitset0_b64 s[42:43], s44")
    a(f"v_readlane_b32 s45, v{RING+4}, s44")
    a(f"v_readlane_b32 s46, v{RING+5}, s44")
    a("s_nop 3")
    a("s_lshl_b32 s46, s46, 9")
    a(f"v_add_u32 v{vOff}, s46, v{vSeq}")
    a(f"buffer_load_dwordx4 {vr(RING,4)}, v{vOff}, {sr(sX,4)}, 0 offen")
    a("s_waitcnt vmcnt(0)")
    for j in range(NPW):
        if j < NPW - 1:
            a(f"s_cmp_eq_u32 s45, {16*(j//2) + j%2}")
            a(f"s_cbranch_scc0 S_J{j+1}")
        a(f"v_mfma_f32_16x16x32_bf16 {vr(SA+4*j,4)}, {vr(vA1,4)}, {vr(RING,4)}, {vr(SA+4*j,4)}")
        a("s_nop 7")
        a("s_branch S_IN")
        if j < NPW - 1:
            a.label(f"S_J{j+1}")
    a.label("S_NEXT")
    a("s_add_u32 s41, s41, 256")
    a(f"s_cmp_lt_u32 s41, {E*4}")
    a("s_cbranch_scc1 S_LOOP")
    for j in range(NPW):
        for r in range(4):
            a(f"v_mov_b32 v{vAcc+r}, v{SA+4*j+r}")
        flush()

    a.label("M_GDONE")
    vm.clear(); lg.clear()
    st(4)
    ACP = [16, 32, 16, W + 64, W + 80, W + 96]
    if STAMP:
        BFR = [48, 52, 58]
        vRd = [2, 3, 4, 7, 8, 10, 11, 12]
        vBA, vWr, vRB2, vXW, vOut, vBA2 = 13, 57, 62, 0, 5, 6
        tJ, tQ = 48, 49
    else:
        BFR = [48, 52, 58, 10]
        vRd = [2, 3, 4, 7, 8, 9, 14, 15]
        vBA, vWr, vRB2, vXW, vOut, vBA2 = 1, 57, 62, 0, 5, 6
        tJ, tQ = 48, 49
    NBF = len(BFR)
    PRE = NBF - 1
    XB = [0, ACT]
    a(f"v_and_b32 v{tJ}, 15, v{vLane}")
    a(f"v_lshrrev_b32 v{tQ}, 4, v{vLane}")
    a(f"s_lshl_b32 s4, s{sV}, 11")
    a(f"v_lshl_add_u32 v{vXW}, v{vLane}, 4, s4")
    a(f"s_lshl_b32 s4, s{sV}, 8")
    a(f"s_add_u32 s4, s4, {BIAS}")
    a(f"v_lshl_add_u32 v{vBA}, v{tQ}, 4, s4")
    def bias_ops(p):
        A = ACP[p]
        if p < 3:
            return [("ds", f"ds_read_b128 {vr(A+4*mt,4)}, v{vBA} offset:{64*mt}", f"bias{p}") for mt in range(4)]
        return [("ds", f"ds_read_b128 {vr(A+4*mt,4)}, v{vBA2} offset:{64*mt}", f"bias{p}") for mt in range(2)]
    for op in bias_ops(0) + bias_ops(1):
        emit(op)
    a(f"s_lshl_b32 s4, s{sRot}, 2")
    a(f"v_xor_b32 v{vRB2}, v{tQ}, v{tJ}")
    a(f"v_xor_b32 v{vRd[0]}, s4, v{vRB2}")
    a(f"v_lshlrev_b32 v{vRd[0]}, 4, v{vRd[0]}")
    a(f"v_lshl_or_b32 v{vRd[0]}, v{tJ}, 9, v{vRd[0]}")
    for k in range(1, 8):
        a(f"v_xor_b32 v{vRd[k]}, {64*k}, v{vRd[0]}")
    a(f"v_lshlrev_b32 v{vRB2}, 4, v{vRB2}")
    a(f"v_lshl_or_b32 v{vRB2}, v{tJ}, 10, v{vRB2}")
    a(f"s_and_b32 s4, s{sV}, 1")
    a("s_lshl_b32 s4, s4, 9")
    a(f"v_or_b32 v{vRB2}, s4, v{vRB2}")
    a(f"s_lshl_b32 s4, s{sV}, 3")
    a(f"v_or_b32 v{vWr}, s4, v{tQ}")
    a(f"v_xor_b32 v{vWr}, v{vWr}, v{tJ}")
    a(f"v_lshlrev_b32 v{vWr}, 4, v{vWr}")
    a(f"v_lshl_or_b32 v{vWr}, v{tJ}, 10, v{vWr}")
    a(f"s_lshl_b32 s4, s{sV}, 7")
    a(f"s_add_u32 s4, s4, {BIAS + 2048}")
    a(f"v_lshl_add_u32 v{vBA2}, v{tQ}, 4, s4")
    a("s_lshl_b32 s6, s3, 9")
    a(f"s_lshl_b32 s7, s{sV}, 6")
    a("s_add_u32 s6, s6, s7")
    a(f"v_and_b32 v{vOut}, 1, v{tQ}")
    a(f"v_lshlrev_b32 v{vOut}, 5, v{vOut}")
    a(f"v_lshl_or_b32 v{vOut}, v{tJ}, 9, v{vOut}")
    a(f"v_lshrrev_b32 v{tQ}, 1, v{tQ}")
    a(f"v_lshl_or_b32 v{vOut}, v{tQ}, 4, v{vOut}")
    a(f"v_add_u32 v{vOut}, s6, v{vOut}")
    for k in range(NR, min(6, NR + opt.get('early', 1))):
        for o in dma_w2l_ops(k, k % 2):
            emit(o)
    a("s_waitcnt lgkmcnt(0)")
    lg.clear()
    a("s_barrier")
    st(5)

    w2reg_ = lambda k: W2R + 16 * k
    steps = [(p, s) for p in range(6) for s in range(8)]
    vR2 = [vRB2, vRd[0], vRd[1], vRd[2]]
    SCR = [vRd[3], vRd[4]]
    vXR = W + 112
    SCR0 = [w2reg_(3) + 14, w2reg_(3) + 15] if NR < 4 else None
    def rd_op(i):
        p, s = steps[i]
        if p < 3:
            return ("ds", f"ds_read_b128 {vr(BFR[i%NBF],4)}, v{vRd[s]} offset:{HH + p*8192}", f"b_{i}")
        return ("ds", f"ds_read_b128 {vr(BFR[i%NBF],4)}, v{vR2[s%4]} offset:{ACT + (p-3)*16384 + (s//4)*256}", f"b_{i}")
    def w2reg(k):
        return W2R + 16 * k if k < 4 else W + 16 * (k - 4)
    def areg(p, s, mt):
        return (W + 16 * s if p < 3 else w2reg(s)) + 4 * mt
    def epi_a(p):
        A = ACP[p]
        ops = []
        if p < 3:
            for aa in range(2):
                m = A + 8 * aa
                ops.append(f"v_cvt_pk_bf16_f32 v{m}, v{m}, v{m+1}")
                ops.append(f"v_cvt_pk_bf16_f32 v{m+1}, v{m+2}, v{m+3}")
                ops.append(f"v_cvt_pk_bf16_f32 v{m+2}, v{m+4}, v{m+5}")
                ops.append(f"v_cvt_pk_bf16_f32 v{m+3}, v{m+6}, v{m+7}")
                for x in range(4):
                    ops.append(f"v_pk_max_i16 v{m+x}, v{m+x}, 0")
                if aa == 1:
                    ops.append(f"v_xor_b32 v{m+4}, 64, v{vWr}")
                    ops.append(("ds", f"ds_write_b128 v{m+4}, {vr(m,4)} offset:{ACT + p*16384}", f"aw{p}"))
                else:
                    ops.append(("ds", f"ds_write_b128 v{vWr}, {vr(m,4)} offset:{ACT + p*16384}", f"aw{p}"))
        else:
            for x in range(2):
                ops.append(("ds", f"ds_write_b128 v{vXW}, {vr(A+8+4*x,4)} offset:{XB[(p-3)%2] + 1024*x}", f"aw{p}"))
        return ops
    def epi_b1(p):
        A = ACP[p]
        return [("ds", f"ds_read_b128 {vr(A+8+4*x,4)}, v{vXR} offset:{XB[(p-3)%2] + 1024*x}", f"xr{p}") for x in range(2)]
    def epi_b2(p):
        A = ACP[p]
        ops = [("wl", f"xr{p}")]
        for x in range(8):
            ops.append(f"v_add_f32 v{A+x}, v{A+x}, v{A+8+x}")
        for x in range(4):
            ops.append(f"v_cvt_pk_bf16_f32 v{A+8+x}, v{A+2*x}, v{A+2*x+1}")
        ops.append("s_nop 1")
        ops.append(f"v_permlane16_swap_b32 v{A+8}, v{A+10}")
        ops.append(f"v_permlane16_swap_b32 v{A+9}, v{A+11}")
        if p > 3:
            ops.append(f"v_add_u32 v{vOut}, 8192, v{vOut}")
        ops.append(("vm", f"buffer_store_dwordx4 {vr(A+8,4)}, v{vOut}, {sr(sOUT,4)}, 0 offen" + ["", " sc1", " nt", " sc0 sc1", " sc1 nt"][opt.get('ost', 0)], "out"))
        return ops

    G = lambda p, s, mt=0: (p * 8 + s) * 4 + mt
    streams = []
    def add(name, ops, start=0, dl=10**9, after=None):
        streams.append(dict(name=name, ops=list(ops), start=start, dl=dl, after=after or [], done=None))
    RDL = 8 - PRE
    early = opt.get('early', 1)
    prev = {0: None, 1: None}
    lastd = None
    for k in range(NR, 6):
        sl = k % 2
        deps = []
        ops = []
        if prev[sl] is not None:
            deps.append((prev[sl], 3))
            ops.append(("wl", f"t2_{k-2}"))
        if lastd:
            deps.append((lastd, 0))
        if not (k - NR < early):
            for o in dma_w2l_ops(k, sl):
                ops += [o] + ([("skip",)] if opt.get('dskip', 0) else [])
            add(f"dma{k}", ops, 1, G(1, 7, 3) if k >= 4 else G(1, 2, 0) if k >= NR + 2 else G(0, 4, 0), after=deps)
            lastd = f"dma{k}"
        if k < 4:
            add(f"tr{k}", [("wv", f"w2_{k}")] + tr_w2_ops(w2reg(k), vTB, sl * 4096, f"t2_{k}", SCR0),
                opt.get('trd', 10), G(1, 6, 0), after=([(f"dma{k}", opt.get('trd', 10))] if not (k - NR < early) else []) + ([(f"tr{k-1}", 0)] if k > NR else []))
            prev[sl] = f"tr{k}"
    add("e0", epi_a(0), G(1, 1, 2), G(1, 6, 3))
    add("bias2", [("wl", "aw0")] + bias_ops(2), 0, G(1, 7, 2), after=[("e0", 1)])
    add("bar0", [("bar", ["aw0"])], 0, G(2, RDL - 1, 3), after=[("bias2", 2)])
    add("e1", epi_a(1), G(2, 1, 2), G(3, RDL - 2, 3))
    add("bar1", [("bar", ["aw1"])], 0, G(3, RDL - 1, 3), after=[("e1", 3), ("bar0", 0)])
    add("a2", [f"v_xor_b32 v{vR2[k]}, {64*k}, v{vRB2}" for k in range(1, 4)], G(2, max(0, 2 - PRE) + 1), G(2, RDL - 1, 3))
    add("tr4", [("wv", "w2_4")] + tr_w2_ops(w2reg(4), vTB, 0, "t2_4", SCR), G(2, max(1, 4 - PRE + 1)), G(2, 4, 3), after=[(n_, 0) for n_ in ("dma4", "dma5") if any(z['name'] == n_ for z in streams)])
    add("tr5", [("wv", "w2_5")] + tr_w2_ops(w2reg(5), vTB, 4096, "t2_5", SCR), G(2, 2), G(2, 6, 0), after=[("tr4", 0)])
    add("dma6", [("wl", "t2_4")] + dma_w2l_ops(6, 0), 0, G(2, 7, 0), after=[("tr4", 3)])
    add("dma7", [("wl", "t2_5")] + dma_w2l_ops(7, 1), 0, G(3, 0, 3), after=[("tr5", 3), ("dma6", 0)])
    add("bias3", bias_ops(3), G(2, 5, 1), G(2, 7, 1))
    add("tr6", [("wv", "w2_6")] + tr_w2_ops(w2reg(6), vTB, 0, "t2_6", SCR), G(3, 2), G(3, 5, 0), after=[("dma7", 0)])
    add("tr7", [("wv", "w2_7")] + tr_w2_ops(w2reg(7), vTB, 4096, "t2_7", SCR), G(3, 3), G(3, 6, 0), after=[("tr6", 0)])
    add("bias4", [f"v_xor_b32 v{vXR}, 2048, v{vXW}"] + bias_ops(4), G(3, 0, 1), G(3, 7, 1))
    add("e2", epi_a(2), G(3, 1, 2), G(4, 2, 3))
    add("bias5", bias_ops(5), G(3, 0, 1), G(4, 7, 1))
    add("e3", epi_a(3), G(4, 1, 2), G(4, 2, 3), after=[("bar1", 0)])
    add("bar2", [("bar", ["aw2", "aw3"])], 0, G(4, RDL - 1, 3), after=[("e2", 3), ("e3", 3), ("bar1", 0)])
    add("x3", epi_b1(3), 0, G(4, 6, 0), after=[("bar2", 0)])
    add("f3", epi_b2(3), 0, G(5, 3, 3), after=[("x3", 4)])
    add("e4", epi_a(4), G(5, 1, 2), G(5, 2, 3), after=[("bar2", 0)])
    add("bar3", [("bar", ["aw4", "xr3"])], 0, G(5, 4, 0), after=[("e4", 3), ("x3", 0)])
    add("x4", epi_b1(4), 0, G(5, 5, 0), after=[("bar3", 0)])
    add("f4", epi_b2(4), 0, G(5, 7, 3), after=[("x4", 4), ("f3", 0)])
    byname = {s_['name']: s_ for s_ in streams}

    def ready(s_, g, force=False):
        if not s_['ops']:
            return False
        if g < s_['start']:
            return False
        for nm, dly in s_['after']:
            d = byname[nm]['done']
            if d is None or (g < d + dly and not force):
                return False
        return True
    def force_finish(s_, g):
        for nm, _ in s_['after']:
            force_finish(byname[nm], g)
        if s_['ops']:
            assert g >= s_['start'], (s_['name'], g)
            while s_['ops']:
                emit(s_['ops'].pop(0))
            s_['done'] = g
    BUD = opt.get('bud', 3)
    for i in range(PRE):
        emit(rd_op(i))
    segs = None
    if bars_hint is not None and opt.get('mprio', 1):
        pts = [0] + [b + 1 for b in bars_hint] + [len(steps)]
        segs = {}
        for x, y in zip(pts[:-1], pts[1:]):
            L = y - x
            for k in range(4):
                segs.setdefault(x + k * L // 4, 3 - k)
                segs[x + k * L // 4] = min(segs[x + k * L // 4], 3 - k) if k and (x + k * L // 4) != x else segs[x + k * L // 4]
    for i, (p, s) in enumerate(steps):
        cur_q[0] = i
        if segs and i in segs:
            a(f"s_setprio {segs[i]}")
        tags = [f"b_{i}"]
        if s == 0:
            tags.append(f"bias{p}")
        if p == 3:
            tags.append(f"t2_{s}")
        wait(ltag=tags)
        for mt in range(4):
            g = i * 4 + mt
            A = ACP[p] + 4 * mt
            c = "0" if (p >= 3 and s == 0 and mt >= 2) else vr(A, 4)
            a(f"v_mfma_f32_16x16x32_bf16 {vr(A,4)}, {vr(areg(p,s,mt),4)}, {vr(BFR[i%NBF],4)}, {c}")
            B_ = opt.get('bud23', 4) if p in (2, 3) else BUD
            bud = (B_ + (g % 2)) // 2
            if mt == 3:
                bud = min(bud, opt.get('bud3', 1))
            if mt == 0 and i + PRE < len(steps):
                bud -= emit(rd_op(i + PRE))
            while bud > 0:
                cand = [s_ for s_ in streams if ready(s_, g)]
                if not cand:
                    break
                s_ = min(cand, key=lambda z: z['dl'] - len(z['ops']))
                bud -= emit(s_['ops'].pop(0))
                if not s_['ops']:
                    s_['done'] = g
            for s_ in streams:
                if s_['ops'] and s_['dl'] <= g:
                    if opt.get('verbose'):
                        print("forced", s_['name'], len(s_['ops']), "ops at", p, s, mt, file=sys.stderr)
                    force_finish(s_, g)
        if p == 2 and s == 7:
            st(6)
    assert all(not s_['ops'] for s_ in streams)
    st(10)
    if opt.get('dly_e'):
        a(f"s_sleep {opt['dly_e']}")
    a("s_nop 7")
    for op in epi_a(5):
        emit(op)
    a("s_waitcnt lgkmcnt(0)")
    lg.clear()
    a("s_barrier")
    for op in epi_b1(5) + epi_b2(5):
        emit(op)
    if STAMP:
        a("s_waitcnt vmcnt(0)")
        st(7)
    if opt.get('amp') is not None:
        a("s_waitcnt vmcnt(0)")
        st(7)
        a("s_sub_u32 s99, s99, s98")
        a("s_lshl_b32 s99, s99, 3")
        a("s_min_u32 s99, s99, 100000")
        a("s_memrealtime s[96:97]")
        a("s_waitcnt lgkmcnt(0)")
        a("s_mov_b32 s98, s96")
        a.label("AMP_L")
        a("s_sleep 2")
        a("s_memrealtime s[96:97]")
        a("s_waitcnt lgkmcnt(0)")
        a("s_sub_u32 s96, s96, s98")
        a("s_cmp_lt_u32 s96, s99")
        a("s_cbranch_scc1 AMP_L")
    a("s_endpgm")

    a.label("AUX")
    aux[0] = True
    vm.clear(); lg.clear()
    a("s_memrealtime s[96:97]")
    a(f"s_and_b32 s{sA}, s2, 7")
    a(f"s_mul_i32 s{sPI}, s{sA}, 5000")
    a(f"s_lshr_b32 s{sB}, s2, 3")
    a("s_waitcnt lgkmcnt(0)")
    srd(a, sDST, 80, E * 4)
    srd(a, sSRC, 78, E * 4)
    srd(a, sX, 76, N * 512)

    def xpf(first, stride, n, vd):
        for r in range(n):
            a(f"v_add_u32 v{vT0}, {first + r*stride}, v{vSeq}")
            a(f"v_subrev_u32 v{vT1}, 40000, v{vT0}")
            a(f"v_min_u32 v{vT0}, v{vT0}, v{vT1}")
            a(f"v_lshlrev_b32 v{vT0}, 7, v{vT0}")
            a(f"buffer_load_dword v{vd+r}, v{vT0}, {sr(sX,4)}, 0 offen")

    a(f"s_cmp_lt_u32 s2, {NPROD}")
    a("s_cbranch_scc1 PROD")
    stamp_setup()
    st(0)
    a(f"s_sub_u32 s{sB}, s{sB}, 4")
    a(f"s_lshl_b32 s{sB}, s{sB}, 9")
    a(f"s_add_u32 s{sPI}, s{sPI}, s{sB}")
    a(f"v_add_u32 v{vSeq}, s{sPI}, v0")
    xpf(0, 1024, NH, 16)
    if STAMP:
        a("s_waitcnt vmcnt(0)")
        st(13)
    a("s_endpgm")
    a.label("PROD")
    a(f"s_mul_i32 s{sA}, s2, {CH*4}")
    for r in range(3):
        if r == 2:
            a(f"s_cmp_lt_u32 s{sW}, 4")
            a("s_cbranch_scc0 P_E2")
        a(f"buffer_load_dwordx4 {vr(16+8*r,4)}, v{vT16}, {sr(sDST,4)}, s{sA} offen")
        a(f"buffer_load_dwordx4 {vr(20+8*r,4)}, v{vT16}, {sr(sSRC,4)}, s{sA} offen")
        if r < 2:
            a(f"s_add_u32 s{sA}, s{sA}, 8192")
    a.label("P_E2")
    vm.issue("edges")
    srd(a, sW2, 88, 256 * 1024)
    srd(a, sDBG, 6, 256)
    srd(a, sWS, 100, CELLS_BYTES)
    a(f"s_or_b32 s{sNode}, s96, 1")
    stamp_setup()
    st(0)
    a(f"s_cmp_eq_u32 s{sW}, 0")
    a("s_cbranch_scc0 P_N")
    a(f"v_mov_b32 v{vT0}, s{sNode}")
    a(f"s_lshl_b32 s{sA}, s2, 2")
    a(f"v_mov_b32 v{vT1}, s{sA}")
    a(f"v_mov_b32 v{vOff}, {NONCE}")
    a("s_mov_b64 exec, 1")
    a(f"buffer_store_dword v{vT0}, v{vT1}, {sr(sDBG,4)}, 0 offen sc1")
    a(f"ds_write_b32 v{vOff}, v{vT0}")
    a("s_mov_b64 exec, -1")
    a.label("P_N")
    a(f"v_mov_b32 v40, {EMPTY}")
    a("v_mov_b32 v41, v40")
    a("v_mov_b32 v42, v40")
    a("v_mov_b32 v43, v40")
    for i in range(7):
        a(f"ds_write_b128 v{vT16}, v[40:43] offset:{IMG + i*8192}")
    a(f"v_lshlrev_b32 v{vT0}, 2, v0")
    a(f"v_mov_b32 v{vT1}, 0")
    a(f"ds_write_b32 v{vT0}, v{vT1} offset:{PCNT}")
    a("v_mov_b32 v44, 1")
    a(f"v_mov_b32 v45, {PCNT + 2040}")
    a(f"s_movk_i32 s{sT}, -48")
    a(f"s_mov_b32 s{sId}, {MHI}")
    a("v_lshrrev_b32 v46, 4, v0")
    a("v_and_b32 v47, 15, v0")
    a("v_lshlrev_b32 v48, 8, v46")
    a("v_lshl_or_b32 v48, v47, 3, v48")
    a("v_lshlrev_b32 v49, 2, v46")
    a("v_lshlrev_b32 v50, 14, v46")
    a("v_lshl_or_b32 v50, v47, 4, v50")
    a(f"s_lshl_b32 s4, s2, 8")
    a(f"v_add_u32 v50, s4, v50")
    a(f"v_mov_b32 v51, {NONCE}")
    a(f"v_mov_b32 v52, {MARK}")
    a("s_waitcnt lgkmcnt(0)")
    a("s_barrier")
    if opt.get('w2touch', 1):
        a(f"s_lshl_b32 s{sA}, s{sB}, 16")
        a(f"v_lshlrev_b32 v{vT0}, 7, v0")
        a(f"buffer_load_dword v60, v{vT0}, {sr(sW2,4)}, s{sA} offen")
        vm.issue("touch")
    a(f"s_mov_b32 s{sA}, 43691")
    a(f"s_lshl_b32 s{sB}, s{sB}, 9")
    a(f"s_add_u32 s{sPI}, s{sPI}, s{sB}")
    a(f"v_add_u32 v{vSeq}, s{sPI}, v0")
    a("ds_read_b32 v53, v51")
    for i in range(7):
        a(f"v_add_u32 v{72+i}, {i*32*16384}, v50")
    a("s_waitcnt lgkmcnt(0)")
    Q1, Q2 = 128, 160
    for i in range(7):
        for q in (Q1, Q2):
            a(f"v_mov_b32 v{q+4*i+1}, v53")
            a(f"v_mov_b32 v{q+4*i+3}, v53")
    wait(vtag="edges")
    st(14)
    def bin_a(r):
        vd, vs, vb, va, vrk = 16 + 8 * r, 20 + 8 * r, 192 + 4 * r, 204 + 4 * r, 216 + 4 * r
        for k in range(4):
            a(f"v_mul_u32_u24 v{vb+k}, s{sA}, v{vd+k}")
            a(f"v_lshrrev_b32 v{vb+k}, 21, v{vb+k}")
            a(f"v_lshlrev_b32 v{va+k}, 2, v{vb+k}")
            a(f"ds_add_rtn_u32 v{vrk+k}, v{va+k}, v44 offset:{PCNT}")
    def bin_a2(r):
        vd, vs, vb, va, vrk = 16 + 8 * r, 20 + 8 * r, 192 + 4 * r, 204 + 4 * r, 216 + 4 * r
        for k in range(4):
            a(f"v_mad_i32_i24 v{vd+k}, v{vb+k}, s{sT}, v{vd+k}")
            a(f"v_lshl_or_b32 v{vs+k}, v{vd+k}, 14, v{vs+k}")
            a(f"v_or_b32 v{vs+k}, s{sId}, v{vs+k}")
            a(f"v_lshlrev_b32 v{vb+k}, 8, v{vb+k}")
    def bin_b(r):
        vd, vs, vb, va, vrk = 16 + 8 * r, 20 + 8 * r, 192 + 4 * r, 204 + 4 * r, 216 + 4 * r
        for k in range(4):
            a(f"v_cmp_gt_u32 vcc, 64, v{vrk+k}")
            a(f"v_lshl_add_u32 v{vb+k}, v{vrk+k}, 2, v{vb+k}")
            a("s_nop 0")
            a(f"v_cndmask_b32 v{vb+k}, v45, v{vb+k}, vcc")
            a(f"ds_write_b32 v{vb+k}, v{vs+k} offset:{IMG}")
    bin_a(0)
    bin_a(1)
    a(f"s_cmp_lt_u32 s{sW}, 4")
    a("s_cbranch_scc0 P_R2")
    a(f"v_cmp_gt_u32 vcc, {CH//4 - 1024}, v0")
    a("s_and_saveexec_b64 s[4:5], vcc")
    bin_a(2)
    bin_a2(2)
    a("s_waitcnt lgkmcnt(0)")
    bin_b(2)
    a("s_mov_b64 exec, s[4:5]")
    a.label("P_R2")
    bin_a2(0)
    bin_a2(1)
    a("s_waitcnt lgkmcnt(0)")
    bin_b(0)
    bin_b(1)
    a("s_waitcnt lgkmcnt(0)")
    a("s_barrier")
    if opt.get('dly_p'):
        a(f"s_sleep {opt['dly_p']}")
    st(15)
    for i in range(7):
        a(f"ds_read_b64 {vr(16+2*i,2)}, v48 offset:{IMG + i*8192}")
        lg.issue(f"c{i}")
    for i in range(7):
        a(f"ds_read_b32 v{64+i}, v49 offset:{PCNT + i*128}")
        lg.issue(f"n{i}")
    for i in range(7):
        d = Q1 + 4 * i
        wait(ltag=f"c{i}")
        a(f"v_mov_b32 v{d}, v{16+2*i}")
        a(f"v_mov_b32 v{d+2}, v{17+2*i}")
        a(f"buffer_store_dwordx4 {vr(d,4)}, v{72+i}, {sr(sWS,4)}, 0 offen sc1")
        a(f"ds_read_b64 {vr(96+2*i,2)}, v48 offset:{IMG + i*8192 + 128}")
        lg.issue(f"d{i}")
    a("s_movk_i32 s6, 0x2000")
    for i in range(7):
        d = Q2 + 4 * i
        wait(ltag=f"d{i}")
        a(f"v_cmp_lt_u32 vcc, 64, v{64+i}")
        a(f"v_mov_b32 v{d+2}, v{97+2*i}")
        a("s_nop 0")
        a(f"v_cndmask_b32 v{d}, v{96+2*i}, v52, vcc")
        a(f"v_cmp_le_u32 vcc, 32, v{64+i}")
        a("s_and_b64 exec, exec, vcc")
        a(f"s_cbranch_scc0 P_SK{i}")
        a(f"buffer_store_dwordx4 {vr(d,4)}, v{72+i}, {sr(sWS,4)}, s6 offen sc1")
        a.label(f"P_SK{i}")
        a("s_mov_b64 exec, -1")
    if STAMP or opt.get('pamp') is not None:
        st(1)
        if STAMP or opt.get('pamp') == 2:
            a("s_waitcnt vmcnt(0)")
            st(2)
    a("s_barrier")
    xpf(NH * 1024, 2048, NP, 16)
    if opt.get('pamp') is not None:
        a("s_sub_u32 s99, s99, s98")
        a("s_lshl_b32 s99, s99, 4")
        a("s_min_u32 s99, s99, 100000")
        a.label("PAMP_L")
        a("s_sleep 2")
        a("s_memrealtime s[96:97]")
        a("s_waitcnt lgkmcnt(0)")
        a("s_sub_u32 s96, s96, s98")
        a("s_cmp_lt_u32 s96, s99")
        a("s_cbranch_scc1 PAMP_L")
    if STAMP:
        a("s_waitcnt vmcnt(0)")
        st(13)
    a.label("M_END")
    a("s_endpgm")
    return LDS_TOTAL, bars


def build(opt):
    name = "gather_scatter__isomorphism_gin_2__graph_kernel"
    _, bars = gen_main(Asm(), dict(opt, verbose=0), name)
    b = Asm()
    lds, bars2 = gen_main(b, opt, name, bars)
    assert bars == bars2
    a = Asm()
    a.raw(HEADER.rstrip())
    a.raw(f"; @launch grid=(256,1,1) block=(512,1,1) lds={lds}")
    a.raw('.amdgcn_target "amdgcn-amd-amdhsa--gfx950"')
    a.raw(".text")
    a.l += b.l
    a.raw('.section .rodata,"a"')
    a.raw(kd(name, 256, 102))
    return a.text()

if __name__ == "__main__":
    out = sys.argv[1]
    opt = {}
    for kv in sys.argv[2:]:
        k, v = kv.split("=")
        opt[k] = int(v)
    open(out, "w").write(build(opt))
```

```python
import sys
from gen2 import Asm, Ctr, vr, sr, srd, kd, HEADER

N = 10000
E = 160000
BN = 48
NBLK = 209
NPROD = 32
NHELP = 15
C0 = NPROD + NHELP
CH = E // NPROD
CELLS_BYTES = NBLK * 8192
W2F = 0x200000
WS_BYTES = W2F + 0x40000
STAMP_OFF = 0x400000
EMPTY = 63 << 14
MARK = 62 << 14
NW2H = 8
NPW = 6


def gen_main(a, opt, name, bars_hint=None):
    D = opt.get('depth', 8)
    NH = opt.get('nh', 8)
    NP = opt.get('np', 4)
    STAMP = opt.get('stamp')
    assert D <= 8
    HH = 0
    ACT = 24576
    WST = 73728
    LIST = 65536
    CNT = LIST + 6144
    FLAG = CNT + 56 * 4
    BIAS = WST + 65536
    LDS_TOTAL = BIAS + 3072
    IMG = 0
    PCNT = 65536
    NONCE = PCNT + 2048
    vLane, vC16, vSh, vSeq, vT0, vT1, vOff, vFl = 1, 2, 3, 4, 5, 6, 7, 8
    vAcc = 10
    RING = 16
    vA1, vAS = 48, 52
    vS2, vT16, vLB, vTB = 56, 57, 58, 63
    W2R = 64
    W = 128
    vS1 = 16
    vTR = 20
    vTR2 = 29
    vBI = 44
    sX, sWS, sOUT, sSRC, sDST, sB1, sB2, sW1, sW2, sDBG = 8, 12, 16, 20, 24, 28, 32, 64, 68, 72
    sW, sWB, sA, sB = 36, 37, 38, 39
    sLB, sRot, sWL, sV = 46, 47, 48, 49
    sPC, sPI, sT, sXor, sNode, sId = 50, 51, 52, 53, 54, 55
    sMask = 56
    sM = 76
    sST = 92

    vm = Ctr(63)
    lg = Ctr(15)
    aux = [False]

    LST = {0: 98, 1: 96, 2: 94, 3: 92, 4: 90, 5: 88, 6: 86, 10: 84}
    def st(idx):
        if opt.get('lst') and not aux[0]:
            if idx in LST:
                a(("s_memrealtime" if not opt.get('cyc') else "s_memtime") + f" {sr(LST[idx],2)}")
            return
        amp = opt.get('amp')
        pamp = opt.get('pamp')
        if pamp is not None and aux[0] and (idx == 0 or idx == pamp):
            a("s_memrealtime s[94:95]")
            a("s_waitcnt lgkmcnt(0)")
            lg.clear()
            a(f"s_mov_b32 s{98 if idx == 0 else 99}, s94")
        if amp is not None and not aux[0]:
            if idx == 0 or idx == amp:
                a("s_memrealtime s[96:97]")
                a("s_waitcnt lgkmcnt(0)")
                lg.clear()
                a(f"s_mov_b32 s{98 if idx == 0 else 99}, s96")
                if amp == 30:
                    a("s_mov_b32 s99, s96")
                    a("s_mov_b32 s98, s94")
            if idx == 2 and amp in (20, 21):
                for i in range(4):
                    a(f"v_readlane_b32 s{92+i}, v40, {16*i}")
                a("s_nop 3")
                op = "s_min_u32" if amp == 20 else "s_max_u32"
                a(f"{op} s92, s92, s93")
                a(f"{op} s94, s94, s95")
                a(f"{op} s92, s92, s94")
                if amp == 20:
                    a("s_mov_b32 s99, s98")
                    a("s_min_u32 s98, s92, s98")
                else:
                    a("s_max_u32 s99, s92, s98")
        if STAMP and (opt.get('stmask', 0xffff) >> idx) & 1:
            a("s_memrealtime s[96:97]" if not opt.get('cyc') else "s_memtime s[96:97]")
            a("s_waitcnt lgkmcnt(0)")
            lg.clear()
            a("v_mov_b32 v14, s96")
            a("v_mov_b32 v15, s97")
            a("s_mov_b64 s[98:99], exec")
            a("s_mov_b64 exec, 1")
            a(f"buffer_store_dwordx2 v[14:15], v9, {sr(sST,4)}, 0 offen offset:{idx*8}")
            vm.issue('st')
            a("s_mov_b64 exec, s[98:99]")

    def wait(vtag=None, ltag=None):
        p = []
        if vtag is not None:
            n = vm.need(vtag)
            if n is not None:
                p.append(f"vmcnt({n})")
        if ltag is not None:
            tags = ltag if isinstance(ltag, (list, tuple)) else [ltag]
            ns = [lg.need(t) for t in tags]
            ns = [n for n in ns if n is not None]
            if ns:
                p.append(f"lgkmcnt({min(ns)})")
        if p:
            a("s_waitcnt " + " ".join(p))
            return True
        return False

    def stamp_setup():
        if STAMP:
            srd(a, sST, 100, 0x1000000)
            a("s_lshl_b32 s96, s2, 4")
            a(f"s_add_u32 s96, s96, s{sW}")
            a("s_lshl_b32 s96, s96, 7")
            a(f"s_add_u32 s96, s96, {STAMP_OFF}")
            a("v_mov_b32 v9, s96")

    a.raw(f".globl {name}")
    a.raw(".p2align 8")
    a.raw(f".type {name},@function")
    a.label(name)
    if opt.get('amp') == 30:
        a("s_memrealtime s[94:95]")
    a("s_cmp_ge_u32 s2, 256")
    a("s_cbranch_scc1 M_END")
    a("s_load_dwordx16 s[76:91], s[0:1], 0")
    a("s_load_dwordx4 s[4:7], s[0:1], 64")
    a("s_load_dwordx2 s[100:101], s[0:1], 80")
    a(f"v_and_b32 v{vLane}, 63, v0")
    a(f"v_lshrrev_b32 v{vT0}, 6, v0")
    a(f"v_lshlrev_b32 v{vT16}, 4, v0")
    a(f"v_readfirstlane_b32 s{sW}, v{vT0}")
    a(f"s_cmp_lt_u32 s2, {C0}")
    a("s_cbranch_scc1 AUX")

    a(f"s_sub_u32 s3, s2, {C0}")
    a(f"s_lshl_b32 s{sLB}, s3, 13")
    a(f"s_mul_i32 s3, s3, {BN}")
    a(f"v_mov_b32 v{vLB}, {LIST}")
    a(f"v_lshrrev_b32 v{vT0}, 3, v0")
    a(f"v_add_u32 v{vT0}, s3, v{vT0}")
    a(f"v_or_b32 v{vT0}, 0xffff0000, v{vT0}")
    a(f"v_and_b32 v{vT1}, 7, v0")
    a(f"v_cmp_eq_u32 vcc, 0, v{vT1}")
    a("v_mov_b32 v37, -1")
    a(f"v_add_u32 v{vOff}, v{vLB}, v{vT16}")
    a(f"v_cndmask_b32 v36, v37, v{vT0}, vcc")
    a("v_cmp_le_u32 vcc, 384, v0")
    a("v_mov_b32 v40, 1")
    a("s_nop 0")
    a("v_cndmask_b32 v36, v36, v40, vcc")
    a("v_cndmask_b32 v37, v37, v40, vcc")
    a("v_cmp_eq_u32 vcc, 398, v0")
    a("v_mov_b32 v38, v37")
    a("v_mov_b32 v39, v37")
    a("v_cndmask_b32 v36, v36, 0, vcc")
    a(f"ds_write_b128 v{vOff}, v[36:39]")
    a(f"s_lshr_b32 s{sRot}, s2, 3")
    a(f"s_and_b32 s{sRot}, s{sRot}, 7")
    a(f"s_lshr_b32 s{sV}, s2, 4")
    a(f"s_and_b32 s{sV}, s{sV}, 4")
    a(f"s_and_b32 s{sA}, s{sRot}, 3")
    a(f"s_or_b32 s{sV}, s{sV}, s{sA}")
    a(f"s_xor_b32 s{sV}, s{sW}, s{sV}")
    a(f"v_bfe_u32 v{vT0}, v{vLane}, 1, 2")
    a(f"v_bfe_u32 v{vT1}, v{vLane}, 4, 1")
    a(f"v_xor_b32 v{vT0}, v{vT0}, v{vT1}")
    a(f"v_lshrrev_b32 v{vT1}, 3, v{vLane}")
    a(f"v_lshlrev_b32 v{vT1}, 10, v{vT1}")
    a(f"v_and_b32 v{vOff}, 1, v{vLane}")
    a(f"v_lshl_or_b32 v{vT1}, v{vOff}, 4, v{vT1}")
    a(f"s_lshl_b32 s{sA}, s{sV}, 7")
    a(f"v_or_b32 v{vT1}, s{sA}, v{vT1}")
    a(f"v_lshl_or_b32 v{vS1}, v{vT0}, 5, v{vT1}")
    a(f"v_xor_b32 v{vS1+1}, 64, v{vS1}")
    a(f"s_lshl_b32 s{sWL}, s{sW}, 13")
    a(f"s_add_u32 s{sWB}, s{sWL}, {WST}")
    a(f"s_lshl_b32 s{sB}, s{sRot}, 15")
    a("s_waitcnt lgkmcnt(0)")
    srd(a, sW1, 84, 256 * 1024)
    a("s_barrier")

    def slot_base(sl):
        return (sWB if sl < 2 else sWL), (sl % 2) * 4096

    def dma_unit(u):
        sb, off = slot_base(u % 4)
        for i in range(4):
            a(f"s_add_u32 m0, s{sb}, {off + i * 1024}")
            if u < 8:
                a(f"s_xor_b32 s{sA}, s{sB}, {(u * 32 + i * 8) * 1024}")
                a(f"buffer_load_dwordx4 v{vS1 + i % 2}, {sr(sW1,4)}, s{sA} offen lds")
            else:
                a(f"s_mov_b32 s{sA}, {((u - 8) * 32 + i * 8) * 512}")
                a(f"buffer_load_dwordx4 v{vN2}, {sr(sW2,4)}, s{sA} offen lds")
            vm.issue(f"u{u}")

    NR = opt.get('nr', 2)
    NU = 8 + NR
    vN2 = 28
    NBUB = opt.get('nb', 2)
    NINF = opt.get('ninf', 3)
    PPRIO = opt.get('pprio', 1)
    stamp_setup()
    st(0)
    if opt.get('dly_c'):
        a(f"s_sleep {opt['dly_c']}")
    if PPRIO:
        a("s_setprio 3")
    dma_unit(0)
    if PPRIO:
        a("s_setprio 2")
    a("s_load_dword s45, s[82:83], 0")
    for u in range(1, NINF):
        dma_unit(u)
    srd(a, sB1, 86, 1024)
    srd(a, sB2, 90, 512)
    a(f"v_lshlrev_b32 v{vC16}, 4, v{vLane}")
    a(f"s_cmp_eq_u32 s{sW}, 2")
    a("s_cbranch_scc0 C_SL2")
    a(f"buffer_load_dwordx4 {vr(vBI,4)}, v{vC16}, {sr(sB1,4)}, 0 offen")
    a.label("C_SL2")
    a(f"s_cmp_eq_u32 s{sW}, 3")
    a("s_cbranch_scc0 C_SL3")
    a(f"buffer_load_dwordx4 {vr(vBI,4)}, v{vC16}, {sr(sB2,4)}, 0 offen")
    a.label("C_SL3")
    a(f"v_lshrrev_b32 v{vT0}, 4, v{vLane}")
    a(f"v_lshlrev_b32 v{vT0}, 10, v{vT0}")
    a(f"v_bfe_u32 v{vT1}, v{vLane}, 2, 2")
    a(f"v_lshl_or_b32 v{vT0}, v{vT1}, 7, v{vT0}")
    a(f"v_and_b32 v{vT1}, 3, v{vLane}")
    a(f"v_lshl_or_b32 v{vT0}, v{vT1}, 3, v{vT0}")
    a(f"v_bfe_u32 v{vT1}, v{vLane}, 3, 2")
    for mt in range(4):
        a(f"v_xor_b32 v{vOff}, {mt}, v{vT1}")
        a(f"v_lshl_add_u32 v{vOff}, v{vOff}, 5, v{vT0}")
        a(f"v_add_u32 v{vTR+mt}, s{sWB}, v{vOff}")
        a(f"v_add_u32 v{vTR+4+mt}, s{sWL}, v{vOff}")

    def w2_addr(sLW, vsrc, vtb_list):
        a(f"v_bfe_u32 v{vT0}, v{vLane}, 1, 2")
        a(f"v_lshrrev_b32 v{vT1}, 4, v{vLane}")
        a(f"v_xor_b32 v{vT0}, v{vT0}, v{vT1}")
        a(f"v_lshrrev_b32 v{vT1}, 3, v{vLane}")
        a(f"v_lshlrev_b32 v{vT1}, 9, v{vT1}")
        a(f"v_lshl_or_b32 v{vT0}, v{vT0}, 5, v{vT1}")
        a(f"v_and_b32 v{vT1}, 1, v{vLane}")
        a(f"v_lshl_or_b32 v{vT0}, v{vT1}, 4, v{vT0}")
        a(f"s_lshr_b32 s{sA}, s{sLW}, 1")
        a(f"s_lshl_b32 s{sA}, s{sA}, 7")
        a(f"s_and_b32 s44, s{sLW}, 1")
        a(f"s_lshl_b32 s43, s44, 17")
        a(f"s_or_b32 s{sA}, s{sA}, s43")
        a(f"v_or_b32 v{vsrc}, s{sA}, v{vT0}")
        a(f"v_and_b32 v{vT0}, 3, v{vLane}")
        a(f"v_lshlrev_b32 v{vT0}, 4, v{vT0}")
        a(f"s_lshl_b32 s44, s44, 6")
        a(f"v_or_b32 v{vT0}, s44, v{vT0}")
        a(f"v_bfe_u32 v{vT1}, v{vLane}, 3, 2")
        a(f"v_lshlrev_b32 v{vT1}, 5, v{vT1}")
        a(f"v_xor_b32 v{vT0}, v{vT0}, v{vT1}")
        a(f"v_lshrrev_b32 v{vT1}, 2, v{vLane}")
        a(f"v_lshl_or_b32 v{vT0}, v{vT1}, 7, v{vT0}")
        for (v, sb) in vtb_list:
            a(f"v_add_u32 v{v}, s{sb}, v{vT0}")

    def setup_a():
        a(f"s_lshl_b32 s{sA}, s{sV}, 15")
        a(f"s_add_u32 s{sA}, s{sA}, {W2F}")
        a(f"v_lshl_add_u32 v{vS2}, v{vLane}, 4, s{sA}")
        if NR:
            srd(a, sW2, 88, 256 * 1024)
            w2_addr(sV, vN2, [(vTB, sWB), (vTR2, sWL)])

    def setup_b():
        srd(a, sX, 76, N * 512)
        srd(a, sDBG, 6, 256)
        srd(a, sWS, 100, WS_BYTES)
        srd(a, sOUT, 4, N * 512)
        srd(a, sDST, 80, E * 4)
        srd(a, sSRC, 78, E * 4)

    def setup_c():
        a(f"v_lshrrev_b32 v{vT0}, 4, v{vLane}")
        a(f"v_lshrrev_b32 v{vT1}, 3, v{vLane}")
        a(f"v_xor_b32 v{vT0}, v{vT0}, v{vT1}")
        a(f"v_and_b32 v{vT0}, 1, v{vT0}")
        a(f"v_bfe_u32 v{vT1}, v{vLane}, 1, 2")
        a(f"v_lshl_or_b32 v{vT0}, v{vT0}, 2, v{vT1}")
        a(f"v_and_b32 v{vT1}, 1, v{vLane}")
        a(f"v_lshlrev_b32 v{vT1}, 4, v{vT1}")
        a("s_lshl_b32 s45, s45, 16")
        a("v_mov_b32 v40, s45")
        a("v_add_f32 v40, 1.0, v40")
        a("v_cvt_pk_bf16_f32 v40, v40, v40")
        a("v_and_b32 v40, 0xffff, v40")
        a("v_mov_b32 v41, 0x3f80")
        a(f"v_cmp_gt_u32 vcc, 32, v{vLane}")
        a("s_nop 1")
        a("v_cndmask_b32 v40, v41, v40, vcc")
        a(f"v_lshlrev_b32 v40, v{vT1}, v40")
        a(f"v_lshlrev_b32 v41, v{vT1}, v41")
        for p in range(4):
            a(f"v_cmp_eq_u32 vcc, {p}, v{vT0}")
            a("s_nop 1")
            a(f"v_cndmask_b32 v{vA1+p}, 0, v41, vcc")
            a(f"v_cndmask_b32 v{vAS+p}, 0, v40, vcc")

    def setup_d():
        a(f"v_lshrrev_b32 v{vSh}, 5, v{vLane}")
        a(f"v_lshlrev_b32 v{vSh}, 4, v{vSh}")
        a(f"v_and_b32 v{vT0}, 15, v{vLane}")
        a(f"v_lshlrev_b32 v{vFl}, 4, v{vT0}")
        a(f"v_lshl_or_b32 v{vFl}, v{vSh}, 4, v{vFl}")
        a(f"v_bfe_u32 v{vT0}, v{vLane}, 4, 1")
        a(f"v_lshl_or_b32 v{vFl}, v{vT0}, 3, v{vFl}")
        a(f"v_and_b32 v{vC16}, 31, v{vLane}")
        a(f"v_lshlrev_b32 v{vC16}, 4, v{vC16}")
        a(f"v_bfe_u32 v42, v{vLane}, 3, 2")
        a(f"s_lshl_b32 s{sA}, s{sW}, 4")
        a(f"v_lshl_add_u32 v42, v42, 2, s{sA}")
        a(f"v_and_b32 v43, {NW2H-1}, v{vLane}")
        a("v_lshlrev_b32 v43, 2, v43")
        a(f"s_lshl_b32 s{sA}, s{sW}, 9")
        a(f"v_lshl_add_u32 v41, v{vSh}, 8, v{vC16}")
        a(f"v_add_u32 v41, s{sA}, v41")
        a(f"s_mov_b32 s{sPC}, 0")
        a(f"s_mov_b32 s{sT}, {EMPTY}")
        a(f"v_lshrrev_b32 v{vT0}, 1, v{vLane}")
        a(f"v_lshlrev_b32 v{vT0}, 4, v{vT0}")
        a(f"v_and_b32 v{vT1}, 1, v{vLane}")
        a(f"v_or_b32 v{vT0}, v{vT0}, v{vT1}")
        a(f"s_lshl_b32 s{sNode}, s{sW}, 1")
        a(f"v_add_u32 v{vT0}, s{sNode}, v{vT0}")
        a(f"v_cmp_gt_u32 vcc, 6, v{vLane}")
        a(f"v_mov_b32 v{vT1}, 56")
        a("v_mov_b32 v62, 64")
        a(f"v_cndmask_b32 v{vT0}, v{vT1}, v{vT0}, vcc")
        a(f"v_lshl_add_u32 v61, v{vT0}, 2, v{vLB}")
        a(f"s_lshl_b32 s{sA}, s{sW}, 8")
        a(f"v_lshl_add_u32 v{vT1}, v{vLane}, 2, v{vLB}")
        a(f"v_add_u32 v60, s{sA}, v{vT1}")
        a("v_cndmask_b32 v62, 0, v62, vcc")
        set_xor()

    def set_xor():
        a(f"s_lshl_b32 s{sXor}, s{sNode}, 9")
        a(f"s_and_b32 s44, s{sNode}, 15")
        a("s_lshl_b32 s44, s44, 4")
        a(f"s_or_b32 s{sXor}, s{sXor}, s44")

    def bias_to_lds():
        a(f"s_sub_u32 s{sA}, s{sW}, 2")
        a(f"s_cmp_lt_u32 s{sA}, 2")
        a("s_cbranch_scc0 C_NB")
        for x in range(4):
            a(f"v_lshlrev_b32 v{32+2*x}, 16, v{vBI+x}")
            a(f"v_and_b32 v{33+2*x}, 0xffff0000, v{vBI+x}")
        a(f"s_lshl_b32 s{sA}, s{sA}, 11")
        a(f"s_add_u32 s{sA}, s{sA}, {BIAS}")
        a(f"v_lshl_add_u32 v{vOff}, v{vLane}, 5, s{sA}")
        a(f"s_cmp_eq_u32 s{sW}, 3")
        a("s_cbranch_scc0 C_NB2")
        a("s_mov_b64 exec, 0xffffffff")
        a.label("C_NB2")
        a(f"ds_write_b128 v{vOff}, v[32:35]")
        a(f"ds_write_b128 v{vOff}, v[36:39] offset:16")
        a("s_mov_b64 exec, -1")
        a("s_waitcnt lgkmcnt(0)")
        a.label("C_NB")

    def tr_w2_ops(dst, vbase, off, tag, scr):
        ops = [f"v_xor_b32 v{scr[0]}, 64, v{vbase}"]
        for z in range(2):
            for t in range(2):
                for hf in range(2):
                    ops.append(("ds", f"ds_read_b64_tr_b16 {vr(dst+8*z+4*t+2*hf,2)}, v{scr[0] if z else vbase} offset:{off + hf*2048 + 8*t}", tag))
        return ops

    def w2reg(k):
        return W2R + 16 * k if k < 4 else W + 16 * (k - 4)

    def w2_ops(k):
        ops = []
        for mt in range(4):
            ops.append(("vm2", [f"s_mov_b32 s{sA}, {k * 4096}"] if mt == 0 else [],
                        f"buffer_load_dwordx4 {vr(w2reg(k)+4*mt,4)}, v{vS2}, {sr(sWS,4)}, s{sA} offen offset:{mt*1024} sc1", f"w2_{k}"))
        return ops

    bars = []
    cur_q = [0]
    def emit(op):
        if isinstance(op, tuple):
            k = op[0]
            if k == "ds":
                a(op[1]); lg.issue(op[2]); return 1
            if k == "vm":
                a(op[1]); vm.issue(op[2]); return 1
            if k == "vm2":
                for l in op[1]:
                    a(l)
                a(op[2]); vm.issue(op[3]); return 1
            if k == "dma":
                for l in op[1]:
                    a(l)
                vm.issue(op[2]); return 2
            if k == "skip":
                return 2
            if k == "wl":
                return 1 if wait(ltag=op[1]) else 0
            if k == "wv":
                return 1 if wait(vtag=op[1]) else 0
            if k == "bar":
                wait(ltag=op[1])
                a("s_barrier")
                bars.append(cur_q[0])
                return 2
            raise ValueError(op)
        a(op)
        return 1

    def poll_issue():
        a(f"buffer_load_dword v40, v42, {sr(sDBG,4)}, 0 offen sc1")
        a(f"buffer_load_dword v39, v43, {sr(sDBG,4)}, 0 offen offset:128 sc1")
        a(f"buffer_load_dwordx4 v[32:35], v41, {sr(sWS,4)}, s{sLB} offen sc1")

    def unit_step(u):
        sl = u % 4
        hi = 0 if sl < 2 else 1
        off = (sl % 2) * 4096
        if not opt.get('nowait'):
            wait(vtag=f"u{u}")
        if opt.get('notr'):
            pass
        elif u < 8:
            for mt in range(4):
                for hf in range(2):
                    a(f"ds_read_b64_tr_b16 {vr(W+16*u+4*mt+2*hf,2)}, v{vTR+4*hi+mt} offset:{off + hf*512}")
                    lg.issue(f"t{u}")
        else:
            for op in tr_w2_ops(W2R + 16 * (u - 8), vTB if hi == 0 else vTR2, off, f"t{u}", [30, 31]):
                emit(op)
        nx = u + NINF
        if nx < NU:
            if nx - 4 >= 0:
                wait(ltag=f"t{nx-4}")
            dma_unit(nx)

    DEFER = opt.get('defer', 1)
    a("s_waitcnt lgkmcnt(0)")
    if not DEFER:
        setup_a()
        setup_b()
        setup_c()
        setup_d()
    if opt.get('sync0'):
        a("s_waitcnt vmcnt(0)")
        a("s_barrier")
    PU = opt.get('pu', 9)
    for u in range(NU):
        if opt.get('pst') and u in (0, 1, 4, 8):
            st({0: 8, 1: 9, 4: 11, 8: 12}[u])
        if PPRIO and u in (NU // 4, NU // 2 + 1):
            a(f"s_setprio {1 if u == NU // 4 else 0}")
        unit_step(u)
        if DEFER:
            {0: setup_a, 1: setup_b, 2: setup_c, 5: setup_d}.get(u, lambda: None)()
        if u == NINF:
            bias_to_lds()
        if u == PU:
            a(f"buffer_load_dword v40, v42, {sr(sDBG,4)}, 0 offen sc1")
            a(f"buffer_load_dword v39, v43, {sr(sDBG,4)}, 0 offen offset:128 sc1")
            a(f"buffer_load_dwordx4 v[32:35], v41, {sr(sWS,4)}, s{sLB} offen sc1")
            vm.issue("poll"); vm.issue("poll"); vm.issue("poll")
    st(1)
    NPRE, NPOST = NR, 0
    wait(vtag="poll")
    a.label("POLL_CHK")
    a("v_lshrrev_b32 v16, 8, v33")
    a("v_lshrrev_b32 v17, 8, v35")
    a("v_xor_b32 v16, v16, v40")
    a("v_xor_b32 v17, v17, v40")
    a("v_or_b32 v16, v16, v17")
    a("v_alignbit_b32 v26, v35, v34, 20")
    a(f"v_cmp_ne_u32 {sr(sM,2)}, 0, v16")
    a("v_and_b32 v26, 0xfffff, v26")
    a("v_min_u32 v17, v40, v39")
    a(f"v_cmp_eq_u32 {sr(sM+2,2)}, 0, v17")
    a(f"v_cmp_ne_u32 vcc, s{sT}, v26")
    a("s_and_b32 s5, vcc_lo, 0x80808080")
    a("s_lshr_b32 s5, s5, 7")
    a("s_mul_i32 s5, s5, 255")
    a("s_mov_b32 s4, -1")
    a(f"s_and_b64 {sr(sM,2)}, {sr(sM,2)}, s[4:5]")
    a(f"s_or_b64 {sr(sM,2)}, {sr(sM,2)}, {sr(sM+2,2)}")
    a("s_cbranch_scc1 POLL_RETRY")
    a("v_and_b32 v20, 0xfffff, v32")
    a("v_alignbit_b32 v22, v33, v32, 20")
    a("v_and_b32 v22, 0xfffff, v22")
    a("v_and_b32 v24, 0xfffff, v34")
    a.label("POLL_OK")
    vm.clear()
    st(2)
    a(f"v_mov_b32 v16, s{sT}")
    a("v_cndmask_b32 v20, v16, v20, s[4:5]")
    a(f"s_mov_b32 s4, {MARK}")
    a("v_mov_b32 v41, 1")
    ent = [20, 22, 24, 26]
    for k in range(4):
        a(f"v_bfe_u32 v{ent[k]+1}, v{ent[k]}, 14, 6")
        a(f"v_lshl_add_u32 v{16+k}, v{ent[k]+1}, 2, v{vLB}")
    for k in range(4):
        a(f"v_cmpx_gt_u32 vcc, s4, v{ent[k]}")
        a(f"ds_add_rtn_u32 v{16+k}, v{16+k}, v41 offset:{CNT-LIST}")
        a(f"s_mov_b64 {sr(sM+2*k,2)}, exec")
    a("s_mov_b64 exec, -1")
    a("v_cmp_eq_u32 vcc, s4, v20")
    a("s_and_saveexec_b64 s[6:7], vcc")
    a(f"ds_write_b32 v{vLB}, v41 offset:{FLAG-LIST}")
    a("s_mov_b64 exec, -1")
    for k in range(4):
        a(f"v_and_b32 v{ent[k]}, 0x3fff, v{ent[k]}")
        a(f"v_lshl_add_u32 v{ent[k]+1}, v{ent[k]+1}, 7, v{vLB}")
    a("s_waitcnt lgkmcnt(0)")
    for k in range(4):
        a(f"v_min_u32 v{16+k}, 63, v{16+k}")
        a(f"v_lshl_add_u32 v{ent[k]+1}, v{16+k}, 1, v{ent[k]+1}")
    for k in range(4):
        a(f"s_mov_b64 exec, {sr(sM+2*k,2)}")
        a(f"ds_write_b16 v{ent[k]+1}, v{ent[k]}")
    a("s_mov_b64 exec, -1")
    lg.clear()
    vL = [vSeq, 59, 60]
    vCnt = 61
    sFlush, sJ, sEnd, sLeft = sMask, sMask + 1, sT, sPC
    a(f"s_mov_b32 s{sFlush}, 0")
    a(f"s_mov_b32 s{sJ}, 0")
    a(f"s_mov_b32 s{sPI}, 0")
    a(f"s_mov_b32 s{sLeft}, {NPW}")
    NBUB = max(NBUB, NPRE + NPOST)
    for k in range(NPRE + NPOST, NBUB):
        for op in w2_ops(k):
            emit(op)
    a("s_waitcnt lgkmcnt(0)")
    for _ in range(opt.get('dly_g', 0)):
        a("s_sleep 64")
    a("s_barrier")
    a(f"ds_read_b32 v{vCnt}, v61 offset:{CNT-LIST}")
    for i in range(3):
        a(f"ds_read_b32 v{vL[i]}, v60 offset:{2048*i}")
    GPRIO = opt.get('gprio', 1)
    if GPRIO:
        a("s_setprio 3")
    a("s_waitcnt lgkmcnt(2)")
    a(f"v_cmp_gt_u32 vcc, v{vCnt}, v62")
    a(f"v_add_u32 v{vCnt}, 1, v{vCnt}")
    a(f"v_lshrrev_b32 v{vCnt}, 1, v{vCnt}")
    a("s_cmp_lg_u64 vcc, 0")
    a("s_cbranch_scc1 M_SLOW")
    a(f"v_readlane_b32 s{sEnd}, v{vCnt}, 0")
    a("s_waitcnt lgkmcnt(0)")
    st(3)

    def flush():
        a(f"v_xor_b32 v{vT0}, s{sXor}, v{vFl}")
        a(f"v_cvt_pk_bf16_f32 v14, v{vAcc}, v{vAcc+1}")
        a(f"v_cvt_pk_bf16_f32 v15, v{vAcc+2}, v{vAcc+3}")
        a(f"ds_write_b64 v{vT0}, v[14:15] offset:{HH}")
        a(f"s_and_b32 s4, s{sNode}, 1")
        a("s_mul_i32 s4, s4, 14")
        a(f"s_add_u32 s{sNode}, s{sNode}, s4")
        a(f"s_add_u32 s{sNode}, s{sNode}, 1")
        set_xor()

    acc = vr(vAcc, 4)
    def mf_norm(s):
        a(f"v_mfma_f32_16x16x32_bf16 {acc}, {vr(vA1,4)}, {vr(RING+4*s,4)}, {acc}")
    def mf_first(s):
        a(f"v_mfma_f32_16x16x32_bf16 {acc}, {vr(vAS,4)}, {vr(RING+4*s,4)}, 0")
    def issue(s):
        a(f"v_bfe_u32 v{vOff}, s{sId}, v{vSh}, 16")
        a(f"v_lshl_add_u32 v{vOff}, v{vOff}, 9, v{vC16}")
        a(f"buffer_load_dwordx4 {vr(RING+4*s,4)}, v{vOff}, {sr(sX,4)}, 0 offen")
    swn = [0]
    def switch(s, lab_exit):
        a(f"s_bitset1_b32 s{sFlush}, {s}")
        a(f"s_add_u32 s{sJ}, s{sJ}, 1")
        a(f"s_cmp_eq_u32 s{sJ}, {NPW}")
        a(f"s_cbranch_scc1 {lab_exit}")
        a(f"v_readlane_b32 s{sEnd}, v{vCnt}, s{sJ}")
        a(f"s_and_b32 s{sPI}, s{sJ}, 1")
        a(f"s_cselect_b32 s4, 0, -1")
        a(f"s_mov_b32 s5, s4")
        a(f"s_lshl_b32 s{sPI}, s{sPI}, 5")
        a(f"v_cndmask_b32 v{vL[0]}, v{vL[0]}, v{vL[1]}, s[4:5]")
        a(f"v_cndmask_b32 v{vL[1]}, v{vL[1]}, v{vL[2]}, s[4:5]")
        a(f"s_add_u32 s{sEnd}, s{sEnd}, s{sPI}")
        if GPRIO:
            k = swn[0]; swn[0] += 1
            a(f"s_cmp_lt_u32 s{sJ}, 3")
            a(f"s_cbranch_scc1 SWP{k}")
            a("s_setprio 2")
            a(f"s_cmp_lt_u32 s{sJ}, 4")
            a(f"s_cbranch_scc1 SWP{k}")
            a("s_setprio 1")
            a(f"s_cmp_lt_u32 s{sJ}, 5")
            a(f"s_cbranch_scc1 SWP{k}")
            a("s_setprio 0")
            a.label(f"SWP{k}")

    for s in range(D):
        a.label(f"F_{s}")
        a(f"v_readlane_b32 s{sId}, v{vL[0]}, s{sPI}")
        a(f"s_add_u32 s{sPI}, s{sPI}, 1")
        a(f"s_cmp_eq_u32 s{sPI}, s{sEnd}")
        issue(s)
        a(f"s_cbranch_scc1 F_SW{s}")
    a("s_branch G_F0")
    for s in range(D):
        a.label(f"F_SW{s}")
        switch(s, "X_F0")
        a(f"s_branch {'F_%d' % (s+1) if s + 1 < D else 'G_F0'}")
    for s in range(D):
        n = (s + 1) % D
        a.label(f"G_N{s}")
        a(f"s_waitcnt vmcnt({D-1})")
        a(f"v_readlane_b32 s{sId}, v{vL[0]}, s{sPI}")
        mf_norm(s)
        a.label(f"G_C{s}")
        a(f"s_add_u32 s{sPI}, s{sPI}, 1")
        a(f"s_bitcmp1_b32 s{sFlush}, {s}")
        issue(s)
        a(f"s_cbranch_scc1 G_FL{s}")
        a(f"s_cmp_eq_u32 s{sPI}, s{sEnd}")
        a(f"s_cbranch_scc1 G_SN{s}")
        if n == 0:
            a("s_branch G_N0")
    for s in range(D):
        n = (s + 1) % D
        a.label(f"G_SN{s}")
        switch(s, f"X_N{n}")
        a(f"s_branch G_N{n}")
    for s in range(D):
        n = (s + 1) % D
        a.label(f"G_FL{s}")
        a(f"s_bitset0_b32 s{sFlush}, {s}")
        a(f"s_sub_u32 s{sLeft}, s{sLeft}, 1")
        a("s_nop 0")
        flush()
        a(f"s_cmp_eq_u32 s{sPI}, s{sEnd}")
        a(f"s_cbranch_scc0 G_F{n}")
        switch(s, f"X_F{n}")
        a.label(f"G_F{n}")
        a(f"s_waitcnt vmcnt({D-1})")
        a(f"v_readlane_b32 s{sId}, v{vL[0]}, s{sPI}")
        mf_first(n)
        a(f"s_branch G_C{n}")
    for s in range(D):
        a.label(f"X_N{s}")
        a("s_waitcnt vmcnt(0)")
        a(f"s_branch T_N{s}")
        a.label(f"X_F{s}")
        a("s_waitcnt vmcnt(0)")
        a(f"s_branch T_F{s}")
    for s in range(D):
        n = (s + 1) % D
        a.label(f"T_N{s}")
        mf_norm(s)
        a.label(f"T_C{s}")
        a(f"s_bitcmp1_b32 s{sFlush}, {s}")
        a(f"s_cbranch_scc1 T_FL{s}")
        if n == 0:
            a(f"s_cmp_eq_u32 s{sFlush}, 0")
            a("s_cbranch_scc1 M_GDONE")
            a("s_branch T_N0")
    for s in range(D):
        n = (s + 1) % D
        a.label(f"T_FL{s}")
        a(f"s_bitset0_b32 s{sFlush}, {s}")
        a(f"s_sub_u32 s{sLeft}, s{sLeft}, 1")
        a("s_nop 4")
        flush()
        a(f"s_cmp_eq_u32 s{sLeft}, 0")
        a(f"s_cbranch_scc1 M_GDONE")
        a.label(f"T_F{n}")
        mf_first(n)
        a(f"s_branch T_C{n}")

    a.label("POLL_RETRY")
    a(f"s_add_u32 s{sPC}, s{sPC}, 1")
    a(f"s_cmp_lt_u32 s{sPC}, {opt.get('spin', 30000)}")
    a("s_cbranch_scc0 POLL_GIVEUP")
    a(f"s_cmp_eq_u32 s{sPC}, 1")
    a("s_cbranch_scc1 POLL_NOSLEEP")
    a.label("POLL_SLEEP")
    a(f"s_sleep {opt.get('psleep', 4)}")
    a.label("POLL_NOSLEEP")
    a(f"s_cmp_eq_u64 {sr(sM+2,2)}, 0")
    a("s_cbranch_scc1 POLL_CELLS")
    a(f"buffer_load_dword v40, v42, {sr(sDBG,4)}, 0 offen sc1")
    a(f"buffer_load_dword v39, v43, {sr(sDBG,4)}, 0 offen offset:128 sc1")
    a.label("POLL_CELLS")
    a(f"buffer_load_dwordx4 v[32:35], v41, {sr(sWS,4)}, s{sLB} offen sc1")
    a("s_waitcnt vmcnt(0)")
    a("s_branch POLL_CHK")
    a.label("POLL_GIVEUP")
    a(f"s_cmp_lt_u32 s{sPC}, {8 * opt.get('spin', 30000)}")
    a("s_cbranch_scc0 POLL_GO")
    a("v_cmp_eq_u32 vcc, 0, v39")
    a("s_cmp_lg_u64 vcc, 0")
    a("s_cbranch_scc1 POLL_SLEEP")
    a.label("POLL_GO")
    a(f"v_mov_b32 v20, {MARK}")
    a("s_mov_b64 s[4:5], -1")
    a("s_branch POLL_OK")

    a.label("M_SLOW")
    SA = RING + 8
    a("s_waitcnt vmcnt(0) lgkmcnt(0)")
    a(f"v_mov_b32 v{vT0}, 0x7f000000")
    a(f"v_cmp_gt_u32 vcc, 32, v{vLane}")
    a("s_nop 1")
    a(f"v_cndmask_b32 v{vSeq}, v{vT0}, v{vC16}, vcc")
    a(f"s_add_u32 s40, s3, s{sNode}")
    for j in range(NPW):
        a(f"s_add_u32 s4, s40, {16*(j//2) + j%2}")
        a("s_lshl_b32 s4, s4, 9")
        a(f"v_add_u32 v{vOff}, s4, v{vSeq}")
        a(f"buffer_load_dwordx4 {vr(RING,4)}, v{vOff}, {sr(sX,4)}, 0 offen")
        a("s_waitcnt vmcnt(0)")
        a(f"v_mfma_f32_16x16x32_bf16 {vr(SA+4*j,4)}, {vr(vAS,4)}, {vr(RING,4)}, 0")
        a("s_nop 7")
    a(f"v_lshlrev_b32 v{vT0}, 2, v{vLane}")
    a("s_mov_b32 s41, 0")
    a.label("S_LOOP")
    a(f"buffer_load_dword v{RING+4}, v{vT0}, {sr(sDST,4)}, s41 offen")
    a(f"buffer_load_dword v{RING+5}, v{vT0}, {sr(sSRC,4)}, s41 offen")
    a("s_waitcnt vmcnt(0)")
    a(f"v_subrev_u32 v{RING+4}, s40, v{RING+4}")
    a(f"v_and_b32 v{RING+6}, 0xffffffce, v{RING+4}")
    a(f"v_cmp_eq_u32 vcc, 0, v{RING+6}")
    a(f"v_cmp_gt_u32 s[42:43], 48, v{RING+4}")
    a("s_nop 3")
    a("s_and_b64 s[42:43], s[42:43], vcc")
    a.label("S_IN")
    a("s_cmp_eq_u64 s[42:43], 0")
    a("s_cbranch_scc1 S_NEXT")
    a("s_ff1_i32_b64 s44, s[42:43]")
    a("s_bitset0_b64 s[42:43], s44")
    a(f"v_readlane_b32 s45, v{RING+4}, s44")
    a(f"v_readlane_b32 s46, v{RING+5}, s44")
    a("s_nop 3")
    a("s_lshl_b32 s46, s46, 9")
    a(f"v_add_u32 v{vOff}, s46, v{vSeq}")
    a(f"buffer_load_dwordx4 {vr(RING,4)}, v{vOff}, {sr(sX,4)}, 0 offen")
    a("s_waitcnt vmcnt(0)")
    for j in range(NPW):
        if j < NPW - 1:
            a(f"s_cmp_eq_u32 s45, {16*(j//2) + j%2}")
            a(f"s_cbranch_scc0 S_J{j+1}")
        a(f"v_mfma_f32_16x16x32_bf16 {vr(SA+4*j,4)}, {vr(vA1,4)}, {vr(RING,4)}, {vr(SA+4*j,4)}")
        a("s_nop 7")
        a("s_branch S_IN")
        if j < NPW - 1:
            a.label(f"S_J{j+1}")
    a.label("S_NEXT")
    a("s_add_u32 s41, s41, 256")
    a(f"s_cmp_lt_u32 s41, {E*4}")
    a("s_cbranch_scc1 S_LOOP")
    for j in range(NPW):
        for r in range(4):
            a(f"v_mov_b32 v{vAcc+r}, v{SA+4*j+r}")
        flush()

    a.label("M_GDONE")
    vm.clear(); lg.clear()
    st(4)
    NE = min(4, NBUB + opt.get('early', 2))
    for k in range(NBUB, NE):
        for op in w2_ops(k):
            emit(op)
    ACP = [16, 32, 16, W + 64, W + 80, W + 96]
    if STAMP:
        BFR = [48, 52, 58]
        vRd = [2, 3, 4, 7, 8, 10, 11, 12]
        vBA, vWr, vRB2, vXW, vOut, vBA2 = 13, 57, 62, 0, 5, 6
        tJ, tQ = 48, 49
    else:
        BFR = [48, 52, 58, 10]
        vRd = [2, 3, 4, 7, 8, 9, 14, 15]
        vBA, vWr, vRB2, vXW, vOut, vBA2 = 1, 57, 62, 0, 5, 6
        tJ, tQ = 48, 49
    NBF = len(BFR)
    PRE = NBF - 1
    XB = [0, ACT]
    a(f"v_and_b32 v{tJ}, 15, v{vLane}")
    a(f"v_lshrrev_b32 v{tQ}, 4, v{vLane}")
    a(f"s_lshl_b32 s4, s{sV}, 11")
    a(f"v_lshl_add_u32 v{vXW}, v{vLane}, 4, s4")
    a(f"s_lshl_b32 s4, s{sV}, 8")
    a(f"s_add_u32 s4, s4, {BIAS}")
    a(f"v_lshl_add_u32 v{vBA}, v{tQ}, 4, s4")
    def bias_ops(p):
        A = ACP[p]
        if p < 3:
            return [("ds", f"ds_read_b128 {vr(A+4*mt,4)}, v{vBA} offset:{64*mt}", f"bias{p}") for mt in range(4)]
        return [("ds", f"ds_read_b128 {vr(A+4*mt,4)}, v{vBA2} offset:{16*mt}", f"bias{p}") for mt in range(2)]
    for op in bias_ops(0) + bias_ops(1):
        emit(op)
    a(f"s_lshl_b32 s4, s{sRot}, 2")
    a(f"v_xor_b32 v{vRB2}, v{tQ}, v{tJ}")
    a(f"v_xor_b32 v{vRd[0]}, s4, v{vRB2}")
    a(f"v_lshlrev_b32 v{vRd[0]}, 4, v{vRd[0]}")
    a(f"v_lshl_or_b32 v{vRd[0]}, v{tJ}, 9, v{vRd[0]}")
    for k in range(1, 8):
        a(f"v_xor_b32 v{vRd[k]}, {64*k}, v{vRd[0]}")
    a(f"v_lshlrev_b32 v{vRB2}, 4, v{vRB2}")
    a(f"v_lshl_or_b32 v{vRB2}, v{tJ}, 10, v{vRB2}")
    a(f"s_and_b32 s4, s{sV}, 1")
    a("s_lshl_b32 s4, s4, 9")
    a(f"v_or_b32 v{vRB2}, s4, v{vRB2}")
    a(f"s_lshl_b32 s4, s{sV}, 3")
    a(f"v_or_b32 v{vWr}, s4, v{tQ}")
    a(f"v_xor_b32 v{vWr}, v{vWr}, v{tJ}")
    a(f"v_lshlrev_b32 v{vWr}, 4, v{vWr}")
    a(f"v_lshl_or_b32 v{vWr}, v{tJ}, 10, v{vWr}")
    a(f"s_lshl_b32 s4, s{sV}, 7")
    a(f"s_add_u32 s4, s4, {BIAS + 2048}")
    a(f"v_lshl_add_u32 v{vBA2}, v{tQ}, 5, s4")
    a("s_lshl_b32 s6, s3, 9")
    a(f"s_lshl_b32 s7, s{sV}, 6")
    a("s_add_u32 s6, s6, s7")
    a(f"v_lshlrev_b32 v{vOut}, 4, v{tQ}")
    a(f"v_lshl_or_b32 v{vOut}, v{tJ}, 9, v{vOut}")
    a(f"v_add_u32 v{vOut}, s6, v{vOut}")
    a("s_waitcnt lgkmcnt(0)")
    lg.clear()
    a("s_barrier")
    st(5)

    w2reg_ = lambda k: W2R + 16 * k
    steps = [(p, s) for p in range(3) for s in range(8)]
    if opt.get('reord', 1):
        steps += [(3, s) for s in range(4)] + [(4, s) for s in range(4)] + [(3, s) for s in range(4, 8)] + [(4, s) for s in range(4, 8)]
    else:
        steps += [(p, s) for p in (3, 4) for s in range(8)]
    steps += [(5, s) for s in range(8)]
    SI = {ps: i for i, ps in enumerate(steps)}
    vR2 = [vRB2, vRd[0], vRd[1], vRd[2]]
    SCR = [vRd[3], vRd[4]]
    vXR = W + 112
    def rd_op(i):
        p, s = steps[i]
        if p < 3:
            return ("ds", f"ds_read_b128 {vr(BFR[i%NBF],4)}, v{vRd[s]} offset:{HH + p*8192}", f"b_{i}")
        return ("ds", f"ds_read_b128 {vr(BFR[i%NBF],4)}, v{vR2[s%4]} offset:{ACT + (p-3)*16384 + (s//4)*256}", f"b_{i}")
    def areg(p, s, mt):
        return (W + 16 * s if p < 3 else w2reg(s)) + 4 * mt
    def epi_a(p):
        A = ACP[p]
        ops = []
        if p < 3:
            for aa in range(2):
                m = A + 8 * aa
                ops.append(f"v_cvt_pk_bf16_f32 v{m}, v{m}, v{m+1}")
                ops.append(f"v_cvt_pk_bf16_f32 v{m+1}, v{m+2}, v{m+3}")
                ops.append(f"v_cvt_pk_bf16_f32 v{m+2}, v{m+4}, v{m+5}")
                ops.append(f"v_cvt_pk_bf16_f32 v{m+3}, v{m+6}, v{m+7}")
                for x in range(4):
                    ops.append(f"v_pk_max_i16 v{m+x}, v{m+x}, 0")
                if aa == 1:
                    ops.append(f"v_xor_b32 v{m+4}, 64, v{vWr}")
                    ops.append(("ds", f"ds_write_b128 v{m+4}, {vr(m,4)} offset:{ACT + p*16384}", f"aw{p}"))
                else:
                    ops.append(("ds", f"ds_write_b128 v{vWr}, {vr(m,4)} offset:{ACT + p*16384}", f"aw{p}"))
        else:
            for x in range(2):
                ops.append(("ds", f"ds_write_b128 v{vXW}, {vr(A+8+4*x,4)} offset:{XB[(p-3)%2] + 1024*x}", f"aw{p}"))
        return ops
    def epi_b1(p):
        A = ACP[p]
        return [("ds", f"ds_read_b128 {vr(A+8+4*x,4)}, v{vXR} offset:{XB[(p-3)%2] + 1024*x}", f"xr{p}") for x in range(2)]
    def epi_b2(p):
        A = ACP[p]
        ops = [("wl", f"xr{p}")]
        for x in range(8):
            ops.append(f"v_add_f32 v{A+x}, v{A+x}, v{A+8+x}")
        for x in range(4):
            ops.append(f"v_cvt_pk_bf16_f32 v{A+8+x}, v{A+2*x}, v{A+2*x+1}")
        if p > 3:
            ops.append(f"v_add_u32 v{vOut}, 8192, v{vOut}")
        ops.append(("vm", f"buffer_store_dwordx4 {vr(A+8,4)}, v{vOut}, {sr(sOUT,4)}, 0 offen" + ["", " sc1", " nt", " sc0 sc1", " sc1 nt"][opt.get('ost', 0)], "out"))
        return ops

    G = lambda p, s, mt=0: SI[(p, s)] * 4 + mt
    GI = lambda i, mt=0: i * 4 + mt
    first_rd = lambda p: SI[(p, 0)] - PRE
    done = lambda p: SI[(p, 7)] + 1
    streams = []
    def add(name, ops, start=0, dl=10**9, after=None, pri=0):
        streams.append(dict(name=name, ops=list(ops), start=start, dl=dl, after=after or [], done=None, pri=pri))
    RDL = 8 - PRE
    lastw = None
    WSP = opt.get('wsp', 3)
    for k in range(NE, 8):
        for j, o in enumerate(w2_ops(k)):
            nm = f"w{k}_{j}"
            add(nm, [o], 1 if k < 4 else G(2, k - 4, 3), GI(SI[(3, k)] - 2, 3), after=[(lastw, WSP)] if lastw else [], pri=-1000)
            lastw = nm
    last = len(steps) - 1
    add("e0", epi_a(0), G(1, 1, 2), G(1, 6, 3))
    add("bias2", [("wl", "aw0")] + bias_ops(2), 0, G(1, 7, 2), after=[("e0", 1)])
    add("bar0", [("bar", ["aw0"])], 0, GI(first_rd(3) - 1, 3), after=[("bias2", 2)])
    add("e1", epi_a(1), G(2, 1, 2), GI(first_rd(4) - 2, 3))
    add("bar1", [("bar", ["aw1"])], 0, GI(first_rd(4) - 1, 3), after=[("e1", 3), ("bar0", 0)])
    add("a2", [f"v_xor_b32 v{vR2[k]}, {64*k}, v{vRB2}" for k in range(1, 4)], G(2, max(0, 2 - PRE) + 1), GI(first_rd(3) - 1, 3))
    add("bias3", bias_ops(3), G(2, 5, 1), G(2, 7, 1))
    add("bias4", bias_ops(4), G(2, 6, 1), GI(SI[(4, 0)] - 1, 1))
    add("xr", [f"v_xor_b32 v{vXR}, 2048, v{vXW}"], G(3, 0, 1), GI(done(3), 0))
    add("e2", epi_a(2), G(3, 1, 2), GI(first_rd(5) - 2, 3))
    add("bias5", bias_ops(5), G(3, 0, 1), GI(SI[(5, 0)] - 1, 1))
    add("e3", epi_a(3), GI(done(3) + 1, 2), GI(done(3) + 2, 3), after=[("bar1", 0)])
    if opt.get('reord', 1):
        add("bar2a", [("bar", ["aw2"])], 0, GI(first_rd(5) - 1, 3), after=[("e2", 3), ("bar1", 0)])
        add("bar2", [("bar", ["aw3"])], 0, GI(done(3) + 3, 3), after=[("e3", 3), ("bar2a", 0)])
    else:
        add("bar2", [("bar", ["aw2", "aw3"])], 0, GI(first_rd(5) - 1, 3), after=[("e2", 3), ("e3", 3), ("bar1", 0)])
    add("x3", epi_b1(3), 0, GI(done(3) + 5, 0), after=[("bar2", 0), ("xr", 0)])
    add("f3", epi_b2(3), 0, GI(last - 4, 3), after=[("x3", 4)])
    add("e4", epi_a(4), GI(done(4) + 1, 2), GI(done(4) + 2, 3), after=[("bar2", 0)])
    add("bar3", [("bar", ["aw4", "xr3"])], 0, GI(done(4) + 4, 0), after=[("e4", 3), ("x3", 0)])
    add("x4", epi_b1(4), 0, GI(done(4) + 5, 0), after=[("bar3", 0)])
    add("f4", epi_b2(4), 0, GI(last, 3), after=[("x4", 4), ("f3", 0)])
    byname = {s_['name']: s_ for s_ in streams}

    def ready(s_, g, force=False):
        if not s_['ops']:
            return False
        if g < s_['start']:
            return False
        for nm, dly in s_['after']:
            d = byname[nm]['done']
            if d is None or (g < d + dly and not force):
                return False
        return True
    def force_finish(s_, g):
        for nm, _ in s_['after']:
            force_finish(byname[nm], g)
        if s_['ops']:
            assert g >= s_['start'], (s_['name'], g)
            while s_['ops']:
                emit(s_['ops'].pop(0))
            s_['done'] = g
    BUD = opt.get('bud', 3)
    for i in range(PRE):
        emit(rd_op(i))
    segs = None
    if bars_hint is not None and opt.get('mprio', 1):
        pts = [0] + [b + 1 for b in bars_hint] + [len(steps)]
        segs = {}
        for x, y in zip(pts[:-1], pts[1:]):
            L = y - x
            for k in range(4):
                segs.setdefault(x + k * L // 4, 3 - k)
                segs[x + k * L // 4] = min(segs[x + k * L // 4], 3 - k) if k and (x + k * L // 4) != x else segs[x + k * L // 4]
    for i, (p, s) in enumerate(steps):
        cur_q[0] = i
        if segs and i in segs:
            a(f"s_setprio {segs[i]}")
        tags = [f"b_{i}"]
        if s == 0:
            tags.append(f"bias{p}")
        wait(vtag=f"w2_{s}" if p == 3 else None, ltag=tags)
        for mt in range(4):
            g = i * 4 + mt
            A = ACP[p] + 4 * mt
            c = "0" if (p >= 3 and s == 0 and mt >= 2) else vr(A, 4)
            a(f"v_mfma_f32_16x16x32_bf16 {vr(A,4)}, {vr(areg(p,s,mt),4)}, {vr(BFR[i%NBF],4)}, {c}")
            B_ = opt.get('bud23', 4) if p in (2, 3) else BUD
            bud = (B_ + (g % 2)) // 2
            if mt == 3:
                bud = min(bud, opt.get('bud3', 1))
            if mt == 0 and i + PRE < len(steps):
                bud -= emit(rd_op(i + PRE))
            while bud > 0:
                cand = [s_ for s_ in streams if ready(s_, g)]
                if not cand:
                    break
                s_ = min(cand, key=lambda z: z['dl'] - len(z['ops']) + z['pri'])
                bud -= emit(s_['ops'].pop(0))
                if not s_['ops']:
                    s_['done'] = g
            for s_ in streams:
                if s_['ops'] and s_['dl'] <= g:
                    if opt.get('verbose'):
                        print("forced", s_['name'], len(s_['ops']), "ops at", p, s, mt, file=sys.stderr)
                    force_finish(s_, g)
        if p == 2 and s == 7:
            st(6)
    assert all(not s_['ops'] for s_ in streams)
    st(10)
    if opt.get('dly_e'):
        a(f"s_sleep {opt['dly_e']}")
    a("s_nop 7")
    for op in epi_a(5):
        emit(op)
    a("s_waitcnt lgkmcnt(0)")
    lg.clear()
    a("s_barrier")
    for op in epi_b1(5) + epi_b2(5):
        emit(op)
    if opt.get('lst'):
        a("s_waitcnt vmcnt(0)")
        a(("s_memrealtime" if not opt.get('cyc') else "s_memtime") + " s[40:41]")
        srd(a, 76, 100, 0x1000000)
        a("s_lshl_b32 s42, s2, 4")
        a(f"s_add_u32 s42, s42, s{sW}")
        a("s_lshl_b32 s42, s42, 7")
        a(f"s_add_u32 s42, s42, {STAMP_OFF}")
        a("v_mov_b32 v9, s42")
        a("s_waitcnt lgkmcnt(0)")
        a("s_mov_b64 exec, 1")
        for idx, r in list(LST.items()) + [(7, 40)]:
            a(f"v_mov_b32 v14, s{r}")
            a(f"v_mov_b32 v15, s{r+1}")
            a(f"buffer_store_dwordx2 v[14:15], v9, s[76:79], 0 offen offset:{idx*8}")
    if STAMP:
        a("s_waitcnt vmcnt(0)")
        st(7)
    if opt.get('amp') is not None:
        a("s_waitcnt vmcnt(0)")
        st(7)
        a("s_sub_u32 s99, s99, s98")
        a("s_lshl_b32 s99, s99, 3")
        a("s_min_u32 s99, s99, 100000")
        a("s_memrealtime s[96:97]")
        a("s_waitcnt lgkmcnt(0)")
        a("s_mov_b32 s98, s96")
        a.label("AMP_L")
        a("s_sleep 2")
        a("s_memrealtime s[96:97]")
        a("s_waitcnt lgkmcnt(0)")
        a("s_sub_u32 s96, s96, s98")
        a("s_cmp_lt_u32 s96, s99")
        a("s_cbranch_scc1 AMP_L")
    a("s_endpgm")

    a.label("AUX")
    aux[0] = True
    vm.clear(); lg.clear()
    a("s_memrealtime s[96:97]")
    a(f"s_and_b32 s{sA}, s2, 7")
    a(f"s_mul_i32 s{sPI}, s{sA}, 5000")
    a(f"s_lshr_b32 s{sB}, s2, 3")
    a("s_waitcnt lgkmcnt(0)")
    srd(a, sDST, 80, E * 4)
    srd(a, sSRC, 78, E * 4)
    srd(a, sX, 76, N * 512)

    def xpf(first, stride, n, vd):
        for r in range(n):
            a(f"v_add_u32 v{vT0}, {first + r*stride}, v{vSeq}")
            a(f"v_subrev_u32 v{vT1}, 40000, v{vT0}")
            a(f"v_min_u32 v{vT0}, v{vT0}, v{vT1}")
            a(f"v_lshlrev_b32 v{vT0}, 7, v{vT0}")
            a(f"buffer_load_dword v{vd+r}, v{vT0}, {sr(sX,4)}, 0 offen")

    a(f"s_cmp_lt_u32 s2, {NPROD}")
    a("s_cbranch_scc1 PROD")
    stamp_setup()
    st(0)
    a(f"s_sub_u32 s{sB}, s{sB}, 4")
    a(f"s_lshl_b32 s{sB}, s{sB}, 9")
    a(f"s_add_u32 s{sPI}, s{sPI}, s{sB}")
    a(f"v_add_u32 v{vSeq}, s{sPI}, v0")
    a(f"s_sub_u32 s{sId}, s2, {NPROD}")
    a(f"s_cmp_lt_u32 s{sId}, {NW2H}")
    a("s_cbranch_scc0 H_PF")
    srd(a, sW2, 88, 256 * 1024)
    srd(a, sDBG, 6, 256)
    srd(a, sWS, 100, WS_BYTES)
    a(f"v_bfe_u32 v{vT0}, v{vLane}, 1, 2")
    a(f"v_lshrrev_b32 v{vT1}, 4, v{vLane}")
    a(f"v_xor_b32 v{vT0}, v{vT0}, v{vT1}")
    a(f"v_lshrrev_b32 v{vT1}, 3, v{vLane}")
    a(f"v_lshlrev_b32 v{vT1}, 9, v{vT1}")
    a(f"v_lshl_or_b32 v{vT0}, v{vT0}, 5, v{vT1}")
    a(f"v_and_b32 v{vT1}, 1, v{vLane}")
    a(f"v_lshl_or_b32 v{vT0}, v{vT1}, 4, v{vT0}")
    a(f"s_lshr_b32 s{sA}, s{sW}, 1")
    a(f"s_lshl_b32 s{sA}, s{sA}, 7")
    a(f"s_and_b32 s44, s{sW}, 1")
    a(f"s_lshl_b32 s45, s44, 17")
    a(f"s_or_b32 s{sA}, s{sA}, s45")
    a(f"v_or_b32 v{vS2}, s{sA}, v{vT0}")
    a(f"s_lshl_b32 s{sWB}, s{sW}, 12")
    a(f"s_lshl_b32 s{sA}, s{sId}, 14")
    for i in range(4):
        a(f"s_add_u32 m0, s{sWB}, {i*1024}")
        a(f"s_add_u32 s45, s{sA}, {i*4096}")
        a(f"buffer_load_dwordx4 v{vS2}, {sr(sW2,4)}, s45 offen lds")
    a(f"v_and_b32 v{vT0}, 3, v{vLane}")
    a(f"v_lshlrev_b32 v{vT0}, 4, v{vT0}")
    a(f"s_lshl_b32 s44, s44, 6")
    a(f"v_or_b32 v{vT0}, s44, v{vT0}")
    a(f"v_bfe_u32 v{vT1}, v{vLane}, 3, 2")
    a(f"v_lshlrev_b32 v{vT1}, 5, v{vT1}")
    a(f"v_xor_b32 v{vT0}, v{vT0}, v{vT1}")
    a(f"v_lshrrev_b32 v{vT1}, 2, v{vLane}")
    a(f"v_lshl_or_b32 v{vT0}, v{vT1}, 7, v{vT0}")
    a(f"v_add_u32 v{vTB}, s{sWB}, v{vT0}")
    a(f"v_xor_b32 v{vTB-1}, 64, v{vTB}")
    a(f"s_lshl_b32 s{sA}, s{sW}, 15")
    a(f"s_lshl_b32 s45, s{sId}, 12")
    a(f"s_add_u32 s{sA}, s{sA}, s45")
    a(f"s_add_u32 s{sA}, s{sA}, {W2F}")
    a(f"v_lshl_add_u32 v{vOff}, v{vLane}, 4, s{sA}")
    a("s_waitcnt vmcnt(0)")
    for z in range(2):
        for t in range(2):
            for hf in range(2):
                a(f"ds_read_b64_tr_b16 {vr(64+8*z+4*t+2*hf,2)}, v{vTB-z} offset:{hf*2048 + 8*t}")
    a("s_waitcnt lgkmcnt(0)")
    for mt in range(4):
        a(f"buffer_store_dwordx4 {vr(64+4*mt,4)}, v{vOff}, {sr(sWS,4)}, 0 offen offset:{mt*1024} sc1")
    a("s_waitcnt vmcnt(0)")
    a("s_barrier")
    a(f"s_cmp_eq_u32 s{sW}, 0")
    a("s_cbranch_scc0 H_PF")
    a(f"s_lshl_b32 s{sA}, s{sId}, 2")
    a(f"v_mov_b32 v{vT1}, s{sA}")
    a(f"v_mov_b32 v{vT0}, 1")
    a("s_mov_b64 exec, 1")
    a(f"buffer_store_dword v{vT0}, v{vT1}, {sr(sDBG,4)}, 0 offen offset:128 sc1")
    a("s_mov_b64 exec, -1")
    st(12)
    a.label("H_PF")
    xpf(0, 1024, NH, 16)
    if STAMP:
        a("s_waitcnt vmcnt(0)")
        st(13)
    a("s_endpgm")
    a.label("PROD")
    a(f"s_mul_i32 s{sA}, s2, {CH*4}")
    for r in range(3):
        if r == 2:
            a(f"s_cmp_lt_u32 s{sW}, 4")
            a("s_cbranch_scc0 P_E2")
        a(f"buffer_load_dwordx4 {vr(16+8*r,4)}, v{vT16}, {sr(sDST,4)}, s{sA} offen")
        a(f"buffer_load_dwordx4 {vr(20+8*r,4)}, v{vT16}, {sr(sSRC,4)}, s{sA} offen")
        if r < 2:
            a(f"s_add_u32 s{sA}, s{sA}, 8192")
    a.label("P_E2")
    srd(a, sDBG, 6, 256)
    srd(a, sWS, 100, CELLS_BYTES)
    a("v_lshrrev_b32 v46, 3, v0")
    a("v_and_b32 v47, 7, v0")
    a("v_lshlrev_b32 v50, 13, v46")
    a("v_lshl_or_b32 v50, v47, 4, v50")
    a(f"s_lshl_b32 s4, s2, 7")
    a(f"v_add_u32 v50, s4, v50")
    vm.issue("edges")
    a(f"s_lshr_b32 s{sNode}, s96, 8")
    a(f"s_or_b32 s{sNode}, s{sNode}, 1")
    a(f"v_mov_b32 v51, {NONCE}")
    a(f"s_cmp_eq_u32 s{sW}, 7")
    a("s_cbranch_scc0 P_N1")
    a(f"v_mov_b32 v{vT0}, s{sNode}")
    a(f"s_lshl_b32 s4, s2, 2")
    a(f"v_mov_b32 v{vT1}, s4")
    a("s_mov_b64 exec, 1")
    a(f"buffer_store_dword v{vT0}, v{vT1}, {sr(sDBG,4)}, 0 offen sc1")
    a(f"ds_write_b32 v51, v{vT0}")
    a("s_mov_b64 exec, -1")
    a.label("P_N1")
    stamp_setup()
    st(0)
    a(f"v_mov_b32 v40, {EMPTY}")
    a("v_mov_b32 v41, v40")
    a("v_mov_b32 v42, v40")
    a("v_mov_b32 v43, v40")
    for i in range(8):
        a(f"ds_write_b128 v{vT16}, v[40:43] offset:{IMG + i*8192}")
    a(f"v_mov_b32 v55, {PCNT}")
    a(f"v_lshl_add_u32 v{vT0}, v0, 2, v55")
    a(f"v_mov_b32 v{vT1}, 0")
    a(f"ds_write_b32 v{vT0}, v{vT1}")
    a("v_mov_b32 v44, 1")
    a(f"v_mov_b32 v45, {PCNT + 2040}")
    a(f"s_movk_i32 s{sT}, -48")
    a("v_lshlrev_b32 v48, 8, v46")
    a("v_lshl_or_b32 v48, v47, 4, v48")
    a("v_lshl_add_u32 v49, v46, 2, v55")
    a(f"v_mov_b32 v52, {MARK}")
    a(f"s_mov_b32 s{sA}, 43691")
    a(f"s_lshl_b32 s{sB}, s{sB}, 9")
    a(f"s_add_u32 s{sPI}, s{sPI}, s{sB}")
    a(f"v_add_u32 v{vSeq}, s{sPI}, v0")
    for i in range(4):
        a(f"v_add_u32 v{72+i}, {i*64*8192}, v50")
    a("s_waitcnt lgkmcnt(0)")
    a("s_barrier")
    a("ds_read_b32 v53, v51")
    a("s_waitcnt lgkmcnt(0)")
    a("v_lshlrev_b32 v53, 8, v53")
    n_ = vm.need("edges")
    a(f"s_cmp_eq_u32 s{sW}, 7")
    a("s_cbranch_scc1 P_W7")
    a(f"s_waitcnt vmcnt({n_})")
    a.label("P_W7")
    a(f"s_waitcnt vmcnt({n_ + 1})")
    st(14)
    def bin_a(r):
        vd, vs, vb, va, vrk = 16 + 8 * r, 20 + 8 * r, 192 + 4 * r, 204 + 4 * r, 216 + 4 * r
        for k in range(4):
            a(f"v_mul_u32_u24 v{vb+k}, s{sA}, v{vd+k}")
            a(f"v_lshrrev_b32 v{vb+k}, 21, v{vb+k}")
            a(f"v_lshl_add_u32 v{va+k}, v{vb+k}, 2, v55")
            a(f"ds_add_rtn_u32 v{vrk+k}, v{va+k}, v44")
    def bin_a2(r):
        vd, vs, vb, va, vrk = 16 + 8 * r, 20 + 8 * r, 192 + 4 * r, 204 + 4 * r, 216 + 4 * r
        for k in range(4):
            a(f"v_mad_i32_i24 v{vd+k}, v{vb+k}, s{sT}, v{vd+k}")
            a(f"v_lshl_or_b32 v{vs+k}, v{vd+k}, 14, v{vs+k}")
            a(f"v_lshlrev_b32 v{vb+k}, 8, v{vb+k}")
    def bin_b(r):
        vd, vs, vb, va, vrk = 16 + 8 * r, 20 + 8 * r, 192 + 4 * r, 204 + 4 * r, 216 + 4 * r
        for k in range(4):
            a(f"v_cmp_gt_u32 vcc, 64, v{vrk+k}")
            a(f"v_lshl_add_u32 v{vb+k}, v{vrk+k}, 2, v{vb+k}")
            a("s_nop 0")
            a(f"v_cndmask_b32 v{vb+k}, v45, v{vb+k}, vcc")
            a(f"ds_write_b32 v{vb+k}, v{vs+k} offset:{IMG}")
    bin_a(0)
    bin_a(1)
    a(f"s_cmp_lt_u32 s{sW}, 4")
    a("s_cbranch_scc0 P_R2")
    a(f"v_cmp_gt_u32 vcc, {CH//4 - 1024}, v0")
    a("s_and_saveexec_b64 s[4:5], vcc")
    bin_a(2)
    bin_a2(2)
    a("s_waitcnt lgkmcnt(0)")
    bin_b(2)
    a("s_mov_b64 exec, s[4:5]")
    a.label("P_R2")
    bin_a2(0)
    bin_a2(1)
    a("s_waitcnt lgkmcnt(0)")
    bin_b(0)
    bin_b(1)
    a("s_waitcnt lgkmcnt(0)")
    a("s_barrier")
    st(15)
    for i in range(4):
        a(f"ds_read_b128 {vr(128+4*i,4)}, v48 offset:{IMG + i*16384}")
        lg.issue(f"c{i}")
    for i in range(4):
        a(f"ds_read_b32 v{64+i}, v49 offset:{i*256}")
        lg.issue(f"n{i}")
        a(f"ds_read_b128 {vr(144+4*i,4)}, v48 offset:{IMG + i*16384 + 128}")
        lg.issue(f"d{i}")
    def pack(d):
        a(f"v_lshl_or_b32 v{d}, v{d+1}, 20, v{d}")
        a(f"v_lshrrev_b32 v{d+1}, 12, v{d+1}")
        a(f"v_or_b32 v{d+1}, v53, v{d+1}")
        a(f"v_lshl_or_b32 v{d+2}, v{d+3}, 20, v{d+2}")
        a(f"v_lshrrev_b32 v{d+3}, 12, v{d+3}")
        a(f"v_or_b32 v{d+3}, v53, v{d+3}")
    for i in range(4):
        wait(ltag=f"c{i}")
        pack(128 + 4 * i)
        a(f"buffer_store_dwordx4 {vr(128+4*i,4)}, v{72+i}, {sr(sWS,4)}, 0 offen sc1")
    a("s_movk_i32 s6, 0x1000")
    for i in range(4):
        d = 144 + 4 * i
        wait(ltag=f"d{i}")
        a(f"v_cmp_le_u32 vcc, 32, v{64+i}")
        a("s_and_b64 exec, exec, vcc")
        a(f"s_cbranch_scc0 P_SK{i}")
        a(f"v_cmp_lt_u32 vcc, 64, v{64+i}")
        a("s_nop 1")
        a(f"v_cndmask_b32 v{d}, v{d}, v52, vcc")
        pack(d)
        a(f"buffer_store_dwordx4 {vr(d,4)}, v{72+i}, {sr(sWS,4)}, s6 offen sc1")
        a.label(f"P_SK{i}")
        a("s_mov_b64 exec, -1")
    if STAMP:
        st(1)
        a("s_waitcnt vmcnt(0)")
        st(2)
    a("s_barrier")
    if opt.get('ftouch', 1):
        srd(a, sW1, 100, WS_BYTES)
        a(f"v_and_b32 v{vT0}, {NW2H-1}, v{vLane}")
        a(f"v_lshlrev_b32 v{vT0}, 2, v{vT0}")
        a(f"buffer_load_dword v{vT1}, v{vT0}, {sr(sDBG,4)}, 0 offen offset:128 sc1")
        a(f"s_lshr_b32 s4, s2, 3")
        a("s_lshl_b32 s4, s4, 16")
        a(f"s_add_u32 s4, s4, {W2F}")
        a(f"v_lshlrev_b32 v{vT0}, 7, v0")
        a("s_waitcnt vmcnt(0)")
        a(f"v_cmp_eq_u32 vcc, 0, v{vT1}")
        a("s_cmp_lg_u64 vcc, 0")
        a("s_cbranch_scc1 P_NT")
        a(f"buffer_load_dword v60, v{vT0}, {sr(sW1,4)}, s4 offen sc1")
        a.label("P_NT")
    xpf(NH * 1024, 2048, NP, 16)
    if STAMP:
        a("s_waitcnt vmcnt(0)")
        st(13)
    a.label("M_END")
    a("s_endpgm")
    return LDS_TOTAL, bars


def build(opt):
    name = "gather_scatter__isomorphism_gin_2__graph_kernel"
    _, bars = gen_main(Asm(), dict(opt, verbose=0), name)
    b = Asm()
    lds, bars2 = gen_main(b, opt, name, bars)
    assert bars == bars2
    a = Asm()
    a.raw(HEADER.rstrip())
    a.raw(f"; @launch grid=(256,1,1) block=(512,1,1) lds={lds}")
    a.raw('.amdgcn_target "amdgcn-amd-amdhsa--gfx950"')
    a.raw(".text")
    a.l += b.l
    a.raw('.section .rodata,"a"')
    a.raw(kd(name, 256, 102))
    return a.text()

if __name__ == "__main__":
    out = sys.argv[1]
    opt = {}
    for kv in sys.argv[2:]:
        k, v = kv.split("=")
        opt[k] = int(v)
    open(out, "w").write(build(opt))
```

```python
import sys
from gen2 import Asm, Ctr, vr, sr, srd, kd, HEADER

N = 10000
E = 160000
BN = 48
NBLK = 209
NPROD = 32
NHELP = 15
C0 = NPROD + NHELP
CH = E // NPROD
CELLS_BYTES = NBLK * 8192
W2F = 0x200000
WS_BYTES = W2F + 0x40000
STAMP_OFF = 0x400000
EMPTY = 63 << 14
MARK = 62 << 14
NW2H = 8
NPW = 6


def gen_main(a, opt, name, bars_hint=None):
    D = opt.get('depth', 8)
    NH = opt.get('nh', 8)
    NP = opt.get('np', 4)
    STAMP = opt.get('stamp')
    assert D <= 8
    HH = 0
    ACT = 24576
    WST = 73728
    LIST = 65536
    CNT = LIST + 6144
    FLAG = CNT + 56 * 4
    BIAS = WST + 65536
    LDS_TOTAL = BIAS + 3072
    IMG = 2048
    PCNT = 0
    NONCE = 1024
    CST = 528
    vLane, vC16, vSh, vSeq, vT0, vT1, vOff, vFl = 1, 2, 3, 4, 5, 6, 7, 8
    vAcc = 10
    RING = 16
    vA1, vAS = 48, 52
    vS2, vT16, vLB, vTB = 56, 57, 58, 63
    W2R = 64
    W = 128
    vS1 = 16
    vTR = 20
    vTR2 = 29
    vBI = 44
    sX, sWS, sOUT, sSRC, sDST, sB1, sB2, sW1, sW2, sDBG = 8, 12, 16, 20, 24, 28, 32, 64, 68, 72
    sW, sWB, sA, sB = 36, 37, 38, 39
    sLB, sRot, sWL, sV = 46, 47, 48, 49
    sPC, sPI, sT, sXor, sNode, sId = 50, 51, 52, 53, 54, 55
    sMask = 56
    sM = 76
    sST = 92

    vm = Ctr(63)
    lg = Ctr(15)
    aux = [False]

    LST = {0: 98, 1: 96, 2: 94, 3: 92, 4: 90, 5: 88, 6: 86, 10: 84}
    def st(idx):
        if opt.get('lst') and not aux[0]:
            if idx in LST:
                a(("s_memrealtime" if not opt.get('cyc') else "s_memtime") + f" {sr(LST[idx],2)}")
            return
        amp = opt.get('amp')
        pamp = opt.get('pamp')
        if pamp is not None and aux[0] and (idx == 0 or idx == pamp):
            a("s_memrealtime s[94:95]")
            a("s_waitcnt lgkmcnt(0)")
            lg.clear()
            a(f"s_mov_b32 s{98 if idx == 0 else 99}, s94")
        if amp is not None and not aux[0]:
            if idx == 0 or idx == amp:
                a("s_memrealtime s[96:97]")
                a("s_waitcnt lgkmcnt(0)")
                lg.clear()
                a(f"s_mov_b32 s{98 if idx == 0 else 99}, s96")
                if amp == 30:
                    a("s_mov_b32 s99, s96")
                    a("s_mov_b32 s98, s94")
            if idx == 2 and amp in (20, 21):
                for i in range(4):
                    a(f"v_readlane_b32 s{92+i}, v40, {16*i}")
                a("s_nop 3")
                op = "s_min_u32" if amp == 20 else "s_max_u32"
                a(f"{op} s92, s92, s93")
                a(f"{op} s94, s94, s95")
                a(f"{op} s92, s92, s94")
                if amp == 20:
                    a("s_mov_b32 s99, s98")
                    a("s_min_u32 s98, s92, s98")
                else:
                    a("s_max_u32 s99, s92, s98")
        if STAMP and (opt.get('stmask', 0xffff) >> idx) & 1:
            a("s_memrealtime s[96:97]" if not opt.get('cyc') else "s_memtime s[96:97]")
            a("s_waitcnt lgkmcnt(0)")
            lg.clear()
            a("v_mov_b32 v14, s96")
            a("v_mov_b32 v15, s97")
            a("s_mov_b64 s[98:99], exec")
            a("s_mov_b64 exec, 1")
            a(f"buffer_store_dwordx2 v[14:15], v9, {sr(sST,4)}, 0 offen offset:{idx*8}")
            vm.issue('st')
            a("s_mov_b64 exec, s[98:99]")

    def wait(vtag=None, ltag=None):
        p = []
        if vtag is not None:
            n = vm.need(vtag)
            if n is not None:
                p.append(f"vmcnt({n})")
        if ltag is not None:
            tags = ltag if isinstance(ltag, (list, tuple)) else [ltag]
            ns = [lg.need(t) for t in tags]
            ns = [n for n in ns if n is not None]
            if ns:
                p.append(f"lgkmcnt({min(ns)})")
        if p:
            a("s_waitcnt " + " ".join(p))
            return True
        return False

    def stamp_setup():
        if STAMP:
            srd(a, sST, 100, 0x1000000)
            a("s_lshl_b32 s96, s2, 4")
            a(f"s_add_u32 s96, s96, s{sW}")
            a("s_lshl_b32 s96, s96, 7")
            a(f"s_add_u32 s96, s96, {STAMP_OFF}")
            a("v_mov_b32 v9, s96")

    a.raw(f".globl {name}")
    a.raw(".p2align 8")
    a.raw(f".type {name},@function")
    a.label(name)
    if opt.get('amp') == 30:
        a("s_memrealtime s[94:95]")
    a("s_cmp_ge_u32 s2, 256")
    a("s_cbranch_scc1 M_END")
    a("s_load_dwordx16 s[76:91], s[0:1], 0")
    a("s_load_dwordx4 s[4:7], s[0:1], 64")
    a("s_load_dwordx2 s[100:101], s[0:1], 80")
    a(f"v_and_b32 v{vLane}, 63, v0")
    a(f"v_lshrrev_b32 v{vT0}, 6, v0")
    a(f"v_lshlrev_b32 v{vT16}, 4, v0")
    a(f"v_readfirstlane_b32 s{sW}, v{vT0}")
    a(f"s_cmp_lt_u32 s2, {C0}")
    a("s_cbranch_scc1 AUX")

    a(f"s_sub_u32 s3, s2, {C0}")
    a(f"s_lshl_b32 s{sLB}, s3, 13")
    a(f"s_mul_i32 s3, s3, {BN}")
    a(f"v_mov_b32 v{vLB}, {LIST}")
    a(f"v_lshrrev_b32 v{vT0}, 3, v0")
    a(f"v_add_u32 v{vT0}, s3, v{vT0}")
    a(f"v_or_b32 v{vT0}, 0xffff0000, v{vT0}")
    a(f"v_and_b32 v{vT1}, 7, v0")
    a(f"v_cmp_eq_u32 vcc, 0, v{vT1}")
    a("v_mov_b32 v37, -1")
    a(f"v_add_u32 v{vOff}, v{vLB}, v{vT16}")
    a(f"v_cndmask_b32 v36, v37, v{vT0}, vcc")
    a("v_cmp_le_u32 vcc, 384, v0")
    a("v_mov_b32 v40, 1")
    a("s_nop 0")
    a("v_cndmask_b32 v36, v36, v40, vcc")
    a("v_cndmask_b32 v37, v37, v40, vcc")
    a("v_cmp_eq_u32 vcc, 398, v0")
    a("v_mov_b32 v38, v37")
    a("v_mov_b32 v39, v37")
    a("v_cndmask_b32 v36, v36, 0, vcc")
    a(f"ds_write_b128 v{vOff}, v[36:39]")
    a(f"s_lshr_b32 s{sRot}, s2, 3")
    a(f"s_and_b32 s{sRot}, s{sRot}, 7")
    a(f"s_lshr_b32 s{sV}, s2, 4")
    a(f"s_and_b32 s{sV}, s{sV}, 4")
    a(f"s_and_b32 s{sA}, s{sRot}, 3")
    a(f"s_or_b32 s{sV}, s{sV}, s{sA}")
    a(f"s_xor_b32 s{sV}, s{sW}, s{sV}")
    a(f"v_bfe_u32 v{vT0}, v{vLane}, 1, 2")
    a(f"v_bfe_u32 v{vT1}, v{vLane}, 4, 1")
    a(f"v_xor_b32 v{vT0}, v{vT0}, v{vT1}")
    a(f"v_lshrrev_b32 v{vT1}, 3, v{vLane}")
    a(f"v_lshlrev_b32 v{vT1}, 10, v{vT1}")
    a(f"v_and_b32 v{vOff}, 1, v{vLane}")
    a(f"v_lshl_or_b32 v{vT1}, v{vOff}, 4, v{vT1}")
    a(f"s_lshl_b32 s{sA}, s{sV}, 7")
    a(f"v_or_b32 v{vT1}, s{sA}, v{vT1}")
    a(f"v_lshl_or_b32 v{vS1}, v{vT0}, 5, v{vT1}")
    a(f"v_xor_b32 v{vS1+1}, 64, v{vS1}")
    a(f"s_lshl_b32 s{sWL}, s{sW}, 13")
    a(f"s_add_u32 s{sWB}, s{sWL}, {WST}")
    a(f"s_lshl_b32 s{sB}, s{sRot}, 15")
    a("s_waitcnt lgkmcnt(0)")
    srd(a, sW1, 84, 256 * 1024)
    a("s_barrier")

    def slot_base(sl):
        return (sWB if sl < 2 else sWL), (sl % 2) * 4096

    def dma_unit(u):
        sb, off = slot_base(u % 4)
        for i in range(4):
            a(f"s_add_u32 m0, s{sb}, {off + i * 1024}")
            if u < 8:
                a(f"s_xor_b32 s{sA}, s{sB}, {(u * 32 + i * 8) * 1024}")
                a(f"buffer_load_dwordx4 v{vS1 + i % 2}, {sr(sW1,4)}, s{sA} offen lds")
            else:
                a(f"s_mov_b32 s{sA}, {((u - 8) * 64 + i * 16) * 512}")
                a(f"buffer_load_dwordx4 v{vN2}, {sr(sW2,4)}, s{sA} offen lds")
            vm.issue(f"u{u}")

    NR = opt.get('nr', 2)
    NU = 8 + NR
    vN2 = 28
    NBUB = opt.get('nb', 2)
    NINF = opt.get('ninf', 3)
    PPRIO = opt.get('pprio', 1)
    stamp_setup()
    st(0)
    if opt.get('dly_c'):
        a(f"s_sleep {opt['dly_c']}")
    if PPRIO:
        a("s_setprio 3")
    dma_unit(0)
    if PPRIO:
        a("s_setprio 2")
    a("s_load_dword s45, s[82:83], 0")
    for u in range(1, NINF):
        dma_unit(u)
    srd(a, sB1, 86, 1024)
    srd(a, sB2, 90, 512)
    a(f"v_lshlrev_b32 v{vC16}, 4, v{vLane}")
    a(f"s_cmp_eq_u32 s{sW}, 2")
    a("s_cbranch_scc0 C_SL2")
    a(f"buffer_load_dwordx4 {vr(vBI,4)}, v{vC16}, {sr(sB1,4)}, 0 offen")
    a.label("C_SL2")
    a(f"s_cmp_eq_u32 s{sW}, 3")
    a("s_cbranch_scc0 C_SL3")
    a(f"buffer_load_dwordx4 {vr(vBI,4)}, v{vC16}, {sr(sB2,4)}, 0 offen")
    a.label("C_SL3")
    a(f"v_lshrrev_b32 v{vT0}, 4, v{vLane}")
    a(f"v_lshlrev_b32 v{vT0}, 10, v{vT0}")
    a(f"v_bfe_u32 v{vT1}, v{vLane}, 2, 2")
    a(f"v_lshl_or_b32 v{vT0}, v{vT1}, 7, v{vT0}")
    a(f"v_and_b32 v{vT1}, 3, v{vLane}")
    a(f"v_lshl_or_b32 v{vT0}, v{vT1}, 3, v{vT0}")
    a(f"v_bfe_u32 v{vT1}, v{vLane}, 3, 2")
    for mt in range(4):
        a(f"v_xor_b32 v{vOff}, {mt}, v{vT1}")
        a(f"v_lshl_add_u32 v{vOff}, v{vOff}, 5, v{vT0}")
        a(f"v_add_u32 v{vTR+mt}, s{sWB}, v{vOff}")
        a(f"v_add_u32 v{vTR+4+mt}, s{sWL}, v{vOff}")

    def w2_addr(sLW, vsrc, vtb_list):
        a(f"v_lshrrev_b32 v{vT0}, 2, v{vLane}")
        a(f"v_lshlrev_b32 v{vT0}, 9, v{vT0}")
        a(f"v_and_b32 v{vT1}, 3, v{vLane}")
        a(f"v_lshl_or_b32 v{vT0}, v{vT1}, 4, v{vT0}")
        a(f"s_lshl_b32 s{sA}, s{sLW}, 6")
        a(f"v_or_b32 v{vsrc}, s{sA}, v{vT0}")
        for (v, sb) in vtb_list:
            a(f"v_lshl_add_u32 v{v}, v{vLane}, 4, s{sb}")

    def setup_a():
        a(f"s_lshl_b32 s{sA}, s{sV}, 15")
        a(f"s_add_u32 s{sA}, s{sA}, {W2F}")
        a(f"v_lshl_add_u32 v{vS2}, v{vLane}, 4, s{sA}")
        if NR:
            srd(a, sW2, 88, 256 * 1024)
            w2_addr(sV, vN2, [(vTB, sWB), (vTR2, sWL)])

    def setup_b():
        srd(a, sX, 76, N * 512)
        srd(a, sDBG, 6, 256)
        srd(a, sWS, 100, WS_BYTES)
        if opt.get('ctouch', 0):
            a(f"s_cmp_eq_u32 s{sW}, 0")
            a("s_cbranch_scc0 C_CT")
            a(f"v_mov_b32 v{vT0}, 0x1f0000")
            a(f"v_lshlrev_b32 v{vT1}, 20, v{vLane}")
            a("s_mov_b64 exec, 31")
            a(f"buffer_load_dword v31, v{vT0}, {sr(sWS,4)}, 0 offen")
            a(f"buffer_load_dword v30, v{vT1}, {sr(sX,4)}, 0 offen")
            a("s_mov_b64 exec, -1")
            a.label("C_CT")
        srd(a, sOUT, 4, N * 512)
        srd(a, sDST, 80, E * 4)
        srd(a, sSRC, 78, E * 4)

    def setup_c():
        a(f"v_lshrrev_b32 v{vT0}, 4, v{vLane}")
        a(f"v_lshrrev_b32 v{vT1}, 3, v{vLane}")
        a(f"v_xor_b32 v{vT0}, v{vT0}, v{vT1}")
        a(f"v_and_b32 v{vT0}, 1, v{vT0}")
        a(f"v_bfe_u32 v{vT1}, v{vLane}, 1, 2")
        a(f"v_lshl_or_b32 v{vT0}, v{vT0}, 2, v{vT1}")
        a(f"v_and_b32 v{vT1}, 1, v{vLane}")
        a(f"v_lshlrev_b32 v{vT1}, 4, v{vT1}")
        a("s_lshl_b32 s45, s45, 16")
        a("v_mov_b32 v40, s45")
        a("v_add_f32 v40, 1.0, v40")
        a("v_cvt_pk_bf16_f32 v40, v40, v40")
        a("v_and_b32 v40, 0xffff, v40")
        a("v_mov_b32 v41, 0x3f80")
        a(f"v_cmp_gt_u32 vcc, 32, v{vLane}")
        a("s_nop 1")
        a("v_cndmask_b32 v40, v41, v40, vcc")
        a(f"v_lshlrev_b32 v40, v{vT1}, v40")
        a(f"v_lshlrev_b32 v41, v{vT1}, v41")
        for p in range(4):
            a(f"v_cmp_eq_u32 vcc, {p}, v{vT0}")
            a("s_nop 1")
            a(f"v_cndmask_b32 v{vA1+p}, 0, v41, vcc")
            a(f"v_cndmask_b32 v{vAS+p}, 0, v40, vcc")

    def setup_d():
        a(f"v_lshrrev_b32 v{vSh}, 5, v{vLane}")
        a(f"v_lshlrev_b32 v{vSh}, 4, v{vSh}")
        a(f"v_and_b32 v{vT0}, 15, v{vLane}")
        a(f"v_lshlrev_b32 v{vFl}, 4, v{vT0}")
        a(f"v_lshl_or_b32 v{vFl}, v{vSh}, 4, v{vFl}")
        a(f"v_bfe_u32 v{vT0}, v{vLane}, 4, 1")
        a(f"v_lshl_or_b32 v{vFl}, v{vT0}, 3, v{vFl}")
        a(f"v_and_b32 v{vC16}, 31, v{vLane}")
        a(f"v_lshlrev_b32 v{vC16}, 4, v{vC16}")
        a(f"v_bfe_u32 v42, v{vLane}, 3, 2")
        a(f"s_lshl_b32 s{sA}, s{sW}, 4")
        a(f"v_lshl_add_u32 v42, v42, 2, s{sA}")
        a(f"v_and_b32 v43, {NW2H-1}, v{vLane}")
        a("v_lshlrev_b32 v43, 2, v43")
        a(f"s_lshl_b32 s{sA}, s{sW}, 9")
        a(f"v_lshl_add_u32 v41, v{vSh}, 8, v{vC16}")
        a(f"v_add_u32 v41, s{sA}, v41")
        a(f"s_mov_b32 s{sPC}, 0")
        a(f"s_mov_b32 s{sT}, {EMPTY}")
        a(f"v_lshrrev_b32 v{vT0}, 1, v{vLane}")
        a(f"v_lshlrev_b32 v{vT0}, 4, v{vT0}")
        a(f"v_and_b32 v{vT1}, 1, v{vLane}")
        a(f"v_or_b32 v{vT0}, v{vT0}, v{vT1}")
        a(f"s_lshl_b32 s{sNode}, s{sW}, 1")
        a(f"v_add_u32 v{vT0}, s{sNode}, v{vT0}")
        a(f"v_cmp_gt_u32 vcc, 6, v{vLane}")
        a(f"v_mov_b32 v{vT1}, 56")
        a("v_mov_b32 v62, 64")
        a(f"v_cndmask_b32 v{vT0}, v{vT1}, v{vT0}, vcc")
        a(f"v_lshl_add_u32 v61, v{vT0}, 2, v{vLB}")
        a(f"s_lshl_b32 s{sA}, s{sW}, 8")
        a(f"v_lshl_add_u32 v{vT1}, v{vLane}, 2, v{vLB}")
        a(f"v_add_u32 v60, s{sA}, v{vT1}")
        a("v_cndmask_b32 v62, 0, v62, vcc")
        set_xor()

    def set_xor():
        a(f"s_lshl_b32 s{sXor}, s{sNode}, 9")
        a(f"s_and_b32 s44, s{sNode}, 15")
        a("s_lshl_b32 s44, s44, 4")
        a(f"s_or_b32 s{sXor}, s{sXor}, s44")

    def cpf(r0, n):
        tot = opt.get('cpf', 0) + opt.get('cpf2', 0)
        a("s_and_b32 s4, s2, 7")
        a("s_mul_i32 s4, s4, 5000")
        a("s_lshr_b32 s5, s2, 3")
        a(f"s_mul_i32 s5, s5, {512 * tot}")
        a("s_add_u32 s4, s4, s5")
        for r in range(r0, r0 + n):
            a(f"s_add_u32 s5, s4, {NH * 1024 + NP * 2048 - 5 * 512 * tot + 512 * r}")
            a(f"v_add_u32 v{vT0}, s5, v0")
            a(f"v_subrev_u32 v{vT1}, 40000, v{vT0}")
            a(f"v_min_u32 v{vT0}, v{vT0}, v{vT1}")
            a(f"v_lshlrev_b32 v{vT0}, 7, v{vT0}")
            a(f"buffer_load_dword v{44+r}, v{vT0}, {sr(sX,4)}, 0 offen")
            vm.issue("cpf")

    def bias_to_lds():
        a(f"s_sub_u32 s{sA}, s{sW}, 2")
        a(f"s_cmp_lt_u32 s{sA}, 2")
        a("s_cbranch_scc0 C_NB")
        for x in range(4):
            a(f"v_lshlrev_b32 v{32+2*x}, 16, v{vBI+x}")
            a(f"v_and_b32 v{33+2*x}, 0xffff0000, v{vBI+x}")
        a(f"s_lshl_b32 s{sA}, s{sA}, 11")
        a(f"s_add_u32 s{sA}, s{sA}, {BIAS}")
        a(f"v_lshl_add_u32 v{vOff}, v{vLane}, 5, s{sA}")
        a(f"s_cmp_eq_u32 s{sW}, 3")
        a("s_cbranch_scc0 C_NB2")
        a("s_mov_b64 exec, 0xffffffff")
        a.label("C_NB2")
        a(f"ds_write_b128 v{vOff}, v[32:35]")
        a(f"ds_write_b128 v{vOff}, v[36:39] offset:16")
        a("s_mov_b64 exec, -1")
        a("s_waitcnt lgkmcnt(0)")
        a.label("C_NB")

    def tr_w2_ops(dst, vbase, off, tag, scr):
        ops = []
        for kk in range(2):
            for t in range(2):
                for hf in range(2):
                    ops.append(("ds", f"ds_read_b64_tr_b16 {vr(dst+8*kk+4*t+2*hf,2)}, v{vbase} offset:{off + kk*2048 + hf*1024 + 8*t}", tag))
        return ops

    def w2reg(k):
        return W2R + 16 * k if k < 4 else W + 16 * (k - 4)

    def w2_ops(k):
        ops = []
        for mt in range(4):
            ops.append(("vm2", [f"s_mov_b32 s{sA}, {k * 4096}"] if mt == 0 else [],
                        f"buffer_load_dwordx4 {vr(w2reg(k)+4*mt,4)}, v{vS2}, {sr(sWS,4)}, s{sA} offen offset:{mt*1024} sc1", f"w2_{k}"))
        return ops

    bars = []
    cur_q = [0]
    def emit(op):
        if isinstance(op, tuple):
            k = op[0]
            if k == "ds":
                a(op[1]); lg.issue(op[2]); return 1
            if k == "vm":
                a(op[1]); vm.issue(op[2]); return 1
            if k == "vm2":
                for l in op[1]:
                    a(l)
                a(op[2]); vm.issue(op[3]); return 1
            if k == "dma":
                for l in op[1]:
                    a(l)
                vm.issue(op[2]); return 2
            if k == "skip":
                return 2
            if k == "wl":
                return 1 if wait(ltag=op[1]) else 0
            if k == "wv":
                return 1 if wait(vtag=op[1]) else 0
            if k == "bar":
                wait(ltag=op[1])
                a("s_barrier")
                bars.append(cur_q[0])
                return 2
            raise ValueError(op)
        a(op)
        return 1

    def poll_issue():
        a(f"buffer_load_dword v40, v42, {sr(sDBG,4)}, 0 offen sc1")
        a(f"buffer_load_dword v39, v43, {sr(sDBG,4)}, 0 offen offset:128 sc1")
        a(f"buffer_load_dwordx4 v[32:35], v41, {sr(sWS,4)}, s{sLB} offen sc1")

    def unit_step(u):
        sl = u % 4
        hi = 0 if sl < 2 else 1
        off = (sl % 2) * 4096
        if not opt.get('nowait'):
            wait(vtag=f"u{u}")
        if opt.get('notr'):
            pass
        elif u < 8:
            for mt in range(4):
                for hf in range(2):
                    a(f"ds_read_b64_tr_b16 {vr(W+16*u+4*mt+2*hf,2)}, v{vTR+4*hi+mt} offset:{off + hf*512}")
                    lg.issue(f"t{u}")
        else:
            for op in tr_w2_ops(W2R + 16 * (u - 8), vTB if hi == 0 else vTR2, off, f"t{u}", [30, 31]):
                emit(op)
        nx = u + NINF
        if nx < NU:
            if nx - 4 >= 0:
                wait(ltag=f"t{nx-4}")
            dma_unit(nx)

    DEFER = opt.get('defer', 1)
    a("s_waitcnt lgkmcnt(0)")
    if not DEFER:
        setup_a()
        setup_b()
        setup_c()
        setup_d()
    if opt.get('sync0'):
        a("s_waitcnt vmcnt(0)")
        a("s_barrier")
    PU = opt.get('pu', 9)
    LATEF = opt.get('lateflag', 0)
    assert not LATEF or (NR == 0 and NBUB == 0)
    PU2 = opt.get('pu2', PU)
    SD = opt.get('sd', 5)
    def pollx():
        a(f"buffer_load_dword v40, v42, {sr(sDBG,4)}, 0 offen sc1")
        if not LATEF:
            a(f"buffer_load_dword v39, v43, {sr(sDBG,4)}, 0 offen offset:128 sc1")
            vm.issue("poll")
        else:
            a("v_mov_b32 v39, 1")
        a(f"buffer_load_dwordx4 v[32:35], v41, {sr(sWS,4)}, s{sLB} offen sc1")
        vm.issue("poll"); vm.issue("poll")
    def steps_from(u0, pu):
        for u in range(u0, NU):
            if PPRIO and u in (NU // 4, NU // 2 + 1):
                a(f"s_setprio {1 if u == NU // 4 else 0}")
            unit_step(u)
            {0: setup_a, 1: setup_b, 2: setup_c, SD: setup_d}.get(u, lambda: None)()
            if u == NINF:
                bias_to_lds()
            if pu is None and u == PU2:
                return
            if u == pu:
                pollx()
    if PU2 == PU:
        steps_from(0, PU)
    else:
        assert max(SD, NINF) <= PU2 < PU
        steps_from(0, None)
        a(f"s_cmp_lt_u32 s{sW}, {opt.get('ysplit', 4)}")
        a("s_cbranch_scc1 C_OLD")
        sv = (list(vm.q), list(lg.q))
        pollx()
        steps_from(PU2 + 1, -1)
        wait(vtag="poll")
        a("s_branch C_JOIN")
        vm.q, lg.q = sv
        a.label("C_OLD")
        steps_from(PU2 + 1, PU)
        wait(vtag="poll")
        a.label("C_JOIN")
    st(1)
    NPRE, NPOST = NR, 0
    wait(vtag="poll")
    a.label("POLL_CHK")
    a("v_lshrrev_b32 v16, 8, v33")
    a("v_lshrrev_b32 v17, 8, v35")
    a("v_xor_b32 v16, v16, v40")
    a("v_xor_b32 v17, v17, v40")
    a("v_or_b32 v16, v16, v17")
    a("v_alignbit_b32 v26, v35, v34, 20")
    a(f"v_cmp_ne_u32 {sr(sM,2)}, 0, v16")
    a("v_and_b32 v26, 0xfffff, v26")
    a("v_min_u32 v17, v40, v39")
    a(f"v_cmp_eq_u32 {sr(sM+2,2)}, 0, v17")
    a(f"v_cmp_ne_u32 vcc, s{sT}, v26")
    a("s_and_b32 s5, vcc_lo, 0x80808080")
    a("s_lshr_b32 s5, s5, 7")
    a("s_mul_i32 s5, s5, 255")
    a("s_mov_b32 s4, -1")
    a(f"s_and_b64 {sr(sM,2)}, {sr(sM,2)}, s[4:5]")
    a(f"s_or_b64 {sr(sM,2)}, {sr(sM,2)}, {sr(sM+2,2)}")
    a("s_cbranch_scc1 POLL_RETRY")
    a("v_and_b32 v20, 0xfffff, v32")
    a("v_alignbit_b32 v22, v33, v32, 20")
    a("v_and_b32 v22, 0xfffff, v22")
    a("v_and_b32 v24, 0xfffff, v34")
    a.label("POLL_OK")
    vm.clear()
    st(2)
    a(f"v_mov_b32 v16, s{sT}")
    a("v_cndmask_b32 v20, v16, v20, s[4:5]")
    a(f"s_mov_b32 s4, {MARK}")
    a("v_mov_b32 v41, 1")
    ent = [20, 22, 24, 26]
    for k in range(4):
        a(f"v_bfe_u32 v{ent[k]+1}, v{ent[k]}, 14, 6")
        a(f"v_lshl_add_u32 v{16+k}, v{ent[k]+1}, 2, v{vLB}")
    for k in range(4):
        a(f"v_cmpx_gt_u32 vcc, s4, v{ent[k]}")
        a(f"ds_add_rtn_u32 v{16+k}, v{16+k}, v41 offset:{CNT-LIST}")
        a(f"s_mov_b64 {sr(sM+2*k,2)}, exec")
    a("s_mov_b64 exec, -1")
    a("v_cmp_eq_u32 vcc, s4, v20")
    a("s_and_saveexec_b64 s[6:7], vcc")
    a(f"ds_write_b32 v{vLB}, v41 offset:{FLAG-LIST}")
    a("s_mov_b64 exec, -1")
    for k in range(4):
        a(f"v_and_b32 v{ent[k]}, 0x3fff, v{ent[k]}")
        a(f"v_lshl_add_u32 v{ent[k]+1}, v{ent[k]+1}, 7, v{vLB}")
    a("s_waitcnt lgkmcnt(0)")
    for k in range(4):
        a(f"v_min_u32 v{16+k}, 63, v{16+k}")
        a(f"v_lshl_add_u32 v{ent[k]+1}, v{16+k}, 1, v{ent[k]+1}")
    for k in range(4):
        a(f"s_mov_b64 exec, {sr(sM+2*k,2)}")
        a(f"ds_write_b16 v{ent[k]+1}, v{ent[k]}")
    a("s_mov_b64 exec, -1")
    lg.clear()
    vL = [vSeq, 59, 60]
    vCnt = 61
    sFlush, sJ, sEnd, sLeft = sMask, sMask + 1, sT, sPC
    a(f"s_mov_b32 s{sFlush}, 0")
    a(f"s_mov_b32 s{sJ}, 0")
    a(f"s_mov_b32 s{sPI}, 0")
    a(f"s_mov_b32 s{sLeft}, {NPW}")
    if LATEF:
        a("v_mov_b32 v64, v43")
        a(f"buffer_load_dword v63, v43, {sr(sDBG,4)}, 0 offen offset:128 sc1")
    NBUB = max(NBUB, NPRE + NPOST)
    for k in range(NPRE + NPOST, NBUB):
        for op in w2_ops(k):
            emit(op)
    a("s_waitcnt lgkmcnt(0)")
    for _ in range(opt.get('dly_g', 0)):
        a("s_sleep 64")
    a("s_barrier")
    a(f"ds_read_b32 v{vCnt}, v61 offset:{CNT-LIST}")
    for i in range(3):
        a(f"ds_read_b32 v{vL[i]}, v60 offset:{2048*i}")
    GPRIO = opt.get('gprio', 1)
    if GPRIO:
        a("s_setprio 3")
    a("s_waitcnt lgkmcnt(2)")
    a(f"v_cmp_gt_u32 vcc, v{vCnt}, v62")
    a(f"v_add_u32 v{vCnt}, 1, v{vCnt}")
    a(f"v_lshrrev_b32 v{vCnt}, 1, v{vCnt}")
    a("s_cmp_lg_u64 vcc, 0")
    a("s_cbranch_scc1 M_SLOW")
    a(f"v_readlane_b32 s{sEnd}, v{vCnt}, 0")
    a("s_waitcnt lgkmcnt(0)")
    st(3)

    def flush():
        a(f"v_xor_b32 v{vT0}, s{sXor}, v{vFl}")
        a(f"v_cvt_pk_bf16_f32 v14, v{vAcc}, v{vAcc+1}")
        a(f"v_cvt_pk_bf16_f32 v15, v{vAcc+2}, v{vAcc+3}")
        a(f"ds_write_b64 v{vT0}, v[14:15] offset:{HH}")
        a(f"s_and_b32 s4, s{sNode}, 1")
        a("s_mul_i32 s4, s4, 14")
        a(f"s_add_u32 s{sNode}, s{sNode}, s4")
        a(f"s_add_u32 s{sNode}, s{sNode}, 1")
        set_xor()

    acc = vr(vAcc, 4)
    def mf_norm(s):
        a(f"v_mfma_f32_16x16x32_bf16 {acc}, {vr(vA1,4)}, {vr(RING+4*s,4)}, {acc}")
    def mf_first(s):
        a(f"v_mfma_f32_16x16x32_bf16 {acc}, {vr(vAS,4)}, {vr(RING+4*s,4)}, 0")
    def issue(s):
        a(f"v_bfe_u32 v{vOff}, s{sId}, v{vSh}, 16")
        a(f"v_lshl_add_u32 v{vOff}, v{vOff}, 9, v{vC16}")
        a(f"buffer_load_dwordx4 {vr(RING+4*s,4)}, v{vOff}, {sr(sX,4)}, 0 offen")
    swn = [0]
    def switch(s, lab_exit):
        a(f"s_bitset1_b32 s{sFlush}, {s}")
        a(f"s_add_u32 s{sJ}, s{sJ}, 1")
        a(f"s_cmp_eq_u32 s{sJ}, {NPW}")
        a(f"s_cbranch_scc1 {lab_exit}")
        a(f"v_readlane_b32 s{sEnd}, v{vCnt}, s{sJ}")
        a(f"s_and_b32 s{sPI}, s{sJ}, 1")
        a(f"s_cselect_b32 s4, 0, -1")
        a(f"s_mov_b32 s5, s4")
        a(f"s_lshl_b32 s{sPI}, s{sPI}, 5")
        a(f"v_cndmask_b32 v{vL[0]}, v{vL[0]}, v{vL[1]}, s[4:5]")
        a(f"v_cndmask_b32 v{vL[1]}, v{vL[1]}, v{vL[2]}, s[4:5]")
        a(f"s_add_u32 s{sEnd}, s{sEnd}, s{sPI}")
        if GPRIO:
            k = swn[0]; swn[0] += 1
            a(f"s_cmp_lt_u32 s{sJ}, 3")
            a(f"s_cbranch_scc1 SWP{k}")
            a("s_setprio 2")
            a(f"s_cmp_lt_u32 s{sJ}, 4")
            a(f"s_cbranch_scc1 SWP{k}")
            a("s_setprio 1")
            a(f"s_cmp_lt_u32 s{sJ}, 5")
            a(f"s_cbranch_scc1 SWP{k}")
            a("s_setprio 0")
            a.label(f"SWP{k}")

    for s in range(D):
        a.label(f"F_{s}")
        a(f"v_readlane_b32 s{sId}, v{vL[0]}, s{sPI}")
        a(f"s_add_u32 s{sPI}, s{sPI}, 1")
        a(f"s_cmp_eq_u32 s{sPI}, s{sEnd}")
        issue(s)
        a(f"s_cbranch_scc1 F_SW{s}")
    a("s_branch G_F0")
    for s in range(D):
        a.label(f"F_SW{s}")
        switch(s, "X_F0")
        a(f"s_branch {'F_%d' % (s+1) if s + 1 < D else 'G_F0'}")
    for s in range(D):
        n = (s + 1) % D
        a.label(f"G_N{s}")
        a(f"s_waitcnt vmcnt({D-1})")
        a(f"v_readlane_b32 s{sId}, v{vL[0]}, s{sPI}")
        mf_norm(s)
        a.label(f"G_C{s}")
        a(f"s_add_u32 s{sPI}, s{sPI}, 1")
        a(f"s_bitcmp1_b32 s{sFlush}, {s}")
        issue(s)
        a(f"s_cbranch_scc1 G_FL{s}")
        a(f"s_cmp_eq_u32 s{sPI}, s{sEnd}")
        a(f"s_cbranch_scc1 G_SN{s}")
        if n == 0:
            a("s_branch G_N0")
    for s in range(D):
        n = (s + 1) % D
        a.label(f"G_SN{s}")
        switch(s, f"X_N{n}")
        a(f"s_branch G_N{n}")
    for s in range(D):
        n = (s + 1) % D
        a.label(f"G_FL{s}")
        a(f"s_bitset0_b32 s{sFlush}, {s}")
        a(f"s_sub_u32 s{sLeft}, s{sLeft}, 1")
        a("s_nop 0")
        flush()
        a(f"s_cmp_eq_u32 s{sPI}, s{sEnd}")
        a(f"s_cbranch_scc0 G_F{n}")
        switch(s, f"X_F{n}")
        a.label(f"G_F{n}")
        a(f"s_waitcnt vmcnt({D-1})")
        a(f"v_readlane_b32 s{sId}, v{vL[0]}, s{sPI}")
        mf_first(n)
        a(f"s_branch G_C{n}")
    for s in range(D):
        a.label(f"X_N{s}")
        a("s_waitcnt vmcnt(0)")
        a(f"s_branch T_N{s}")
        a.label(f"X_F{s}")
        a("s_waitcnt vmcnt(0)")
        a(f"s_branch T_F{s}")
    for s in range(D):
        n = (s + 1) % D
        a.label(f"T_N{s}")
        mf_norm(s)
        a.label(f"T_C{s}")
        a(f"s_bitcmp1_b32 s{sFlush}, {s}")
        a(f"s_cbranch_scc1 T_FL{s}")
        if n == 0:
            a(f"s_cmp_eq_u32 s{sFlush}, 0")
            a("s_cbranch_scc1 M_GDONE")
            a("s_branch T_N0")
    for s in range(D):
        n = (s + 1) % D
        a.label(f"T_FL{s}")
        a(f"s_bitset0_b32 s{sFlush}, {s}")
        a(f"s_sub_u32 s{sLeft}, s{sLeft}, 1")
        a("s_nop 4")
        flush()
        a(f"s_cmp_eq_u32 s{sLeft}, 0")
        a(f"s_cbranch_scc1 M_GDONE")
        a.label(f"T_F{n}")
        mf_first(n)
        a(f"s_branch T_C{n}")

    a.label("POLL_RETRY")
    a(f"s_add_u32 s{sPC}, s{sPC}, 1")
    a(f"s_cmp_lt_u32 s{sPC}, {opt.get('spin', 30000)}")
    a("s_cbranch_scc0 POLL_GIVEUP")
    a(f"s_cmp_eq_u32 s{sPC}, 1")
    a("s_cbranch_scc1 POLL_NOSLEEP")
    a.label("POLL_SLEEP")
    a(f"s_sleep {opt.get('psleep', 4)}")
    a.label("POLL_NOSLEEP")
    a(f"s_cmp_eq_u64 {sr(sM+2,2)}, 0")
    a("s_cbranch_scc1 POLL_CELLS")
    a(f"buffer_load_dword v40, v42, {sr(sDBG,4)}, 0 offen sc1")
    if not LATEF:
        a(f"buffer_load_dword v39, v43, {sr(sDBG,4)}, 0 offen offset:128 sc1")
    a.label("POLL_CELLS")
    a(f"buffer_load_dwordx4 v[32:35], v41, {sr(sWS,4)}, s{sLB} offen sc1")
    a("s_waitcnt vmcnt(0)")
    a("s_branch POLL_CHK")
    a.label("POLL_GIVEUP")
    a(f"s_cmp_lt_u32 s{sPC}, {8 * opt.get('spin', 30000)}")
    a("s_cbranch_scc0 POLL_GO")
    a("v_cmp_eq_u32 vcc, 0, v39")
    a("s_cmp_lg_u64 vcc, 0")
    a("s_cbranch_scc1 POLL_SLEEP")
    a.label("POLL_GO")
    a(f"v_mov_b32 v20, {MARK}")
    a("s_mov_b64 s[4:5], -1")
    a("s_branch POLL_OK")

    if LATEF:
        a.label("FLG_RETRY")
        a(f"s_add_u32 s{sPC}, s{sPC}, 1")
        a(f"s_cmp_lt_u32 s{sPC}, {8 * opt.get('spin', 30000)}")
        a("s_cbranch_scc0 FLG_OK")
        a("s_sleep 8")
        a(f"buffer_load_dword v63, v64, {sr(sDBG,4)}, 0 offen offset:128 sc1")
        a("s_waitcnt vmcnt(0)")
        a("s_branch FLG_CHK")

    a.label("M_SLOW")
    SA = RING + 8
    a("s_waitcnt vmcnt(0) lgkmcnt(0)")
    a(f"v_mov_b32 v{vT0}, 0x7f000000")
    a(f"v_cmp_gt_u32 vcc, 32, v{vLane}")
    a("s_nop 1")
    a(f"v_cndmask_b32 v{vSeq}, v{vT0}, v{vC16}, vcc")
    a(f"s_add_u32 s40, s3, s{sNode}")
    for j in range(NPW):
        a(f"s_add_u32 s4, s40, {16*(j//2) + j%2}")
        a("s_lshl_b32 s4, s4, 9")
        a(f"v_add_u32 v{vOff}, s4, v{vSeq}")
        a(f"buffer_load_dwordx4 {vr(RING,4)}, v{vOff}, {sr(sX,4)}, 0 offen")
        a("s_waitcnt vmcnt(0)")
        a(f"v_mfma_f32_16x16x32_bf16 {vr(SA+4*j,4)}, {vr(vAS,4)}, {vr(RING,4)}, 0")
        a("s_nop 7")
    a(f"v_lshlrev_b32 v{vT0}, 2, v{vLane}")
    a("s_mov_b32 s41, 0")
    a.label("S_LOOP")
    a(f"buffer_load_dword v{RING+4}, v{vT0}, {sr(sDST,4)}, s41 offen")
    a(f"buffer_load_dword v{RING+5}, v{vT0}, {sr(sSRC,4)}, s41 offen")
    a("s_waitcnt vmcnt(0)")
    a(f"v_subrev_u32 v{RING+4}, s40, v{RING+4}")
    a(f"v_and_b32 v{RING+6}, 0xffffffce, v{RING+4}")
    a(f"v_cmp_eq_u32 vcc, 0, v{RING+6}")
    a(f"v_cmp_gt_u32 s[42:43], 48, v{RING+4}")
    a("s_nop 3")
    a("s_and_b64 s[42:43], s[42:43], vcc")
    a.label("S_IN")
    a("s_cmp_eq_u64 s[42:43], 0")
    a("s_cbranch_scc1 S_NEXT")
    a("s_ff1_i32_b64 s44, s[42:43]")
    a("s_bitset0_b64 s[42:43], s44")
    a(f"v_readlane_b32 s45, v{RING+4}, s44")
    a(f"v_readlane_b32 s46, v{RING+5}, s44")
    a("s_nop 3")
    a("s_lshl_b32 s46, s46, 9")
    a(f"v_add_u32 v{vOff}, s46, v{vSeq}")
    a(f"buffer_load_dwordx4 {vr(RING,4)}, v{vOff}, {sr(sX,4)}, 0 offen")
    a("s_waitcnt vmcnt(0)")
    for j in range(NPW):
        if j < NPW - 1:
            a(f"s_cmp_eq_u32 s45, {16*(j//2) + j%2}")
            a(f"s_cbranch_scc0 S_J{j+1}")
        a(f"v_mfma_f32_16x16x32_bf16 {vr(SA+4*j,4)}, {vr(vA1,4)}, {vr(RING,4)}, {vr(SA+4*j,4)}")
        a("s_nop 7")
        a("s_branch S_IN")
        if j < NPW - 1:
            a.label(f"S_J{j+1}")
    a.label("S_NEXT")
    a("s_add_u32 s41, s41, 256")
    a(f"s_cmp_lt_u32 s41, {E*4}")
    a("s_cbranch_scc1 S_LOOP")
    for j in range(NPW):
        for r in range(4):
            a(f"v_mov_b32 v{vAcc+r}, v{SA+4*j+r}")
        flush()

    a.label("M_GDONE")
    vm.clear(); lg.clear()
    st(4)
    if LATEF:
        a(f"s_mov_b32 s{sPC}, 0")
        a.label("FLG_CHK")
        a("v_cmp_eq_u32 vcc, 0, v63")
        a("s_cmp_lg_u64 vcc, 0")
        a("s_cbranch_scc1 FLG_RETRY")
        a.label("FLG_OK")
    NE = min(4, NBUB + opt.get('early', 2))
    for k in range(NBUB, NE):
        for op in w2_ops(k):
            emit(op)
    ACP = [16, 32, 16, W + 64, W + 72, W + 80]
    BFR = [48, 52, 58, 10]
    vRd = [2, 3, 4, 7, 8, 9, 14, 15]
    vBA, vWr, vRB2, vOut, vBA2 = 1, 57, 62, 5, 6
    tJ, tQ = 48, 49
    PRE = 3
    a(f"v_and_b32 v{tJ}, 15, v{vLane}")
    a(f"v_lshrrev_b32 v{tQ}, 4, v{vLane}")
    a(f"s_lshl_b32 s4, s{sV}, 8")
    a(f"s_add_u32 s4, s4, {BIAS}")
    a(f"v_lshl_add_u32 v{vBA}, v{tQ}, 4, s4")
    def bias_ops(p):
        A = ACP[p]
        if p < 3:
            return [("ds", f"ds_read_b128 {vr(A+4*mt,4)}, v{vBA} offset:{64*mt}", f"bias{p}") for mt in range(4)]
        return [("ds", f"ds_read_b128 {vr(A+4*mt,4)}, v{vBA2} offset:{16*mt}", f"bias{p}") for mt in range(2)]
    for op in bias_ops(0) + bias_ops(1):
        emit(op)
    a(f"s_lshl_b32 s4, s{sRot}, 2")
    a(f"v_xor_b32 v{vRB2}, v{tQ}, v{tJ}")
    a(f"v_xor_b32 v{vRd[0]}, s4, v{vRB2}")
    a(f"v_lshlrev_b32 v{vRd[0]}, 4, v{vRd[0]}")
    a(f"v_lshl_or_b32 v{vRd[0]}, v{tJ}, 9, v{vRd[0]}")
    for k in range(1, 8):
        a(f"v_xor_b32 v{vRd[k]}, {64*k}, v{vRd[0]}")
    a(f"v_lshlrev_b32 v{vRB2}, 4, v{vRB2}")
    a(f"v_lshl_or_b32 v{vRB2}, v{tJ}, 10, v{vRB2}")
    a(f"s_lshl_b32 s4, s{sV}, 3")
    a(f"v_or_b32 v{vWr}, s4, v{tQ}")
    a(f"v_xor_b32 v{vWr}, v{vWr}, v{tJ}")
    a(f"v_lshlrev_b32 v{vWr}, 4, v{vWr}")
    a(f"v_lshl_or_b32 v{vWr}, v{tJ}, 10, v{vWr}")
    a(f"s_lshl_b32 s4, s{sV}, 7")
    a(f"s_add_u32 s4, s4, {BIAS + 2048}")
    a(f"v_lshl_add_u32 v{vBA2}, v{tQ}, 5, s4")
    a("s_lshl_b32 s6, s3, 9")
    a(f"s_lshl_b32 s7, s{sV}, 6")
    a("s_add_u32 s6, s6, s7")
    a(f"v_lshlrev_b32 v{vOut}, 4, v{tQ}")
    a(f"v_lshl_or_b32 v{vOut}, v{tJ}, 9, v{vOut}")
    a(f"v_add_u32 v{vOut}, s6, v{vOut}")
    vR2 = [vRB2, 0, 63, vRd[0]]
    a(f"v_xor_b32 v{vR2[1]}, 64, v{vRB2}")
    a(f"v_xor_b32 v{vR2[2]}, 128, v{vRB2}")
    a("s_waitcnt lgkmcnt(0)")
    lg.clear()
    a("s_barrier")
    st(5)

    steps = [(p, s) for p in range(3) for s in range(8)]
    steps += [(p, s) for h in range(2) for p in (3, 4, 5) for s in range(4 * h, 4 * h + 4)]
    SI = {ps: i for i, ps in enumerate(steps)}
    frags = []
    for i, (p, s) in enumerate(steps):
        frags += [(i, 0)] if p < 3 else [(i, 0), (i, 1)]
    B2R = [32, 36, 40, 44]
    def fbuf(f):
        i, kk = frags[f]
        if i < 24 or kk == 0:
            return BFR[i % 4]
        return B2R[i % 4]
    def rd_op(f):
        i, kk = frags[f]
        p, s = steps[i]
        if p < 3:
            return ("ds", f"ds_read_b128 {vr(fbuf(f),4)}, v{vRd[s]} offset:{HH + p*8192}", f"b_{i}")
        ks = 2 * s + kk
        return ("ds", f"ds_read_b128 {vr(fbuf(f),4)}, v{vR2[ks%4]} offset:{ACT + (p-3)*16384 + (ks//4)*256}", f"b_{i}")
    FI = {fk: f for f, fk in enumerate(frags)}
    def epi_a(p):
        A = ACP[p]
        ops = []
        if p < 3:
            for aa in range(2):
                m = A + 8 * aa
                ops.append(f"v_cvt_pk_bf16_f32 v{m}, v{m}, v{m+1}")
                ops.append(f"v_cvt_pk_bf16_f32 v{m+1}, v{m+2}, v{m+3}")
                ops.append(f"v_cvt_pk_bf16_f32 v{m+2}, v{m+4}, v{m+5}")
                ops.append(f"v_cvt_pk_bf16_f32 v{m+3}, v{m+6}, v{m+7}")
                for x in range(4):
                    ops.append(f"v_pk_max_i16 v{m+x}, v{m+x}, 0")
                if aa == 1:
                    ops.append(f"v_xor_b32 v{m+4}, 64, v{vWr}")
                    ops.append(("ds", f"ds_write_b128 v{m+4}, {vr(m,4)} offset:{ACT + p*16384}", f"aw{p}"))
                else:
                    ops.append(("ds", f"ds_write_b128 v{vWr}, {vr(m,4)} offset:{ACT + p*16384}", f"aw{p}"))
        else:
            if p > 3:
                ops.append(f"v_add_u32 v{vOut}, 8192, v{vOut}")
            for x in range(4):
                ops.append(f"v_cvt_pk_bf16_f32 v{A+x}, v{A+2*x}, v{A+2*x+1}")
            ops.append(("vm", f"buffer_store_dwordx4 {vr(A,4)}, v{vOut}, {sr(sOUT,4)}, 0 offen" + ["", " sc1", " nt", " sc0 sc1", " sc1 nt"][opt.get('ost', 0)], "out"))
        return ops

    G = lambda p, s, mt=0: SI[(p, s)] * 4 + mt
    GI = lambda i, mt=0: i * 4 + mt
    first_rd = lambda p: SI[(p, 0)] - PRE
    done = lambda p: SI[(p, 7)] + 1
    streams = []
    def add(name, ops, start=0, dl=10**9, after=None, pri=0):
        streams.append(dict(name=name, ops=list(ops), start=start, dl=dl, after=after or [], done=None, pri=pri))
    lastw = None
    WSP = opt.get('wsp', 4)
    for k in range(NE, 8):
        for j, o in enumerate(w2_ops(k)):
            nm = f"w{k}_{j}"
            add(nm, [o], 1 if k < 4 else G(2, k - 4, 3), GI(SI[(3, k)] - 2, 3), after=[(lastw, WSP)] if lastw else [], pri=-1000)
            lastw = nm
    last = len(steps) - 1
    add("e0", epi_a(0), G(1, 1, 2), G(1, 6, 3))
    add("bias2", [("wl", "aw0")] + bias_ops(2), 0, G(1, 7, 2), after=[("e0", 1)])
    add("e1", epi_a(1), G(2, 1, 0), GI(first_rd(3) - 1, 1))
    add("bar1", [("bar", ["aw0", "aw1"])], 0, GI(first_rd(3) - 1, 3), after=[("e1", 2)])
    add("a2", [f"v_xor_b32 v{vR2[3]}, 192, v{vRB2}"], G(2, 0, 1), GI(first_rd(3) - 1, 3))
    add("bias3", bias_ops(3) + bias_ops(4), G(2, 5, 1), G(2, 7, 1))
    add("bias5", bias_ops(5), G(2, 6, 1), GI(SI[(5, 0)] - 1, 1))
    add("e2", epi_a(2), G(3, 1, 0), GI(first_rd(5) - 1, 1))
    add("bar2", [("bar", ["aw2"])], 0, GI(first_rd(5) - 1, 3), after=[("e2", 2), ("bar1", 0)])
    add("e3", epi_a(3), GI(done(3) + 1, 2), GI(done(3) + 3, 3))
    add("e4", epi_a(4), GI(done(4) + 1, 2), GI(last, 3), after=[("e3", 0)])
    byname = {s_['name']: s_ for s_ in streams}

    def ready(s_, g, force=False):
        if not s_['ops']:
            return False
        if g < s_['start']:
            return False
        for nm, dly in s_['after']:
            d = byname[nm]['done']
            if d is None or (g < d + dly and not force):
                return False
        return True
    def force_finish(s_, g):
        for nm, _ in s_['after']:
            force_finish(byname[nm], g)
        if s_['ops']:
            assert g >= s_['start'], (s_['name'], g)
            while s_['ops']:
                emit(s_['ops'].pop(0))
            s_['done'] = g
    BUD = opt.get('bud', 3)
    for i in range(PRE):
        emit(rd_op(i))
    segs = None
    if bars_hint is not None and opt.get('mprio', 1):
        pts = [0] + [b + 1 for b in bars_hint] + [len(steps)]
        segs = {}
        for x, y in zip(pts[:-1], pts[1:]):
            L = y - x
            for k in range(4):
                segs[x + k * L // 4] = 3 - k
    for i, (p, s) in enumerate(steps):
        cur_q[0] = i
        if segs and i in segs:
            a(f"s_setprio {segs[i]}")
        tags = [f"b_{i}"]
        if s == 0:
            tags.append(f"bias{p}")
        wait(vtag=f"w2_{s}" if p == 3 else None, ltag=tags)
        for mt in range(4):
            g = i * 4 + mt
            if p < 3:
                A = ACP[p] + 4 * mt
                a(f"v_mfma_f32_16x16x32_bf16 {vr(A,4)}, {vr(W+16*s+4*mt,4)}, {vr(fbuf(FI[(i,0)]),4)}, {vr(A,4)}")
            else:
                A = ACP[p] + 4 * (mt % 2)
                a(f"v_mfma_f32_16x16x32_bf16 {vr(A,4)}, {vr(w2reg(s)+4*mt,4)}, {vr(fbuf(FI[(i,mt//2)]),4)}, {vr(A,4)}")
            B_ = opt.get('bud23', 4) if 16 <= i < 32 else BUD
            bud = (B_ + (g % 2)) // 2
            if mt == 3:
                bud = min(bud, opt.get('bud3', 1))
            if mt in (0, 2) and (i + PRE, mt // 2) in FI:
                bud -= emit(rd_op(FI[(i + PRE, mt // 2)]))
            while bud > 0:
                cand = [s_ for s_ in streams if ready(s_, g)]
                if not cand:
                    break
                s_ = min(cand, key=lambda z: z['dl'] - len(z['ops']) + z['pri'])
                bud -= emit(s_['ops'].pop(0))
                if not s_['ops']:
                    s_['done'] = g
            for s_ in streams:
                if s_['ops'] and s_['dl'] <= g:
                    if opt.get('verbose'):
                        print("forced", s_['name'], len(s_['ops']), "ops at", p, s, mt, file=sys.stderr)
                    force_finish(s_, g)
        if p == 2 and s == 7:
            st(6)
    assert all(not s_['ops'] for s_ in streams)
    st(10)
    a("s_nop 6")
    for op in epi_a(5):
        emit(op)
    if opt.get('lst'):
        a("s_waitcnt vmcnt(0)")
        a(("s_memrealtime" if not opt.get('cyc') else "s_memtime") + " s[40:41]")
        srd(a, 76, 100, 0x1000000)
        a("s_lshl_b32 s42, s2, 4")
        a(f"s_add_u32 s42, s42, s{sW}")
        a("s_lshl_b32 s42, s42, 7")
        a(f"s_add_u32 s42, s42, {STAMP_OFF}")
        a("v_mov_b32 v9, s42")
        a("s_waitcnt lgkmcnt(0)")
        a("s_mov_b64 exec, 1")
        for idx, r in list(LST.items()) + [(7, 40)]:
            a(f"v_mov_b32 v14, s{r}")
            a(f"v_mov_b32 v15, s{r+1}")
            a(f"buffer_store_dwordx2 v[14:15], v9, s[76:79], 0 offen offset:{idx*8}")
    if STAMP:
        a("s_waitcnt vmcnt(0)")
        st(7)
    if opt.get('amp') is not None:
        a("s_waitcnt vmcnt(0)")
        st(7)
        a("s_sub_u32 s99, s99, s98")
        a("s_lshl_b32 s99, s99, 3")
        a("s_min_u32 s99, s99, 100000")
        a("s_memrealtime s[96:97]")
        a("s_waitcnt lgkmcnt(0)")
        a("s_mov_b32 s98, s96")
        a.label("AMP_L")
        a("s_sleep 2")
        a("s_memrealtime s[96:97]")
        a("s_waitcnt lgkmcnt(0)")
        a("s_sub_u32 s96, s96, s98")
        a("s_cmp_lt_u32 s96, s99")
        a("s_cbranch_scc1 AMP_L")
    a("s_endpgm")

    a.label("AUX")
    aux[0] = True
    vm.clear(); lg.clear()
    a("s_memrealtime s[96:97]")
    a(f"s_and_b32 s{sA}, s2, 7")
    a(f"s_mul_i32 s{sPI}, s{sA}, 5000")
    a(f"s_lshr_b32 s{sB}, s2, 3")
    a("s_waitcnt lgkmcnt(0)")
    if opt.get('stouch', 0):
        a("s_load_dword s40, s[78:79], 0")
        a("s_load_dword s41, s[100:101], 0xffffc")
        a("s_load_dword s42, s[6:7], 0xfc")
    srd(a, sDST, 80, E * 4)
    srd(a, sSRC, 78, E * 4)
    srd(a, sX, 76, N * 512)

    def xpf(first, stride, n, vd):
        for r in range(n):
            a(f"v_add_u32 v{vT0}, {first + r*stride}, v{vSeq}")
            a(f"v_subrev_u32 v{vT1}, 40000, v{vT0}")
            a(f"v_min_u32 v{vT0}, v{vT0}, v{vT1}")
            a(f"v_lshlrev_b32 v{vT0}, 7, v{vT0}")
            a(f"buffer_load_dword v{vd+r}, v{vT0}, {sr(sX,4)}, 0 offen")

    a(f"s_cmp_lt_u32 s2, {NPROD}")
    a("s_cbranch_scc1 PROD")
    stamp_setup()
    st(0)
    a(f"s_sub_u32 s{sB}, s{sB}, 4")
    a(f"s_lshl_b32 s{sB}, s{sB}, 9")
    a(f"s_add_u32 s{sPI}, s{sPI}, s{sB}")
    a(f"v_add_u32 v{vSeq}, s{sPI}, v0")
    a(f"s_sub_u32 s{sId}, s2, {NPROD}")
    a(f"s_cmp_lt_u32 s{sId}, {NW2H}")
    a("s_cbranch_scc0 H_PF")
    srd(a, sW2, 88, 256 * 1024)
    srd(a, sDBG, 6, 256)
    srd(a, sWS, 100, WS_BYTES)
    a(f"s_lshl_b32 s{sWB}, s{sW}, 12")
    w2_addr(sW, vS2, [(vTB, sWB)])
    a(f"s_lshl_b32 s{sA}, s{sId}, 15")
    for i in range(4):
        a(f"s_add_u32 m0, s{sWB}, {i*1024}")
        a(f"s_add_u32 s45, s{sA}, {i*8192}")
        a(f"buffer_load_dwordx4 v{vS2}, {sr(sW2,4)}, s45 offen lds")
    a(f"s_lshl_b32 s{sA}, s{sW}, 15")
    a(f"s_lshl_b32 s45, s{sId}, 12")
    a(f"s_add_u32 s{sA}, s{sA}, s45")
    a(f"s_add_u32 s{sA}, s{sA}, {W2F}")
    a(f"v_lshl_add_u32 v{vOff}, v{vLane}, 4, s{sA}")
    a("s_waitcnt vmcnt(0)")
    for op in tr_w2_ops(64, vTB, 0, "h", None):
        a(op[1])
    a("s_waitcnt lgkmcnt(0)")
    for mt in range(4):
        a(f"buffer_store_dwordx4 {vr(64+4*mt,4)}, v{vOff}, {sr(sWS,4)}, 0 offen offset:{mt*1024} sc1")
    a("s_waitcnt vmcnt(0)")
    a("s_barrier")
    a(f"s_cmp_eq_u32 s{sW}, 0")
    a("s_cbranch_scc0 H_PF")
    a(f"s_lshl_b32 s{sA}, s{sId}, 2")
    a(f"v_mov_b32 v{vT1}, s{sA}")
    a(f"v_mov_b32 v{vT0}, 1")
    a("s_mov_b64 exec, 1")
    a(f"buffer_store_dword v{vT0}, v{vT1}, {sr(sDBG,4)}, 0 offen offset:128 sc1")
    a("s_mov_b64 exec, -1")
    st(12)
    a.label("H_PF")
    xpf(0, 1024, NH, 16)
    if STAMP:
        a("s_waitcnt vmcnt(0)")
        st(13)
    a("s_endpgm")
    a.label("PROD")
    a(f"s_mul_i32 s{sA}, s2, {CH*4}")
    for r in range(3):
        if r == 2:
            a(f"s_cmp_lt_u32 s{sW}, 4")
            a("s_cbranch_scc0 P_E2")
        a(f"buffer_load_dwordx4 {vr(16+8*r,4)}, v{vT16}, {sr(sDST,4)}, s{sA} offen")
        a(f"buffer_load_dwordx4 {vr(20+8*r,4)}, v{vT16}, {sr(sSRC,4)}, s{sA} offen")
        if r < 2:
            a(f"s_add_u32 s{sA}, s{sA}, 8192")
    a.label("P_E2")
    srd(a, sDBG, 6, 256)
    srd(a, sWS, 100, CELLS_BYTES)
    a("v_lshrrev_b32 v46, 3, v0")
    a("v_and_b32 v47, 7, v0")
    a("v_lshlrev_b32 v50, 13, v46")
    a("v_lshl_or_b32 v50, v47, 4, v50")
    a(f"s_lshl_b32 s4, s2, 7")
    a(f"v_add_u32 v50, s4, v50")
    if opt.get('vtouch', 0):
        srd(a, sW1, 100, WS_BYTES)
        a(f"s_cmp_eq_u32 s{sW}, 6")
        a("s_cbranch_scc0 P_VT")
        a(f"v_mov_b32 v{vT0}, 0x1f0000")
        a(f"buffer_load_dword v60, v{vT0}, {sr(sW1,4)}, 0 offen")
        a.label("P_VT")
    vm.issue("edges")
    a(f"s_lshr_b32 s{sNode}, s96, 8")
    a(f"s_or_b32 s{sNode}, s{sNode}, 1")
    a(f"v_mov_b32 v51, {NONCE}")
    a(f"s_cmp_eq_u32 s{sW}, 7")
    a("s_cbranch_scc0 P_N1")
    a(f"v_mov_b32 v{vT0}, s{sNode}")
    a(f"s_lshl_b32 s4, s2, 2")
    a(f"v_mov_b32 v{vT1}, s4")
    a("s_mov_b64 exec, 1")
    a(f"buffer_store_dword v{vT0}, v{vT1}, {sr(sDBG,4)}, 0 offen sc1")
    a(f"ds_write_b32 v51, v{vT0}")
    a("s_mov_b64 exec, -1")
    a.label("P_N1")
    stamp_setup()
    st(0)
    a(f"v_mov_b32 v40, {EMPTY}")
    a("v_mov_b32 v41, v40")
    a("v_mov_b32 v42, v40")
    a("v_mov_b32 v43, v40")
    a(f"s_movk_i32 s4, {CST}")
    a(f"v_mov_b32 v55, {IMG}")
    a("v_mad_u32_u24 v56, v46, s4, v55")
    a("v_lshl_add_u32 v48, v47, 4, v56")
    a(f"v_add_u32 v49, {128*CST}, v48")
    def cp(i):
        return (48 + i // 2, (i % 2) * 64 * CST)
    for i in range(4):
        r, o = cp(i)
        a(f"ds_write_b128 v{r}, v[40:43] offset:{o}")
        a(f"ds_write_b128 v{r}, v[40:43] offset:{o + 128}")
    a(f"v_and_b32 v{vT0}, 255, v0")
    a(f"v_mad_u32_u24 v{vT1}, v{vT0}, s4, v55")
    a(f"v_lshlrev_b32 v{vT0}, 2, v{vT0}")
    a(f"ds_write_b32 v{vT0}, v{vT1} offset:{PCNT}")
    a("v_mov_b32 v44, 4")
    a(f"s_mov_b32 s{sT}, {-(48 << 14) & 0xffffffff}")
    a("v_lshlrev_b32 v45, 2, v46")
    a(f"v_mov_b32 v52, {MARK}")
    a(f"s_mov_b32 s{sA}, 43691")
    a(f"s_lshl_b32 s{sB}, s{sB}, 9")
    a(f"s_add_u32 s{sPI}, s{sPI}, s{sB}")
    a(f"v_add_u32 v{vSeq}, s{sPI}, v0")
    for i in range(4):
        a(f"v_add_u32 v{72+i}, {i*64*8192}, v50")
        a(f"v_add_u32 v{76+i}, {i*64*CST + 128}, v56")
    a(f"v_lshlrev_b32 v{vT0}, 2, v{vLane}")
    a(f"v_mad_u32_u24 v80, v{vT0}, s4, v55")
    a("v_add_u32 v80, 512, v80")
    a(f"v_lshlrev_b32 v84, 4, v{vLane}")
    a("s_waitcnt lgkmcnt(0)")
    a("s_barrier")
    a("ds_read_b32 v53, v51")
    a("s_waitcnt lgkmcnt(0)")
    a("v_lshlrev_b32 v53, 8, v53")
    n_ = vm.need("edges")
    a(f"s_cmp_eq_u32 s{sW}, 7")
    a("s_cbranch_scc1 P_W7")
    a(f"s_waitcnt vmcnt({n_})")
    a.label("P_W7")
    a(f"s_waitcnt vmcnt({n_ + 1})")
    st(14)
    def bin_a(r):
        vd, vs, vb, va = 16 + 8 * r, 20 + 8 * r, 192 + 4 * r, 204 + 4 * r
        for k in range(4):
            a(f"v_mul_u32_u24 v{vb+k}, s{sA}, v{vd+k}")
            a(f"v_lshrrev_b32 v{vb+k}, 21, v{vb+k}")
            a(f"v_lshlrev_b32 v{va+k}, 2, v{vb+k}")
            a(f"ds_add_rtn_u32 v{va+k}, v{va+k}, v44 offset:{PCNT}")
    def bin_a2(r):
        vd, vs, vb, va = 16 + 8 * r, 20 + 8 * r, 192 + 4 * r, 204 + 4 * r
        for k in range(4):
            a(f"v_lshl_or_b32 v{vs+k}, v{vd+k}, 14, v{vs+k}")
            a(f"v_mad_i32_i24 v{vs+k}, v{vb+k}, s{sT}, v{vs+k}")
    def bin_b(r):
        vd, vs, vb, va = 16 + 8 * r, 20 + 8 * r, 192 + 4 * r, 204 + 4 * r
        for k in range(4):
            a(f"ds_write_b32 v{va+k}, v{vs+k}")
    bin_a(0)
    bin_a(1)
    a(f"s_cmp_lt_u32 s{sW}, 4")
    a("s_cbranch_scc0 P_R2")
    a(f"v_cmp_gt_u32 vcc, {CH//4 - 1024}, v0")
    a("s_and_saveexec_b64 s[4:5], vcc")
    bin_a(2)
    bin_a2(2)
    a("s_waitcnt lgkmcnt(0)")
    bin_b(2)
    a("s_mov_b64 exec, s[4:5]")
    a.label("P_R2")
    bin_a2(0)
    bin_a2(1)
    a("s_waitcnt lgkmcnt(0)")
    bin_b(0)
    bin_b(1)
    a("s_waitcnt lgkmcnt(0)")
    a("s_barrier")
    st(15)
    a(f"ds_read_b128 v[88:91], v84 offset:{PCNT}")
    lg.issue("all")
    for i in range(4):
        r, o = cp(i)
        a(f"ds_read_b128 {vr(128+4*i,4)}, v{r} offset:{o}")
        lg.issue(f"c{i}")
    for i in range(4):
        r, o = cp(i)
        a(f"ds_read_b32 v{64+i}, v45 offset:{PCNT + i*256}")
        lg.issue(f"n{i}")
        a(f"ds_read_b128 {vr(144+4*i,4)}, v{r} offset:{o + 128}")
        lg.issue(f"d{i}")
    def pack(d):
        a(f"v_lshl_or_b32 v{d}, v{d+1}, 20, v{d}")
        a(f"v_lshrrev_b32 v{d+1}, 12, v{d+1}")
        a(f"v_or_b32 v{d+1}, v53, v{d+1}")
        a(f"v_lshl_or_b32 v{d+2}, v{d+3}, 20, v{d+2}")
        a(f"v_lshrrev_b32 v{d+3}, 12, v{d+3}")
        a(f"v_or_b32 v{d+3}, v53, v{d+3}")
    wait(ltag="all")
    for k in range(1, 4):
        a(f"v_subrev_u32 v{88+k}, {k*CST}, v{88+k}")
    a("v_max3_u32 v88, v88, v89, v90")
    a("v_max_u32 v88, v88, v91")
    a("v_cmp_gt_u32 vcc, v88, v80")
    a("s_cmp_lg_u64 vcc, 0")
    a("s_cbranch_scc1 P_OVF")
    a.label("P_OVR")
    for i in range(4):
        wait(ltag=f"c{i}")
        pack(128 + 4 * i)
        a(f"buffer_store_dwordx4 {vr(128+4*i,4)}, v{72+i}, {sr(sWS,4)}, 0 offen sc1")
    a("s_movk_i32 s6, 0x1000")
    for i in range(4):
        d = 144 + 4 * i
        wait(ltag=f"d{i}")
        a(f"v_cmp_le_u32 vcc, v{76+i}, v{64+i}")
        a("s_and_b64 exec, exec, vcc")
        a(f"s_cbranch_scc0 P_SK{i}")
        a(f"v_add_u32 v{76+i}, 128, v{76+i}")
        a(f"v_cmp_lt_u32 vcc, v{76+i}, v{64+i}")
        a("s_nop 1")
        a(f"v_cndmask_b32 v{d}, v{d}, v52, vcc")
        pack(d)
        a(f"buffer_store_dwordx4 {vr(d,4)}, v{72+i}, {sr(sWS,4)}, s6 offen sc1")
        a.label(f"P_SK{i}")
        a("s_mov_b64 exec, -1")
    if STAMP:
        st(1)
        a("s_waitcnt vmcnt(0)")
        st(2)
    a("s_barrier")
    if opt.get('ftouch', 1):
        srd(a, sW1, 100, WS_BYTES)
        a(f"v_and_b32 v{vT0}, {NW2H-1}, v{vLane}")
        a(f"v_lshlrev_b32 v{vT0}, 2, v{vT0}")
        a(f"buffer_load_dword v{vT1}, v{vT0}, {sr(sDBG,4)}, 0 offen offset:128 sc1")
        a(f"s_lshr_b32 s4, s2, 3")
        a("s_lshl_b32 s4, s4, 16")
        a(f"s_add_u32 s4, s4, {W2F}")
        a(f"v_lshlrev_b32 v{vT0}, 7, v0")
        a("s_waitcnt vmcnt(0)")
        a(f"v_cmp_eq_u32 vcc, 0, v{vT1}")
        a("s_cmp_lg_u64 vcc, 0")
        a("s_cbranch_scc1 P_NT")
        a(f"buffer_load_dword v60, v{vT0}, {sr(sW1,4)}, s4 offen sc1")
        a.label("P_NT")
    xpf(NH * 1024, 2048, NP, 16)
    if STAMP:
        a("s_waitcnt vmcnt(0)")
        st(13)
    a("s_endpgm")
    a.label("P_OVF")
    a("s_waitcnt lgkmcnt(0)")
    for i in range(4):
        a(f"v_mov_b32 v{128+4*i}, v52")
        a(f"v_mov_b32 v{64+i}, -1")
    a("s_branch P_OVR")
    a.label("M_END")
    a("s_endpgm")
    return LDS_TOTAL, bars


def build(opt):
    name = "gather_scatter__isomorphism_gin_2__graph_kernel"
    _, bars = gen_main(Asm(), dict(opt, verbose=0), name)
    b = Asm()
    lds, bars2 = gen_main(b, opt, name, bars)
    assert bars == bars2
    a = Asm()
    a.raw(HEADER.rstrip())
    a.raw(f"; @launch grid=(256,1,1) block=(512,1,1) lds={lds}")
    a.raw('.amdgcn_target "amdgcn-amd-amdhsa--gfx950"')
    a.raw(".text")
    a.l += b.l
    a.raw('.section .rodata,"a"')
    a.raw(kd(name, 256, 102))
    return a.text()

if __name__ == "__main__":
    out = sys.argv[1]
    opt = {}
    for kv in sys.argv[2:]:
        k, v = kv.split("=")
        opt[k] = int(v)
    open(out, "w").write(build(opt))
```

```python
import sys
from gen2 import Asm, Ctr, vr, sr, srd, kd, HEADER

N = 10000
E = 160000
BN = 48
NBLK = 209
NPROD = 32
NHELP = 15
C0 = NPROD + NHELP
CH = E // NPROD
CELLS_BYTES = NBLK * 8192
W2F = 0x200000
WS_BYTES = W2F + 0x40000
STAMP_OFF = 0x400000
EMPTY = 63 << 14
MARK = 62 << 14
NW2H = 8
NPW = 6


def gen_main(a, opt, name, bars_hint=None):
    D = opt.get('depth', 8)
    NH = opt.get('nh', 8)
    NP = opt.get('np', 4)
    STAMP = opt.get('stamp')
    assert D <= 8
    HH = 0
    ACT = 24576
    WST = 73728
    LIST = 65536
    CNT = LIST + 6144
    FLAG = CNT + 56 * 4
    BIAS = WST + 65536
    LDS_TOTAL = BIAS + 3072
    IMG = 2048
    PCNT = 0
    NONCE = 1024
    CST = 528
    vLane, vC16, vSh, vSeq, vT0, vT1, vOff, vFl = 1, 2, 3, 4, 5, 6, 7, 8
    vAcc = 10
    RING = 16
    vA1, vAS = 48, 52
    vS2, vT16, vLB, vTB = 56, 57, 58, 63
    W2R = 64
    vSF, vAH = 112, 124
    W = 128
    vS1 = 16
    vTR = 20
    vTR2 = 29
    vBI = 44
    sX, sWS, sOUT, sSRC, sDST, sB1, sB2, sW1, sW2, sDBG = 8, 12, 16, 20, 24, 28, 32, 64, 68, 72
    sW, sWB, sA, sB = 36, 37, 38, 39
    sLB, sRot, sWL, sV = 46, 47, 48, 49
    sPC, sPI, sT, sXor, sNode, sId = 50, 51, 52, 53, 54, 55
    sMask = 56
    sM = 76
    sST = 92

    vm = Ctr(63)
    lg = Ctr(15)
    aux = [False]

    LST = {0: 98, 1: 96, 2: 94, 3: 92, 4: 90, 5: 88, 6: 86, 10: 84}
    def st(idx):
        if opt.get('lst') and not aux[0]:
            if idx in LST:
                a(("s_memrealtime" if not opt.get('cyc') else "s_memtime") + f" {sr(LST[idx],2)}")
            return
        amp = opt.get('amp')
        pamp = opt.get('pamp')
        if pamp is not None and aux[0] and (idx == 0 or idx == pamp):
            a("s_memrealtime s[94:95]")
            a("s_waitcnt lgkmcnt(0)")
            lg.clear()
            a(f"s_mov_b32 s{98 if idx == 0 else 99}, s94")
        if amp is not None and not aux[0]:
            if idx == 0 or idx == amp:
                a("s_memrealtime s[96:97]")
                a("s_waitcnt lgkmcnt(0)")
                lg.clear()
                a(f"s_mov_b32 s{98 if idx == 0 else 99}, s96")
                if amp == 30:
                    a("s_mov_b32 s99, s96")
                    a("s_mov_b32 s98, s94")
            if idx == 2 and amp in (20, 21):
                for i in range(4):
                    a(f"v_readlane_b32 s{92+i}, v40, {16*i}")
                a("s_nop 3")
                op = "s_min_u32" if amp == 20 else "s_max_u32"
                a(f"{op} s92, s92, s93")
                a(f"{op} s94, s94, s95")
                a(f"{op} s92, s92, s94")
                if amp == 20:
                    a("s_mov_b32 s99, s98")
                    a("s_min_u32 s98, s92, s98")
                else:
                    a("s_max_u32 s99, s92, s98")
        if STAMP and (opt.get('stmask', 0xffff) >> idx) & 1:
            a("s_memrealtime s[96:97]" if not opt.get('cyc') else "s_memtime s[96:97]")
            a("s_waitcnt lgkmcnt(0)")
            lg.clear()
            a("v_mov_b32 v14, s96")
            a("v_mov_b32 v15, s97")
            a("s_mov_b64 s[98:99], exec")
            a("s_mov_b64 exec, 1")
            a(f"buffer_store_dwordx2 v[14:15], v9, {sr(sST,4)}, 0 offen offset:{idx*8}")
            vm.issue('st')
            a("s_mov_b64 exec, s[98:99]")

    def wait(vtag=None, ltag=None):
        p = []
        if vtag is not None:
            n = vm.need(vtag)
            if n is not None:
                p.append(f"vmcnt({n})")
        if ltag is not None:
            tags = ltag if isinstance(ltag, (list, tuple)) else [ltag]
            ns = [lg.need(t) for t in tags]
            ns = [n for n in ns if n is not None]
            if ns:
                p.append(f"lgkmcnt({min(ns)})")
        if p:
            a("s_waitcnt " + " ".join(p))
            return True
        return False

    def stamp_setup():
        if STAMP:
            srd(a, sST, 100, 0x1000000)
            a("s_lshl_b32 s96, s2, 4")
            a(f"s_add_u32 s96, s96, s{sW}")
            a("s_lshl_b32 s96, s96, 7")
            a(f"s_add_u32 s96, s96, {STAMP_OFF}")
            a("v_mov_b32 v9, s96")

    a.raw(f".globl {name}")
    a.raw(".p2align 8")
    a.raw(f".type {name},@function")
    a.label(name)
    if opt.get('amp') == 30:
        a("s_memrealtime s[94:95]")
    a("s_cmp_ge_u32 s2, 256")
    a("s_cbranch_scc1 M_END")
    a("s_load_dwordx16 s[76:91], s[0:1], 0")
    a("s_load_dwordx4 s[4:7], s[0:1], 64")
    a("s_load_dwordx2 s[100:101], s[0:1], 80")
    a(f"v_and_b32 v{vLane}, 63, v0")
    a(f"v_lshrrev_b32 v{vT0}, 6, v0")
    a(f"v_lshlrev_b32 v{vT16}, 4, v0")
    a(f"v_readfirstlane_b32 s{sW}, v{vT0}")
    a(f"s_cmp_lt_u32 s2, {C0}")
    a("s_cbranch_scc1 AUX")

    a(f"s_sub_u32 s3, s2, {C0}")
    a(f"s_lshl_b32 s{sLB}, s3, 13")
    a(f"s_mul_i32 s3, s3, {BN}")
    a(f"v_mov_b32 v{vLB}, {LIST}")
    a("v_cmp_gt_u32 vcc, 384, v0")
    a(f"v_add_u32 v{vOff}, v{vLB}, v{vT16}")
    a("s_nop 0")
    a("v_cndmask_b32 v36, 0, -1, vcc")
    a("v_mov_b32 v37, v36")
    a("v_mov_b32 v38, v36")
    a("v_mov_b32 v39, v36")
    a(f"ds_write_b128 v{vOff}, v[36:39]")
    a(f"s_lshr_b32 s{sRot}, s2, 3")
    a(f"s_and_b32 s{sRot}, s{sRot}, 7")
    a(f"s_lshr_b32 s{sV}, s2, 4")
    a(f"s_and_b32 s{sV}, s{sV}, 4")
    a(f"s_and_b32 s{sA}, s{sRot}, 3")
    a(f"s_or_b32 s{sV}, s{sV}, s{sA}")
    a(f"s_xor_b32 s{sV}, s{sW}, s{sV}")
    a(f"v_bfe_u32 v{vT0}, v{vLane}, 1, 2")
    a(f"v_bfe_u32 v{vT1}, v{vLane}, 4, 1")
    a(f"v_xor_b32 v{vT0}, v{vT0}, v{vT1}")
    a(f"v_lshrrev_b32 v{vT1}, 3, v{vLane}")
    a(f"v_lshlrev_b32 v{vT1}, 10, v{vT1}")
    a(f"v_and_b32 v{vOff}, 1, v{vLane}")
    a(f"v_lshl_or_b32 v{vT1}, v{vOff}, 4, v{vT1}")
    a(f"s_lshl_b32 s{sA}, s{sV}, 7")
    a(f"v_or_b32 v{vT1}, s{sA}, v{vT1}")
    a(f"v_lshl_or_b32 v{vS1}, v{vT0}, 5, v{vT1}")
    a(f"v_xor_b32 v{vS1+1}, 64, v{vS1}")
    a(f"s_lshl_b32 s{sWL}, s{sW}, 13")
    a(f"s_add_u32 s{sWB}, s{sWL}, {WST}")
    a(f"s_lshl_b32 s{sB}, s{sRot}, 15")
    a("s_waitcnt lgkmcnt(0)")
    srd(a, sW1, 84, 256 * 1024)
    a("s_barrier")

    def slot_base(sl):
        return (sWB if sl < 2 else sWL), (sl % 2) * 4096

    def dma_unit(u):
        sb, off = slot_base(u % 4)
        for i in range(4):
            a(f"s_add_u32 m0, s{sb}, {off + i * 1024}")
            if u < 8:
                a(f"s_xor_b32 s{sA}, s{sB}, {(u * 32 + i * 8) * 1024}")
                a(f"buffer_load_dwordx4 v{vS1 + i % 2}, {sr(sW1,4)}, s{sA} offen lds")
            else:
                a(f"s_mov_b32 s{sA}, {((u - 8) * 64 + i * 16) * 512}")
                a(f"buffer_load_dwordx4 v{vN2}, {sr(sW2,4)}, s{sA} offen lds")
            vm.issue(f"u{u}")

    NR = opt.get('nr', 2)
    NU = 8 + NR
    vN2 = 28
    NBUB = opt.get('nb', 2)
    NINF = opt.get('ninf', 3)
    PPRIO = opt.get('pprio', 1)
    stamp_setup()
    st(0)
    if opt.get('dly_c'):
        a(f"s_sleep {opt['dly_c']}")
    if PPRIO:
        a("s_setprio 3")
    dma_unit(0)
    if PPRIO:
        a("s_setprio 2")
    a("s_load_dword s45, s[82:83], 0")
    SPF = opt.get('spf', 0)
    if SPF:
        a("s_and_b32 s40, s2, 7")
        a("s_mul_i32 s40, s40, 5000")
        a("s_lshr_b32 s41, s2, 3")
        a("s_lshl_b32 s41, s41, 3")
        a(f"s_add_u32 s41, s41, s{sW}")
        a(f"s_mul_i32 s41, s41, {SPF}")
        a("s_add_u32 s40, s40, s41")
        a(f"s_add_u32 s40, s40, {NH * 1024 + NP * 2048 - 40 * SPF}")
        a(f"s_sub_u32 s41, s40, {40000 - SPF}")
        a("s_min_u32 s40, s40, s41")
        a("s_lshl_b32 s40, s40, 7")
        a("s_add_u32 s40, s76, s40")
        a("s_addc_u32 s41, s77, 0")
        for r in range(SPF):
            a(f"s_load_dword s42, s[40:41], {128 * r}")
    for u in range(1, NINF):
        dma_unit(u)
    srd(a, sB1, 86, 1024)
    srd(a, sB2, 90, 512)
    a(f"v_lshlrev_b32 v{vC16}, 4, v{vLane}")
    a(f"s_cmp_eq_u32 s{sW}, 2")
    a("s_cbranch_scc0 C_SL2")
    a(f"buffer_load_dwordx4 {vr(vBI,4)}, v{vC16}, {sr(sB1,4)}, 0 offen")
    a.label("C_SL2")
    a(f"s_cmp_eq_u32 s{sW}, 3")
    a("s_cbranch_scc0 C_SL3")
    a(f"buffer_load_dwordx4 {vr(vBI,4)}, v{vC16}, {sr(sB2,4)}, 0 offen")
    a.label("C_SL3")
    a(f"v_lshrrev_b32 v{vT0}, 4, v{vLane}")
    a(f"v_lshlrev_b32 v{vT0}, 10, v{vT0}")
    a(f"v_bfe_u32 v{vT1}, v{vLane}, 2, 2")
    a(f"v_lshl_or_b32 v{vT0}, v{vT1}, 7, v{vT0}")
    a(f"v_and_b32 v{vT1}, 3, v{vLane}")
    a(f"v_lshl_or_b32 v{vT0}, v{vT1}, 3, v{vT0}")
    a(f"v_bfe_u32 v{vT1}, v{vLane}, 3, 2")
    for mt in range(4):
        a(f"v_xor_b32 v{vOff}, {mt}, v{vT1}")
        a(f"v_lshl_add_u32 v{vOff}, v{vOff}, 5, v{vT0}")
        a(f"v_add_u32 v{vTR+mt}, s{sWB}, v{vOff}")
        a(f"v_add_u32 v{vTR+4+mt}, s{sWL}, v{vOff}")

    def w2_addr(sLW, vsrc, vtb_list):
        a(f"v_lshrrev_b32 v{vT0}, 2, v{vLane}")
        a(f"v_lshlrev_b32 v{vT0}, 9, v{vT0}")
        a(f"v_and_b32 v{vT1}, 3, v{vLane}")
        a(f"v_lshl_or_b32 v{vT0}, v{vT1}, 4, v{vT0}")
        a(f"s_lshl_b32 s{sA}, s{sLW}, 6")
        a(f"v_or_b32 v{vsrc}, s{sA}, v{vT0}")
        for (v, sb) in vtb_list:
            a(f"v_lshl_add_u32 v{v}, v{vLane}, 4, s{sb}")

    def setup_a():
        a(f"s_lshl_b32 s{sA}, s{sV}, 15")
        a(f"s_add_u32 s{sA}, s{sA}, {W2F}")
        a(f"v_lshl_add_u32 v{vS2}, v{vLane}, 4, s{sA}")
        if NR:
            srd(a, sW2, 88, 256 * 1024)
            w2_addr(sV, vN2, [(vTB, sWB), (vTR2, sWL)])

    def setup_b():
        srd(a, sX, 76, N * 512)
        srd(a, sDBG, 6, 256)
        srd(a, sWS, 100, WS_BYTES)
        if opt.get('ctouch', 0):
            a(f"s_cmp_eq_u32 s{sW}, 0")
            a("s_cbranch_scc0 C_CT")
            a(f"v_mov_b32 v{vT0}, 0x1f0000")
            a(f"v_lshlrev_b32 v{vT1}, 20, v{vLane}")
            a("s_mov_b64 exec, 31")
            a(f"buffer_load_dword v31, v{vT0}, {sr(sWS,4)}, 0 offen")
            a(f"buffer_load_dword v30, v{vT1}, {sr(sX,4)}, 0 offen")
            a("s_mov_b64 exec, -1")
            a.label("C_CT")
        srd(a, sOUT, 4, N * 512)
        srd(a, sDST, 80, E * 4)
        srd(a, sSRC, 78, E * 4)

    def setup_c():
        a(f"v_lshrrev_b32 v{vT0}, 4, v{vLane}")
        a(f"v_lshrrev_b32 v{vT1}, 3, v{vLane}")
        a(f"v_xor_b32 v{vT0}, v{vT0}, v{vT1}")
        a(f"v_and_b32 v{vT0}, 1, v{vT0}")
        a(f"v_bfe_u32 v{vT1}, v{vLane}, 1, 2")
        a(f"v_lshl_or_b32 v{vT0}, v{vT0}, 2, v{vT1}")
        a(f"v_and_b32 v{vT1}, 1, v{vLane}")
        a(f"v_lshlrev_b32 v{vT1}, 4, v{vT1}")
        a("s_lshl_b32 s45, s45, 16")
        a("v_mov_b32 v40, s45")
        a("v_add_f32 v40, 1.0, v40")
        a("v_cvt_pk_bf16_f32 v40, v40, v40")
        a("v_and_b32 v40, 0xffff, v40")
        a("v_mov_b32 v41, 0x3f80")
        a(f"v_lshlrev_b32 v40, v{vT1}, v40")
        a(f"v_lshlrev_b32 v41, v{vT1}, v41")
        a(f"v_cmp_gt_u32 vcc, 32, v{vLane}")
        a("s_nop 1")
        a("v_cndmask_b32 v42, v40, 0, vcc")
        a("v_cndmask_b32 v40, 0, v40, vcc")
        for p in range(4):
            a(f"v_cmp_eq_u32 vcc, {p}, v{vT0}")
            a("s_nop 1")
            a(f"v_cndmask_b32 v{vA1+p}, 0, v41, vcc")
            a(f"v_cndmask_b32 v{vAS+p}, 0, v40, vcc")
            a(f"v_cndmask_b32 v{vAH+p}, 0, v42, vcc")

    def setup_d():
        a(f"v_lshrrev_b32 v{vSh}, 5, v{vLane}")
        a(f"v_lshlrev_b32 v{vSh}, 4, v{vSh}")
        a(f"v_and_b32 v{vT0}, 15, v{vLane}")
        a(f"v_lshlrev_b32 v{vFl}, 4, v{vT0}")
        a(f"v_lshl_or_b32 v{vFl}, v{vSh}, 4, v{vFl}")
        a(f"v_bfe_u32 v{vT0}, v{vLane}, 4, 1")
        a(f"v_lshl_or_b32 v{vFl}, v{vT0}, 3, v{vFl}")
        a(f"v_and_b32 v{vC16}, 31, v{vLane}")
        a(f"v_lshlrev_b32 v{vC16}, 4, v{vC16}")
        a(f"v_bfe_u32 v42, v{vLane}, 3, 2")
        a(f"s_lshl_b32 s{sA}, s{sW}, 4")
        a(f"v_lshl_add_u32 v42, v42, 2, s{sA}")
        a(f"v_and_b32 v43, {NW2H-1}, v{vLane}")
        a("v_lshlrev_b32 v43, 2, v43")
        a(f"s_lshl_b32 s{sA}, s{sW}, 9")
        a(f"v_lshl_add_u32 v41, v{vSh}, 8, v{vC16}")
        a(f"v_add_u32 v41, s{sA}, v41")
        a(f"s_mov_b32 s{sPC}, 0")
        a(f"s_mov_b32 s{sT}, {EMPTY}")
        a(f"v_lshrrev_b32 v{vT0}, 1, v{vLane}")
        a(f"v_lshlrev_b32 v{vT0}, 4, v{vT0}")
        a(f"v_and_b32 v{vT1}, 1, v{vLane}")
        a(f"v_or_b32 v{vT0}, v{vT0}, v{vT1}")
        a(f"s_lshl_b32 s{sNode}, s{sW}, 1")
        a(f"v_add_u32 v{vT0}, s{sNode}, v{vT0}")
        a(f"v_cmp_gt_u32 vcc, 6, v{vLane}")
        a(f"v_mov_b32 v{vT1}, 56")
        a("v_mov_b32 v62, 64")
        a(f"v_cndmask_b32 v{vT0}, v{vT1}, v{vT0}, vcc")
        a(f"v_lshl_add_u32 v61, v{vT0}, 2, v{vLB}")
        a(f"s_lshl_b32 s{sA}, s{sW}, 8")
        a(f"v_lshl_add_u32 v{vT1}, v{vLane}, 2, v{vLB}")
        a(f"v_add_u32 v60, s{sA}, v{vT1}")
        a("v_cndmask_b32 v62, 0, v62, vcc")
        set_xor()

    def set_xor():
        a(f"s_lshl_b32 s{sXor}, s{sNode}, 9")
        a(f"s_and_b32 s44, s{sNode}, 15")
        a("s_lshl_b32 s44, s44, 4")
        a(f"s_or_b32 s{sXor}, s{sXor}, s44")

    def cpf(r0, n):
        tot = opt.get('cpf', 0) + opt.get('cpf2', 0)
        a("s_and_b32 s4, s2, 7")
        a("s_mul_i32 s4, s4, 5000")
        a("s_lshr_b32 s5, s2, 3")
        a(f"s_mul_i32 s5, s5, {512 * tot}")
        a("s_add_u32 s4, s4, s5")
        for r in range(r0, r0 + n):
            a(f"s_add_u32 s5, s4, {NH * 1024 + NP * 2048 - 5 * 512 * tot + 512 * r}")
            a(f"v_add_u32 v{vT0}, s5, v0")
            a(f"v_subrev_u32 v{vT1}, 40000, v{vT0}")
            a(f"v_min_u32 v{vT0}, v{vT0}, v{vT1}")
            a(f"v_lshlrev_b32 v{vT0}, 7, v{vT0}")
            a(f"buffer_load_dword v{44+r}, v{vT0}, {sr(sX,4)}, 0 offen")
            vm.issue("cpf")

    def bias_to_lds():
        a(f"s_sub_u32 s{sA}, s{sW}, 2")
        a(f"s_cmp_lt_u32 s{sA}, 2")
        a("s_cbranch_scc0 C_NB")
        for x in range(4):
            a(f"v_lshlrev_b32 v{32+2*x}, 16, v{vBI+x}")
            a(f"v_and_b32 v{33+2*x}, 0xffff0000, v{vBI+x}")
        a(f"s_lshl_b32 s{sA}, s{sA}, 11")
        a(f"s_add_u32 s{sA}, s{sA}, {BIAS}")
        a(f"v_lshl_add_u32 v{vOff}, v{vLane}, 5, s{sA}")
        a(f"s_cmp_eq_u32 s{sW}, 3")
        a("s_cbranch_scc0 C_NB2")
        a("s_mov_b64 exec, 0xffffffff")
        a.label("C_NB2")
        a(f"ds_write_b128 v{vOff}, v[32:35]")
        a(f"ds_write_b128 v{vOff}, v[36:39] offset:16")
        a("s_mov_b64 exec, -1")
        a("s_waitcnt lgkmcnt(0)")
        a.label("C_NB")

    def tr_w2_ops(dst, vbase, off, tag, scr):
        ops = []
        for kk in range(2):
            for t in range(2):
                for hf in range(2):
                    ops.append(("ds", f"ds_read_b64_tr_b16 {vr(dst+8*kk+4*t+2*hf,2)}, v{vbase} offset:{off + kk*2048 + hf*1024 + 8*t}", tag))
        return ops

    def w2reg(k):
        return W2R + 16 * k if k < 4 else W + 16 * (k - 4)

    def w2_ops(k):
        ops = []
        for mt in range(4):
            ops.append(("vm2", [f"s_mov_b32 s{sA}, {k * 4096}"] if mt == 0 else [],
                        f"buffer_load_dwordx4 {vr(w2reg(k)+4*mt,4)}, v{vS2}, {sr(sWS,4)}, s{sA} offen offset:{mt*1024} sc1", f"w2_{k}"))
        return ops

    bars = []
    cur_q = [0]
    def emit(op):
        if isinstance(op, tuple):
            k = op[0]
            if k == "ds":
                a(op[1]); lg.issue(op[2]); return 1
            if k == "vm":
                a(op[1]); vm.issue(op[2]); return 1
            if k == "vm2":
                for l in op[1]:
                    a(l)
                a(op[2]); vm.issue(op[3]); return 1
            if k == "dma":
                for l in op[1]:
                    a(l)
                vm.issue(op[2]); return 2
            if k == "skip":
                return 2
            if k == "wl":
                return 1 if wait(ltag=op[1]) else 0
            if k == "wv":
                return 1 if wait(vtag=op[1]) else 0
            if k == "bar":
                wait(ltag=op[1])
                a("s_barrier")
                bars.append(cur_q[0])
                return 2
            raise ValueError(op)
        a(op)
        return 1

    def poll_issue():
        a(f"buffer_load_dword v40, v42, {sr(sDBG,4)}, 0 offen sc1")
        a(f"buffer_load_dword v39, v43, {sr(sDBG,4)}, 0 offen offset:128 sc1")
        a(f"buffer_load_dwordx4 v[32:35], v41, {sr(sWS,4)}, s{sLB} offen sc1")

    def unit_step(u):
        sl = u % 4
        hi = 0 if sl < 2 else 1
        off = (sl % 2) * 4096
        if not opt.get('nowait'):
            wait(vtag=f"u{u}")
        if opt.get('notr'):
            pass
        elif u < 8:
            for mt in range(4):
                for hf in range(2):
                    a(f"ds_read_b64_tr_b16 {vr(W+16*u+4*mt+2*hf,2)}, v{vTR+4*hi+mt} offset:{off + hf*512}")
                    lg.issue(f"t{u}")
        else:
            for op in tr_w2_ops(W2R + 16 * (u - 8), vTB if hi == 0 else vTR2, off, f"t{u}", [30, 31]):
                emit(op)
        nx = u + NINF
        if nx < NU:
            if nx - 4 >= 0:
                wait(ltag=f"t{nx-4}")
            dma_unit(nx)

    DEFER = opt.get('defer', 1)
    a("s_waitcnt lgkmcnt(0)")
    if not DEFER:
        setup_a()
        setup_b()
        setup_c()
        setup_d()
    if opt.get('sync0'):
        a("s_waitcnt vmcnt(0)")
        a("s_barrier")
    PU = opt.get('pu', 9)
    LATEF = opt.get('lateflag', 0)
    assert not LATEF or (NR == 0 and NBUB == 0)
    PU2 = opt.get('pu2', PU)
    SD = opt.get('sd', 5)
    def pollx():
        a(f"buffer_load_dword v40, v42, {sr(sDBG,4)}, 0 offen sc1")
        if not LATEF:
            a(f"buffer_load_dword v39, v43, {sr(sDBG,4)}, 0 offen offset:128 sc1")
            vm.issue("poll")
        else:
            a("v_mov_b32 v39, 1")
        a(f"buffer_load_dwordx4 v[32:35], v41, {sr(sWS,4)}, s{sLB} offen sc1")
        vm.issue("poll"); vm.issue("poll")
    def steps_from(u0, pu):
        for u in range(u0, NU):
            if PPRIO and u in (NU // 4, NU // 2 + 1):
                a(f"s_setprio {1 if u == NU // 4 else 0}")
            unit_step(u)
            {0: setup_a, 1: setup_b, 2: setup_c, SD: setup_d}.get(u, lambda: None)()
            if u == NINF:
                bias_to_lds()
            if pu is None and u == PU2:
                return
            if u == pu:
                pollx()
    if PU2 == PU:
        steps_from(0, PU)
    else:
        assert max(SD, NINF) <= PU2 < PU
        steps_from(0, None)
        a(f"s_cmp_lt_u32 s{sW}, {opt.get('ysplit', 4)}")
        a("s_cbranch_scc1 C_OLD")
        sv = (list(vm.q), list(lg.q))
        pollx()
        steps_from(PU2 + 1, -1)
        wait(vtag="poll")
        a("s_branch C_JOIN")
        vm.q, lg.q = sv
        a.label("C_OLD")
        steps_from(PU2 + 1, PU)
        wait(vtag="poll")
        a.label("C_JOIN")
    st(1)
    NPRE, NPOST = NR, 0
    wait(vtag="poll")
    a.label("POLL_CHK")
    a("v_lshrrev_b32 v16, 8, v33")
    a("v_lshrrev_b32 v17, 8, v35")
    a("v_xor_b32 v16, v16, v40")
    a("v_xor_b32 v17, v17, v40")
    a("v_or_b32 v16, v16, v17")
    a("v_alignbit_b32 v26, v35, v34, 20")
    a(f"v_cmp_ne_u32 {sr(sM,2)}, 0, v16")
    a("v_and_b32 v26, 0xfffff, v26")
    a("v_min_u32 v17, v40, v39")
    a(f"v_cmp_eq_u32 {sr(sM+2,2)}, 0, v17")
    a(f"v_cmp_ne_u32 vcc, s{sT}, v26")
    a("s_and_b32 s5, vcc_lo, 0x80808080")
    a("s_lshr_b32 s5, s5, 7")
    a("s_mul_i32 s5, s5, 255")
    a("s_mov_b32 s4, -1")
    a(f"s_and_b64 {sr(sM,2)}, {sr(sM,2)}, s[4:5]")
    a(f"s_or_b64 {sr(sM,2)}, {sr(sM,2)}, {sr(sM+2,2)}")
    a("s_cbranch_scc1 POLL_RETRY")
    a("v_and_b32 v20, 0xfffff, v32")
    a("v_alignbit_b32 v22, v33, v32, 20")
    a("v_and_b32 v22, 0xfffff, v22")
    a("v_and_b32 v24, 0xfffff, v34")
    a.label("POLL_OK")
    vm.clear()
    st(2)
    a(f"s_add_u32 s6, s3, s{sNode}")
    a("s_lshl_b32 s6, s6, 9")
    a(f"v_lshl_add_u32 v28, v{vLane}, 4, s6")
    a(f"buffer_load_dwordx4 {vr(vSF,4)}, v28, {sr(sX,4)}, 0 offen")
    a("v_add_u32 v29, 8192, v28")
    a(f"buffer_load_dwordx4 {vr(vSF+4,4)}, v29, {sr(sX,4)}, 0 offen")
    a("v_add_u32 v30, 16384, v28")
    a(f"buffer_load_dwordx4 {vr(vSF+8,4)}, v30, {sr(sX,4)}, 0 offen")
    a(f"v_mov_b32 v16, s{sT}")
    a("v_cndmask_b32 v20, v16, v20, s[4:5]")
    a(f"s_mov_b32 s4, {MARK}")
    a("v_mov_b32 v41, 1")
    ent = [20, 22, 24, 26]
    for k in range(4):
        a(f"v_bfe_u32 v{ent[k]+1}, v{ent[k]}, 14, 6")
        a(f"v_lshl_add_u32 v{16+k}, v{ent[k]+1}, 2, v{vLB}")
    for k in range(4):
        a(f"v_cmpx_gt_u32 vcc, s4, v{ent[k]}")
        a(f"ds_add_rtn_u32 v{16+k}, v{16+k}, v41 offset:{CNT-LIST}")
        a(f"s_mov_b64 {sr(sM+2*k,2)}, exec")
    a("s_mov_b64 exec, -1")
    a("v_cmp_eq_u32 vcc, s4, v20")
    a("s_and_saveexec_b64 s[6:7], vcc")
    a(f"ds_write_b32 v{vLB}, v41 offset:{FLAG-LIST}")
    a("s_mov_b64 exec, -1")
    for k in range(4):
        a(f"v_and_b32 v{ent[k]}, 0x3fff, v{ent[k]}")
        a(f"v_lshl_add_u32 v{ent[k]+1}, v{ent[k]+1}, 7, v{vLB}")
    a("s_waitcnt lgkmcnt(0)")
    for k in range(4):
        a(f"v_min_u32 v{16+k}, 63, v{16+k}")
        a(f"v_lshl_add_u32 v{ent[k]+1}, v{16+k}, 1, v{ent[k]+1}")
    for k in range(4):
        a(f"s_mov_b64 exec, {sr(sM+2*k,2)}")
        a(f"ds_write_b16 v{ent[k]+1}, v{ent[k]}")
    a("s_mov_b64 exec, -1")
    lg.clear()
    vL = [vSeq, 59, 60]
    vCnt = 61
    sFlush, sJ, sEnd, sLeft = sMask, sMask + 1, sT, sPC
    a(f"s_mov_b32 s{sFlush}, 0")
    a(f"s_mov_b32 s{sJ}, 0")
    a(f"s_mov_b32 s{sPI}, 0")
    a(f"s_mov_b32 s{sLeft}, {NPW}")
    if LATEF:
        a("v_mov_b32 v64, v43")
        a(f"buffer_load_dword v63, v43, {sr(sDBG,4)}, 0 offen offset:128 sc1")
    NBUB = max(NBUB, NPRE + NPOST)
    assert NBUB <= 3
    for k in range(NPRE + NPOST, NBUB):
        for op in w2_ops(k):
            emit(op)
    a("s_waitcnt lgkmcnt(0)")
    for _ in range(opt.get('dly_g', 0)):
        a("s_sleep 64")
    a("s_barrier")
    a(f"ds_read_b32 v{vCnt}, v61 offset:{CNT-LIST}")
    for i in range(3):
        a(f"ds_read_b32 v{vL[i]}, v60 offset:{2048*i}")
    GPRIO = opt.get('gprio', 1)
    if GPRIO:
        a("s_setprio 3")
    a("s_waitcnt lgkmcnt(2)")
    a(f"v_cmp_gt_u32 vcc, v{vCnt}, v62")
    a(f"v_add_u32 v{vCnt}, 1, v{vCnt}")
    a(f"v_lshrrev_b32 v{vCnt}, 1, v{vCnt}")
    a(f"v_max_u32 v{vCnt}, 1, v{vCnt}")
    a("s_cmp_lg_u64 vcc, 0")
    a("s_cbranch_scc1 M_SLOW")
    a(f"v_readlane_b32 s{sEnd}, v{vCnt}, 0")
    a("s_waitcnt lgkmcnt(0)")
    st(3)

    def flush():
        a(f"v_xor_b32 v{vT0}, s{sXor}, v{vFl}")
        a(f"v_cvt_pk_bf16_f32 v14, v{vAcc}, v{vAcc+1}")
        a(f"v_cvt_pk_bf16_f32 v15, v{vAcc+2}, v{vAcc+3}")
        a(f"ds_write_b64 v{vT0}, v[14:15] offset:{HH}")
        a(f"s_and_b32 s4, s{sNode}, 1")
        a("s_cselect_b64 s[6:7], -1, 0")
        for x in range(4):
            a(f"v_swap_b32 v{vAS+x}, v{vAH+x}")
        for x in range(8):
            a(f"v_cndmask_b32 v{vSF+x}, v{vSF+x}, v{vSF+4+x}, s[6:7]")
        a("s_mul_i32 s4, s4, 14")
        a(f"s_add_u32 s{sNode}, s{sNode}, s4")
        a(f"s_add_u32 s{sNode}, s{sNode}, 1")
        set_xor()

    acc = vr(vAcc, 4)
    def mf_norm(s):
        a(f"v_mfma_f32_16x16x32_bf16 {acc}, {vr(vA1,4)}, {vr(RING+4*s,4)}, {acc}")
    def mf_first(s):
        a(f"v_mfma_f32_16x16x32_bf16 {acc}, {vr(vAS,4)}, {vr(vSF,4)}, 0")
        mf_norm(s)
    def issue(s):
        a(f"v_bfe_u32 v{vOff}, s{sId}, v{vSh}, 16")
        a(f"v_lshl_add_u32 v{vOff}, v{vOff}, 9, v{vC16}")
        a(f"buffer_load_dwordx4 {vr(RING+4*s,4)}, v{vOff}, {sr(sX,4)}, 0 offen")
    swn = [0]
    def switch(s, lab_exit):
        a(f"s_bitset1_b32 s{sFlush}, {s}")
        a(f"s_add_u32 s{sJ}, s{sJ}, 1")
        a(f"s_cmp_eq_u32 s{sJ}, {NPW}")
        a(f"s_cbranch_scc1 {lab_exit}")
        a(f"v_readlane_b32 s{sEnd}, v{vCnt}, s{sJ}")
        a(f"s_and_b32 s{sPI}, s{sJ}, 1")
        a(f"s_cselect_b32 s4, 0, -1")
        a(f"s_mov_b32 s5, s4")
        a(f"s_lshl_b32 s{sPI}, s{sPI}, 5")
        a(f"v_cndmask_b32 v{vL[0]}, v{vL[0]}, v{vL[1]}, s[4:5]")
        a(f"v_cndmask_b32 v{vL[1]}, v{vL[1]}, v{vL[2]}, s[4:5]")
        a(f"s_add_u32 s{sEnd}, s{sEnd}, s{sPI}")
        if GPRIO:
            k = swn[0]; swn[0] += 1
            a(f"s_cmp_lt_u32 s{sJ}, 3")
            a(f"s_cbranch_scc1 SWP{k}")
            a("s_setprio 2")
            a(f"s_cmp_lt_u32 s{sJ}, 4")
            a(f"s_cbranch_scc1 SWP{k}")
            a("s_setprio 1")
            a(f"s_cmp_lt_u32 s{sJ}, 5")
            a(f"s_cbranch_scc1 SWP{k}")
            a("s_setprio 0")
            a.label(f"SWP{k}")

    for s in range(D):
        a.label(f"F_{s}")
        a(f"v_readlane_b32 s{sId}, v{vL[0]}, s{sPI}")
        a(f"s_add_u32 s{sPI}, s{sPI}, 1")
        a(f"s_cmp_eq_u32 s{sPI}, s{sEnd}")
        issue(s)
        a(f"s_cbranch_scc1 F_SW{s}")
    a("s_branch G_F0")
    for s in range(D):
        a.label(f"F_SW{s}")
        switch(s, "X_F0")
        a(f"s_branch {'F_%d' % (s+1) if s + 1 < D else 'G_F0'}")
    for s in range(D):
        n = (s + 1) % D
        a.label(f"G_N{s}")
        a(f"s_waitcnt vmcnt({D-1})")
        a(f"v_readlane_b32 s{sId}, v{vL[0]}, s{sPI}")
        mf_norm(s)
        a.label(f"G_C{s}")
        a(f"s_add_u32 s{sPI}, s{sPI}, 1")
        a(f"s_bitcmp1_b32 s{sFlush}, {s}")
        issue(s)
        a(f"s_cbranch_scc1 G_FL{s}")
        a(f"s_cmp_eq_u32 s{sPI}, s{sEnd}")
        a(f"s_cbranch_scc1 G_SN{s}")
        if n == 0:
            a("s_branch G_N0")
    for s in range(D):
        n = (s + 1) % D
        a.label(f"G_SN{s}")
        switch(s, f"X_N{n}")
        a(f"s_branch G_N{n}")
    for s in range(D):
        n = (s + 1) % D
        a.label(f"G_FL{s}")
        a(f"s_bitset0_b32 s{sFlush}, {s}")
        a(f"s_sub_u32 s{sLeft}, s{sLeft}, 1")
        a("s_nop 0")
        flush()
        a(f"s_cmp_eq_u32 s{sPI}, s{sEnd}")
        a(f"s_cbranch_scc0 G_F{n}")
        switch(s, f"X_F{n}")
        a.label(f"G_F{n}")
        a(f"s_waitcnt vmcnt({D-1})")
        a(f"v_readlane_b32 s{sId}, v{vL[0]}, s{sPI}")
        mf_first(n)
        a(f"s_branch G_C{n}")
    for s in range(D):
        a.label(f"X_N{s}")
        a("s_waitcnt vmcnt(0)")
        a(f"s_branch T_N{s}")
        a.label(f"X_F{s}")
        a("s_waitcnt vmcnt(0)")
        a(f"s_branch T_F{s}")
    for s in range(D):
        n = (s + 1) % D
        a.label(f"T_N{s}")
        mf_norm(s)
        a.label(f"T_C{s}")
        a(f"s_bitcmp1_b32 s{sFlush}, {s}")
        a(f"s_cbranch_scc1 T_FL{s}")
        if n == 0:
            a(f"s_cmp_eq_u32 s{sFlush}, 0")
            a("s_cbranch_scc1 M_GDONE")
            a("s_branch T_N0")
    for s in range(D):
        n = (s + 1) % D
        a.label(f"T_FL{s}")
        a(f"s_bitset0_b32 s{sFlush}, {s}")
        a(f"s_sub_u32 s{sLeft}, s{sLeft}, 1")
        a("s_nop 4")
        flush()
        a(f"s_cmp_eq_u32 s{sLeft}, 0")
        a(f"s_cbranch_scc1 M_GDONE")
        a.label(f"T_F{n}")
        mf_first(n)
        a(f"s_branch T_C{n}")

    a.label("POLL_RETRY")
    a(f"s_add_u32 s{sPC}, s{sPC}, 1")
    a(f"s_cmp_lt_u32 s{sPC}, {opt.get('spin', 30000)}")
    a("s_cbranch_scc0 POLL_GIVEUP")
    a(f"s_cmp_eq_u32 s{sPC}, 1")
    a("s_cbranch_scc1 POLL_NOSLEEP")
    a.label("POLL_SLEEP")
    a(f"s_sleep {opt.get('psleep', 4)}")
    a.label("POLL_NOSLEEP")
    a(f"s_cmp_eq_u64 {sr(sM+2,2)}, 0")
    a("s_cbranch_scc1 POLL_CELLS")
    a(f"buffer_load_dword v40, v42, {sr(sDBG,4)}, 0 offen sc1")
    if not LATEF:
        a(f"buffer_load_dword v39, v43, {sr(sDBG,4)}, 0 offen offset:128 sc1")
    a.label("POLL_CELLS")
    a(f"buffer_load_dwordx4 v[32:35], v41, {sr(sWS,4)}, s{sLB} offen sc1")
    a("s_waitcnt vmcnt(0)")
    a("s_branch POLL_CHK")
    a.label("POLL_GIVEUP")
    a(f"s_cmp_lt_u32 s{sPC}, {8 * opt.get('spin', 30000)}")
    a("s_cbranch_scc0 POLL_GO")
    a("v_cmp_eq_u32 vcc, 0, v39")
    a("s_cmp_lg_u64 vcc, 0")
    a("s_cbranch_scc1 POLL_SLEEP")
    a.label("POLL_GO")
    a(f"v_mov_b32 v20, {MARK}")
    a("s_mov_b64 s[4:5], -1")
    a("s_branch POLL_OK")

    if LATEF:
        a.label("FLG_RETRY")
        a(f"s_add_u32 s{sPC}, s{sPC}, 1")
        a(f"s_cmp_lt_u32 s{sPC}, {8 * opt.get('spin', 30000)}")
        a("s_cbranch_scc0 FLG_OK")
        a("s_sleep 8")
        a(f"buffer_load_dword v63, v64, {sr(sDBG,4)}, 0 offen offset:128 sc1")
        a("s_waitcnt vmcnt(0)")
        a("s_branch FLG_CHK")

    a.label("M_SLOW")
    SA = RING + 8
    a("s_waitcnt vmcnt(0) lgkmcnt(0)")
    a(f"v_mov_b32 v{vT0}, 0x7f000000")
    a(f"v_cmp_gt_u32 vcc, 32, v{vLane}")
    a("s_nop 1")
    a(f"v_cndmask_b32 v{vSeq}, v{vT0}, v{vC16}, vcc")
    a(f"s_add_u32 s40, s3, s{sNode}")
    for j in range(NPW):
        a(f"s_add_u32 s4, s40, {16*(j//2) + j%2}")
        a("s_lshl_b32 s4, s4, 9")
        a(f"v_add_u32 v{vOff}, s4, v{vSeq}")
        a(f"buffer_load_dwordx4 {vr(RING,4)}, v{vOff}, {sr(sX,4)}, 0 offen")
        a("s_waitcnt vmcnt(0)")
        a(f"v_mfma_f32_16x16x32_bf16 {vr(SA+4*j,4)}, {vr(vAS,4)}, {vr(RING,4)}, 0")
        a("s_nop 7")
    a(f"v_lshlrev_b32 v{vT0}, 2, v{vLane}")
    a("s_mov_b32 s41, 0")
    a.label("S_LOOP")
    a(f"buffer_load_dword v{RING+4}, v{vT0}, {sr(sDST,4)}, s41 offen")
    a(f"buffer_load_dword v{RING+5}, v{vT0}, {sr(sSRC,4)}, s41 offen")
    a("s_waitcnt vmcnt(0)")
    a(f"v_subrev_u32 v{RING+4}, s40, v{RING+4}")
    a(f"v_and_b32 v{RING+6}, 0xffffffce, v{RING+4}")
    a(f"v_cmp_eq_u32 vcc, 0, v{RING+6}")
    a(f"v_cmp_gt_u32 s[42:43], 48, v{RING+4}")
    a("s_nop 3")
    a("s_and_b64 s[42:43], s[42:43], vcc")
    a.label("S_IN")
    a("s_cmp_eq_u64 s[42:43], 0")
    a("s_cbranch_scc1 S_NEXT")
    a("s_ff1_i32_b64 s44, s[42:43]")
    a("s_bitset0_b64 s[42:43], s44")
    a(f"v_readlane_b32 s45, v{RING+4}, s44")
    a(f"v_readlane_b32 s46, v{RING+5}, s44")
    a("s_nop 3")
    a("s_lshl_b32 s46, s46, 9")
    a(f"v_add_u32 v{vOff}, s46, v{vSeq}")
    a(f"buffer_load_dwordx4 {vr(RING,4)}, v{vOff}, {sr(sX,4)}, 0 offen")
    a("s_waitcnt vmcnt(0)")
    for j in range(NPW):
        if j < NPW - 1:
            a(f"s_cmp_eq_u32 s45, {16*(j//2) + j%2}")
            a(f"s_cbranch_scc0 S_J{j+1}")
        a(f"v_mfma_f32_16x16x32_bf16 {vr(SA+4*j,4)}, {vr(vA1,4)}, {vr(RING,4)}, {vr(SA+4*j,4)}")
        a("s_nop 7")
        a("s_branch S_IN")
        if j < NPW - 1:
            a.label(f"S_J{j+1}")
    a.label("S_NEXT")
    a("s_add_u32 s41, s41, 256")
    a(f"s_cmp_lt_u32 s41, {E*4}")
    a("s_cbranch_scc1 S_LOOP")
    for j in range(NPW):
        for r in range(4):
            a(f"v_mov_b32 v{vAcc+r}, v{SA+4*j+r}")
        flush()

    a.label("M_GDONE")
    vm.clear(); lg.clear()
    st(4)
    if LATEF:
        a(f"s_mov_b32 s{sPC}, 0")
        a.label("FLG_CHK")
        a("v_cmp_eq_u32 vcc, 0, v63")
        a("s_cmp_lg_u64 vcc, 0")
        a("s_cbranch_scc1 FLG_RETRY")
        a.label("FLG_OK")
    NE = min(4, NBUB + opt.get('early', 2))
    for k in range(NBUB, NE):
        for op in w2_ops(k):
            emit(op)
    ACP = [16, 32, 16, W + 64, W + 72, W + 80]
    BFR = [48, 52, 58, 10]
    vRd = [2, 3, 4, 7, 8, 9, 14, 15]
    vBA, vWr, vRB2, vOut, vBA2 = 1, 57, 62, 5, 6
    tJ, tQ = 48, 49
    PRE = 3
    a(f"v_and_b32 v{tJ}, 15, v{vLane}")
    a(f"v_lshrrev_b32 v{tQ}, 4, v{vLane}")
    a(f"s_lshl_b32 s4, s{sV}, 8")
    a(f"s_add_u32 s4, s4, {BIAS}")
    a(f"v_lshl_add_u32 v{vBA}, v{tQ}, 4, s4")
    def bias_ops(p):
        A = ACP[p]
        if p < 3:
            return [("ds", f"ds_read_b128 {vr(A+4*mt,4)}, v{vBA} offset:{64*mt}", f"bias{p}") for mt in range(4)]
        return [("ds", f"ds_read_b128 {vr(A+4*mt,4)}, v{vBA2} offset:{16*mt}", f"bias{p}") for mt in range(2)]
    for op in bias_ops(0) + bias_ops(1):
        emit(op)
    a(f"s_lshl_b32 s4, s{sRot}, 2")
    a(f"v_xor_b32 v{vRB2}, v{tQ}, v{tJ}")
    a(f"v_xor_b32 v{vRd[0]}, s4, v{vRB2}")
    a(f"v_lshlrev_b32 v{vRd[0]}, 4, v{vRd[0]}")
    a(f"v_lshl_or_b32 v{vRd[0]}, v{tJ}, 9, v{vRd[0]}")
    for k in range(1, 8):
        a(f"v_xor_b32 v{vRd[k]}, {64*k}, v{vRd[0]}")
    a(f"v_lshlrev_b32 v{vRB2}, 4, v{vRB2}")
    a(f"v_lshl_or_b32 v{vRB2}, v{tJ}, 10, v{vRB2}")
    a(f"s_lshl_b32 s4, s{sV}, 3")
    a(f"v_or_b32 v{vWr}, s4, v{tQ}")
    a(f"v_xor_b32 v{vWr}, v{vWr}, v{tJ}")
    a(f"v_lshlrev_b32 v{vWr}, 4, v{vWr}")
    a(f"v_lshl_or_b32 v{vWr}, v{tJ}, 10, v{vWr}")
    a(f"s_lshl_b32 s4, s{sV}, 7")
    a(f"s_add_u32 s4, s4, {BIAS + 2048}")
    a(f"v_lshl_add_u32 v{vBA2}, v{tQ}, 5, s4")
    a("s_lshl_b32 s6, s3, 9")
    a(f"s_lshl_b32 s7, s{sV}, 6")
    a("s_add_u32 s6, s6, s7")
    a(f"v_lshlrev_b32 v{vOut}, 4, v{tQ}")
    a(f"v_lshl_or_b32 v{vOut}, v{tJ}, 9, v{vOut}")
    a(f"v_add_u32 v{vOut}, s6, v{vOut}")
    vR2 = [vRB2, 0, 63, vRd[0]]
    a(f"v_xor_b32 v{vR2[1]}, 64, v{vRB2}")
    a(f"v_xor_b32 v{vR2[2]}, 128, v{vRB2}")
    a("s_waitcnt lgkmcnt(0)")
    lg.clear()
    a("s_barrier")
    st(5)

    steps = [(p, s) for p in range(3) for s in range(8)]
    steps += [(p, s) for h in range(2) for p in (3, 4, 5) for s in range(4 * h, 4 * h + 4)]
    SI = {ps: i for i, ps in enumerate(steps)}
    frags = []
    for i, (p, s) in enumerate(steps):
        frags += [(i, 0)] if p < 3 else [(i, 0), (i, 1)]
    B2R = [32, 36, 40, 44]
    def fbuf(f):
        i, kk = frags[f]
        if i < 24 or kk == 0:
            return BFR[i % 4]
        return B2R[i % 4]
    def rd_op(f):
        i, kk = frags[f]
        p, s = steps[i]
        if p < 3:
            return ("ds", f"ds_read_b128 {vr(fbuf(f),4)}, v{vRd[s]} offset:{HH + p*8192}", f"b_{i}")
        ks = 2 * s + kk
        return ("ds", f"ds_read_b128 {vr(fbuf(f),4)}, v{vR2[ks%4]} offset:{ACT + (p-3)*16384 + (ks//4)*256}", f"b_{i}")
    FI = {fk: f for f, fk in enumerate(frags)}
    def epi_a(p):
        A = ACP[p]
        ops = []
        if p < 3:
            for aa in range(2):
                m = A + 8 * aa
                ops.append(f"v_cvt_pk_bf16_f32 v{m}, v{m}, v{m+1}")
                ops.append(f"v_cvt_pk_bf16_f32 v{m+1}, v{m+2}, v{m+3}")
                ops.append(f"v_cvt_pk_bf16_f32 v{m+2}, v{m+4}, v{m+5}")
                ops.append(f"v_cvt_pk_bf16_f32 v{m+3}, v{m+6}, v{m+7}")
                for x in range(4):
                    ops.append(f"v_pk_max_i16 v{m+x}, v{m+x}, 0")
                if aa == 1:
                    ops.append(f"v_xor_b32 v{m+4}, 64, v{vWr}")
                    ops.append(("ds", f"ds_write_b128 v{m+4}, {vr(m,4)} offset:{ACT + p*16384}", f"aw{p}"))
                else:
                    ops.append(("ds", f"ds_write_b128 v{vWr}, {vr(m,4)} offset:{ACT + p*16384}", f"aw{p}"))
        else:
            if p > 3:
                ops.append(f"v_add_u32 v{vOut}, 8192, v{vOut}")
            for x in range(4):
                ops.append(f"v_cvt_pk_bf16_f32 v{A+x}, v{A+2*x}, v{A+2*x+1}")
            ops.append(("vm", f"buffer_store_dwordx4 {vr(A,4)}, v{vOut}, {sr(sOUT,4)}, 0 offen" + ["", " sc1", " nt", " sc0 sc1", " sc1 nt"][opt.get('ost', 0)], "out"))
        return ops

    G = lambda p, s, mt=0: SI[(p, s)] * 4 + mt
    GI = lambda i, mt=0: i * 4 + mt
    first_rd = lambda p: SI[(p, 0)] - PRE
    done = lambda p: SI[(p, 7)] + 1
    streams = []
    def add(name, ops, start=0, dl=10**9, after=None, pri=0):
        streams.append(dict(name=name, ops=list(ops), start=start, dl=dl, after=after or [], done=None, pri=pri))
    lastw = None
    WSP = opt.get('wsp', 4)
    for k in range(NE, 8):
        for j, o in enumerate(w2_ops(k)):
            nm = f"w{k}_{j}"
            add(nm, [o], 1 if k < 4 else G(2, k - 4, 3), GI(SI[(3, k)] - 2, 3), after=[(lastw, WSP)] if lastw else [], pri=-1000)
            lastw = nm
    last = len(steps) - 1
    add("e0", epi_a(0), G(1, 1, 2), G(1, 6, 3))
    add("bias2", [("wl", "aw0")] + bias_ops(2), 0, G(1, 7, 2), after=[("e0", 1)])
    add("e1", epi_a(1), G(2, 1, 0), GI(first_rd(3) - 1, 1))
    add("bar1", [("bar", ["aw0", "aw1"])], 0, GI(first_rd(3) - 1, 3), after=[("e1", 2)])
    add("a2", [f"v_xor_b32 v{vR2[3]}, 192, v{vRB2}"], G(2, 0, 1), GI(first_rd(3) - 1, 3))
    add("bias3", bias_ops(3) + bias_ops(4), G(2, 5, 1), G(2, 7, 1))
    add("bias5", bias_ops(5), G(2, 6, 1), GI(SI[(5, 0)] - 1, 1))
    add("e2", epi_a(2), G(3, 1, 0), GI(first_rd(5) - 1, 1))
    add("bar2", [("bar", ["aw2"])], 0, GI(first_rd(5) - 1, 3), after=[("e2", 2), ("bar1", 0)])
    add("e3", epi_a(3), GI(done(3) + 1, 2), GI(done(3) + 3, 3))
    add("e4", epi_a(4), GI(done(4) + 1, 2), GI(last, 3), after=[("e3", 0)])
    byname = {s_['name']: s_ for s_ in streams}

    def ready(s_, g, force=False):
        if not s_['ops']:
            return False
        if g < s_['start']:
            return False
        for nm, dly in s_['after']:
            d = byname[nm]['done']
            if d is None or (g < d + dly and not force):
                return False
        return True
    def force_finish(s_, g):
        for nm, _ in s_['after']:
            force_finish(byname[nm], g)
        if s_['ops']:
            assert g >= s_['start'], (s_['name'], g)
            while s_['ops']:
                emit(s_['ops'].pop(0))
            s_['done'] = g
    BUD = opt.get('bud', 3)
    for i in range(PRE):
        emit(rd_op(i))
    segs = None
    if bars_hint is not None and opt.get('mprio', 1):
        pts = [0] + [b + 1 for b in bars_hint] + [len(steps)]
        segs = {}
        for x, y in zip(pts[:-1], pts[1:]):
            L = y - x
            for k in range(4):
                segs[x + k * L // 4] = 3 - k
    for i, (p, s) in enumerate(steps):
        cur_q[0] = i
        if segs and i in segs:
            a(f"s_setprio {segs[i]}")
        tags = [f"b_{i}"]
        if s == 0:
            tags.append(f"bias{p}")
        wait(vtag=f"w2_{s}" if p == 3 else None, ltag=tags)
        for mt in range(4):
            g = i * 4 + mt
            if p < 3:
                A = ACP[p] + 4 * mt
                a(f"v_mfma_f32_16x16x32_bf16 {vr(A,4)}, {vr(W+16*s+4*mt,4)}, {vr(fbuf(FI[(i,0)]),4)}, {vr(A,4)}")
            else:
                A = ACP[p] + 4 * (mt % 2)
                a(f"v_mfma_f32_16x16x32_bf16 {vr(A,4)}, {vr(w2reg(s)+4*mt,4)}, {vr(fbuf(FI[(i,mt//2)]),4)}, {vr(A,4)}")
            B_ = opt.get('bud23', 4) if 16 <= i < 32 else BUD
            bud = (B_ + (g % 2)) // 2
            if mt == 3:
                bud = min(bud, opt.get('bud3', 1))
            if mt in (0, 2) and (i + PRE, mt // 2) in FI:
                bud -= emit(rd_op(FI[(i + PRE, mt // 2)]))
            while bud > 0:
                cand = [s_ for s_ in streams if ready(s_, g)]
                if not cand:
                    break
                s_ = min(cand, key=lambda z: z['dl'] - len(z['ops']) + z['pri'])
                bud -= emit(s_['ops'].pop(0))
                if not s_['ops']:
                    s_['done'] = g
            for s_ in streams:
                if s_['ops'] and s_['dl'] <= g:
                    if opt.get('verbose'):
                        print("forced", s_['name'], len(s_['ops']), "ops at", p, s, mt, file=sys.stderr)
                    force_finish(s_, g)
        if p == 2 and s == 7:
            st(6)
    assert all(not s_['ops'] for s_ in streams)
    st(10)
    a("s_nop 6")
    for op in epi_a(5):
        emit(op)
    if opt.get('lst'):
        a("s_waitcnt vmcnt(0)")
        a(("s_memrealtime" if not opt.get('cyc') else "s_memtime") + " s[40:41]")
        srd(a, 76, 100, 0x1000000)
        a("s_lshl_b32 s42, s2, 4")
        a(f"s_add_u32 s42, s42, s{sW}")
        a("s_lshl_b32 s42, s42, 7")
        a(f"s_add_u32 s42, s42, {STAMP_OFF}")
        a("v_mov_b32 v9, s42")
        a("s_waitcnt lgkmcnt(0)")
        a("s_mov_b64 exec, 1")
        for idx, r in list(LST.items()) + [(7, 40)]:
            a(f"v_mov_b32 v14, s{r}")
            a(f"v_mov_b32 v15, s{r+1}")
            a(f"buffer_store_dwordx2 v[14:15], v9, s[76:79], 0 offen offset:{idx*8}")
    if STAMP:
        a("s_waitcnt vmcnt(0)")
        st(7)
    if opt.get('amp') is not None:
        a("s_waitcnt vmcnt(0)")
        st(7)
        a("s_sub_u32 s99, s99, s98")
        a("s_lshl_b32 s99, s99, 3")
        a("s_min_u32 s99, s99, 100000")
        a("s_memrealtime s[96:97]")
        a("s_waitcnt lgkmcnt(0)")
        a("s_mov_b32 s98, s96")
        a.label("AMP_L")
        a("s_sleep 2")
        a("s_memrealtime s[96:97]")
        a("s_waitcnt lgkmcnt(0)")
        a("s_sub_u32 s96, s96, s98")
        a("s_cmp_lt_u32 s96, s99")
        a("s_cbranch_scc1 AMP_L")
    a("s_endpgm")

    a.label("AUX")
    aux[0] = True
    vm.clear(); lg.clear()
    a("s_memrealtime s[96:97]")
    a(f"s_and_b32 s{sA}, s2, 7")
    a(f"s_mul_i32 s{sPI}, s{sA}, 5000")
    a(f"s_lshr_b32 s{sB}, s2, 3")
    a("s_waitcnt lgkmcnt(0)")
    if opt.get('stouch', 0):
        a("s_load_dword s40, s[78:79], 0")
        a("s_load_dword s41, s[100:101], 0xffffc")
        a("s_load_dword s42, s[6:7], 0xfc")
    srd(a, sDST, 80, E * 4)
    srd(a, sSRC, 78, E * 4)
    srd(a, sX, 76, N * 512)

    def xpf(first, stride, n, vd):
        for r in range(n):
            a(f"v_add_u32 v{vT0}, {first + r*stride}, v{vSeq}")
            a(f"v_subrev_u32 v{vT1}, 40000, v{vT0}")
            a(f"v_min_u32 v{vT0}, v{vT0}, v{vT1}")
            a(f"v_lshlrev_b32 v{vT0}, 7, v{vT0}")
            a(f"buffer_load_dword v{vd+r}, v{vT0}, {sr(sX,4)}, 0 offen")

    a(f"s_cmp_lt_u32 s2, {NPROD}")
    a("s_cbranch_scc1 PROD")
    stamp_setup()
    st(0)
    a(f"s_sub_u32 s{sB}, s{sB}, 4")
    a(f"s_lshl_b32 s{sB}, s{sB}, 9")
    a(f"s_add_u32 s{sPI}, s{sPI}, s{sB}")
    a(f"v_add_u32 v{vSeq}, s{sPI}, v0")
    a(f"s_sub_u32 s{sId}, s2, {NPROD}")
    a(f"s_cmp_lt_u32 s{sId}, {NW2H}")
    a("s_cbranch_scc0 H_PF")
    srd(a, sW2, 88, 256 * 1024)
    srd(a, sDBG, 6, 256)
    srd(a, sWS, 100, WS_BYTES)
    a(f"s_lshl_b32 s{sWB}, s{sW}, 12")
    w2_addr(sW, vS2, [(vTB, sWB)])
    a(f"s_lshl_b32 s{sA}, s{sId}, 15")
    for i in range(4):
        a(f"s_add_u32 m0, s{sWB}, {i*1024}")
        a(f"s_add_u32 s45, s{sA}, {i*8192}")
        a(f"buffer_load_dwordx4 v{vS2}, {sr(sW2,4)}, s45 offen lds")
    a(f"s_lshl_b32 s{sA}, s{sW}, 15")
    a(f"s_lshl_b32 s45, s{sId}, 12")
    a(f"s_add_u32 s{sA}, s{sA}, s45")
    a(f"s_add_u32 s{sA}, s{sA}, {W2F}")
    a(f"v_lshl_add_u32 v{vOff}, v{vLane}, 4, s{sA}")
    a("s_waitcnt vmcnt(0)")
    for op in tr_w2_ops(64, vTB, 0, "h", None):
        a(op[1])
    a("s_waitcnt lgkmcnt(0)")
    for mt in range(4):
        a(f"buffer_store_dwordx4 {vr(64+4*mt,4)}, v{vOff}, {sr(sWS,4)}, 0 offen offset:{mt*1024} sc1")
    a("s_waitcnt vmcnt(0)")
    a("s_barrier")
    a(f"s_cmp_eq_u32 s{sW}, 0")
    a("s_cbranch_scc0 H_PF")
    a(f"s_lshl_b32 s{sA}, s{sId}, 2")
    a(f"v_mov_b32 v{vT1}, s{sA}")
    a(f"v_mov_b32 v{vT0}, 1")
    a("s_mov_b64 exec, 1")
    a(f"buffer_store_dword v{vT0}, v{vT1}, {sr(sDBG,4)}, 0 offen offset:128 sc1")
    a("s_mov_b64 exec, -1")
    st(12)
    a.label("H_PF")
    xpf(0, 1024, NH, 16)
    if STAMP:
        a("s_waitcnt vmcnt(0)")
        st(13)
    a("s_endpgm")
    a.label("PROD")
    a(f"s_mul_i32 s{sA}, s2, {CH*4}")
    for r in range(3):
        if r == 2:
            a(f"s_cmp_lt_u32 s{sW}, 4")
            a("s_cbranch_scc0 P_E2")
        a(f"buffer_load_dwordx4 {vr(16+8*r,4)}, v{vT16}, {sr(sDST,4)}, s{sA} offen")
        a(f"buffer_load_dwordx4 {vr(20+8*r,4)}, v{vT16}, {sr(sSRC,4)}, s{sA} offen")
        if r < 2:
            a(f"s_add_u32 s{sA}, s{sA}, 8192")
    a.label("P_E2")
    srd(a, sDBG, 6, 256)
    srd(a, sWS, 100, CELLS_BYTES)
    a("v_lshrrev_b32 v46, 3, v0")
    a("v_and_b32 v47, 7, v0")
    a("v_lshlrev_b32 v50, 13, v46")
    a("v_lshl_or_b32 v50, v47, 4, v50")
    a(f"s_lshl_b32 s4, s2, 7")
    a(f"v_add_u32 v50, s4, v50")
    if opt.get('vtouch', 0):
        srd(a, sW1, 100, WS_BYTES)
        a(f"s_cmp_eq_u32 s{sW}, 6")
        a("s_cbranch_scc0 P_VT")
        a(f"v_mov_b32 v{vT0}, 0x1f0000")
        a(f"buffer_load_dword v60, v{vT0}, {sr(sW1,4)}, 0 offen")
        a.label("P_VT")
    vm.issue("edges")
    a(f"s_lshr_b32 s{sNode}, s96, 8")
    a(f"s_or_b32 s{sNode}, s{sNode}, 1")
    a(f"v_mov_b32 v51, {NONCE}")
    a(f"s_cmp_eq_u32 s{sW}, 7")
    a("s_cbranch_scc0 P_N1")
    a(f"v_mov_b32 v{vT0}, s{sNode}")
    a(f"s_lshl_b32 s4, s2, 2")
    a(f"v_mov_b32 v{vT1}, s4")
    a("s_mov_b64 exec, 1")
    a(f"buffer_store_dword v{vT0}, v{vT1}, {sr(sDBG,4)}, 0 offen sc1")
    a(f"ds_write_b32 v51, v{vT0}")
    a("s_mov_b64 exec, -1")
    a.label("P_N1")
    stamp_setup()
    st(0)
    a(f"v_mov_b32 v40, {EMPTY}")
    a("v_mov_b32 v41, v40")
    a("v_mov_b32 v42, v40")
    a("v_mov_b32 v43, v40")
    a(f"s_movk_i32 s4, {CST}")
    a(f"v_mov_b32 v55, {IMG}")
    a("v_mad_u32_u24 v56, v46, s4, v55")
    a("v_lshl_add_u32 v48, v47, 4, v56")
    a(f"v_add_u32 v49, {128*CST}, v48")
    def cp(i):
        return (48 + i // 2, (i % 2) * 64 * CST)
    for i in range(4):
        r, o = cp(i)
        a(f"ds_write_b128 v{r}, v[40:43] offset:{o}")
        a(f"ds_write_b128 v{r}, v[40:43] offset:{o + 128}")
    a(f"v_and_b32 v{vT0}, 255, v0")
    a(f"v_mad_u32_u24 v{vT1}, v{vT0}, s4, v55")
    a(f"v_lshlrev_b32 v{vT0}, 2, v{vT0}")
    a(f"ds_write_b32 v{vT0}, v{vT1} offset:{PCNT}")
    a("v_mov_b32 v44, 4")
    a(f"s_mov_b32 s{sT}, {-(48 << 14) & 0xffffffff}")
    a("v_lshlrev_b32 v45, 2, v46")
    a(f"v_mov_b32 v52, {MARK}")
    a(f"s_mov_b32 s{sA}, 43691")
    a(f"s_lshl_b32 s{sB}, s{sB}, 9")
    a(f"s_add_u32 s{sPI}, s{sPI}, s{sB}")
    a(f"v_add_u32 v{vSeq}, s{sPI}, v0")
    for i in range(4):
        a(f"v_add_u32 v{72+i}, {i*64*8192}, v50")
        a(f"v_add_u32 v{76+i}, {i*64*CST + 128}, v56")
    a(f"v_lshlrev_b32 v{vT0}, 2, v{vLane}")
    a(f"v_mad_u32_u24 v80, v{vT0}, s4, v55")
    a("v_add_u32 v80, 512, v80")
    a(f"v_lshlrev_b32 v84, 4, v{vLane}")
    a("s_waitcnt lgkmcnt(0)")
    a("s_barrier")
    a("ds_read_b32 v53, v51")
    a("s_waitcnt lgkmcnt(0)")
    a("v_lshlrev_b32 v53, 8, v53")
    n_ = vm.need("edges")
    a(f"s_cmp_eq_u32 s{sW}, 7")
    a("s_cbranch_scc1 P_W7")
    a(f"s_waitcnt vmcnt({n_})")
    a.label("P_W7")
    a(f"s_waitcnt vmcnt({n_ + 1})")
    st(14)
    def bin_a(r):
        vd, vs, vb, va = 16 + 8 * r, 20 + 8 * r, 192 + 4 * r, 204 + 4 * r
        for k in range(4):
            a(f"v_mul_u32_u24 v{vb+k}, s{sA}, v{vd+k}")
            a(f"v_lshrrev_b32 v{vb+k}, 21, v{vb+k}")
            a(f"v_lshlrev_b32 v{va+k}, 2, v{vb+k}")
            a(f"ds_add_rtn_u32 v{va+k}, v{va+k}, v44 offset:{PCNT}")
    def bin_a2(r):
        vd, vs, vb, va = 16 + 8 * r, 20 + 8 * r, 192 + 4 * r, 204 + 4 * r
        for k in range(4):
            a(f"v_lshl_or_b32 v{vs+k}, v{vd+k}, 14, v{vs+k}")
            a(f"v_mad_i32_i24 v{vs+k}, v{vb+k}, s{sT}, v{vs+k}")
    def bin_b(r):
        vd, vs, vb, va = 16 + 8 * r, 20 + 8 * r, 192 + 4 * r, 204 + 4 * r
        for k in range(4):
            a(f"ds_write_b32 v{va+k}, v{vs+k}")
    bin_a(0)
    bin_a(1)
    a(f"s_cmp_lt_u32 s{sW}, 4")
    a("s_cbranch_scc0 P_R2")
    a(f"v_cmp_gt_u32 vcc, {CH//4 - 1024}, v0")
    a("s_and_saveexec_b64 s[4:5], vcc")
    bin_a(2)
    bin_a2(2)
    a("s_waitcnt lgkmcnt(0)")
    bin_b(2)
    a("s_mov_b64 exec, s[4:5]")
    a.label("P_R2")
    bin_a2(0)
    bin_a2(1)
    a("s_waitcnt lgkmcnt(0)")
    bin_b(0)
    bin_b(1)
    a("s_waitcnt lgkmcnt(0)")
    a("s_barrier")
    st(15)
    a(f"ds_read_b128 v[88:91], v84 offset:{PCNT}")
    lg.issue("all")
    for i in range(4):
        r, o = cp(i)
        a(f"ds_read_b128 {vr(128+4*i,4)}, v{r} offset:{o}")
        lg.issue(f"c{i}")
    for i in range(4):
        r, o = cp(i)
        a(f"ds_read_b32 v{64+i}, v45 offset:{PCNT + i*256}")
        lg.issue(f"n{i}")
        a(f"ds_read_b128 {vr(144+4*i,4)}, v{r} offset:{o + 128}")
        lg.issue(f"d{i}")
    def pack(d):
        a(f"v_lshl_or_b32 v{d}, v{d+1}, 20, v{d}")
        a(f"v_lshrrev_b32 v{d+1}, 12, v{d+1}")
        a(f"v_or_b32 v{d+1}, v53, v{d+1}")
        a(f"v_lshl_or_b32 v{d+2}, v{d+3}, 20, v{d+2}")
        a(f"v_lshrrev_b32 v{d+3}, 12, v{d+3}")
        a(f"v_or_b32 v{d+3}, v53, v{d+3}")
    wait(ltag="all")
    for k in range(1, 4):
        a(f"v_subrev_u32 v{88+k}, {k*CST}, v{88+k}")
    a("v_max3_u32 v88, v88, v89, v90")
    a("v_max_u32 v88, v88, v91")
    a("v_cmp_gt_u32 vcc, v88, v80")
    a("s_cmp_lg_u64 vcc, 0")
    a("s_cbranch_scc1 P_OVF")
    a.label("P_OVR")
    for i in range(4):
        wait(ltag=f"c{i}")
        pack(128 + 4 * i)
        a(f"buffer_store_dwordx4 {vr(128+4*i,4)}, v{72+i}, {sr(sWS,4)}, 0 offen sc1")
    a("s_movk_i32 s6, 0x1000")
    for i in range(4):
        d = 144 + 4 * i
        wait(ltag=f"d{i}")
        a(f"v_cmp_le_u32 vcc, v{76+i}, v{64+i}")
        a("s_and_b64 exec, exec, vcc")
        a(f"s_cbranch_scc0 P_SK{i}")
        a(f"v_add_u32 v{76+i}, 128, v{76+i}")
        a(f"v_cmp_lt_u32 vcc, v{76+i}, v{64+i}")
        a("s_nop 1")
        a(f"v_cndmask_b32 v{d}, v{d}, v52, vcc")
        pack(d)
        a(f"buffer_store_dwordx4 {vr(d,4)}, v{72+i}, {sr(sWS,4)}, s6 offen sc1")
        a.label(f"P_SK{i}")
        a("s_mov_b64 exec, -1")
    if STAMP:
        st(1)
        a("s_waitcnt vmcnt(0)")
        st(2)
    a("s_barrier")
    if opt.get('ftouch', 1):
        srd(a, sW1, 100, WS_BYTES)
        a(f"v_and_b32 v{vT0}, {NW2H-1}, v{vLane}")
        a(f"v_lshlrev_b32 v{vT0}, 2, v{vT0}")
        a(f"buffer_load_dword v{vT1}, v{vT0}, {sr(sDBG,4)}, 0 offen offset:128 sc1")
        a(f"s_lshr_b32 s4, s2, 3")
        a("s_lshl_b32 s4, s4, 16")
        a(f"s_add_u32 s4, s4, {W2F}")
        a(f"v_lshlrev_b32 v{vT0}, 7, v0")
        a("s_waitcnt vmcnt(0)")
        a(f"v_cmp_eq_u32 vcc, 0, v{vT1}")
        a("s_cmp_lg_u64 vcc, 0")
        a("s_cbranch_scc1 P_NT")
        a(f"buffer_load_dword v60, v{vT0}, {sr(sW1,4)}, s4 offen sc1")
        a.label("P_NT")
    xpf(NH * 1024, 2048, NP, 16)
    if STAMP:
        a("s_waitcnt vmcnt(0)")
        st(13)
    a("s_endpgm")
    a.label("P_OVF")
    a("s_waitcnt lgkmcnt(0)")
    for i in range(4):
        a(f"v_mov_b32 v{128+4*i}, v52")
        a(f"v_mov_b32 v{64+i}, -1")
    a("s_branch P_OVR")
    a.label("M_END")
    a("s_endpgm")
    return LDS_TOTAL, bars


DOC = """
GIN layer, one fused kernel (generated by gen/gen20.py).  256 workgroups of 8 waves, one per CU:
  ids  0..31  producers : bin 5000 edges each by 48-node destination block (LDS counting), publish
              fixed-capacity cells in d_ws as 8-byte granules {2 x 20-bit entry, 24-bit launch tag}
              with sc1 stores; the tag is announced in d_debug[id].  Afterwards: L2 prefetch of x.
  ids 32..46  helpers   : 32..39 re-lay W2 into MFMA fragment order in d_ws (sc1 stores, drained,
              flag in d_debug[32+h]); all of them prefetch x into L2.
  ids 47..255 consumers : 48 nodes each.  W1 -> registers via LDS-DMA + transposing LDS reads,
              poll + sort their cells into per-node lists, gather x rows (two rows per load, summed
              in fp32 by one MFMA against a 0/1 selection matrix, self row scaled by bf16(1+eps)),
              then GEMM1 (+b1, relu) and GEMM2 (+b2) with bf16 MFMA.
  Any capacity overflow or hand-off timeout falls back to an exact scan of src/dst.
"""

def build(opt):
    name = "gather_scatter__isomorphism_gin_2__graph_kernel"
    _, bars = gen_main(Asm(), dict(opt, verbose=0), name)
    b = Asm()
    lds, bars2 = gen_main(b, opt, name, bars)
    assert bars == bars2
    a = Asm()
    a.raw(HEADER.rstrip())
    a.raw(f"; @launch grid=(256,1,1) block=(512,1,1) lds={lds}")
    a.raw('.amdgcn_target "amdgcn-amd-amdhsa--gfx950"')
    for l in DOC.strip().split("\n"):
        a.raw("; " + l)
    a.raw(".text")
    a.l += b.l
    a.raw('.section .rodata,"a"')
    a.raw(kd(name, 256, 102))
    return a.text()

if __name__ == "__main__":
    out = sys.argv[1]
    opt = {}
    for kv in sys.argv[2:]:
        k, v = kv.split("=")
        opt[k] = int(v)
    open(out, "w").write(build(opt))
```

```python
import sys
from gen2 import Asm, Ctr, vr, sr, srd, kd, HEADER

N = 10000
E = 160000
BN = 48
NBLK = 209
NPROD = 32
NHELP = 15
C0 = NPROD + NHELP
CH = E // NPROD
CELLS_BYTES = NBLK * 8192
W2F = 0x200000
WS_BYTES = W2F + 0x40000
STAMP_OFF = 0x400000
EMPTY = 63 << 14
MARK = 62 << 14
NW2H = 8
NPW = 6


def gen_main(a, opt, name, bars_hint=None):
    D = opt.get('depth', 8)
    NH = opt.get('nh', 8)
    NP = opt.get('np', 4)
    STAMP = opt.get('stamp')
    assert D <= 16
    HH = 0
    ACT = 24576
    WST = 73728
    LIST = 65536
    CNT = LIST + 6144
    FLAG = CNT + 56 * 4
    BIAS = WST + 65536
    LDS_TOTAL = BIAS + 3072
    IMG = 2048
    PCNT = 0
    NONCE = 1024
    CST = 528
    vLane, vC16, vSh, vSeq, vT0, vT1, vOff, vFl = 1, 2, 3, 4, 5, 6, 7, 8
    vAcc = 10
    RING = 16
    vA1, vAS = 48, 52
    RS = lambda s: RING + 4 * s if s < 8 else 68 + 4 * (s - 8)
    vS2, vT16, vLB, vTB = 56, 57, 58, 63
    W2R = 64
    vSF, vAH = 112, 124
    W = 128
    vS1 = 16
    vTR = 20
    vTR2 = 29
    vBI = 44
    sX, sWS, sOUT, sSRC, sDST, sB1, sB2, sW1, sW2, sDBG = 8, 12, 16, 20, 24, 28, 32, 64, 68, 72
    sW, sWB, sA, sB = 36, 37, 38, 39
    sLB, sRot, sWL, sV = 46, 47, 48, 49
    sPC, sPI, sT, sXor, sNode, sId = 50, 51, 52, 53, 54, 55
    sMask = 56
    sM = 76
    sST = 92

    vm = Ctr(63)
    lg = Ctr(15)
    aux = [False]

    LST = {0: 98, 1: 96, 2: 94, 3: 92, 4: 90, 5: 88, 6: 86, 10: 84}
    def st(idx):
        if opt.get('lst') and not aux[0]:
            if idx in LST:
                a(("s_memrealtime" if not opt.get('cyc') else "s_memtime") + f" {sr(LST[idx],2)}")
            return
        amp = opt.get('amp')
        pamp = opt.get('pamp')
        if pamp is not None and aux[0] and (idx == 0 or idx == pamp):
            a("s_memrealtime s[94:95]")
            a("s_waitcnt lgkmcnt(0)")
            lg.clear()
            a(f"s_mov_b32 s{98 if idx == 0 else 99}, s94")
        if amp is not None and not aux[0]:
            if idx == 0 or idx == amp:
                a("s_memrealtime s[96:97]")
                a("s_waitcnt lgkmcnt(0)")
                lg.clear()
                a(f"s_mov_b32 s{98 if idx == 0 else 99}, s96")
                if amp == 30:
                    a("s_mov_b32 s99, s96")
                    a("s_mov_b32 s98, s94")
            if idx == 2 and amp in (20, 21):
                for i in range(4):
                    a(f"v_readlane_b32 s{92+i}, v40, {16*i}")
                a("s_nop 3")
                op = "s_min_u32" if amp == 20 else "s_max_u32"
                a(f"{op} s92, s92, s93")
                a(f"{op} s94, s94, s95")
                a(f"{op} s92, s92, s94")
                if amp == 20:
                    a("s_mov_b32 s99, s98")
                    a("s_min_u32 s98, s92, s98")
                else:
                    a("s_max_u32 s99, s92, s98")
        if STAMP and (opt.get('stmask', 0xffff) >> idx) & 1:
            a("s_memrealtime s[96:97]" if not opt.get('cyc') else "s_memtime s[96:97]")
            a("s_waitcnt lgkmcnt(0)")
            lg.clear()
            a("v_mov_b32 v14, s96")
            a("v_mov_b32 v15, s97")
            a("s_mov_b64 s[98:99], exec")
            a("s_mov_b64 exec, 1")
            a(f"buffer_store_dwordx2 v[14:15], v9, {sr(sST,4)}, 0 offen offset:{idx*8}")
            vm.issue('st')
            a("s_mov_b64 exec, s[98:99]")

    def wait(vtag=None, ltag=None):
        p = []
        if vtag is not None:
            n = vm.need(vtag)
            if n is not None:
                p.append(f"vmcnt({n})")
        if ltag is not None:
            tags = ltag if isinstance(ltag, (list, tuple)) else [ltag]
            ns = [lg.need(t) for t in tags]
            ns = [n for n in ns if n is not None]
            if ns:
                p.append(f"lgkmcnt({min(ns)})")
        if p:
            a("s_waitcnt " + " ".join(p))
            return True
        return False

    def stamp_setup():
        if STAMP:
            srd(a, sST, 100, 0x1000000)
            a("s_lshl_b32 s96, s2, 4")
            a(f"s_add_u32 s96, s96, s{sW}")
            a("s_lshl_b32 s96, s96, 7")
            a(f"s_add_u32 s96, s96, {STAMP_OFF}")
            a("v_mov_b32 v9, s96")

    a.raw(f".globl {name}")
    a.raw(".p2align 8")
    a.raw(f".type {name},@function")
    a.label(name)
    if opt.get('amp') == 30:
        a("s_memrealtime s[94:95]")
    a("s_cmp_ge_u32 s2, 256")
    a("s_cbranch_scc1 M_END")
    a("s_load_dwordx16 s[76:91], s[0:1], 0")
    a("s_load_dwordx4 s[4:7], s[0:1], 64")
    a("s_load_dwordx2 s[100:101], s[0:1], 80")
    a(f"v_and_b32 v{vLane}, 63, v0")
    a(f"v_lshrrev_b32 v{vT0}, 6, v0")
    a(f"v_lshlrev_b32 v{vT16}, 4, v0")
    a(f"v_readfirstlane_b32 s{sW}, v{vT0}")
    a(f"s_cmp_lt_u32 s2, {C0}")
    a("s_cbranch_scc1 AUX")

    a(f"s_sub_u32 s3, s2, {C0}")
    a(f"s_lshl_b32 s{sLB}, s3, 13")
    a(f"s_mul_i32 s3, s3, {BN}")
    a(f"v_mov_b32 v{vLB}, {LIST}")
    a("v_cmp_gt_u32 vcc, 384, v0")
    a(f"v_add_u32 v{vOff}, v{vLB}, v{vT16}")
    a("s_nop 0")
    a("v_cndmask_b32 v36, 0, -1, vcc")
    a("v_mov_b32 v37, v36")
    a("v_mov_b32 v38, v36")
    a("v_mov_b32 v39, v36")
    a(f"ds_write_b128 v{vOff}, v[36:39]")
    a(f"s_lshr_b32 s{sRot}, s2, 3")
    a(f"s_and_b32 s{sRot}, s{sRot}, 7")
    a(f"s_lshr_b32 s{sV}, s2, 4")
    a(f"s_and_b32 s{sV}, s{sV}, 4")
    a(f"s_and_b32 s{sA}, s{sRot}, 3")
    a(f"s_or_b32 s{sV}, s{sV}, s{sA}")
    a(f"s_xor_b32 s{sV}, s{sW}, s{sV}")
    a(f"v_bfe_u32 v{vT0}, v{vLane}, 1, 2")
    a(f"v_bfe_u32 v{vT1}, v{vLane}, 4, 1")
    a(f"v_xor_b32 v{vT0}, v{vT0}, v{vT1}")
    a(f"v_lshrrev_b32 v{vT1}, 3, v{vLane}")
    a(f"v_lshlrev_b32 v{vT1}, 10, v{vT1}")
    a(f"v_and_b32 v{vOff}, 1, v{vLane}")
    a(f"v_lshl_or_b32 v{vT1}, v{vOff}, 4, v{vT1}")
    a(f"s_lshl_b32 s{sA}, s{sV}, 7")
    a(f"v_or_b32 v{vT1}, s{sA}, v{vT1}")
    a(f"v_lshl_or_b32 v{vS1}, v{vT0}, 5, v{vT1}")
    a(f"v_xor_b32 v{vS1+1}, 64, v{vS1}")
    a(f"s_lshl_b32 s{sWL}, s{sW}, 13")
    a(f"s_add_u32 s{sWB}, s{sWL}, {WST}")
    a(f"s_lshl_b32 s{sB}, s{sRot}, 15")
    a("s_waitcnt lgkmcnt(0)")
    srd(a, sW1, 84, 256 * 1024)
    a("s_barrier")

    def slot_base(sl):
        return (sWB if sl < 2 else sWL), (sl % 2) * 4096

    def dma_unit(u):
        sb, off = slot_base(u % 4)
        for i in range(4):
            a(f"s_add_u32 m0, s{sb}, {off + i * 1024}")
            if u < 8:
                a(f"s_xor_b32 s{sA}, s{sB}, {(u * 32 + i * 8) * 1024}")
                a(f"buffer_load_dwordx4 v{vS1 + i % 2}, {sr(sW1,4)}, s{sA} offen lds")
            else:
                a(f"s_mov_b32 s{sA}, {((u - 8) * 64 + i * 16) * 512}")
                a(f"buffer_load_dwordx4 v{vN2}, {sr(sW2,4)}, s{sA} offen lds")
            vm.issue(f"u{u}")

    NR = opt.get('nr', 2)
    NU = 8 + NR
    vN2 = 28
    NBUB = opt.get('nb', 2)
    NINF = opt.get('ninf', 3)
    PPRIO = opt.get('pprio', 1)
    stamp_setup()
    st(0)
    if opt.get('dly_c'):
        a(f"s_sleep {opt['dly_c']}")
    if PPRIO:
        a("s_setprio 3")
    dma_unit(0)
    if PPRIO:
        a("s_setprio 2")
    a("s_load_dword s45, s[82:83], 0")
    SPF = opt.get('spf', 0)
    if SPF:
        a("s_and_b32 s40, s2, 7")
        a("s_mul_i32 s40, s40, 5000")
        a("s_lshr_b32 s41, s2, 3")
        a("s_lshl_b32 s41, s41, 3")
        a(f"s_add_u32 s41, s41, s{sW}")
        a(f"s_mul_i32 s41, s41, {SPF}")
        a("s_add_u32 s40, s40, s41")
        a(f"s_add_u32 s40, s40, {NH * 1024 + NP * 2048 - 40 * SPF}")
        a(f"s_sub_u32 s41, s40, {40000 - SPF}")
        a("s_min_u32 s40, s40, s41")
        a("s_lshl_b32 s40, s40, 7")
        a("s_add_u32 s40, s76, s40")
        a("s_addc_u32 s41, s77, 0")
        for r in range(SPF):
            a(f"s_load_dword s42, s[40:41], {128 * r}")
    for u in range(1, NINF):
        dma_unit(u)
    srd(a, sB1, 86, 1024)
    srd(a, sB2, 90, 512)
    a(f"v_lshlrev_b32 v{vC16}, 4, v{vLane}")
    a(f"s_cmp_eq_u32 s{sW}, 2")
    a("s_cbranch_scc0 C_SL2")
    a(f"buffer_load_dwordx4 {vr(vBI,4)}, v{vC16}, {sr(sB1,4)}, 0 offen")
    a.label("C_SL2")
    a(f"s_cmp_eq_u32 s{sW}, 3")
    a("s_cbranch_scc0 C_SL3")
    a(f"buffer_load_dwordx4 {vr(vBI,4)}, v{vC16}, {sr(sB2,4)}, 0 offen")
    a.label("C_SL3")
    a(f"v_lshrrev_b32 v{vT0}, 4, v{vLane}")
    a(f"v_lshlrev_b32 v{vT0}, 10, v{vT0}")
    a(f"v_bfe_u32 v{vT1}, v{vLane}, 2, 2")
    a(f"v_lshl_or_b32 v{vT0}, v{vT1}, 7, v{vT0}")
    a(f"v_and_b32 v{vT1}, 3, v{vLane}")
    a(f"v_lshl_or_b32 v{vT0}, v{vT1}, 3, v{vT0}")
    a(f"v_bfe_u32 v{vT1}, v{vLane}, 3, 2")
    for mt in range(4):
        a(f"v_xor_b32 v{vOff}, {mt}, v{vT1}")
        a(f"v_lshl_add_u32 v{vOff}, v{vOff}, 5, v{vT0}")
        a(f"v_add_u32 v{vTR+mt}, s{sWB}, v{vOff}")
        a(f"v_add_u32 v{vTR+4+mt}, s{sWL}, v{vOff}")

    def w2_addr(sLW, vsrc, vtb_list):
        a(f"v_lshrrev_b32 v{vT0}, 2, v{vLane}")
        a(f"v_lshlrev_b32 v{vT0}, 9, v{vT0}")
        a(f"v_and_b32 v{vT1}, 3, v{vLane}")
        a(f"v_lshl_or_b32 v{vT0}, v{vT1}, 4, v{vT0}")
        a(f"s_lshl_b32 s{sA}, s{sLW}, 6")
        a(f"v_or_b32 v{vsrc}, s{sA}, v{vT0}")
        for (v, sb) in vtb_list:
            a(f"v_lshl_add_u32 v{v}, v{vLane}, 4, s{sb}")

    def setup_a():
        a(f"s_lshl_b32 s{sA}, s{sV}, 15")
        a(f"s_add_u32 s{sA}, s{sA}, {W2F}")
        a(f"v_lshl_add_u32 v{vS2}, v{vLane}, 4, s{sA}")
        if NR:
            srd(a, sW2, 88, 256 * 1024)
            w2_addr(sV, vN2, [(vTB, sWB), (vTR2, sWL)])

    def setup_b():
        srd(a, sX, 76, N * 512)
        srd(a, sDBG, 6, 256)
        srd(a, sWS, 100, WS_BYTES)
        if opt.get('ctouch', 0):
            a(f"s_cmp_eq_u32 s{sW}, 0")
            a("s_cbranch_scc0 C_CT")
            a(f"v_mov_b32 v{vT0}, 0x1f0000")
            a(f"v_lshlrev_b32 v{vT1}, 20, v{vLane}")
            a("s_mov_b64 exec, 31")
            a(f"buffer_load_dword v31, v{vT0}, {sr(sWS,4)}, 0 offen")
            a(f"buffer_load_dword v30, v{vT1}, {sr(sX,4)}, 0 offen")
            a("s_mov_b64 exec, -1")
            a.label("C_CT")
        srd(a, sOUT, 4, N * 512)
        srd(a, sDST, 80, E * 4)
        srd(a, sSRC, 78, E * 4)

    def setup_c():
        a(f"v_lshrrev_b32 v{vT0}, 4, v{vLane}")
        a(f"v_lshrrev_b32 v{vT1}, 3, v{vLane}")
        a(f"v_xor_b32 v{vT0}, v{vT0}, v{vT1}")
        a(f"v_and_b32 v{vT0}, 1, v{vT0}")
        a(f"v_bfe_u32 v{vT1}, v{vLane}, 1, 2")
        a(f"v_lshl_or_b32 v{vT0}, v{vT0}, 2, v{vT1}")
        a(f"v_and_b32 v{vT1}, 1, v{vLane}")
        a(f"v_lshlrev_b32 v{vT1}, 4, v{vT1}")
        a("s_lshl_b32 s45, s45, 16")
        a("v_mov_b32 v40, s45")
        a("v_add_f32 v40, 1.0, v40")
        a("v_cvt_pk_bf16_f32 v40, v40, v40")
        a("v_and_b32 v40, 0xffff, v40")
        a("v_mov_b32 v41, 0x3f80")
        a(f"v_lshlrev_b32 v40, v{vT1}, v40")
        a(f"v_lshlrev_b32 v41, v{vT1}, v41")
        a(f"v_cmp_gt_u32 vcc, 32, v{vLane}")
        a("s_nop 1")
        a("v_cndmask_b32 v42, v40, 0, vcc")
        a("v_cndmask_b32 v40, 0, v40, vcc")
        for p in range(4):
            a(f"v_cmp_eq_u32 vcc, {p}, v{vT0}")
            a("s_nop 1")
            a(f"v_cndmask_b32 v{vA1+p}, 0, v41, vcc")
            a(f"v_cndmask_b32 v{vAS+p}, 0, v40, vcc")
            a(f"v_cndmask_b32 v{vAH+p}, 0, v42, vcc")

    def setup_d():
        a(f"v_lshrrev_b32 v{vSh}, 5, v{vLane}")
        a(f"v_lshlrev_b32 v{vSh}, 4, v{vSh}")
        a(f"v_and_b32 v{vT0}, 15, v{vLane}")
        a(f"v_lshlrev_b32 v{vFl}, 4, v{vT0}")
        a(f"v_lshl_or_b32 v{vFl}, v{vSh}, 4, v{vFl}")
        a(f"v_bfe_u32 v{vT0}, v{vLane}, 4, 1")
        a(f"v_lshl_or_b32 v{vFl}, v{vT0}, 3, v{vFl}")
        a(f"v_and_b32 v{vC16}, 31, v{vLane}")
        a(f"v_lshlrev_b32 v{vC16}, 4, v{vC16}")
        a(f"v_bfe_u32 v42, v{vLane}, 3, 2")
        a(f"s_lshl_b32 s{sA}, s{sW}, 4")
        a(f"v_lshl_add_u32 v42, v42, 2, s{sA}")
        a(f"v_and_b32 v43, {NW2H-1}, v{vLane}")
        a("v_lshlrev_b32 v43, 2, v43")
        a(f"s_lshl_b32 s{sA}, s{sW}, 9")
        a(f"v_lshl_add_u32 v41, v{vSh}, 8, v{vC16}")
        a(f"v_add_u32 v41, s{sA}, v41")
        a(f"s_mov_b32 s{sPC}, 0")
        a(f"s_mov_b32 s{sT}, {EMPTY}")
        a(f"v_lshrrev_b32 v{vT0}, 1, v{vLane}")
        a(f"v_lshlrev_b32 v{vT0}, 4, v{vT0}")
        a(f"v_and_b32 v{vT1}, 1, v{vLane}")
        a(f"v_or_b32 v{vT0}, v{vT0}, v{vT1}")
        a(f"s_lshl_b32 s{sNode}, s{sW}, 1")
        a(f"v_add_u32 v{vT0}, s{sNode}, v{vT0}")
        a(f"v_cmp_gt_u32 vcc, 6, v{vLane}")
        a(f"v_mov_b32 v{vT1}, 56")
        a("v_mov_b32 v62, 64")
        a(f"v_cndmask_b32 v{vT0}, v{vT1}, v{vT0}, vcc")
        a(f"v_lshl_add_u32 v61, v{vT0}, 2, v{vLB}")
        a(f"s_lshl_b32 s{sA}, s{sW}, 8")
        a(f"v_lshl_add_u32 v{vT1}, v{vLane}, 2, v{vLB}")
        a(f"v_add_u32 v60, s{sA}, v{vT1}")
        a("v_cndmask_b32 v62, 0, v62, vcc")
        set_xor()

    def set_xor():
        a(f"s_lshl_b32 s{sXor}, s{sNode}, 9")
        a(f"s_and_b32 s44, s{sNode}, 15")
        a("s_lshl_b32 s44, s44, 4")
        a(f"s_or_b32 s{sXor}, s{sXor}, s44")

    def cpf(r0, n):
        tot = opt.get('cpf', 0) + opt.get('cpf2', 0)
        a("s_and_b32 s4, s2, 7")
        a("s_mul_i32 s4, s4, 5000")
        a("s_lshr_b32 s5, s2, 3")
        a(f"s_mul_i32 s5, s5, {512 * tot}")
        a("s_add_u32 s4, s4, s5")
        for r in range(r0, r0 + n):
            a(f"s_add_u32 s5, s4, {NH * 1024 + NP * 2048 - 5 * 512 * tot + 512 * r}")
            a(f"v_add_u32 v{vT0}, s5, v0")
            a(f"v_subrev_u32 v{vT1}, 40000, v{vT0}")
            a(f"v_min_u32 v{vT0}, v{vT0}, v{vT1}")
            a(f"v_lshlrev_b32 v{vT0}, 7, v{vT0}")
            a(f"buffer_load_dword v{44+r}, v{vT0}, {sr(sX,4)}, 0 offen")
            vm.issue("cpf")

    def bias_to_lds():
        a(f"s_sub_u32 s{sA}, s{sW}, 2")
        a(f"s_cmp_lt_u32 s{sA}, 2")
        a("s_cbranch_scc0 C_NB")
        for x in range(4):
            a(f"v_lshlrev_b32 v{32+2*x}, 16, v{vBI+x}")
            a(f"v_and_b32 v{33+2*x}, 0xffff0000, v{vBI+x}")
        a(f"s_lshl_b32 s{sA}, s{sA}, 11")
        a(f"s_add_u32 s{sA}, s{sA}, {BIAS}")
        a(f"v_lshl_add_u32 v{vOff}, v{vLane}, 5, s{sA}")
        a(f"s_cmp_eq_u32 s{sW}, 3")
        a("s_cbranch_scc0 C_NB2")
        a("s_mov_b64 exec, 0xffffffff")
        a.label("C_NB2")
        a(f"ds_write_b128 v{vOff}, v[32:35]")
        a(f"ds_write_b128 v{vOff}, v[36:39] offset:16")
        a("s_mov_b64 exec, -1")
        a("s_waitcnt lgkmcnt(0)")
        a.label("C_NB")

    def tr_w2_ops(dst, vbase, off, tag, scr):
        ops = []
        for kk in range(2):
            for t in range(2):
                for hf in range(2):
                    ops.append(("ds", f"ds_read_b64_tr_b16 {vr(dst+8*kk+4*t+2*hf,2)}, v{vbase} offset:{off + kk*2048 + hf*1024 + 8*t}", tag))
        return ops

    def w2reg(k):
        return W2R + 16 * k if k < 4 else W + 16 * (k - 4)

    def w2_ops(k):
        ops = []
        for mt in range(4):
            ops.append(("vm2", [f"s_mov_b32 s{sA}, {k * 4096}"] if mt == 0 else [],
                        f"buffer_load_dwordx4 {vr(w2reg(k)+4*mt,4)}, v{vS2}, {sr(sWS,4)}, s{sA} offen offset:{mt*1024} sc1", f"w2_{k}"))
        return ops

    bars = []
    cur_q = [0]
    def emit(op):
        if isinstance(op, tuple):
            k = op[0]
            if k == "ds":
                a(op[1]); lg.issue(op[2]); return 1
            if k == "vm":
                a(op[1]); vm.issue(op[2]); return 1
            if k == "vm2":
                for l in op[1]:
                    a(l)
                a(op[2]); vm.issue(op[3]); return 1
            if k == "dma":
                for l in op[1]:
                    a(l)
                vm.issue(op[2]); return 2
            if k == "skip":
                return 2
            if k == "wl":
                return 1 if wait(ltag=op[1]) else 0
            if k == "wv":
                return 1 if wait(vtag=op[1]) else 0
            if k == "bar":
                wait(ltag=op[1])
                a("s_barrier")
                bars.append(cur_q[0])
                return 2
            raise ValueError(op)
        a(op)
        return 1

    def poll_issue():
        a(f"buffer_load_dword v40, v42, {sr(sDBG,4)}, 0 offen sc1")
        a(f"buffer_load_dword v39, v43, {sr(sDBG,4)}, 0 offen offset:128 sc1")
        a(f"buffer_load_dwordx4 v[32:35], v41, {sr(sWS,4)}, s{sLB} offen sc1")

    def unit_step(u):
        sl = u % 4
        hi = 0 if sl < 2 else 1
        off = (sl % 2) * 4096
        if not opt.get('nowait'):
            wait(vtag=f"u{u}")
        if opt.get('notr'):
            pass
        elif u < 8:
            for mt in range(4):
                for hf in range(2):
                    a(f"ds_read_b64_tr_b16 {vr(W+16*u+4*mt+2*hf,2)}, v{vTR+4*hi+mt} offset:{off + hf*512}")
                    lg.issue(f"t{u}")
        else:
            for op in tr_w2_ops(W2R + 16 * (u - 8), vTB if hi == 0 else vTR2, off, f"t{u}", [30, 31]):
                emit(op)
        nx = u + NINF
        if nx < NU:
            if nx - 4 >= 0:
                wait(ltag=f"t{nx-4}")
            dma_unit(nx)

    DEFER = opt.get('defer', 1)
    a("s_waitcnt lgkmcnt(0)")
    if not DEFER:
        setup_a()
        setup_b()
        setup_c()
        setup_d()
    if opt.get('sync0'):
        a("s_waitcnt vmcnt(0)")
        a("s_barrier")
    PU = opt.get('pu', 9)
    LATEF = opt.get('lateflag', 0)
    assert not LATEF or (NR == 0 and NBUB == 0)
    PU2 = opt.get('pu2', PU)
    SD = opt.get('sd', 5)
    def pollx():
        a(f"buffer_load_dword v40, v42, {sr(sDBG,4)}, 0 offen sc1")
        if not LATEF:
            a(f"buffer_load_dword v39, v43, {sr(sDBG,4)}, 0 offen offset:128 sc1")
            vm.issue("poll")
        else:
            a("v_mov_b32 v39, 1")
        a(f"buffer_load_dwordx4 v[32:35], v41, {sr(sWS,4)}, s{sLB} offen sc1")
        vm.issue("poll"); vm.issue("poll")
    def steps_from(u0, pu):
        for u in range(u0, NU):
            if PPRIO and u in (NU // 4, NU // 2 + 1):
                a(f"s_setprio {1 if u == NU // 4 else 0}")
            unit_step(u)
            {0: setup_a, 1: setup_b, 2: setup_c, SD: setup_d}.get(u, lambda: None)()
            if u == NINF:
                bias_to_lds()
            if pu is None and u == PU2:
                return
            if u == pu:
                pollx()
    if PU2 == PU:
        steps_from(0, PU)
    else:
        assert max(SD, NINF) <= PU2 < PU
        steps_from(0, None)
        a(f"s_cmp_lt_u32 s{sW}, {opt.get('ysplit', 4)}")
        a("s_cbranch_scc1 C_OLD")
        sv = (list(vm.q), list(lg.q))
        pollx()
        steps_from(PU2 + 1, -1)
        wait(vtag="poll")
        a("s_branch C_JOIN")
        vm.q, lg.q = sv
        a.label("C_OLD")
        steps_from(PU2 + 1, PU)
        wait(vtag="poll")
        a.label("C_JOIN")
    st(1)
    NPRE, NPOST = NR, 0
    wait(vtag="poll")
    a.label("POLL_CHK")
    a("v_lshrrev_b32 v16, 8, v33")
    a("v_lshrrev_b32 v17, 8, v35")
    a("v_xor_b32 v16, v16, v40")
    a("v_xor_b32 v17, v17, v40")
    a("v_or_b32 v16, v16, v17")
    a("v_alignbit_b32 v26, v35, v34, 20")
    a(f"v_cmp_ne_u32 {sr(sM,2)}, 0, v16")
    a("v_and_b32 v26, 0xfffff, v26")
    a("v_min_u32 v17, v40, v39")
    a(f"v_cmp_eq_u32 {sr(sM+2,2)}, 0, v17")
    a(f"v_cmp_ne_u32 vcc, s{sT}, v26")
    a("s_and_b32 s5, vcc_lo, 0x80808080")
    a("s_lshr_b32 s5, s5, 7")
    a("s_mul_i32 s5, s5, 255")
    a("s_mov_b32 s4, -1")
    a(f"s_and_b64 {sr(sM,2)}, {sr(sM,2)}, s[4:5]")
    a(f"s_or_b64 {sr(sM,2)}, {sr(sM,2)}, {sr(sM+2,2)}")
    a("s_cbranch_scc1 POLL_RETRY")
    a("v_and_b32 v20, 0xfffff, v32")
    a("v_alignbit_b32 v22, v33, v32, 20")
    a("v_and_b32 v22, 0xfffff, v22")
    a("v_and_b32 v24, 0xfffff, v34")
    a.label("POLL_OK")
    vm.clear()
    st(2)
    a(f"s_add_u32 s6, s3, s{sNode}")
    a("s_lshl_b32 s6, s6, 9")
    a(f"v_lshl_add_u32 v28, v{vLane}, 4, s6")
    a(f"buffer_load_dwordx4 {vr(vSF,4)}, v28, {sr(sX,4)}, 0 offen")
    a("v_add_u32 v29, 8192, v28")
    a(f"buffer_load_dwordx4 {vr(vSF+4,4)}, v29, {sr(sX,4)}, 0 offen")
    a("v_add_u32 v30, 16384, v28")
    a(f"buffer_load_dwordx4 {vr(vSF+8,4)}, v30, {sr(sX,4)}, 0 offen")
    a(f"v_mov_b32 v16, s{sT}")
    a("v_cndmask_b32 v20, v16, v20, s[4:5]")
    a(f"s_mov_b32 s4, {MARK}")
    a("v_mov_b32 v41, 1")
    ent = [20, 22, 24, 26]
    for k in range(4):
        a(f"v_bfe_u32 v{ent[k]+1}, v{ent[k]}, 14, 6")
        a(f"v_lshl_add_u32 v{16+k}, v{ent[k]+1}, 2, v{vLB}")
    for k in range(4):
        a(f"v_cmpx_gt_u32 vcc, s4, v{ent[k]}")
        a(f"ds_add_rtn_u32 v{16+k}, v{16+k}, v41 offset:{CNT-LIST}")
        a(f"s_mov_b64 {sr(sM+2*k,2)}, exec")
    a("s_mov_b64 exec, -1")
    a("v_cmp_eq_u32 vcc, s4, v20")
    a("s_and_saveexec_b64 s[6:7], vcc")
    a(f"ds_write_b32 v{vLB}, v41 offset:{FLAG-LIST}")
    a("s_mov_b64 exec, -1")
    for k in range(4):
        a(f"v_and_b32 v{ent[k]}, 0x3fff, v{ent[k]}")
        a(f"v_lshl_add_u32 v{ent[k]+1}, v{ent[k]+1}, 7, v{vLB}")
    a("s_waitcnt lgkmcnt(0)")
    for k in range(4):
        a(f"v_min_u32 v{16+k}, 63, v{16+k}")
        a(f"v_lshl_add_u32 v{ent[k]+1}, v{16+k}, 1, v{ent[k]+1}")
    for k in range(4):
        a(f"s_mov_b64 exec, {sr(sM+2*k,2)}")
        a(f"ds_write_b16 v{ent[k]+1}, v{ent[k]}")
    a("s_mov_b64 exec, -1")
    lg.clear()
    vL = [vSeq, 59, 60]
    vCnt = 61
    sFlush, sJ, sEnd, sLeft = sMask, sMask + 1, sT, sPC
    a(f"s_mov_b32 s{sFlush}, 0")
    a(f"s_mov_b32 s{sJ}, 0")
    a(f"s_mov_b32 s{sPI}, 0")
    a(f"s_mov_b32 s{sLeft}, {NPW}")
    if LATEF:
        a("v_mov_b32 v64, v43")
        a(f"buffer_load_dword v63, v43, {sr(sDBG,4)}, 0 offen offset:128 sc1")
    NBUB = max(NBUB, NPRE + NPOST)
    assert NBUB <= 3
    for k in range(NPRE + NPOST, NBUB):
        for op in w2_ops(k):
            emit(op)
    a("s_waitcnt lgkmcnt(0)")
    for _ in range(opt.get('dly_g', 0)):
        a("s_sleep 64")
    a("s_barrier")
    a(f"ds_read_b32 v{vCnt}, v61 offset:{CNT-LIST}")
    for i in range(3):
        a(f"ds_read_b32 v{vL[i]}, v60 offset:{2048*i}")
    GPRIO = opt.get('gprio', 1)
    if GPRIO:
        a("s_setprio 3")
    a("s_waitcnt lgkmcnt(2)")
    a(f"v_cmp_gt_u32 vcc, v{vCnt}, v62")
    a(f"v_add_u32 v{vCnt}, 1, v{vCnt}")
    a(f"v_lshrrev_b32 v{vCnt}, 1, v{vCnt}")
    a(f"v_max_u32 v{vCnt}, 1, v{vCnt}")
    a("s_cmp_lg_u64 vcc, 0")
    a("s_cbranch_scc1 M_SLOW")
    a(f"v_readlane_b32 s{sEnd}, v{vCnt}, 0")
    a("s_waitcnt lgkmcnt(0)")
    st(3)

    def flush():
        a(f"v_xor_b32 v{vT0}, s{sXor}, v{vFl}")
        a(f"v_cvt_pk_bf16_f32 v14, v{vAcc}, v{vAcc+1}")
        a(f"v_cvt_pk_bf16_f32 v15, v{vAcc+2}, v{vAcc+3}")
        a(f"ds_write_b64 v{vT0}, v[14:15] offset:{HH}")
        a(f"s_and_b32 s4, s{sNode}, 1")
        a("s_cselect_b64 s[6:7], -1, 0")
        for x in range(4):
            a(f"v_swap_b32 v{vAS+x}, v{vAH+x}")
        for x in range(8):
            a(f"v_cndmask_b32 v{vSF+x}, v{vSF+x}, v{vSF+4+x}, s[6:7]")
        a("s_mul_i32 s4, s4, 14")
        a(f"s_add_u32 s{sNode}, s{sNode}, s4")
        a(f"s_add_u32 s{sNode}, s{sNode}, 1")
        set_xor()

    acc = vr(vAcc, 4)
    def mf_norm(s):
        a(f"v_mfma_f32_16x16x32_bf16 {acc}, {vr(vA1,4)}, {vr(RS(s),4)}, {acc}")
    def mf_first(s):
        a(f"v_mfma_f32_16x16x32_bf16 {acc}, {vr(vAS,4)}, {vr(vSF,4)}, 0")
        mf_norm(s)
    def issue(s):
        a(f"v_bfe_u32 v{vOff}, s{sId}, v{vSh}, 16")
        a(f"v_lshl_add_u32 v{vOff}, v{vOff}, 9, v{vC16}")
        a(f"buffer_load_dwordx4 {vr(RS(s),4)}, v{vOff}, {sr(sX,4)}, 0 offen")
    swn = [0]
    def switch(s, lab_exit):
        a(f"s_bitset1_b32 s{sFlush}, {s}")
        a(f"s_add_u32 s{sJ}, s{sJ}, 1")
        a(f"s_cmp_eq_u32 s{sJ}, {NPW}")
        a(f"s_cbranch_scc1 {lab_exit}")
        a(f"v_readlane_b32 s{sEnd}, v{vCnt}, s{sJ}")
        a(f"s_and_b32 s{sPI}, s{sJ}, 1")
        a(f"s_cselect_b32 s4, 0, -1")
        a(f"s_mov_b32 s5, s4")
        a(f"s_lshl_b32 s{sPI}, s{sPI}, 5")
        a(f"v_cndmask_b32 v{vL[0]}, v{vL[0]}, v{vL[1]}, s[4:5]")
        a(f"v_cndmask_b32 v{vL[1]}, v{vL[1]}, v{vL[2]}, s[4:5]")
        a(f"s_add_u32 s{sEnd}, s{sEnd}, s{sPI}")
        if GPRIO:
            k = swn[0]; swn[0] += 1
            a(f"s_cmp_lt_u32 s{sJ}, 3")
            a(f"s_cbranch_scc1 SWP{k}")
            a("s_setprio 2")
            a(f"s_cmp_lt_u32 s{sJ}, 4")
            a(f"s_cbranch_scc1 SWP{k}")
            a("s_setprio 1")
            a(f"s_cmp_lt_u32 s{sJ}, 5")
            a(f"s_cbranch_scc1 SWP{k}")
            a("s_setprio 0")
            a.label(f"SWP{k}")

    for s in range(D):
        a.label(f"F_{s}")
        a(f"v_readlane_b32 s{sId}, v{vL[0]}, s{sPI}")
        a(f"s_add_u32 s{sPI}, s{sPI}, 1")
        a(f"s_cmp_eq_u32 s{sPI}, s{sEnd}")
        issue(s)
        a(f"s_cbranch_scc1 F_SW{s}")
    a("s_branch G_F0")
    for s in range(D):
        a.label(f"F_SW{s}")
        switch(s, "X_F0")
        a(f"s_branch {'F_%d' % (s+1) if s + 1 < D else 'G_F0'}")
    for s in range(D):
        n = (s + 1) % D
        a.label(f"G_N{s}")
        a(f"s_waitcnt vmcnt({D-1})")
        a(f"v_readlane_b32 s{sId}, v{vL[0]}, s{sPI}")
        mf_norm(s)
        a.label(f"G_C{s}")
        a(f"s_add_u32 s{sPI}, s{sPI}, 1")
        a(f"s_bitcmp1_b32 s{sFlush}, {s}")
        issue(s)
        a(f"s_cbranch_scc1 G_FL{s}")
        a(f"s_cmp_eq_u32 s{sPI}, s{sEnd}")
        a(f"s_cbranch_scc1 G_SN{s}")
        if n == 0:
            a("s_branch G_N0")
    for s in range(D):
        n = (s + 1) % D
        a.label(f"G_SN{s}")
        switch(s, f"X_N{n}")
        a(f"s_branch G_N{n}")
    for s in range(D):
        n = (s + 1) % D
        a.label(f"G_FL{s}")
        a(f"s_bitset0_b32 s{sFlush}, {s}")
        a(f"s_sub_u32 s{sLeft}, s{sLeft}, 1")
        a("s_nop 0")
        flush()
        a(f"s_cmp_eq_u32 s{sPI}, s{sEnd}")
        a(f"s_cbranch_scc0 G_F{n}")
        switch(s, f"X_F{n}")
        a.label(f"G_F{n}")
        a(f"s_waitcnt vmcnt({D-1})")
        a(f"v_readlane_b32 s{sId}, v{vL[0]}, s{sPI}")
        mf_first(n)
        a(f"s_branch G_C{n}")
    for s in range(D):
        a.label(f"X_N{s}")
        a("s_waitcnt vmcnt(0)")
        a(f"s_branch T_N{s}")
        a.label(f"X_F{s}")
        a("s_waitcnt vmcnt(0)")
        a(f"s_branch T_F{s}")
    for s in range(D):
        n = (s + 1) % D
        a.label(f"T_N{s}")
        mf_norm(s)
        a.label(f"T_C{s}")
        a(f"s_bitcmp1_b32 s{sFlush}, {s}")
        a(f"s_cbranch_scc1 T_FL{s}")
        if n == 0:
            a(f"s_cmp_eq_u32 s{sFlush}, 0")
            a("s_cbranch_scc1 M_GDONE")
            a("s_branch T_N0")
    for s in range(D):
        n = (s + 1) % D
        a.label(f"T_FL{s}")
        a(f"s_bitset0_b32 s{sFlush}, {s}")
        a(f"s_sub_u32 s{sLeft}, s{sLeft}, 1")
        a("s_nop 4")
        flush()
        a(f"s_cmp_eq_u32 s{sLeft}, 0")
        a(f"s_cbranch_scc1 M_GDONE")
        a.label(f"T_F{n}")
        mf_first(n)
        a(f"s_branch T_C{n}")

    a.label("POLL_RETRY")
    a(f"s_add_u32 s{sPC}, s{sPC}, 1")
    a(f"s_cmp_lt_u32 s{sPC}, {opt.get('spin', 30000)}")
    a("s_cbranch_scc0 POLL_GIVEUP")
    a(f"s_cmp_eq_u32 s{sPC}, 1")
    a("s_cbranch_scc1 POLL_NOSLEEP")
    a.label("POLL_SLEEP")
    a(f"s_sleep {opt.get('psleep', 4)}")
    a.label("POLL_NOSLEEP")
    a(f"s_cmp_eq_u64 {sr(sM+2,2)}, 0")
    a("s_cbranch_scc1 POLL_CELLS")
    a(f"buffer_load_dword v40, v42, {sr(sDBG,4)}, 0 offen sc1")
    if not LATEF:
        a(f"buffer_load_dword v39, v43, {sr(sDBG,4)}, 0 offen offset:128 sc1")
    a.label("POLL_CELLS")
    a(f"buffer_load_dwordx4 v[32:35], v41, {sr(sWS,4)}, s{sLB} offen sc1")
    a("s_waitcnt vmcnt(0)")
    a("s_branch POLL_CHK")
    a.label("POLL_GIVEUP")
    a(f"s_cmp_lt_u32 s{sPC}, {8 * opt.get('spin', 30000)}")
    a("s_cbranch_scc0 POLL_GO")
    a("v_cmp_eq_u32 vcc, 0, v39")
    a("s_cmp_lg_u64 vcc, 0")
    a("s_cbranch_scc1 POLL_SLEEP")
    a.label("POLL_GO")
    a(f"v_mov_b32 v20, {MARK}")
    a("s_mov_b64 s[4:5], -1")
    a("s_branch POLL_OK")

    if LATEF:
        a.label("FLG_RETRY")
        a(f"s_add_u32 s{sPC}, s{sPC}, 1")
        a(f"s_cmp_lt_u32 s{sPC}, {8 * opt.get('spin', 30000)}")
        a("s_cbranch_scc0 FLG_OK")
        a("s_sleep 8")
        a(f"buffer_load_dword v63, v64, {sr(sDBG,4)}, 0 offen offset:128 sc1")
        a("s_waitcnt vmcnt(0)")
        a("s_branch FLG_CHK")

    a.label("M_SLOW")
    SA = RING + 8
    a("s_waitcnt vmcnt(0) lgkmcnt(0)")
    a(f"v_mov_b32 v{vT0}, 0x7f000000")
    a(f"v_cmp_gt_u32 vcc, 32, v{vLane}")
    a("s_nop 1")
    a(f"v_cndmask_b32 v{vSeq}, v{vT0}, v{vC16}, vcc")
    a(f"s_add_u32 s40, s3, s{sNode}")
    for j in range(NPW):
        a(f"s_add_u32 s4, s40, {16*(j//2) + j%2}")
        a("s_lshl_b32 s4, s4, 9")
        a(f"v_add_u32 v{vOff}, s4, v{vSeq}")
        a(f"buffer_load_dwordx4 {vr(RING,4)}, v{vOff}, {sr(sX,4)}, 0 offen")
        a("s_waitcnt vmcnt(0)")
        a(f"v_mfma_f32_16x16x32_bf16 {vr(SA+4*j,4)}, {vr(vAS,4)}, {vr(RING,4)}, 0")
        a("s_nop 7")
    a(f"v_lshlrev_b32 v{vT0}, 2, v{vLane}")
    a("s_mov_b32 s41, 0")
    a.label("S_LOOP")
    a(f"buffer_load_dword v{RING+4}, v{vT0}, {sr(sDST,4)}, s41 offen")
    a(f"buffer_load_dword v{RING+5}, v{vT0}, {sr(sSRC,4)}, s41 offen")
    a("s_waitcnt vmcnt(0)")
    a(f"v_subrev_u32 v{RING+4}, s40, v{RING+4}")
    a(f"v_and_b32 v{RING+6}, 0xffffffce, v{RING+4}")
    a(f"v_cmp_eq_u32 vcc, 0, v{RING+6}")
    a(f"v_cmp_gt_u32 s[42:43], 48, v{RING+4}")
    a("s_nop 3")
    a("s_and_b64 s[42:43], s[42:43], vcc")
    a.label("S_IN")
    a("s_cmp_eq_u64 s[42:43], 0")
    a("s_cbranch_scc1 S_NEXT")
    a("s_ff1_i32_b64 s44, s[42:43]")
    a("s_bitset0_b64 s[42:43], s44")
    a(f"v_readlane_b32 s45, v{RING+4}, s44")
    a(f"v_readlane_b32 s46, v{RING+5}, s44")
    a("s_nop 3")
    a("s_lshl_b32 s46, s46, 9")
    a(f"v_add_u32 v{vOff}, s46, v{vSeq}")
    a(f"buffer_load_dwordx4 {vr(RING,4)}, v{vOff}, {sr(sX,4)}, 0 offen")
    a("s_waitcnt vmcnt(0)")
    for j in range(NPW):
        if j < NPW - 1:
            a(f"s_cmp_eq_u32 s45, {16*(j//2) + j%2}")
            a(f"s_cbranch_scc0 S_J{j+1}")
        a(f"v_mfma_f32_16x16x32_bf16 {vr(SA+4*j,4)}, {vr(vA1,4)}, {vr(RING,4)}, {vr(SA+4*j,4)}")
        a("s_nop 7")
        a("s_branch S_IN")
        if j < NPW - 1:
            a.label(f"S_J{j+1}")
    a.label("S_NEXT")
    a("s_add_u32 s41, s41, 256")
    a(f"s_cmp_lt_u32 s41, {E*4}")
    a("s_cbranch_scc1 S_LOOP")
    for j in range(NPW):
        for r in range(4):
            a(f"v_mov_b32 v{vAcc+r}, v{SA+4*j+r}")
        flush()

    a.label("M_GDONE")
    vm.clear(); lg.clear()
    st(4)
    if LATEF:
        a(f"s_mov_b32 s{sPC}, 0")
        a.label("FLG_CHK")
        a("v_cmp_eq_u32 vcc, 0, v63")
        a("s_cmp_lg_u64 vcc, 0")
        a("s_cbranch_scc1 FLG_RETRY")
        a.label("FLG_OK")
    NE = min(4, NBUB + opt.get('early', 2))
    for k in range(NBUB, NE):
        for op in w2_ops(k):
            emit(op)
    ACP = [16, 32, 16, W + 64, W + 72, W + 80]
    BFR = [48, 52, 58, 10]
    vRd = [2, 3, 4, 7, 8, 9, 14, 15]
    vBA, vWr, vRB2, vOut, vBA2 = 1, 57, 62, 5, 6
    tJ, tQ = 48, 49
    PRE = 3
    a(f"v_and_b32 v{tJ}, 15, v{vLane}")
    a(f"v_lshrrev_b32 v{tQ}, 4, v{vLane}")
    a(f"s_lshl_b32 s4, s{sV}, 8")
    a(f"s_add_u32 s4, s4, {BIAS}")
    a(f"v_lshl_add_u32 v{vBA}, v{tQ}, 4, s4")
    def bias_ops(p):
        A = ACP[p]
        if p < 3:
            return [("ds", f"ds_read_b128 {vr(A+4*mt,4)}, v{vBA} offset:{64*mt}", f"bias{p}") for mt in range(4)]
        return [("ds", f"ds_read_b128 {vr(A+4*mt,4)}, v{vBA2} offset:{16*mt}", f"bias{p}") for mt in range(2)]
    for op in bias_ops(0) + bias_ops(1):
        emit(op)
    a(f"s_lshl_b32 s4, s{sRot}, 2")
    a(f"v_xor_b32 v{vRB2}, v{tQ}, v{tJ}")
    a(f"v_xor_b32 v{vRd[0]}, s4, v{vRB2}")
    a(f"v_lshlrev_b32 v{vRd[0]}, 4, v{vRd[0]}")
    a(f"v_lshl_or_b32 v{vRd[0]}, v{tJ}, 9, v{vRd[0]}")
    for k in range(1, 8):
        a(f"v_xor_b32 v{vRd[k]}, {64*k}, v{vRd[0]}")
    a(f"v_lshlrev_b32 v{vRB2}, 4, v{vRB2}")
    a(f"v_lshl_or_b32 v{vRB2}, v{tJ}, 10, v{vRB2}")
    a(f"s_lshl_b32 s4, s{sV}, 3")
    a(f"v_or_b32 v{vWr}, s4, v{tQ}")
    a(f"v_xor_b32 v{vWr}, v{vWr}, v{tJ}")
    a(f"v_lshlrev_b32 v{vWr}, 4, v{vWr}")
    a(f"v_lshl_or_b32 v{vWr}, v{tJ}, 10, v{vWr}")
    a(f"s_lshl_b32 s4, s{sV}, 7")
    a(f"s_add_u32 s4, s4, {BIAS + 2048}")
    a(f"v_lshl_add_u32 v{vBA2}, v{tQ}, 5, s4")
    a("s_lshl_b32 s6, s3, 9")
    a(f"s_lshl_b32 s7, s{sV}, 6")
    a("s_add_u32 s6, s6, s7")
    a(f"v_lshlrev_b32 v{vOut}, 4, v{tQ}")
    a(f"v_lshl_or_b32 v{vOut}, v{tJ}, 9, v{vOut}")
    a(f"v_add_u32 v{vOut}, s6, v{vOut}")
    vR2 = [vRB2, 0, 63, vRd[0]]
    a(f"v_xor_b32 v{vR2[1]}, 64, v{vRB2}")
    a(f"v_xor_b32 v{vR2[2]}, 128, v{vRB2}")
    a("s_waitcnt lgkmcnt(0)")
    lg.clear()
    a("s_barrier")
    st(5)

    steps = [(p, s) for p in range(3) for s in range(8)]
    steps += [(p, s) for h in range(2) for p in (3, 4, 5) for s in range(4 * h, 4 * h + 4)]
    SI = {ps: i for i, ps in enumerate(steps)}
    frags = []
    for i, (p, s) in enumerate(steps):
        frags += [(i, 0)] if p < 3 else [(i, 0), (i, 1)]
    B2R = [32, 36, 40, 44]
    def fbuf(f):
        i, kk = frags[f]
        if i < 24 or kk == 0:
            return BFR[i % 4]
        return B2R[i % 4]
    def rd_op(f):
        i, kk = frags[f]
        p, s = steps[i]
        if p < 3:
            return ("ds", f"ds_read_b128 {vr(fbuf(f),4)}, v{vRd[s]} offset:{HH + p*8192}", f"b_{i}")
        ks = 2 * s + kk
        return ("ds", f"ds_read_b128 {vr(fbuf(f),4)}, v{vR2[ks%4]} offset:{ACT + (p-3)*16384 + (ks//4)*256}", f"b_{i}")
    FI = {fk: f for f, fk in enumerate(frags)}
    def epi_a(p):
        A = ACP[p]
        ops = []
        if p < 3:
            for aa in range(2):
                m = A + 8 * aa
                ops.append(f"v_cvt_pk_bf16_f32 v{m}, v{m}, v{m+1}")
                ops.append(f"v_cvt_pk_bf16_f32 v{m+1}, v{m+2}, v{m+3}")
                ops.append(f"v_cvt_pk_bf16_f32 v{m+2}, v{m+4}, v{m+5}")
                ops.append(f"v_cvt_pk_bf16_f32 v{m+3}, v{m+6}, v{m+7}")
                for x in range(4):
                    ops.append(f"v_pk_max_i16 v{m+x}, v{m+x}, 0")
                if aa == 1:
                    ops.append(f"v_xor_b32 v{m+4}, 64, v{vWr}")
                    ops.append(("ds", f"ds_write_b128 v{m+4}, {vr(m,4)} offset:{ACT + p*16384}", f"aw{p}"))
                else:
                    ops.append(("ds", f"ds_write_b128 v{vWr}, {vr(m,4)} offset:{ACT + p*16384}", f"aw{p}"))
        else:
            if p > 3:
                ops.append(f"v_add_u32 v{vOut}, 8192, v{vOut}")
            for x in range(4):
                ops.append(f"v_cvt_pk_bf16_f32 v{A+x}, v{A+2*x}, v{A+2*x+1}")
            ops.append(("vm", f"buffer_store_dwordx4 {vr(A,4)}, v{vOut}, {sr(sOUT,4)}, 0 offen" + ["", " sc1", " nt", " sc0 sc1", " sc1 nt"][opt.get('ost', 0)], "out"))
        return ops

    G = lambda p, s, mt=0: SI[(p, s)] * 4 + mt
    GI = lambda i, mt=0: i * 4 + mt
    first_rd = lambda p: SI[(p, 0)] - PRE
    done = lambda p: SI[(p, 7)] + 1
    streams = []
    def add(name, ops, start=0, dl=10**9, after=None, pri=0):
        streams.append(dict(name=name, ops=list(ops), start=start, dl=dl, after=after or [], done=None, pri=pri))
    lastw = None
    WSP = opt.get('wsp', 4)
    for k in range(NE, 8):
        for j, o in enumerate(w2_ops(k)):
            nm = f"w{k}_{j}"
            add(nm, [o], 1 if k < 4 else G(2, k - 4, 3), GI(SI[(3, k)] - 2, 3), after=[(lastw, WSP)] if lastw else [], pri=-1000)
            lastw = nm
    last = len(steps) - 1
    add("e0", epi_a(0), G(1, 1, 2), G(1, 6, 3))
    add("bias2", [("wl", "aw0")] + bias_ops(2), 0, G(1, 7, 2), after=[("e0", 1)])
    add("e1", epi_a(1), G(2, 1, 0), GI(first_rd(3) - 1, 1))
    add("bar1", [("bar", ["aw0", "aw1"])], 0, GI(first_rd(3) - 1, 3), after=[("e1", 2)])
    add("a2", [f"v_xor_b32 v{vR2[3]}, 192, v{vRB2}"], G(2, 0, 1), GI(first_rd(3) - 1, 3))
    add("bias3", bias_ops(3) + bias_ops(4), G(2, 5, 1), G(2, 7, 1))
    add("bias5", bias_ops(5), G(2, 6, 1), GI(SI[(5, 0)] - 1, 1))
    add("e2", epi_a(2), G(3, 1, 0), GI(first_rd(5) - 1, 1))
    add("bar2", [("bar", ["aw2"])], 0, GI(first_rd(5) - 1, 3), after=[("e2", 2), ("bar1", 0)])
    add("e3", epi_a(3), GI(done(3) + 1, 2), GI(done(3) + 3, 3))
    add("e4", epi_a(4), GI(done(4) + 1, 2), GI(last, 3), after=[("e3", 0)])
    byname = {s_['name']: s_ for s_ in streams}

    def ready(s_, g, force=False):
        if not s_['ops']:
            return False
        if g < s_['start']:
            return False
        for nm, dly in s_['after']:
            d = byname[nm]['done']
            if d is None or (g < d + dly and not force):
                return False
        return True
    def force_finish(s_, g):
        for nm, _ in s_['after']:
            force_finish(byname[nm], g)
        if s_['ops']:
            assert g >= s_['start'], (s_['name'], g)
            while s_['ops']:
                emit(s_['ops'].pop(0))
            s_['done'] = g
    BUD = opt.get('bud', 3)
    for i in range(PRE):
        emit(rd_op(i))
    segs = None
    if bars_hint is not None and opt.get('mprio', 1):
        pts = [0] + [b + 1 for b in bars_hint] + [len(steps)]
        segs = {}
        for x, y in zip(pts[:-1], pts[1:]):
            L = y - x
            for k in range(4):
                segs[x + k * L // 4] = 3 - k
    for i, (p, s) in enumerate(steps):
        cur_q[0] = i
        if segs and i in segs:
            a(f"s_setprio {segs[i]}")
        tags = [f"b_{i}"]
        if s == 0:
            tags.append(f"bias{p}")
        wait(vtag=f"w2_{s}" if p == 3 else None, ltag=tags)
        for mt in range(4):
            g = i * 4 + mt
            if p < 3:
                A = ACP[p] + 4 * mt
                a(f"v_mfma_f32_16x16x32_bf16 {vr(A,4)}, {vr(W+16*s+4*mt,4)}, {vr(fbuf(FI[(i,0)]),4)}, {vr(A,4)}")
            else:
                A = ACP[p] + 4 * (mt % 2)
                a(f"v_mfma_f32_16x16x32_bf16 {vr(A,4)}, {vr(w2reg(s)+4*mt,4)}, {vr(fbuf(FI[(i,mt//2)]),4)}, {vr(A,4)}")
            B_ = opt.get('bud23', 4) if 16 <= i < 32 else BUD
            bud = (B_ + (g % 2)) // 2
            if mt == 3:
                bud = min(bud, opt.get('bud3', 1))
            if mt in (0, 2) and (i + PRE, mt // 2) in FI:
                bud -= emit(rd_op(FI[(i + PRE, mt // 2)]))
            while bud > 0:
                cand = [s_ for s_ in streams if ready(s_, g)]
                if not cand:
                    break
                s_ = min(cand, key=lambda z: z['dl'] - len(z['ops']) + z['pri'])
                bud -= emit(s_['ops'].pop(0))
                if not s_['ops']:
                    s_['done'] = g
            for s_ in streams:
                if s_['ops'] and s_['dl'] <= g:
                    if opt.get('verbose'):
                        print("forced", s_['name'], len(s_['ops']), "ops at", p, s, mt, file=sys.stderr)
                    force_finish(s_, g)
        if p == 2 and s == 7:
            st(6)
    assert all(not s_['ops'] for s_ in streams)
    st(10)
    a("s_nop 6")
    for op in epi_a(5):
        emit(op)
    if opt.get('lst'):
        a("s_waitcnt vmcnt(0)")
        a(("s_memrealtime" if not opt.get('cyc') else "s_memtime") + " s[40:41]")
        srd(a, 76, 100, 0x1000000)
        a("s_lshl_b32 s42, s2, 4")
        a(f"s_add_u32 s42, s42, s{sW}")
        a("s_lshl_b32 s42, s42, 7")
        a(f"s_add_u32 s42, s42, {STAMP_OFF}")
        a("v_mov_b32 v9, s42")
        a("s_waitcnt lgkmcnt(0)")
        a("s_mov_b64 exec, 1")
        for idx, r in list(LST.items()) + [(7, 40)]:
            a(f"v_mov_b32 v14, s{r}")
            a(f"v_mov_b32 v15, s{r+1}")
            a(f"buffer_store_dwordx2 v[14:15], v9, s[76:79], 0 offen offset:{idx*8}")
    if STAMP:
        a("s_waitcnt vmcnt(0)")
        st(7)
    if opt.get('amp') is not None:
        a("s_waitcnt vmcnt(0)")
        st(7)
        a("s_sub_u32 s99, s99, s98")
        a("s_lshl_b32 s99, s99, 3")
        a("s_min_u32 s99, s99, 100000")
        a("s_memrealtime s[96:97]")
        a("s_waitcnt lgkmcnt(0)")
        a("s_mov_b32 s98, s96")
        a.label("AMP_L")
        a("s_sleep 2")
        a("s_memrealtime s[96:97]")
        a("s_waitcnt lgkmcnt(0)")
        a("s_sub_u32 s96, s96, s98")
        a("s_cmp_lt_u32 s96, s99")
        a("s_cbranch_scc1 AMP_L")
    a("s_endpgm")

    a.label("AUX")
    aux[0] = True
    vm.clear(); lg.clear()
    a("s_memrealtime s[96:97]")
    a(f"s_and_b32 s{sA}, s2, 7")
    a(f"s_mul_i32 s{sPI}, s{sA}, 5000")
    a(f"s_lshr_b32 s{sB}, s2, 3")
    a("s_waitcnt lgkmcnt(0)")
    if opt.get('stouch', 0):
        a("s_load_dword s40, s[78:79], 0")
        a("s_load_dword s41, s[100:101], 0xffffc")
        a("s_load_dword s42, s[6:7], 0xfc")
    srd(a, sDST, 80, E * 4)
    srd(a, sSRC, 78, E * 4)
    srd(a, sX, 76, N * 512)

    def xpf(first, stride, n, vd):
        for r in range(n):
            a(f"v_add_u32 v{vT0}, {first + r*stride}, v{vSeq}")
            a(f"v_subrev_u32 v{vT1}, 40000, v{vT0}")
            a(f"v_min_u32 v{vT0}, v{vT0}, v{vT1}")
            a(f"v_lshlrev_b32 v{vT0}, 7, v{vT0}")
            a(f"buffer_load_dword v{vd+r}, v{vT0}, {sr(sX,4)}, 0 offen")

    a(f"s_cmp_lt_u32 s2, {NPROD}")
    a("s_cbranch_scc1 PROD")
    stamp_setup()
    st(0)
    a(f"s_sub_u32 s{sB}, s{sB}, 4")
    a(f"s_lshl_b32 s{sB}, s{sB}, 9")
    a(f"s_add_u32 s{sPI}, s{sPI}, s{sB}")
    a(f"v_add_u32 v{vSeq}, s{sPI}, v0")
    a(f"s_sub_u32 s{sId}, s2, {NPROD}")
    a(f"s_cmp_lt_u32 s{sId}, {NW2H}")
    a("s_cbranch_scc0 H_PF")
    srd(a, sW2, 88, 256 * 1024)
    srd(a, sDBG, 6, 256)
    srd(a, sWS, 100, WS_BYTES)
    a(f"s_lshl_b32 s{sWB}, s{sW}, 12")
    w2_addr(sW, vS2, [(vTB, sWB)])
    a(f"s_lshl_b32 s{sA}, s{sId}, 15")
    for i in range(4):
        a(f"s_add_u32 m0, s{sWB}, {i*1024}")
        a(f"s_add_u32 s45, s{sA}, {i*8192}")
        a(f"buffer_load_dwordx4 v{vS2}, {sr(sW2,4)}, s45 offen lds")
    a(f"s_lshl_b32 s{sA}, s{sW}, 15")
    a(f"s_lshl_b32 s45, s{sId}, 12")
    a(f"s_add_u32 s{sA}, s{sA}, s45")
    a(f"s_add_u32 s{sA}, s{sA}, {W2F}")
    a(f"v_lshl_add_u32 v{vOff}, v{vLane}, 4, s{sA}")
    a("s_waitcnt vmcnt(0)")
    for op in tr_w2_ops(64, vTB, 0, "h", None):
        a(op[1])
    a("s_waitcnt lgkmcnt(0)")
    for mt in range(4):
        a(f"buffer_store_dwordx4 {vr(64+4*mt,4)}, v{vOff}, {sr(sWS,4)}, 0 offen offset:{mt*1024} sc1")
    a("s_waitcnt vmcnt(0)")
    a("s_barrier")
    a(f"s_cmp_eq_u32 s{sW}, 0")
    a("s_cbranch_scc0 H_PF")
    a(f"s_lshl_b32 s{sA}, s{sId}, 2")
    a(f"v_mov_b32 v{vT1}, s{sA}")
    a(f"v_mov_b32 v{vT0}, 1")
    a("s_mov_b64 exec, 1")
    a(f"buffer_store_dword v{vT0}, v{vT1}, {sr(sDBG,4)}, 0 offen offset:128 sc1")
    a("s_mov_b64 exec, -1")
    st(12)
    a.label("H_PF")
    xpf(0, 1024, NH, 16)
    if STAMP:
        a("s_waitcnt vmcnt(0)")
        st(13)
    a("s_endpgm")
    a.label("PROD")
    a(f"s_mul_i32 s{sA}, s2, {CH*4}")
    a(f"s_add_u32 s40, s{sA}, 8192")
    a(f"s_add_u32 s41, s{sA}, 16384")
    a(f"buffer_load_dwordx4 {vr(16,4)}, v{vT16}, {sr(sDST,4)}, s{sA} offen")
    a(f"buffer_load_dwordx4 {vr(24,4)}, v{vT16}, {sr(sDST,4)}, s40 offen")
    a(f"s_cmp_lt_u32 s{sW}, 4")
    a("s_cbranch_scc0 P_E2")
    a(f"buffer_load_dwordx4 {vr(32,4)}, v{vT16}, {sr(sDST,4)}, s41 offen")
    a(f"buffer_load_dwordx4 {vr(36,4)}, v{vT16}, {sr(sSRC,4)}, s41 offen")
    a.label("P_E2")
    vm.issue("dst")
    a(f"buffer_load_dwordx4 {vr(20,4)}, v{vT16}, {sr(sSRC,4)}, s{sA} offen")
    a(f"buffer_load_dwordx4 {vr(28,4)}, v{vT16}, {sr(sSRC,4)}, s40 offen")
    vm.issue("edges")
    srd(a, sDBG, 6, 256)
    srd(a, sWS, 100, CELLS_BYTES)
    a("v_lshrrev_b32 v46, 3, v0")
    a("v_and_b32 v47, 7, v0")
    a("v_lshlrev_b32 v50, 13, v46")
    a("v_lshl_or_b32 v50, v47, 4, v50")
    a(f"s_lshl_b32 s4, s2, 7")
    a(f"v_add_u32 v50, s4, v50")
    if opt.get('vtouch', 0):
        srd(a, sW1, 100, WS_BYTES)
        a(f"s_cmp_eq_u32 s{sW}, 6")
        a("s_cbranch_scc0 P_VT")
        a(f"v_mov_b32 v{vT0}, 0x1f0000")
        a(f"buffer_load_dword v60, v{vT0}, {sr(sW1,4)}, 0 offen")
        a.label("P_VT")
    vm.issue("edges")
    a(f"s_lshr_b32 s{sNode}, s96, 8")
    a(f"s_or_b32 s{sNode}, s{sNode}, 1")
    a(f"v_mov_b32 v51, {NONCE}")
    a(f"s_cmp_eq_u32 s{sW}, 7")
    a("s_cbranch_scc0 P_N1")
    a(f"v_mov_b32 v{vT0}, s{sNode}")
    a(f"s_lshl_b32 s4, s2, 2")
    a(f"v_mov_b32 v{vT1}, s4")
    a("s_mov_b64 exec, 1")
    a(f"buffer_store_dword v{vT0}, v{vT1}, {sr(sDBG,4)}, 0 offen sc1")
    a(f"ds_write_b32 v51, v{vT0}")
    a("s_mov_b64 exec, -1")
    a.label("P_N1")
    stamp_setup()
    st(0)
    a(f"v_mov_b32 v40, {EMPTY}")
    a("v_mov_b32 v41, v40")
    a("v_mov_b32 v42, v40")
    a("v_mov_b32 v43, v40")
    a(f"s_movk_i32 s4, {CST}")
    a(f"v_mov_b32 v55, {IMG}")
    a("v_mad_u32_u24 v56, v46, s4, v55")
    a("v_lshl_add_u32 v48, v47, 4, v56")
    a(f"v_add_u32 v49, {128*CST}, v48")
    def cp(i):
        return (48 + i // 2, (i % 2) * 64 * CST)
    for i in range(4):
        r, o = cp(i)
        a(f"ds_write_b128 v{r}, v[40:43] offset:{o}")
        a(f"ds_write_b128 v{r}, v[40:43] offset:{o + 128}")
    a(f"v_and_b32 v{vT0}, 255, v0")
    a(f"v_mad_u32_u24 v{vT1}, v{vT0}, s4, v55")
    a(f"v_lshlrev_b32 v{vT0}, 2, v{vT0}")
    a(f"ds_write_b32 v{vT0}, v{vT1} offset:{PCNT}")
    a("v_mov_b32 v44, 4")
    a(f"s_mov_b32 s{sT}, {-(48 << 14) & 0xffffffff}")
    a("v_lshlrev_b32 v45, 2, v46")
    a(f"v_mov_b32 v52, {MARK}")
    a(f"s_mov_b32 s{sA}, 43691")
    a(f"s_lshl_b32 s{sB}, s{sB}, 9")
    a(f"s_add_u32 s{sPI}, s{sPI}, s{sB}")
    a(f"v_add_u32 v{vSeq}, s{sPI}, v0")
    for i in range(4):
        a(f"v_add_u32 v{72+i}, {i*64*8192}, v50")
        a(f"v_add_u32 v{76+i}, {i*64*CST + 128}, v56")
    a(f"v_lshlrev_b32 v{vT0}, 2, v{vLane}")
    a(f"v_mad_u32_u24 v80, v{vT0}, s4, v55")
    a("v_add_u32 v80, 512, v80")
    a(f"v_lshlrev_b32 v84, 4, v{vLane}")
    a("s_waitcnt lgkmcnt(0)")
    a("s_barrier")
    a("ds_read_b32 v53, v51")
    a("s_waitcnt lgkmcnt(0)")
    a("v_lshlrev_b32 v53, 8, v53")
    if opt.get('ppf0', 0):
        xpf(NH * 1024 + NP * 2048, 2048, 1, 60)
        vm.issue("pf0")
    def w7(tag, k):
        n_ = vm.need(tag)
        a(f"s_cmp_eq_u32 s{sW}, 7")
        a(f"s_cbranch_scc1 P_W7{k}")
        a(f"s_waitcnt vmcnt({n_})")
        a.label(f"P_W7{k}")
        a(f"s_waitcnt vmcnt({n_ + 1})")
    w7("dst", 0)
    st(14)
    def bin_a(r):
        vd, vs, vb, va = 16 + 8 * r, 20 + 8 * r, 192 + 4 * r, 204 + 4 * r
        for k in range(4):
            a(f"v_mul_u32_u24 v{vb+k}, s{sA}, v{vd+k}")
            a(f"v_lshrrev_b32 v{vb+k}, 21, v{vb+k}")
            a(f"v_lshlrev_b32 v{va+k}, 2, v{vb+k}")
            a(f"ds_add_rtn_u32 v{va+k}, v{va+k}, v44 offset:{PCNT}")
    def bin_a2(r):
        vd, vs, vb, va = 16 + 8 * r, 20 + 8 * r, 192 + 4 * r, 204 + 4 * r
        for k in range(4):
            a(f"v_lshl_or_b32 v{vs+k}, v{vd+k}, 14, v{vs+k}")
            a(f"v_mad_i32_i24 v{vs+k}, v{vb+k}, s{sT}, v{vs+k}")
    def bin_b(r):
        vd, vs, vb, va = 16 + 8 * r, 20 + 8 * r, 192 + 4 * r, 204 + 4 * r
        for k in range(4):
            a(f"ds_write_b32 v{va+k}, v{vs+k}")
    bin_a(0)
    bin_a(1)
    a(f"s_cmp_lt_u32 s{sW}, 4")
    a("s_cbranch_scc0 P_R2")
    a(f"v_cmp_gt_u32 vcc, {CH//4 - 1024}, v0")
    a("s_and_saveexec_b64 s[4:5], vcc")
    bin_a(2)
    bin_a2(2)
    a("s_waitcnt lgkmcnt(0)")
    bin_b(2)
    a("s_mov_b64 exec, s[4:5]")
    a.label("P_R2")
    w7("edges", 1)
    bin_a2(0)
    bin_a2(1)
    a("s_waitcnt lgkmcnt(0)")
    bin_b(0)
    bin_b(1)
    a("s_waitcnt lgkmcnt(0)")
    a("s_barrier")
    st(15)
    a(f"ds_read_b128 v[88:91], v84 offset:{PCNT}")
    lg.issue("all")
    for i in range(4):
        r, o = cp(i)
        a(f"ds_read_b128 {vr(128+4*i,4)}, v{r} offset:{o}")
        lg.issue(f"c{i}")
    for i in range(4):
        r, o = cp(i)
        a(f"ds_read_b32 v{64+i}, v45 offset:{PCNT + i*256}")
        lg.issue(f"n{i}")
        a(f"ds_read_b128 {vr(144+4*i,4)}, v{r} offset:{o + 128}")
        lg.issue(f"d{i}")
    def pack(d):
        a(f"v_lshl_or_b32 v{d}, v{d+1}, 20, v{d}")
        a(f"v_lshrrev_b32 v{d+1}, 12, v{d+1}")
        a(f"v_or_b32 v{d+1}, v53, v{d+1}")
        a(f"v_lshl_or_b32 v{d+2}, v{d+3}, 20, v{d+2}")
        a(f"v_lshrrev_b32 v{d+3}, 12, v{d+3}")
        a(f"v_or_b32 v{d+3}, v53, v{d+3}")
    wait(ltag="all")
    for k in range(1, 4):
        a(f"v_subrev_u32 v{88+k}, {k*CST}, v{88+k}")
    a("v_max3_u32 v88, v88, v89, v90")
    a("v_max_u32 v88, v88, v91")
    a("v_cmp_gt_u32 vcc, v88, v80")
    a("s_cmp_lg_u64 vcc, 0")
    a("s_cbranch_scc1 P_OVF")
    a.label("P_OVR")
    for i in range(4):
        wait(ltag=f"c{i}")
        pack(128 + 4 * i)
        a(f"buffer_store_dwordx4 {vr(128+4*i,4)}, v{72+i}, {sr(sWS,4)}, 0 offen sc1")
    a("s_movk_i32 s6, 0x1000")
    for i in range(4):
        d = 144 + 4 * i
        wait(ltag=f"d{i}")
        a(f"v_cmp_le_u32 vcc, v{76+i}, v{64+i}")
        a("s_and_b64 exec, exec, vcc")
        a(f"s_cbranch_scc0 P_SK{i}")
        a(f"v_add_u32 v{76+i}, 128, v{76+i}")
        a(f"v_cmp_lt_u32 vcc, v{76+i}, v{64+i}")
        a("s_nop 1")
        a(f"v_cndmask_b32 v{d}, v{d}, v52, vcc")
        pack(d)
        a(f"buffer_store_dwordx4 {vr(d,4)}, v{72+i}, {sr(sWS,4)}, s6 offen sc1")
        a.label(f"P_SK{i}")
        a("s_mov_b64 exec, -1")
    if STAMP:
        st(1)
        a("s_waitcnt vmcnt(0)")
        st(2)
    a("s_barrier")
    if opt.get('ftouch', 1):
        srd(a, sW1, 100, WS_BYTES)
        a(f"v_and_b32 v{vT0}, {NW2H-1}, v{vLane}")
        a(f"v_lshlrev_b32 v{vT0}, 2, v{vT0}")
        a(f"buffer_load_dword v{vT1}, v{vT0}, {sr(sDBG,4)}, 0 offen offset:128 sc1")
        a(f"s_lshr_b32 s4, s2, 3")
        a("s_lshl_b32 s4, s4, 16")
        a(f"s_add_u32 s4, s4, {W2F}")
        a(f"v_lshlrev_b32 v{vT0}, 7, v0")
        a("s_waitcnt vmcnt(0)")
        a(f"v_cmp_eq_u32 vcc, 0, v{vT1}")
        a("s_cmp_lg_u64 vcc, 0")
        a("s_cbranch_scc1 P_NT")
        a(f"buffer_load_dword v60, v{vT0}, {sr(sW1,4)}, s4 offen sc1")
        a.label("P_NT")
    xpf(NH * 1024, 2048, NP, 16)
    if STAMP:
        a("s_waitcnt vmcnt(0)")
        st(13)
    a("s_endpgm")
    a.label("P_OVF")
    a("s_waitcnt lgkmcnt(0)")
    for i in range(4):
        a(f"v_mov_b32 v{128+4*i}, v52")
        a(f"v_mov_b32 v{64+i}, -1")
    a("s_branch P_OVR")
    a.label("M_END")
    a("s_endpgm")
    return LDS_TOTAL, bars


DOC = """
GIN layer, one fused kernel (generated by gen/gen21.py).  256 workgroups of 8 waves, one per CU:
  ids  0..31  producers : bin 5000 edges each by 48-node destination block (LDS counting), publish
              fixed-capacity cells in d_ws as 8-byte granules {2 x 20-bit entry, 24-bit launch tag}
              with sc1 stores; the tag is announced in d_debug[id].  Afterwards: L2 prefetch of x.
  ids 32..46  helpers   : 32..39 re-lay W2 into MFMA fragment order in d_ws (sc1 stores, drained,
              flag in d_debug[32+h]); all of them prefetch x into L2.
  ids 47..255 consumers : 48 nodes each.  W1 -> registers via LDS-DMA + transposing LDS reads,
              poll + sort their cells into per-node lists, gather x rows (two rows per load, summed
              in fp32 by one MFMA against a 0/1 selection matrix, self row scaled by bf16(1+eps)),
              then GEMM1 (+b1, relu) and GEMM2 (+b2) with bf16 MFMA.
  Any capacity overflow or hand-off timeout falls back to an exact scan of src/dst.
"""

def build(opt):
    name = "gather_scatter__isomorphism_gin_2__graph_kernel"
    _, bars = gen_main(Asm(), dict(opt, verbose=0), name)
    b = Asm()
    lds, bars2 = gen_main(b, opt, name, bars)
    assert bars == bars2
    a = Asm()
    a.raw(HEADER.rstrip())
    a.raw(f"; @launch grid=(256,1,1) block=(512,1,1) lds={lds}")
    a.raw('.amdgcn_target "amdgcn-amd-amdhsa--gfx950"')
    for l in DOC.strip().split("\n"):
        a.raw("; " + l)
    a.raw(".text")
    a.l += b.l
    a.raw('.section .rodata,"a"')
    a.raw(kd(name, 256, 102))
    return a.text()

if __name__ == "__main__":
    out = sys.argv[1]
    opt = {}
    for kv in sys.argv[2:]:
        k, v = kv.split("=")
        opt[k] = int(v)
    open(out, "w").write(build(opt))
```

```python
import sys
from gen2 import Asm, Ctr, vr, sr, srd, kd, HEADER

N = 10000
E = 160000
BN = 48
NBLK = 209
NPROD = 32
NHELP = 15
C0 = NPROD + NHELP
CH = E // NPROD
CELLS_BYTES = NBLK * 8192
W2F = 0x200000
WS_BYTES = W2F + 0x40000
STAMP_OFF = 0x400000
EMPTY = 63 << 14
MARK = 62 << 14
NW2H = 8
NPW = 6


def gen_main(a, opt, name, bars_hint=None):
    D = opt.get('depth', 8)
    NH = opt.get('nh', 8)
    NP = opt.get('np', 4)
    STAMP = opt.get('stamp')
    assert D <= 16
    HH = 0
    ACT = 24576
    WST = 73728
    LIST = 65536
    CNT = LIST + 6144
    FLAG = CNT + 56 * 4
    BIAS = WST + 65536
    LDS_TOTAL = BIAS + 3072
    IMG = 2048
    PCNT = 0
    NONCE = 1024
    CST = 528
    vLane, vC16, vSh, vSeq, vT0, vT1, vOff, vFl = 1, 2, 3, 4, 5, 6, 7, 8
    vAcc = 10
    RING = 16
    vA1, vAS = 48, 52
    RS = lambda s: RING + 4 * s if s < 8 else 68 + 4 * (s - 8)
    vS2, vT16, vLB, vTB = 56, 57, 58, 63
    W2R = 64
    vSF, vAH = 112, 124
    W = 128
    vS1 = 16
    vTR = 20
    vTR2 = 29
    vBI = 44
    sX, sWS, sOUT, sSRC, sDST, sB1, sB2, sW1, sW2, sDBG = 8, 12, 16, 20, 24, 28, 32, 64, 68, 72
    sW, sWB, sA, sB = 36, 37, 38, 39
    sLB, sRot, sWL, sV = 46, 47, 48, 49
    sPC, sPI, sT, sXor, sNode, sId = 50, 51, 52, 53, 54, 55
    sMask = 56
    sM = 76
    sST = 92

    vm = Ctr(63)
    lg = Ctr(15)
    aux = [False]

    LST = {0: 98, 1: 96, 2: 94, 3: 92, 4: 90, 5: 88, 6: 86, 10: 84}
    def st(idx):
        if opt.get('lst') and not aux[0]:
            if idx in LST:
                a(("s_memrealtime" if not opt.get('cyc') else "s_memtime") + f" {sr(LST[idx],2)}")
            return
        amp = opt.get('amp')
        pamp = opt.get('pamp')
        if pamp is not None and aux[0] and (idx == 0 or idx == pamp):
            a("s_memrealtime s[94:95]")
            a("s_waitcnt lgkmcnt(0)")
            lg.clear()
            a(f"s_mov_b32 s{98 if idx == 0 else 99}, s94")
        if amp is not None and not aux[0]:
            if idx == 0 or idx == amp:
                a("s_memrealtime s[96:97]")
                a("s_waitcnt lgkmcnt(0)")
                lg.clear()
                a(f"s_mov_b32 s{98 if idx == 0 else 99}, s96")
                if amp == 30:
                    a("s_mov_b32 s99, s96")
                    a("s_mov_b32 s98, s94")
            if idx == 2 and amp in (20, 21):
                for i in range(4):
                    a(f"v_readlane_b32 s{92+i}, v40, {16*i}")
                a("s_nop 3")
                op = "s_min_u32" if amp == 20 else "s_max_u32"
                a(f"{op} s92, s92, s93")
                a(f"{op} s94, s94, s95")
                a(f"{op} s92, s92, s94")
                if amp == 20:
                    a("s_mov_b32 s99, s98")
                    a("s_min_u32 s98, s92, s98")
                else:
                    a("s_max_u32 s99, s92, s98")
        if STAMP and (opt.get('stmask', 0xffff) >> idx) & 1:
            a("s_memrealtime s[96:97]" if not opt.get('cyc') else "s_memtime s[96:97]")
            a("s_waitcnt lgkmcnt(0)")
            lg.clear()
            a("v_mov_b32 v14, s96")
            a("v_mov_b32 v15, s97")
            a("s_mov_b64 s[98:99], exec")
            a("s_mov_b64 exec, 1")
            a(f"buffer_store_dwordx2 v[14:15], v9, {sr(sST,4)}, 0 offen offset:{idx*8}")
            vm.issue('st')
            a("s_mov_b64 exec, s[98:99]")

    def wait(vtag=None, ltag=None):
        p = []
        if vtag is not None:
            n = vm.need(vtag)
            if n is not None:
                p.append(f"vmcnt({n})")
        if ltag is not None:
            tags = ltag if isinstance(ltag, (list, tuple)) else [ltag]
            ns = [lg.need(t) for t in tags]
            ns = [n for n in ns if n is not None]
            if ns:
                p.append(f"lgkmcnt({min(ns)})")
        if p:
            a("s_waitcnt " + " ".join(p))
            return True
        return False

    def stamp_setup():
        if STAMP:
            srd(a, sST, 100, 0x1000000)
            a("s_lshl_b32 s96, s2, 4")
            a(f"s_add_u32 s96, s96, s{sW}")
            a("s_lshl_b32 s96, s96, 7")
            a(f"s_add_u32 s96, s96, {STAMP_OFF}")
            a("v_mov_b32 v9, s96")

    a.raw(f".globl {name}")
    a.raw(".p2align 8")
    a.raw(f".type {name},@function")
    a.label(name)
    if opt.get('amp') == 30:
        a("s_memrealtime s[94:95]")
    a("s_cmp_ge_u32 s2, 256")
    a("s_cbranch_scc1 M_END")
    a("s_load_dwordx16 s[76:91], s[0:1], 0")
    a("s_load_dwordx4 s[4:7], s[0:1], 64")
    a("s_load_dwordx2 s[100:101], s[0:1], 80")
    a(f"v_and_b32 v{vLane}, 63, v0")
    a(f"v_lshrrev_b32 v{vT0}, 6, v0")
    a(f"v_lshlrev_b32 v{vT16}, 4, v0")
    a(f"v_readfirstlane_b32 s{sW}, v{vT0}")
    if opt.get('pfast', 1):
        a(f"s_cmp_lt_u32 s2, {NPROD}")
        a("s_cbranch_scc0 NOTP")
        a(f"s_mul_i32 s{sA}, s2, {CH*4}")
        a(f"s_add_u32 s40, s{sA}, 8192")
        a(f"s_add_u32 s41, s{sA}, 16384")
        for d in (sDST, sSRC):
            a(f"s_mov_b32 s{d+2}, {E*4}")
            a(f"s_mov_b32 s{d+3}, 0x00020000")
        a("s_waitcnt lgkmcnt(0)")
        a(f"s_mov_b32 s{sDST}, s80")
        a(f"s_and_b32 s{sDST+1}, s81, 0xffff")
        a(f"buffer_load_dwordx4 {vr(16,4)}, v{vT16}, {sr(sDST,4)}, s{sA} offen")
        a(f"buffer_load_dwordx4 {vr(24,4)}, v{vT16}, {sr(sDST,4)}, s40 offen")
        a(f"s_mov_b32 s{sSRC}, s78")
        a(f"s_and_b32 s{sSRC+1}, s79, 0xffff")
        a(f"s_cmp_lt_u32 s{sW}, 4")
        a("s_cbranch_scc0 P_E2")
        a(f"buffer_load_dwordx4 {vr(32,4)}, v{vT16}, {sr(sDST,4)}, s41 offen")
        a(f"buffer_load_dwordx4 {vr(36,4)}, v{vT16}, {sr(sSRC,4)}, s41 offen")
        a.label("P_E2")
        a(f"buffer_load_dwordx4 {vr(20,4)}, v{vT16}, {sr(sSRC,4)}, s{sA} offen")
        a(f"buffer_load_dwordx4 {vr(28,4)}, v{vT16}, {sr(sSRC,4)}, s40 offen")
        a("s_branch AUX")
        a.label("NOTP")
    a(f"s_cmp_lt_u32 s2, {C0}")
    a("s_cbranch_scc1 AUX")

    a(f"s_sub_u32 s3, s2, {C0}")
    a(f"s_lshl_b32 s{sLB}, s3, 13")
    a(f"s_mul_i32 s3, s3, {BN}")
    a(f"v_mov_b32 v{vLB}, {LIST}")
    a("v_cmp_gt_u32 vcc, 384, v0")
    a(f"v_add_u32 v{vOff}, v{vLB}, v{vT16}")
    a("s_nop 0")
    a("v_cndmask_b32 v36, 0, -1, vcc")
    a("v_mov_b32 v37, v36")
    a("v_mov_b32 v38, v36")
    a("v_mov_b32 v39, v36")
    a(f"ds_write_b128 v{vOff}, v[36:39]")
    a(f"s_lshr_b32 s{sRot}, s2, 3")
    a(f"s_and_b32 s{sRot}, s{sRot}, 7")
    a(f"s_lshr_b32 s{sV}, s2, 4")
    a(f"s_and_b32 s{sV}, s{sV}, 4")
    a(f"s_and_b32 s{sA}, s{sRot}, 3")
    a(f"s_or_b32 s{sV}, s{sV}, s{sA}")
    a(f"s_xor_b32 s{sV}, s{sW}, s{sV}")
    a(f"v_bfe_u32 v{vT0}, v{vLane}, 1, 2")
    a(f"v_bfe_u32 v{vT1}, v{vLane}, 4, 1")
    a(f"v_xor_b32 v{vT0}, v{vT0}, v{vT1}")
    a(f"v_lshrrev_b32 v{vT1}, 3, v{vLane}")
    a(f"v_lshlrev_b32 v{vT1}, 10, v{vT1}")
    a(f"v_and_b32 v{vOff}, 1, v{vLane}")
    a(f"v_lshl_or_b32 v{vT1}, v{vOff}, 4, v{vT1}")
    a(f"s_lshl_b32 s{sA}, s{sV}, 7")
    a(f"v_or_b32 v{vT1}, s{sA}, v{vT1}")
    a(f"v_lshl_or_b32 v{vS1}, v{vT0}, 5, v{vT1}")
    a(f"v_xor_b32 v{vS1+1}, 64, v{vS1}")
    a(f"s_lshl_b32 s{sWL}, s{sW}, 13")
    a(f"s_add_u32 s{sWB}, s{sWL}, {WST}")
    a(f"s_lshl_b32 s{sB}, s{sRot}, 15")
    a("s_waitcnt lgkmcnt(0)")
    srd(a, sW1, 84, 256 * 1024)
    a("s_barrier")

    def slot_base(sl):
        return (sWB if sl < 2 else sWL), (sl % 2) * 4096

    def dma_unit(u):
        sb, off = slot_base(u % 4)
        for i in range(4):
            a(f"s_add_u32 m0, s{sb}, {off + i * 1024}")
            if u < 8:
                a(f"s_xor_b32 s{sA}, s{sB}, {(u * 32 + i * 8) * 1024}")
                a(f"buffer_load_dwordx4 v{vS1 + i % 2}, {sr(sW1,4)}, s{sA} offen lds")
            else:
                a(f"s_mov_b32 s{sA}, {((u - 8) * 64 + i * 16) * 512}")
                a(f"buffer_load_dwordx4 v{vN2}, {sr(sW2,4)}, s{sA} offen lds")
            vm.issue(f"u{u}")

    NR = opt.get('nr', 2)
    NU = 8 + NR
    vN2 = 28
    NBUB = opt.get('nb', 2)
    NINF = opt.get('ninf', 3)
    PPRIO = opt.get('pprio', 1)
    stamp_setup()
    st(0)
    if opt.get('dly_c'):
        a(f"s_sleep {opt['dly_c']}")
    if PPRIO:
        a("s_setprio 3")
    dma_unit(0)
    if PPRIO:
        a("s_setprio 2")
    a("s_load_dword s45, s[82:83], 0")
    SPF = opt.get('spf', 0)
    if SPF:
        a("s_and_b32 s40, s2, 7")
        a("s_mul_i32 s40, s40, 5000")
        a("s_lshr_b32 s41, s2, 3")
        a("s_lshl_b32 s41, s41, 3")
        a(f"s_add_u32 s41, s41, s{sW}")
        a(f"s_mul_i32 s41, s41, {SPF}")
        a("s_add_u32 s40, s40, s41")
        a(f"s_add_u32 s40, s40, {NH * 1024 + NP * 2048 - 40 * SPF}")
        a(f"s_sub_u32 s41, s40, {40000 - SPF}")
        a("s_min_u32 s40, s40, s41")
        a("s_lshl_b32 s40, s40, 7")
        a("s_add_u32 s40, s76, s40")
        a("s_addc_u32 s41, s77, 0")
        for r in range(SPF):
            a(f"s_load_dword s42, s[40:41], {128 * r}")
    for u in range(1, NINF):
        dma_unit(u)
    srd(a, sB1, 86, 1024)
    srd(a, sB2, 90, 512)
    a(f"v_lshlrev_b32 v{vC16}, 4, v{vLane}")
    a(f"s_cmp_eq_u32 s{sW}, 2")
    a("s_cbranch_scc0 C_SL2")
    a(f"buffer_load_dwordx4 {vr(vBI,4)}, v{vC16}, {sr(sB1,4)}, 0 offen")
    a.label("C_SL2")
    a(f"s_cmp_eq_u32 s{sW}, 3")
    a("s_cbranch_scc0 C_SL3")
    a(f"buffer_load_dwordx4 {vr(vBI,4)}, v{vC16}, {sr(sB2,4)}, 0 offen")
    a.label("C_SL3")
    a(f"v_lshrrev_b32 v{vT0}, 4, v{vLane}")
    a(f"v_lshlrev_b32 v{vT0}, 10, v{vT0}")
    a(f"v_bfe_u32 v{vT1}, v{vLane}, 2, 2")
    a(f"v_lshl_or_b32 v{vT0}, v{vT1}, 7, v{vT0}")
    a(f"v_and_b32 v{vT1}, 3, v{vLane}")
    a(f"v_lshl_or_b32 v{vT0}, v{vT1}, 3, v{vT0}")
    a(f"v_bfe_u32 v{vT1}, v{vLane}, 3, 2")
    for mt in range(4):
        a(f"v_xor_b32 v{vOff}, {mt}, v{vT1}")
        a(f"v_lshl_add_u32 v{vOff}, v{vOff}, 5, v{vT0}")
        a(f"v_add_u32 v{vTR+mt}, s{sWB}, v{vOff}")
        a(f"v_add_u32 v{vTR+4+mt}, s{sWL}, v{vOff}")

    def w2_addr(sLW, vsrc, vtb_list):
        a(f"v_lshrrev_b32 v{vT0}, 2, v{vLane}")
        a(f"v_lshlrev_b32 v{vT0}, 9, v{vT0}")
        a(f"v_and_b32 v{vT1}, 3, v{vLane}")
        a(f"v_lshl_or_b32 v{vT0}, v{vT1}, 4, v{vT0}")
        a(f"s_lshl_b32 s{sA}, s{sLW}, 6")
        a(f"v_or_b32 v{vsrc}, s{sA}, v{vT0}")
        for (v, sb) in vtb_list:
            a(f"v_lshl_add_u32 v{v}, v{vLane}, 4, s{sb}")

    def setup_a():
        a(f"s_lshl_b32 s{sA}, s{sV}, 15")
        a(f"s_add_u32 s{sA}, s{sA}, {W2F}")
        a(f"v_lshl_add_u32 v{vS2}, v{vLane}, 4, s{sA}")
        if NR:
            srd(a, sW2, 88, 256 * 1024)
            w2_addr(sV, vN2, [(vTB, sWB), (vTR2, sWL)])

    def setup_b():
        srd(a, sX, 76, N * 512)
        srd(a, sDBG, 6, 256)
        srd(a, sWS, 100, WS_BYTES)
        if opt.get('ctouch', 0):
            a(f"s_cmp_eq_u32 s{sW}, 0")
            a("s_cbranch_scc0 C_CT")
            a(f"v_mov_b32 v{vT0}, 0x1f0000")
            a(f"v_lshlrev_b32 v{vT1}, 20, v{vLane}")
            a("s_mov_b64 exec, 31")
            a(f"buffer_load_dword v31, v{vT0}, {sr(sWS,4)}, 0 offen")
            a(f"buffer_load_dword v30, v{vT1}, {sr(sX,4)}, 0 offen")
            a("s_mov_b64 exec, -1")
            a.label("C_CT")
        srd(a, sOUT, 4, N * 512)
        srd(a, sDST, 80, E * 4)
        srd(a, sSRC, 78, E * 4)

    def setup_c():
        a(f"v_lshrrev_b32 v{vT0}, 4, v{vLane}")
        a(f"v_lshrrev_b32 v{vT1}, 3, v{vLane}")
        a(f"v_xor_b32 v{vT0}, v{vT0}, v{vT1}")
        a(f"v_and_b32 v{vT0}, 1, v{vT0}")
        a(f"v_bfe_u32 v{vT1}, v{vLane}, 1, 2")
        a(f"v_lshl_or_b32 v{vT0}, v{vT0}, 2, v{vT1}")
        a(f"v_and_b32 v{vT1}, 1, v{vLane}")
        a(f"v_lshlrev_b32 v{vT1}, 4, v{vT1}")
        a("s_lshl_b32 s45, s45, 16")
        a("v_mov_b32 v40, s45")
        a("v_add_f32 v40, 1.0, v40")
        a("v_cvt_pk_bf16_f32 v40, v40, v40")
        a("v_and_b32 v40, 0xffff, v40")
        a("v_mov_b32 v41, 0x3f80")
        a(f"v_lshlrev_b32 v40, v{vT1}, v40")
        a(f"v_lshlrev_b32 v41, v{vT1}, v41")
        a(f"v_cmp_gt_u32 vcc, 32, v{vLane}")
        a("s_nop 1")
        a("v_cndmask_b32 v42, v40, 0, vcc")
        a("v_cndmask_b32 v40, 0, v40, vcc")
        for p in range(4):
            a(f"v_cmp_eq_u32 vcc, {p}, v{vT0}")
            a("s_nop 1")
            a(f"v_cndmask_b32 v{vA1+p}, 0, v41, vcc")
            a(f"v_cndmask_b32 v{vAS+p}, 0, v40, vcc")
            a(f"v_cndmask_b32 v{vAH+p}, 0, v42, vcc")

    def setup_d():
        a(f"v_lshrrev_b32 v{vSh}, 5, v{vLane}")
        a(f"v_lshlrev_b32 v{vSh}, 4, v{vSh}")
        a(f"v_and_b32 v{vT0}, 15, v{vLane}")
        a(f"v_lshlrev_b32 v{vFl}, 4, v{vT0}")
        a(f"v_lshl_or_b32 v{vFl}, v{vSh}, 4, v{vFl}")
        a(f"v_bfe_u32 v{vT0}, v{vLane}, 4, 1")
        a(f"v_lshl_or_b32 v{vFl}, v{vT0}, 3, v{vFl}")
        a(f"v_and_b32 v{vC16}, 31, v{vLane}")
        a(f"v_lshlrev_b32 v{vC16}, 4, v{vC16}")
        a(f"v_bfe_u32 v42, v{vLane}, 3, 2")
        a(f"s_lshl_b32 s{sA}, s{sW}, 4")
        a(f"v_lshl_add_u32 v42, v42, 2, s{sA}")
        a(f"v_and_b32 v43, {NW2H-1}, v{vLane}")
        a("v_lshlrev_b32 v43, 2, v43")
        a(f"s_lshl_b32 s{sA}, s{sW}, 9")
        a(f"v_lshl_add_u32 v41, v{vSh}, 8, v{vC16}")
        a(f"v_add_u32 v41, s{sA}, v41")
        a(f"s_mov_b32 s{sPC}, 0")
        a(f"s_mov_b32 s{sT}, {EMPTY}")
        a(f"v_lshrrev_b32 v{vT0}, 1, v{vLane}")
        a(f"v_lshlrev_b32 v{vT0}, 4, v{vT0}")
        a(f"v_and_b32 v{vT1}, 1, v{vLane}")
        a(f"v_or_b32 v{vT0}, v{vT0}, v{vT1}")
        a(f"s_lshl_b32 s{sNode}, s{sW}, 1")
        a(f"v_add_u32 v{vT0}, s{sNode}, v{vT0}")
        a(f"v_cmp_gt_u32 vcc, 6, v{vLane}")
        a(f"v_mov_b32 v{vT1}, 56")
        a("v_mov_b32 v62, 64")
        a(f"v_cndmask_b32 v{vT0}, v{vT1}, v{vT0}, vcc")
        a(f"v_lshl_add_u32 v61, v{vT0}, 2, v{vLB}")
        a(f"s_lshl_b32 s{sA}, s{sW}, 8")
        a(f"v_lshl_add_u32 v{vT1}, v{vLane}, 2, v{vLB}")
        a(f"v_add_u32 v60, s{sA}, v{vT1}")
        a("v_cndmask_b32 v62, 0, v62, vcc")
        set_xor()

    def set_xor():
        a(f"s_lshl_b32 s{sXor}, s{sNode}, 9")
        a(f"s_and_b32 s44, s{sNode}, 15")
        a("s_lshl_b32 s44, s44, 4")
        a(f"s_or_b32 s{sXor}, s{sXor}, s44")

    def cpf(r0, n):
        tot = opt.get('cpf', 0) + opt.get('cpf2', 0)
        a("s_and_b32 s4, s2, 7")
        a("s_mul_i32 s4, s4, 5000")
        a("s_lshr_b32 s5, s2, 3")
        a(f"s_mul_i32 s5, s5, {512 * tot}")
        a("s_add_u32 s4, s4, s5")
        for r in range(r0, r0 + n):
            a(f"s_add_u32 s5, s4, {NH * 1024 + NP * 2048 - 5 * 512 * tot + 512 * r}")
            a(f"v_add_u32 v{vT0}, s5, v0")
            a(f"v_subrev_u32 v{vT1}, 40000, v{vT0}")
            a(f"v_min_u32 v{vT0}, v{vT0}, v{vT1}")
            a(f"v_lshlrev_b32 v{vT0}, 7, v{vT0}")
            a(f"buffer_load_dword v{44+r}, v{vT0}, {sr(sX,4)}, 0 offen")
            vm.issue("cpf")

    def bias_to_lds():
        a(f"s_sub_u32 s{sA}, s{sW}, 2")
        a(f"s_cmp_lt_u32 s{sA}, 2")
        a("s_cbranch_scc0 C_NB")
        for x in range(4):
            a(f"v_lshlrev_b32 v{32+2*x}, 16, v{vBI+x}")
            a(f"v_and_b32 v{33+2*x}, 0xffff0000, v{vBI+x}")
        a(f"s_lshl_b32 s{sA}, s{sA}, 11")
        a(f"s_add_u32 s{sA}, s{sA}, {BIAS}")
        a(f"v_lshl_add_u32 v{vOff}, v{vLane}, 5, s{sA}")
        a(f"s_cmp_eq_u32 s{sW}, 3")
        a("s_cbranch_scc0 C_NB2")
        a("s_mov_b64 exec, 0xffffffff")
        a.label("C_NB2")
        a(f"ds_write_b128 v{vOff}, v[32:35]")
        a(f"ds_write_b128 v{vOff}, v[36:39] offset:16")
        a("s_mov_b64 exec, -1")
        a("s_waitcnt lgkmcnt(0)")
        a.label("C_NB")

    def tr_w2_ops(dst, vbase, off, tag, scr):
        ops = []
        for kk in range(2):
            for t in range(2):
                for hf in range(2):
                    ops.append(("ds", f"ds_read_b64_tr_b16 {vr(dst+8*kk+4*t+2*hf,2)}, v{vbase} offset:{off + kk*2048 + hf*1024 + 8*t}", tag))
        return ops

    def w2reg(k):
        return W2R + 16 * k if k < 4 else W + 16 * (k - 4)

    def w2_ops(k):
        ops = []
        for mt in range(4):
            ops.append(("vm2", [f"s_mov_b32 s{sA}, {k * 4096}"] if mt == 0 else [],
                        f"buffer_load_dwordx4 {vr(w2reg(k)+4*mt,4)}, v{vS2}, {sr(sWS,4)}, s{sA} offen offset:{mt*1024} sc1", f"w2_{k}"))
        return ops

    bars = []
    cur_q = [0]
    def emit(op):
        if isinstance(op, tuple):
            k = op[0]
            if k == "ds":
                a(op[1]); lg.issue(op[2]); return 1
            if k == "vm":
                a(op[1]); vm.issue(op[2]); return 1
            if k == "vm2":
                for l in op[1]:
                    a(l)
                a(op[2]); vm.issue(op[3]); return 1
            if k == "dma":
                for l in op[1]:
                    a(l)
                vm.issue(op[2]); return 2
            if k == "skip":
                return 2
            if k == "wl":
                return 1 if wait(ltag=op[1]) else 0
            if k == "wv":
                return 1 if wait(vtag=op[1]) else 0
            if k == "bar":
                wait(ltag=op[1])
                a("s_barrier")
                bars.append(cur_q[0])
                return 2
            raise ValueError(op)
        a(op)
        return 1

    def poll_issue():
        a(f"buffer_load_dword v40, v42, {sr(sDBG,4)}, 0 offen sc1")
        a(f"buffer_load_dword v39, v43, {sr(sDBG,4)}, 0 offen offset:128 sc1")
        a(f"buffer_load_dwordx4 v[32:35], v41, {sr(sWS,4)}, s{sLB} offen sc1")

    def unit_step(u):
        sl = u % 4
        hi = 0 if sl < 2 else 1
        off = (sl % 2) * 4096
        if not opt.get('nowait'):
            wait(vtag=f"u{u}")
        if opt.get('notr'):
            pass
        elif u < 8:
            for mt in range(4):
                for hf in range(2):
                    a(f"ds_read_b64_tr_b16 {vr(W+16*u+4*mt+2*hf,2)}, v{vTR+4*hi+mt} offset:{off + hf*512}")
                    lg.issue(f"t{u}")
        else:
            for op in tr_w2_ops(W2R + 16 * (u - 8), vTB if hi == 0 else vTR2, off, f"t{u}", [30, 31]):
                emit(op)
        nx = u + NINF
        if nx < NU:
            if nx - 4 >= 0:
                wait(ltag=f"t{nx-4}")
            dma_unit(nx)

    DEFER = opt.get('defer', 1)
    a("s_waitcnt lgkmcnt(0)")
    if not DEFER:
        setup_a()
        setup_b()
        setup_c()
        setup_d()
    if opt.get('sync0'):
        a("s_waitcnt vmcnt(0)")
        a("s_barrier")
    PU = opt.get('pu', 9)
    LATEF = opt.get('lateflag', 0)
    assert not LATEF or (NR == 0 and NBUB == 0)
    PU2 = opt.get('pu2', PU)
    SD = opt.get('sd', 5)
    def pollx():
        a(f"buffer_load_dword v40, v42, {sr(sDBG,4)}, 0 offen sc1")
        if not LATEF:
            a(f"buffer_load_dword v39, v43, {sr(sDBG,4)}, 0 offen offset:128 sc1")
            vm.issue("poll")
        else:
            a("v_mov_b32 v39, 1")
        a(f"buffer_load_dwordx4 v[32:35], v41, {sr(sWS,4)}, s{sLB} offen sc1")
        vm.issue("poll"); vm.issue("poll")
    def steps_from(u0, pu):
        for u in range(u0, NU):
            if PPRIO and u in (NU // 4, NU // 2 + 1):
                a(f"s_setprio {1 if u == NU // 4 else 0}")
            unit_step(u)
            {0: setup_a, 1: setup_b, 2: setup_c, SD: setup_d}.get(u, lambda: None)()
            if u == NINF:
                bias_to_lds()
            if pu is None and u == PU2:
                return
            if u == pu:
                pollx()
    if PU2 == PU:
        steps_from(0, PU)
    else:
        assert max(SD, NINF) <= PU2 < PU
        steps_from(0, None)
        a(f"s_cmp_lt_u32 s{sW}, {opt.get('ysplit', 4)}")
        a("s_cbranch_scc1 C_OLD")
        sv = (list(vm.q), list(lg.q))
        pollx()
        steps_from(PU2 + 1, -1)
        wait(vtag="poll")
        a("s_branch C_JOIN")
        vm.q, lg.q = sv
        a.label("C_OLD")
        steps_from(PU2 + 1, PU)
        wait(vtag="poll")
        a.label("C_JOIN")
    st(1)
    NPRE, NPOST = NR, 0
    wait(vtag="poll")
    a.label("POLL_CHK")
    a("v_lshrrev_b32 v16, 8, v33")
    a("v_lshrrev_b32 v17, 8, v35")
    a("v_xor_b32 v16, v16, v40")
    a("v_xor_b32 v17, v17, v40")
    a("v_or_b32 v16, v16, v17")
    a("v_alignbit_b32 v26, v35, v34, 20")
    a(f"v_cmp_ne_u32 {sr(sM,2)}, 0, v16")
    a("v_and_b32 v26, 0xfffff, v26")
    a("v_min_u32 v17, v40, v39")
    a(f"v_cmp_eq_u32 {sr(sM+2,2)}, 0, v17")
    a(f"v_cmp_ne_u32 vcc, s{sT}, v26")
    a("s_and_b32 s5, vcc_lo, 0x80808080")
    a("s_lshr_b32 s5, s5, 7")
    a("s_mul_i32 s5, s5, 255")
    a("s_mov_b32 s4, -1")
    a(f"s_and_b64 {sr(sM,2)}, {sr(sM,2)}, s[4:5]")
    a(f"s_or_b64 {sr(sM,2)}, {sr(sM,2)}, {sr(sM+2,2)}")
    a("s_cbranch_scc1 POLL_RETRY")
    a("v_and_b32 v20, 0xfffff, v32")
    a("v_alignbit_b32 v22, v33, v32, 20")
    a("v_and_b32 v22, 0xfffff, v22")
    a("v_and_b32 v24, 0xfffff, v34")
    a.label("POLL_OK")
    vm.clear()
    st(2)
    a(f"s_add_u32 s6, s3, s{sNode}")
    a("s_lshl_b32 s6, s6, 9")
    a(f"v_lshl_add_u32 v28, v{vLane}, 4, s6")
    a(f"buffer_load_dwordx4 {vr(vSF,4)}, v28, {sr(sX,4)}, 0 offen")
    a("v_add_u32 v29, 8192, v28")
    a(f"buffer_load_dwordx4 {vr(vSF+4,4)}, v29, {sr(sX,4)}, 0 offen")
    a("v_add_u32 v30, 16384, v28")
    a(f"buffer_load_dwordx4 {vr(vSF+8,4)}, v30, {sr(sX,4)}, 0 offen")
    a(f"v_mov_b32 v16, s{sT}")
    a("v_cndmask_b32 v20, v16, v20, s[4:5]")
    a(f"s_mov_b32 s4, {MARK}")
    a("v_mov_b32 v41, 1")
    ent = [20, 22, 24, 26]
    for k in range(4):
        a(f"v_bfe_u32 v{ent[k]+1}, v{ent[k]}, 14, 6")
        a(f"v_lshl_add_u32 v{16+k}, v{ent[k]+1}, 2, v{vLB}")
    for k in range(4):
        a(f"v_cmpx_gt_u32 vcc, s4, v{ent[k]}")
        a(f"ds_add_rtn_u32 v{16+k}, v{16+k}, v41 offset:{CNT-LIST}")
        a(f"s_mov_b64 {sr(sM+2*k,2)}, exec")
    a("s_mov_b64 exec, -1")
    a("v_cmp_eq_u32 vcc, s4, v20")
    a("s_and_saveexec_b64 s[6:7], vcc")
    a(f"ds_write_b32 v{vLB}, v41 offset:{FLAG-LIST}")
    a("s_mov_b64 exec, -1")
    for k in range(4):
        a(f"v_and_b32 v{ent[k]}, 0x3fff, v{ent[k]}")
        a(f"v_lshl_add_u32 v{ent[k]+1}, v{ent[k]+1}, 7, v{vLB}")
    a("s_waitcnt lgkmcnt(0)")
    for k in range(4):
        a(f"v_min_u32 v{16+k}, 63, v{16+k}")
        a(f"v_lshl_add_u32 v{ent[k]+1}, v{16+k}, 1, v{ent[k]+1}")
    for k in range(4):
        a(f"s_mov_b64 exec, {sr(sM+2*k,2)}")
        a(f"ds_write_b16 v{ent[k]+1}, v{ent[k]}")
    a("s_mov_b64 exec, -1")
    lg.clear()
    vL = [vSeq, 59, 60]
    vCnt = 61
    sFlush, sJ, sEnd, sLeft = sMask, sMask + 1, sT, sPC
    a(f"s_mov_b32 s{sFlush}, 0")
    a(f"s_mov_b32 s{sJ}, 0")
    a(f"s_mov_b32 s{sPI}, 0")
    a(f"s_mov_b32 s{sLeft}, {NPW}")
    if LATEF:
        a("v_mov_b32 v64, v43")
        a(f"buffer_load_dword v63, v43, {sr(sDBG,4)}, 0 offen offset:128 sc1")
    NBUB = max(NBUB, NPRE + NPOST)
    assert NBUB <= 3
    for k in range(NPRE + NPOST, NBUB):
        for op in w2_ops(k):
            emit(op)
    a("s_waitcnt lgkmcnt(0)")
    for _ in range(opt.get('dly_g', 0)):
        a("s_sleep 64")
    a("s_barrier")
    a(f"ds_read_b32 v{vCnt}, v61 offset:{CNT-LIST}")
    for i in range(3):
        a(f"ds_read_b32 v{vL[i]}, v60 offset:{2048*i}")
    GPRIO = opt.get('gprio', 1)
    if GPRIO:
        a("s_setprio 3")
    a("s_waitcnt lgkmcnt(2)")
    a(f"v_cmp_gt_u32 vcc, v{vCnt}, v62")
    a(f"v_add_u32 v{vCnt}, 1, v{vCnt}")
    a(f"v_lshrrev_b32 v{vCnt}, 1, v{vCnt}")
    a(f"v_max_u32 v{vCnt}, 1, v{vCnt}")
    a("s_cmp_lg_u64 vcc, 0")
    a("s_cbranch_scc1 M_SLOW")
    a(f"v_readlane_b32 s{sEnd}, v{vCnt}, 0")
    a("s_waitcnt lgkmcnt(0)")
    st(3)

    def flush():
        a(f"v_xor_b32 v{vT0}, s{sXor}, v{vFl}")
        a(f"v_cvt_pk_bf16_f32 v14, v{vAcc}, v{vAcc+1}")
        a(f"v_cvt_pk_bf16_f32 v15, v{vAcc+2}, v{vAcc+3}")
        a(f"ds_write_b64 v{vT0}, v[14:15] offset:{HH}")
        a(f"s_and_b32 s4, s{sNode}, 1")
        a("s_cselect_b64 s[6:7], -1, 0")
        for x in range(4):
            a(f"v_swap_b32 v{vAS+x}, v{vAH+x}")
        for x in range(8):
            a(f"v_cndmask_b32 v{vSF+x}, v{vSF+x}, v{vSF+4+x}, s[6:7]")
        a("s_mul_i32 s4, s4, 14")
        a(f"s_add_u32 s{sNode}, s{sNode}, s4")
        a(f"s_add_u32 s{sNode}, s{sNode}, 1")
        set_xor()

    acc = vr(vAcc, 4)
    def mf_norm(s):
        a(f"v_mfma_f32_16x16x32_bf16 {acc}, {vr(vA1,4)}, {vr(RS(s),4)}, {acc}")
    def mf_first(s):
        a(f"v_mfma_f32_16x16x32_bf16 {acc}, {vr(vAS,4)}, {vr(vSF,4)}, 0")
        mf_norm(s)
    def issue(s):
        a(f"v_bfe_u32 v{vOff}, s{sId}, v{vSh}, 16")
        a(f"v_lshl_add_u32 v{vOff}, v{vOff}, 9, v{vC16}")
        a(f"buffer_load_dwordx4 {vr(RS(s),4)}, v{vOff}, {sr(sX,4)}, 0 offen")
    swn = [0]
    def switch(s, lab_exit):
        a(f"s_bitset1_b32 s{sFlush}, {s}")
        a(f"s_add_u32 s{sJ}, s{sJ}, 1")
        a(f"s_cmp_eq_u32 s{sJ}, {NPW}")
        a(f"s_cbranch_scc1 {lab_exit}")
        a(f"v_readlane_b32 s{sEnd}, v{vCnt}, s{sJ}")
        a(f"s_and_b32 s{sPI}, s{sJ}, 1")
        a(f"s_cselect_b32 s4, 0, -1")
        a(f"s_mov_b32 s5, s4")
        a(f"s_lshl_b32 s{sPI}, s{sPI}, 5")
        a(f"v_cndmask_b32 v{vL[0]}, v{vL[0]}, v{vL[1]}, s[4:5]")
        a(f"v_cndmask_b32 v{vL[1]}, v{vL[1]}, v{vL[2]}, s[4:5]")
        a(f"s_add_u32 s{sEnd}, s{sEnd}, s{sPI}")
        if GPRIO:
            k = swn[0]; swn[0] += 1
            a(f"s_cmp_lt_u32 s{sJ}, 3")
            a(f"s_cbranch_scc1 SWP{k}")
            a("s_setprio 2")
            a(f"s_cmp_lt_u32 s{sJ}, 4")
            a(f"s_cbranch_scc1 SWP{k}")
            a("s_setprio 1")
            a(f"s_cmp_lt_u32 s{sJ}, 5")
            a(f"s_cbranch_scc1 SWP{k}")
            a("s_setprio 0")
            a.label(f"SWP{k}")

    for s in range(D):
        a.label(f"F_{s}")
        a(f"v_readlane_b32 s{sId}, v{vL[0]}, s{sPI}")
        a(f"s_add_u32 s{sPI}, s{sPI}, 1")
        a(f"s_cmp_eq_u32 s{sPI}, s{sEnd}")
        issue(s)
        a(f"s_cbranch_scc1 F_SW{s}")
    a("s_branch G_F0")
    for s in range(D):
        a.label(f"F_SW{s}")
        switch(s, "X_F0")
        a(f"s_branch {'F_%d' % (s+1) if s + 1 < D else 'G_F0'}")
    for s in range(D):
        n = (s + 1) % D
        a.label(f"G_N{s}")
        a(f"s_waitcnt vmcnt({D-1})")
        a(f"v_readlane_b32 s{sId}, v{vL[0]}, s{sPI}")
        mf_norm(s)
        a.label(f"G_C{s}")
        a(f"s_add_u32 s{sPI}, s{sPI}, 1")
        a(f"s_bitcmp1_b32 s{sFlush}, {s}")
        issue(s)
        a(f"s_cbranch_scc1 G_FL{s}")
        a(f"s_cmp_eq_u32 s{sPI}, s{sEnd}")
        a(f"s_cbranch_scc1 G_SN{s}")
        if n == 0:
            a("s_branch G_N0")
    for s in range(D):
        n = (s + 1) % D
        a.label(f"G_SN{s}")
        switch(s, f"X_N{n}")
        a(f"s_branch G_N{n}")
    for s in range(D):
        n = (s + 1) % D
        a.label(f"G_FL{s}")
        a(f"s_bitset0_b32 s{sFlush}, {s}")
        a(f"s_sub_u32 s{sLeft}, s{sLeft}, 1")
        a("s_nop 0")
        flush()
        a(f"s_cmp_eq_u32 s{sPI}, s{sEnd}")
        a(f"s_cbranch_scc0 G_F{n}")
        switch(s, f"X_F{n}")
        a.label(f"G_F{n}")
        a(f"s_waitcnt vmcnt({D-1})")
        a(f"v_readlane_b32 s{sId}, v{vL[0]}, s{sPI}")
        mf_first(n)
        a(f"s_branch G_C{n}")
    for s in range(D):
        a.label(f"X_N{s}")
        a("s_waitcnt vmcnt(0)")
        a(f"s_branch T_N{s}")
        a.label(f"X_F{s}")
        a("s_waitcnt vmcnt(0)")
        a(f"s_branch T_F{s}")
    for s in range(D):
        n = (s + 1) % D
        a.label(f"T_N{s}")
        mf_norm(s)
        a.label(f"T_C{s}")
        a(f"s_bitcmp1_b32 s{sFlush}, {s}")
        a(f"s_cbranch_scc1 T_FL{s}")
        if n == 0:
            a(f"s_cmp_eq_u32 s{sFlush}, 0")
            a("s_cbranch_scc1 M_GDONE")
            a("s_branch T_N0")
    for s in range(D):
        n = (s + 1) % D
        a.label(f"T_FL{s}")
        a(f"s_bitset0_b32 s{sFlush}, {s}")
        a(f"s_sub_u32 s{sLeft}, s{sLeft}, 1")
        a("s_nop 4")
        flush()
        a(f"s_cmp_eq_u32 s{sLeft}, 0")
        a(f"s_cbranch_scc1 M_GDONE")
        a.label(f"T_F{n}")
        mf_first(n)
        a(f"s_branch T_C{n}")

    a.label("POLL_RETRY")
    a(f"s_add_u32 s{sPC}, s{sPC}, 1")
    a(f"s_cmp_lt_u32 s{sPC}, {opt.get('spin', 30000)}")
    a("s_cbranch_scc0 POLL_GIVEUP")
    a(f"s_cmp_eq_u32 s{sPC}, 1")
    a("s_cbranch_scc1 POLL_NOSLEEP")
    a.label("POLL_SLEEP")
    a(f"s_sleep {opt.get('psleep', 4)}")
    a.label("POLL_NOSLEEP")
    a(f"s_cmp_eq_u64 {sr(sM+2,2)}, 0")
    a("s_cbranch_scc1 POLL_CELLS")
    a(f"buffer_load_dword v40, v42, {sr(sDBG,4)}, 0 offen sc1")
    if not LATEF:
        a(f"buffer_load_dword v39, v43, {sr(sDBG,4)}, 0 offen offset:128 sc1")
    a.label("POLL_CELLS")
    a(f"buffer_load_dwordx4 v[32:35], v41, {sr(sWS,4)}, s{sLB} offen sc1")
    a("s_waitcnt vmcnt(0)")
    a("s_branch POLL_CHK")
    a.label("POLL_GIVEUP")
    a(f"s_cmp_lt_u32 s{sPC}, {8 * opt.get('spin', 30000)}")
    a("s_cbranch_scc0 POLL_GO")
    a("v_cmp_eq_u32 vcc, 0, v39")
    a("s_cmp_lg_u64 vcc, 0")
    a("s_cbranch_scc1 POLL_SLEEP")
    a.label("POLL_GO")
    a(f"v_mov_b32 v20, {MARK}")
    a("s_mov_b64 s[4:5], -1")
    a("s_branch POLL_OK")

    if LATEF:
        a.label("FLG_RETRY")
        a(f"s_add_u32 s{sPC}, s{sPC}, 1")
        a(f"s_cmp_lt_u32 s{sPC}, {8 * opt.get('spin', 30000)}")
        a("s_cbranch_scc0 FLG_OK")
        a("s_sleep 8")
        a(f"buffer_load_dword v63, v64, {sr(sDBG,4)}, 0 offen offset:128 sc1")
        a("s_waitcnt vmcnt(0)")
        a("s_branch FLG_CHK")

    a.label("M_SLOW")
    SA = RING + 8
    a("s_waitcnt vmcnt(0) lgkmcnt(0)")
    a(f"v_mov_b32 v{vT0}, 0x7f000000")
    a(f"v_cmp_gt_u32 vcc, 32, v{vLane}")
    a("s_nop 1")
    a(f"v_cndmask_b32 v{vSeq}, v{vT0}, v{vC16}, vcc")
    a(f"s_add_u32 s40, s3, s{sNode}")
    for j in range(NPW):
        a(f"s_add_u32 s4, s40, {16*(j//2) + j%2}")
        a("s_lshl_b32 s4, s4, 9")
        a(f"v_add_u32 v{vOff}, s4, v{vSeq}")
        a(f"buffer_load_dwordx4 {vr(RING,4)}, v{vOff}, {sr(sX,4)}, 0 offen")
        a("s_waitcnt vmcnt(0)")
        a(f"v_mfma_f32_16x16x32_bf16 {vr(SA+4*j,4)}, {vr(vAS,4)}, {vr(RING,4)}, 0")
        a("s_nop 7")
    a(f"v_lshlrev_b32 v{vT0}, 2, v{vLane}")
    a("s_mov_b32 s41, 0")
    a.label("S_LOOP")
    a(f"buffer_load_dword v{RING+4}, v{vT0}, {sr(sDST,4)}, s41 offen")
    a(f"buffer_load_dword v{RING+5}, v{vT0}, {sr(sSRC,4)}, s41 offen")
    a("s_waitcnt vmcnt(0)")
    a(f"v_subrev_u32 v{RING+4}, s40, v{RING+4}")
    a(f"v_and_b32 v{RING+6}, 0xffffffce, v{RING+4}")
    a(f"v_cmp_eq_u32 vcc, 0, v{RING+6}")
    a(f"v_cmp_gt_u32 s[42:43], 48, v{RING+4}")
    a("s_nop 3")
    a("s_and_b64 s[42:43], s[42:43], vcc")
    a.label("S_IN")
    a("s_cmp_eq_u64 s[42:43], 0")
    a("s_cbranch_scc1 S_NEXT")
    a("s_ff1_i32_b64 s44, s[42:43]")
    a("s_bitset0_b64 s[42:43], s44")
    a(f"v_readlane_b32 s45, v{RING+4}, s44")
    a(f"v_readlane_b32 s46, v{RING+5}, s44")
    a("s_nop 3")
    a("s_lshl_b32 s46, s46, 9")
    a(f"v_add_u32 v{vOff}, s46, v{vSeq}")
    a(f"buffer_load_dwordx4 {vr(RING,4)}, v{vOff}, {sr(sX,4)}, 0 offen")
    a("s_waitcnt vmcnt(0)")
    for j in range(NPW):
        if j < NPW - 1:
            a(f"s_cmp_eq_u32 s45, {16*(j//2) + j%2}")
            a(f"s_cbranch_scc0 S_J{j+1}")
        a(f"v_mfma_f32_16x16x32_bf16 {vr(SA+4*j,4)}, {vr(vA1,4)}, {vr(RING,4)}, {vr(SA+4*j,4)}")
        a("s_nop 7")
        a("s_branch S_IN")
        if j < NPW - 1:
            a.label(f"S_J{j+1}")
    a.label("S_NEXT")
    a("s_add_u32 s41, s41, 256")
    a(f"s_cmp_lt_u32 s41, {E*4}")
    a("s_cbranch_scc1 S_LOOP")
    for j in range(NPW):
        for r in range(4):
            a(f"v_mov_b32 v{vAcc+r}, v{SA+4*j+r}")
        flush()

    a.label("M_GDONE")
    vm.clear(); lg.clear()
    st(4)
    if LATEF:
        a(f"s_mov_b32 s{sPC}, 0")
        a.label("FLG_CHK")
        a("v_cmp_eq_u32 vcc, 0, v63")
        a("s_cmp_lg_u64 vcc, 0")
        a("s_cbranch_scc1 FLG_RETRY")
        a.label("FLG_OK")
    NE = min(4, NBUB + opt.get('early', 2))
    for k in range(NBUB, NE):
        for op in w2_ops(k):
            emit(op)
    ACP = [16, 32, 16, W + 64, W + 72, W + 80]
    BFR = [48, 52, 58, 10]
    vRd = [2, 3, 4, 7, 8, 9, 14, 15]
    vBA, vWr, vRB2, vOut, vBA2 = 1, 57, 62, 5, 6
    tJ, tQ = 48, 49
    PRE = 3
    a(f"v_and_b32 v{tJ}, 15, v{vLane}")
    a(f"v_lshrrev_b32 v{tQ}, 4, v{vLane}")
    a(f"s_lshl_b32 s4, s{sV}, 8")
    a(f"s_add_u32 s4, s4, {BIAS}")
    a(f"v_lshl_add_u32 v{vBA}, v{tQ}, 4, s4")
    def bias_ops(p):
        A = ACP[p]
        if p < 3:
            return [("ds", f"ds_read_b128 {vr(A+4*mt,4)}, v{vBA} offset:{64*mt}", f"bias{p}") for mt in range(4)]
        return [("ds", f"ds_read_b128 {vr(A+4*mt,4)}, v{vBA2} offset:{16*mt}", f"bias{p}") for mt in range(2)]
    for op in bias_ops(0) + bias_ops(1):
        emit(op)
    a(f"s_lshl_b32 s4, s{sRot}, 2")
    a(f"v_xor_b32 v{vRB2}, v{tQ}, v{tJ}")
    a(f"v_xor_b32 v{vRd[0]}, s4, v{vRB2}")
    a(f"v_lshlrev_b32 v{vRd[0]}, 4, v{vRd[0]}")
    a(f"v_lshl_or_b32 v{vRd[0]}, v{tJ}, 9, v{vRd[0]}")
    for k in range(1, 8):
        a(f"v_xor_b32 v{vRd[k]}, {64*k}, v{vRd[0]}")
    a(f"v_lshlrev_b32 v{vRB2}, 4, v{vRB2}")
    a(f"v_lshl_or_b32 v{vRB2}, v{tJ}, 10, v{vRB2}")
    a(f"s_lshl_b32 s4, s{sV}, 3")
    a(f"v_or_b32 v{vWr}, s4, v{tQ}")
    a(f"v_xor_b32 v{vWr}, v{vWr}, v{tJ}")
    a(f"v_lshlrev_b32 v{vWr}, 4, v{vWr}")
    a(f"v_lshl_or_b32 v{vWr}, v{tJ}, 10, v{vWr}")
    a(f"s_lshl_b32 s4, s{sV}, 7")
    a(f"s_add_u32 s4, s4, {BIAS + 2048}")
    a(f"v_lshl_add_u32 v{vBA2}, v{tQ}, 5, s4")
    a("s_lshl_b32 s6, s3, 9")
    a(f"s_lshl_b32 s7, s{sV}, 6")
    a("s_add_u32 s6, s6, s7")
    a(f"v_lshlrev_b32 v{vOut}, 4, v{tQ}")
    a(f"v_lshl_or_b32 v{vOut}, v{tJ}, 9, v{vOut}")
    a(f"v_add_u32 v{vOut}, s6, v{vOut}")
    vR2 = [vRB2, 0, 63, vRd[0]]
    a(f"v_xor_b32 v{vR2[1]}, 64, v{vRB2}")
    a(f"v_xor_b32 v{vR2[2]}, 128, v{vRB2}")
    a("s_waitcnt lgkmcnt(0)")
    lg.clear()
    a("s_barrier")
    st(5)

    steps = [(p, s) for p in range(3) for s in range(8)]
    steps += [(p, s) for h in range(2) for p in (3, 4, 5) for s in range(4 * h, 4 * h + 4)]
    SI = {ps: i for i, ps in enumerate(steps)}
    frags = []
    for i, (p, s) in enumerate(steps):
        frags += [(i, 0)] if p < 3 else [(i, 0), (i, 1)]
    B2R = [32, 36, 40, 44]
    def fbuf(f):
        i, kk = frags[f]
        if i < 24 or kk == 0:
            return BFR[i % 4]
        return B2R[i % 4]
    def rd_op(f):
        i, kk = frags[f]
        p, s = steps[i]
        if p < 3:
            return ("ds", f"ds_read_b128 {vr(fbuf(f),4)}, v{vRd[s]} offset:{HH + p*8192}", f"b_{i}")
        ks = 2 * s + kk
        return ("ds", f"ds_read_b128 {vr(fbuf(f),4)}, v{vR2[ks%4]} offset:{ACT + (p-3)*16384 + (ks//4)*256}", f"b_{i}")
    FI = {fk: f for f, fk in enumerate(frags)}
    def epi_a(p):
        A = ACP[p]
        ops = []
        if p < 3:
            for aa in range(2):
                m = A + 8 * aa
                ops.append(f"v_cvt_pk_bf16_f32 v{m}, v{m}, v{m+1}")
                ops.append(f"v_cvt_pk_bf16_f32 v{m+1}, v{m+2}, v{m+3}")
                ops.append(f"v_cvt_pk_bf16_f32 v{m+2}, v{m+4}, v{m+5}")
                ops.append(f"v_cvt_pk_bf16_f32 v{m+3}, v{m+6}, v{m+7}")
                for x in range(4):
                    ops.append(f"v_pk_max_i16 v{m+x}, v{m+x}, 0")
                if aa == 1:
                    ops.append(f"v_xor_b32 v{m+4}, 64, v{vWr}")
                    ops.append(("ds", f"ds_write_b128 v{m+4}, {vr(m,4)} offset:{ACT + p*16384}", f"aw{p}"))
                else:
                    ops.append(("ds", f"ds_write_b128 v{vWr}, {vr(m,4)} offset:{ACT + p*16384}", f"aw{p}"))
        else:
            if p > 3:
                ops.append(f"v_add_u32 v{vOut}, 8192, v{vOut}")
            for x in range(4):
                ops.append(f"v_cvt_pk_bf16_f32 v{A+x}, v{A+2*x}, v{A+2*x+1}")
            ops.append(("vm", f"buffer_store_dwordx4 {vr(A,4)}, v{vOut}, {sr(sOUT,4)}, 0 offen" + ["", " sc1", " nt", " sc0 sc1", " sc1 nt"][opt.get('ost', 0)], "out"))
        return ops

    G = lambda p, s, mt=0: SI[(p, s)] * 4 + mt
    GI = lambda i, mt=0: i * 4 + mt
    first_rd = lambda p: SI[(p, 0)] - PRE
    done = lambda p: SI[(p, 7)] + 1
    streams = []
    def add(name, ops, start=0, dl=10**9, after=None, pri=0):
        streams.append(dict(name=name, ops=list(ops), start=start, dl=dl, after=after or [], done=None, pri=pri))
    lastw = None
    WSP = opt.get('wsp', 4)
    for k in range(NE, 8):
        for j, o in enumerate(w2_ops(k)):
            nm = f"w{k}_{j}"
            add(nm, [o], 1 if k < 4 else G(2, k - 4, 3), GI(SI[(3, k)] - 2, 3), after=[(lastw, WSP)] if lastw else [], pri=-1000)
            lastw = nm
    last = len(steps) - 1
    add("e0", epi_a(0), G(1, 1, 2), G(1, 6, 3))
    add("bias2", [("wl", "aw0")] + bias_ops(2), 0, G(1, 7, 2), after=[("e0", 1)])
    add("e1", epi_a(1), G(2, 1, 0), GI(first_rd(3) - 1, 1))
    add("bar1", [("bar", ["aw0", "aw1"])], 0, GI(first_rd(3) - 1, 3), after=[("e1", 2)])
    add("a2", [f"v_xor_b32 v{vR2[3]}, 192, v{vRB2}"], G(2, 0, 1), GI(first_rd(3) - 1, 3))
    add("bias3", bias_ops(3) + bias_ops(4), G(2, 5, 1), G(2, 7, 1))
    add("bias5", bias_ops(5), G(2, 6, 1), GI(SI[(5, 0)] - 1, 1))
    add("e2", epi_a(2), G(3, 1, 0), GI(first_rd(5) - 1, 1))
    add("bar2", [("bar", ["aw2"])], 0, GI(first_rd(5) - 1, 3), after=[("e2", 2), ("bar1", 0)])
    add("e3", epi_a(3), GI(done(3) + 1, 2), GI(done(3) + 3, 3))
    add("e4", epi_a(4), GI(done(4) + 1, 2), GI(last, 3), after=[("e3", 0)])
    byname = {s_['name']: s_ for s_ in streams}

    def ready(s_, g, force=False):
        if not s_['ops']:
            return False
        if g < s_['start']:
            return False
        for nm, dly in s_['after']:
            d = byname[nm]['done']
            if d is None or (g < d + dly and not force):
                return False
        return True
    def force_finish(s_, g):
        for nm, _ in s_['after']:
            force_finish(byname[nm], g)
        if s_['ops']:
            assert g >= s_['start'], (s_['name'], g)
            while s_['ops']:
                emit(s_['ops'].pop(0))
            s_['done'] = g
    BUD = opt.get('bud', 3)
    for i in range(PRE):
        emit(rd_op(i))
    segs = None
    if bars_hint is not None and opt.get('mprio', 1):
        pts = [0] + [b + 1 for b in bars_hint] + [len(steps)]
        segs = {}
        for x, y in zip(pts[:-1], pts[1:]):
            L = y - x
            for k in range(4):
                segs[x + k * L // 4] = 3 - k
    for i, (p, s) in enumerate(steps):
        cur_q[0] = i
        if segs and i in segs:
            a(f"s_setprio {segs[i]}")
        tags = [f"b_{i}"]
        if s == 0:
            tags.append(f"bias{p}")
        wait(vtag=f"w2_{s}" if p == 3 else None, ltag=tags)
        for mt in range(4):
            g = i * 4 + mt
            if p < 3:
                A = ACP[p] + 4 * mt
                a(f"v_mfma_f32_16x16x32_bf16 {vr(A,4)}, {vr(W+16*s+4*mt,4)}, {vr(fbuf(FI[(i,0)]),4)}, {vr(A,4)}")
            else:
                A = ACP[p] + 4 * (mt % 2)
                a(f"v_mfma_f32_16x16x32_bf16 {vr(A,4)}, {vr(w2reg(s)+4*mt,4)}, {vr(fbuf(FI[(i,mt//2)]),4)}, {vr(A,4)}")
            B_ = opt.get('bud23', 4) if 16 <= i < 32 else BUD
            bud = (B_ + (g % 2)) // 2
            if mt == 3:
                bud = min(bud, opt.get('bud3', 1))
            if mt in (0, 2) and (i + PRE, mt // 2) in FI:
                bud -= emit(rd_op(FI[(i + PRE, mt // 2)]))
            while bud > 0:
                cand = [s_ for s_ in streams if ready(s_, g)]
                if not cand:
                    break
                s_ = min(cand, key=lambda z: z['dl'] - len(z['ops']) + z['pri'])
                bud -= emit(s_['ops'].pop(0))
                if not s_['ops']:
                    s_['done'] = g
            for s_ in streams:
                if s_['ops'] and s_['dl'] <= g:
                    if opt.get('verbose'):
                        print("forced", s_['name'], len(s_['ops']), "ops at", p, s, mt, file=sys.stderr)
                    force_finish(s_, g)
        if p == 2 and s == 7:
            st(6)
    assert all(not s_['ops'] for s_ in streams)
    st(10)
    a("s_nop 6")
    for op in epi_a(5):
        emit(op)
    if opt.get('lst'):
        a("s_waitcnt vmcnt(0)")
        a(("s_memrealtime" if not opt.get('cyc') else "s_memtime") + " s[40:41]")
        srd(a, 76, 100, 0x1000000)
        a("s_lshl_b32 s42, s2, 4")
        a(f"s_add_u32 s42, s42, s{sW}")
        a("s_lshl_b32 s42, s42, 7")
        a(f"s_add_u32 s42, s42, {STAMP_OFF}")
        a("v_mov_b32 v9, s42")
        a("s_waitcnt lgkmcnt(0)")
        a("s_mov_b64 exec, 1")
        for idx, r in list(LST.items()) + [(7, 40)]:
            a(f"v_mov_b32 v14, s{r}")
            a(f"v_mov_b32 v15, s{r+1}")
            a(f"buffer_store_dwordx2 v[14:15], v9, s[76:79], 0 offen offset:{idx*8}")
    if STAMP:
        a("s_waitcnt vmcnt(0)")
        st(7)
    if opt.get('amp') is not None:
        a("s_waitcnt vmcnt(0)")
        st(7)
        a("s_sub_u32 s99, s99, s98")
        a("s_lshl_b32 s99, s99, 3")
        a("s_min_u32 s99, s99, 100000")
        a("s_memrealtime s[96:97]")
        a("s_waitcnt lgkmcnt(0)")
        a("s_mov_b32 s98, s96")
        a.label("AMP_L")
        a("s_sleep 2")
        a("s_memrealtime s[96:97]")
        a("s_waitcnt lgkmcnt(0)")
        a("s_sub_u32 s96, s96, s98")
        a("s_cmp_lt_u32 s96, s99")
        a("s_cbranch_scc1 AMP_L")
    a("s_endpgm")

    a.label("AUX")
    aux[0] = True
    vm.clear(); lg.clear()
    a("s_memrealtime s[96:97]")
    a(f"s_and_b32 s{sA}, s2, 7")
    a(f"s_mul_i32 s{sPI}, s{sA}, 5000")
    a(f"s_lshr_b32 s{sB}, s2, 3")
    a("s_waitcnt lgkmcnt(0)")
    if opt.get('stouch', 0):
        a("s_load_dword s40, s[78:79], 0")
        a("s_load_dword s41, s[100:101], 0xffffc")
        a("s_load_dword s42, s[6:7], 0xfc")
    srd(a, sX, 76, N * 512)

    def xpf(first, stride, n, vd):
        for r in range(n):
            a(f"v_add_u32 v{vT0}, {first + r*stride}, v{vSeq}")
            a(f"v_subrev_u32 v{vT1}, 40000, v{vT0}")
            a(f"v_min_u32 v{vT0}, v{vT0}, v{vT1}")
            a(f"v_lshlrev_b32 v{vT0}, 7, v{vT0}")
            a(f"buffer_load_dword v{vd+r}, v{vT0}, {sr(sX,4)}, 0 offen")

    a(f"s_cmp_lt_u32 s2, {NPROD}")
    a("s_cbranch_scc1 PROD")
    stamp_setup()
    st(0)
    a(f"s_sub_u32 s{sB}, s{sB}, 4")
    a(f"s_lshl_b32 s{sB}, s{sB}, 9")
    a(f"s_add_u32 s{sPI}, s{sPI}, s{sB}")
    a(f"v_add_u32 v{vSeq}, s{sPI}, v0")
    a(f"s_sub_u32 s{sId}, s2, {NPROD}")
    a(f"s_cmp_lt_u32 s{sId}, {NW2H}")
    a("s_cbranch_scc0 H_PF")
    srd(a, sW2, 88, 256 * 1024)
    srd(a, sDBG, 6, 256)
    srd(a, sWS, 100, WS_BYTES)
    a(f"s_lshl_b32 s{sWB}, s{sW}, 12")
    w2_addr(sW, vS2, [(vTB, sWB)])
    a(f"s_lshl_b32 s{sA}, s{sId}, 15")
    for i in range(4):
        a(f"s_add_u32 m0, s{sWB}, {i*1024}")
        a(f"s_add_u32 s45, s{sA}, {i*8192}")
        a(f"buffer_load_dwordx4 v{vS2}, {sr(sW2,4)}, s45 offen lds")
    a(f"s_lshl_b32 s{sA}, s{sW}, 15")
    a(f"s_lshl_b32 s45, s{sId}, 12")
    a(f"s_add_u32 s{sA}, s{sA}, s45")
    a(f"s_add_u32 s{sA}, s{sA}, {W2F}")
    a(f"v_lshl_add_u32 v{vOff}, v{vLane}, 4, s{sA}")
    a("s_waitcnt vmcnt(0)")
    for op in tr_w2_ops(64, vTB, 0, "h", None):
        a(op[1])
    a("s_waitcnt lgkmcnt(0)")
    for mt in range(4):
        a(f"buffer_store_dwordx4 {vr(64+4*mt,4)}, v{vOff}, {sr(sWS,4)}, 0 offen offset:{mt*1024} sc1")
    a("s_waitcnt vmcnt(0)")
    a("s_barrier")
    a(f"s_cmp_eq_u32 s{sW}, 0")
    a("s_cbranch_scc0 H_PF")
    a(f"s_lshl_b32 s{sA}, s{sId}, 2")
    a(f"v_mov_b32 v{vT1}, s{sA}")
    a(f"v_mov_b32 v{vT0}, 1")
    a("s_mov_b64 exec, 1")
    a(f"buffer_store_dword v{vT0}, v{vT1}, {sr(sDBG,4)}, 0 offen offset:128 sc1")
    a("s_mov_b64 exec, -1")
    st(12)
    a.label("H_PF")
    xpf(0, 1024, NH, 16)
    if STAMP:
        a("s_waitcnt vmcnt(0)")
        st(13)
    a("s_endpgm")
    a.label("PROD")
    if not opt.get('pfast', 1):
        srd(a, sDST, 80, E * 4)
        srd(a, sSRC, 78, E * 4)
        a(f"s_mul_i32 s{sA}, s2, {CH*4}")
        a(f"s_add_u32 s40, s{sA}, 8192")
        a(f"s_add_u32 s41, s{sA}, 16384")
        a(f"buffer_load_dwordx4 {vr(16,4)}, v{vT16}, {sr(sDST,4)}, s{sA} offen")
        a(f"buffer_load_dwordx4 {vr(24,4)}, v{vT16}, {sr(sDST,4)}, s40 offen")
        a(f"s_cmp_lt_u32 s{sW}, 4")
        a("s_cbranch_scc0 P_E2")
        a(f"buffer_load_dwordx4 {vr(32,4)}, v{vT16}, {sr(sDST,4)}, s41 offen")
        a(f"buffer_load_dwordx4 {vr(36,4)}, v{vT16}, {sr(sSRC,4)}, s41 offen")
        a.label("P_E2")
        a(f"buffer_load_dwordx4 {vr(20,4)}, v{vT16}, {sr(sSRC,4)}, s{sA} offen")
        a(f"buffer_load_dwordx4 {vr(28,4)}, v{vT16}, {sr(sSRC,4)}, s40 offen")
    vm.issue("dst")
    vm.issue("edges")
    srd(a, sDBG, 6, 256)
    srd(a, sWS, 100, CELLS_BYTES)
    a("v_lshrrev_b32 v46, 3, v0")
    a("v_and_b32 v47, 7, v0")
    a("v_lshlrev_b32 v50, 13, v46")
    a("v_lshl_or_b32 v50, v47, 4, v50")
    a(f"s_lshl_b32 s4, s2, 7")
    a(f"v_add_u32 v50, s4, v50")
    if opt.get('vtouch', 0):
        srd(a, sW1, 100, WS_BYTES)
        a(f"s_cmp_eq_u32 s{sW}, 6")
        a("s_cbranch_scc0 P_VT")
        a(f"v_mov_b32 v{vT0}, 0x1f0000")
        a(f"buffer_load_dword v60, v{vT0}, {sr(sW1,4)}, 0 offen")
        a.label("P_VT")
    vm.issue("edges")
    a(f"s_lshr_b32 s{sNode}, s96, 8")
    a(f"s_or_b32 s{sNode}, s{sNode}, 1")
    a(f"v_mov_b32 v51, {NONCE}")
    a(f"s_cmp_eq_u32 s{sW}, 7")
    a("s_cbranch_scc0 P_N1")
    a(f"v_mov_b32 v{vT0}, s{sNode}")
    a(f"s_lshl_b32 s4, s2, 2")
    a(f"v_mov_b32 v{vT1}, s4")
    a("s_mov_b64 exec, 1")
    a(f"buffer_store_dword v{vT0}, v{vT1}, {sr(sDBG,4)}, 0 offen sc1")
    a(f"ds_write_b32 v51, v{vT0}")
    a("s_mov_b64 exec, -1")
    a.label("P_N1")
    stamp_setup()
    st(0)
    a(f"v_mov_b32 v40, {EMPTY}")
    a("v_mov_b32 v41, v40")
    a("v_mov_b32 v42, v40")
    a("v_mov_b32 v43, v40")
    a(f"s_movk_i32 s4, {CST}")
    a(f"v_mov_b32 v55, {IMG}")
    a("v_mad_u32_u24 v56, v46, s4, v55")
    a("v_lshl_add_u32 v48, v47, 4, v56")
    a(f"v_add_u32 v49, {128*CST}, v48")
    def cp(i):
        return (48 + i // 2, (i % 2) * 64 * CST)
    for i in range(4):
        r, o = cp(i)
        a(f"ds_write_b128 v{r}, v[40:43] offset:{o}")
        a(f"ds_write_b128 v{r}, v[40:43] offset:{o + 128}")
    a(f"v_and_b32 v{vT0}, 255, v0")
    a(f"v_mad_u32_u24 v{vT1}, v{vT0}, s4, v55")
    a(f"v_lshlrev_b32 v{vT0}, 2, v{vT0}")
    a(f"ds_write_b32 v{vT0}, v{vT1} offset:{PCNT}")
    a("v_mov_b32 v44, 4")
    a(f"s_mov_b32 s{sT}, {-(48 << 14) & 0xffffffff}")
    a("v_lshlrev_b32 v45, 2, v46")
    a(f"v_mov_b32 v52, {MARK}")
    a(f"s_mov_b32 s{sA}, 43691")
    a(f"s_lshl_b32 s{sB}, s{sB}, 9")
    a(f"s_add_u32 s{sPI}, s{sPI}, s{sB}")
    a(f"v_add_u32 v{vSeq}, s{sPI}, v0")
    for i in range(4):
        a(f"v_add_u32 v{72+i}, {i*64*8192}, v50")
        a(f"v_add_u32 v{76+i}, {i*64*CST + 128}, v56")
    a(f"v_lshlrev_b32 v{vT0}, 2, v{vLane}")
    a(f"v_mad_u32_u24 v80, v{vT0}, s4, v55")
    a("v_add_u32 v80, 512, v80")
    a(f"v_lshlrev_b32 v84, 4, v{vLane}")
    a("s_waitcnt lgkmcnt(0)")
    a("s_barrier")
    a("ds_read_b32 v53, v51")
    a("s_waitcnt lgkmcnt(0)")
    a("v_lshlrev_b32 v53, 8, v53")
    if opt.get('ppf0', 0):
        xpf(NH * 1024 + NP * 2048, 2048, 1, 60)
        vm.issue("pf0")
    def w7(tag, k):
        n_ = vm.need(tag)
        a(f"s_cmp_eq_u32 s{sW}, 7")
        a(f"s_cbranch_scc1 P_W7{k}")
        a(f"s_waitcnt vmcnt({n_})")
        a.label(f"P_W7{k}")
        a(f"s_waitcnt vmcnt({n_ + 1})")
    w7("dst", 0)
    st(14)
    def bin_a(r):
        vd, vs, vb, va = 16 + 8 * r, 20 + 8 * r, 192 + 4 * r, 204 + 4 * r
        for k in range(4):
            a(f"v_mul_u32_u24 v{vb+k}, s{sA}, v{vd+k}")
            a(f"v_lshrrev_b32 v{vb+k}, 21, v{vb+k}")
            a(f"v_lshlrev_b32 v{va+k}, 2, v{vb+k}")
            a(f"ds_add_rtn_u32 v{va+k}, v{va+k}, v44 offset:{PCNT}")
    def bin_a2(r):
        vd, vs, vb, va = 16 + 8 * r, 20 + 8 * r, 192 + 4 * r, 204 + 4 * r
        for k in range(4):
            a(f"v_lshl_or_b32 v{vs+k}, v{vd+k}, 14, v{vs+k}")
            a(f"v_mad_i32_i24 v{vs+k}, v{vb+k}, s{sT}, v{vs+k}")
    def bin_b(r):
        vd, vs, vb, va = 16 + 8 * r, 20 + 8 * r, 192 + 4 * r, 204 + 4 * r
        for k in range(4):
            a(f"ds_write_b32 v{va+k}, v{vs+k}")
    bin_a(0)
    bin_a(1)
    a(f"s_cmp_lt_u32 s{sW}, 4")
    a("s_cbranch_scc0 P_R2")
    a(f"v_cmp_gt_u32 vcc, {CH//4 - 1024}, v0")
    a("s_and_saveexec_b64 s[4:5], vcc")
    bin_a(2)
    bin_a2(2)
    a("s_waitcnt lgkmcnt(0)")
    bin_b(2)
    a("s_mov_b64 exec, s[4:5]")
    a.label("P_R2")
    w7("edges", 1)
    bin_a2(0)
    bin_a2(1)
    a("s_waitcnt lgkmcnt(0)")
    bin_b(0)
    bin_b(1)
    a("s_waitcnt lgkmcnt(0)")
    a("s_barrier")
    st(15)
    a(f"ds_read_b128 v[88:91], v84 offset:{PCNT}")
    lg.issue("all")
    for i in range(4):
        r, o = cp(i)
        a(f"ds_read_b128 {vr(128+4*i,4)}, v{r} offset:{o}")
        lg.issue(f"c{i}")
    for i in range(4):
        r, o = cp(i)
        a(f"ds_read_b32 v{64+i}, v45 offset:{PCNT + i*256}")
        lg.issue(f"n{i}")
        a(f"ds_read_b128 {vr(144+4*i,4)}, v{r} offset:{o + 128}")
        lg.issue(f"d{i}")
    def pack(d):
        a(f"v_lshl_or_b32 v{d}, v{d+1}, 20, v{d}")
        a(f"v_lshrrev_b32 v{d+1}, 12, v{d+1}")
        a(f"v_or_b32 v{d+1}, v53, v{d+1}")
        a(f"v_lshl_or_b32 v{d+2}, v{d+3}, 20, v{d+2}")
        a(f"v_lshrrev_b32 v{d+3}, 12, v{d+3}")
        a(f"v_or_b32 v{d+3}, v53, v{d+3}")
    wait(ltag="all")
    for k in range(1, 4):
        a(f"v_subrev_u32 v{88+k}, {k*CST}, v{88+k}")
    a("v_max3_u32 v88, v88, v89, v90")
    a("v_max_u32 v88, v88, v91")
    a("v_cmp_gt_u32 vcc, v88, v80")
    a("s_cmp_lg_u64 vcc, 0")
    a("s_cbranch_scc1 P_OVF")
    a.label("P_OVR")
    for i in range(4):
        wait(ltag=f"c{i}")
        pack(128 + 4 * i)
        a(f"buffer_store_dwordx4 {vr(128+4*i,4)}, v{72+i}, {sr(sWS,4)}, 0 offen sc1")
    a("s_movk_i32 s6, 0x1000")
    for i in range(4):
        d = 144 + 4 * i
        wait(ltag=f"d{i}")
        a(f"v_cmp_le_u32 vcc, v{76+i}, v{64+i}")
        a("s_and_b64 exec, exec, vcc")
        a(f"s_cbranch_scc0 P_SK{i}")
        a(f"v_add_u32 v{76+i}, 128, v{76+i}")
        a(f"v_cmp_lt_u32 vcc, v{76+i}, v{64+i}")
        a("s_nop 1")
        a(f"v_cndmask_b32 v{d}, v{d}, v52, vcc")
        pack(d)
        a(f"buffer_store_dwordx4 {vr(d,4)}, v{72+i}, {sr(sWS,4)}, s6 offen sc1")
        a.label(f"P_SK{i}")
        a("s_mov_b64 exec, -1")
    if STAMP:
        st(1)
        a("s_waitcnt vmcnt(0)")
        st(2)
    a("s_barrier")
    if opt.get('ftouch', 1):
        srd(a, sW1, 100, WS_BYTES)
        a(f"v_and_b32 v{vT0}, {NW2H-1}, v{vLane}")
        a(f"v_lshlrev_b32 v{vT0}, 2, v{vT0}")
        a(f"buffer_load_dword v{vT1}, v{vT0}, {sr(sDBG,4)}, 0 offen offset:128 sc1")
        a(f"s_lshr_b32 s4, s2, 3")
        a("s_lshl_b32 s4, s4, 16")
        a(f"s_add_u32 s4, s4, {W2F}")
        a(f"v_lshlrev_b32 v{vT0}, 7, v0")
        a("s_waitcnt vmcnt(0)")
        a(f"v_cmp_eq_u32 vcc, 0, v{vT1}")
        a("s_cmp_lg_u64 vcc, 0")
        a("s_cbranch_scc1 P_NT")
        a(f"buffer_load_dword v60, v{vT0}, {sr(sW1,4)}, s4 offen sc1")
        a.label("P_NT")
    xpf(NH * 1024, 2048, NP, 16)
    if STAMP:
        a("s_waitcnt vmcnt(0)")
        st(13)
    a("s_endpgm")
    a.label("P_OVF")
    a("s_waitcnt lgkmcnt(0)")
    for i in range(4):
        a(f"v_mov_b32 v{128+4*i}, v52")
        a(f"v_mov_b32 v{64+i}, -1")
    a("s_branch P_OVR")
    a.label("M_END")
    a("s_endpgm")
    return LDS_TOTAL, bars


DOC = """
GIN layer, one fused kernel (generated by gen/gen21.py).  256 workgroups of 8 waves, one per CU:
  ids  0..31  producers : bin 5000 edges each by 48-node destination block (LDS counting), publish
              fixed-capacity cells in d_ws as 8-byte granules {2 x 20-bit entry, 24-bit launch tag}
              with sc1 stores; the tag is announced in d_debug[id].  Afterwards: L2 prefetch of x.
  ids 32..46  helpers   : 32..39 re-lay W2 into MFMA fragment order in d_ws (sc1 stores, drained,
              flag in d_debug[32+h]); all of them prefetch x into L2.
  ids 47..255 consumers : 48 nodes each.  W1 -> registers via LDS-DMA + transposing LDS reads,
              poll + sort their cells into per-node lists, gather x rows (two rows per load, summed
              in fp32 by one MFMA against a 0/1 selection matrix, self row scaled by bf16(1+eps)),
              then GEMM1 (+b1, relu) and GEMM2 (+b2) with bf16 MFMA.
  Any capacity overflow or hand-off timeout falls back to an exact scan of src/dst.
"""

def build(opt):
    name = "gather_scatter__isomorphism_gin_2__graph_kernel"
    _, bars = gen_main(Asm(), dict(opt, verbose=0), name)
    b = Asm()
    lds, bars2 = gen_main(b, opt, name, bars)
    assert bars == bars2
    a = Asm()
    a.raw(HEADER.rstrip())
    a.raw(f"; @launch grid=(256,1,1) block=(512,1,1) lds={lds}")
    a.raw('.amdgcn_target "amdgcn-amd-amdhsa--gfx950"')
    for l in DOC.strip().split("\n"):
        a.raw("; " + l)
    a.raw(".text")
    a.l += b.l
    a.raw('.section .rodata,"a"')
    a.raw(kd(name, 256, 102))
    return a.text()

if __name__ == "__main__":
    out = sys.argv[1]
    opt = {}
    for kv in sys.argv[2:]:
        k, v = kv.split("=")
        opt[k] = int(v)
    open(out, "w").write(build(opt))
```

```python
import sys
from gen2 import Asm, Ctr, vr, sr, srd, kd, HEADER

N = 10000
E = 160000
BN = 48
NBLK = 209
NPROD = 32
NHELP = 15
C0 = NPROD + NHELP
CH = E // NPROD
CELLS_BYTES = NBLK * 8192
W2F = 0x200000
WS_BYTES = W2F + 0x40000
STAMP_OFF = 0x400000
EMPTY = 63 << 14
MARK = 62 << 14
NW2H = 8
NPW = 6


def gen_main(a, opt, name, bars_hint=None):
    D = opt.get('depth', 8)
    NH = opt.get('nh', 8)
    NP = opt.get('np', 4)
    STAMP = opt.get('stamp')
    assert D <= 16
    HH = 0
    ACT = 24576
    WST = 73728
    LIST = 65536
    CNT = LIST + 6144
    FLAG = CNT + 56 * 4
    BIAS = WST + 65536
    LDS_TOTAL = BIAS + 3072
    IMG = 2048
    PCNT = 0
    NONCE = 1024
    CST = 528
    vLane, vC16, vSh, vSeq, vT0, vT1, vOff, vFl = 1, 2, 3, 4, 5, 6, 7, 8
    vAcc = 10
    RING = 16
    vA1, vAS = 48, 52
    RS = lambda s: RING + 4 * s if s < 8 else 68 + 4 * (s - 8)
    vS2, vT16, vLB, vTB = 56, 57, 58, 63
    W2R = 64
    vSF, vAH = 112, 124
    W = 128
    vS1 = 16
    vTR = 20
    vTR2 = 29
    vBI = 44
    sX, sWS, sOUT, sSRC, sDST, sB1, sB2, sW1, sW2, sDBG = 8, 12, 16, 20, 24, 28, 32, 64, 68, 72
    sW, sWB, sA, sB = 36, 37, 38, 39
    sLB, sRot, sWL, sV = 46, 47, 48, 49
    sPC, sPI, sT, sXor, sNode, sId = 50, 51, 52, 53, 54, 55
    sMask = 56
    sM = 76
    sST = 92

    vm = Ctr(63)
    lg = Ctr(15)
    aux = [False]

    LST = {0: 98, 1: 96, 2: 94, 3: 92, 4: 90, 5: 88, 6: 86, 10: 84}
    def st(idx):
        if opt.get('lst') and not aux[0]:
            if idx in LST:
                a(("s_memrealtime" if not opt.get('cyc') else "s_memtime") + f" {sr(LST[idx],2)}")
            return
        amp = opt.get('amp')
        pamp = opt.get('pamp')
        if pamp is not None and aux[0] and (idx == 0 or idx == pamp):
            a("s_memrealtime s[94:95]")
            a("s_waitcnt lgkmcnt(0)")
            lg.clear()
            a(f"s_mov_b32 s{98 if idx == 0 else 99}, s94")
        if amp is not None and not aux[0]:
            if idx == 0 or idx == amp:
                a("s_memrealtime s[96:97]")
                a("s_waitcnt lgkmcnt(0)")
                lg.clear()
                a(f"s_mov_b32 s{98 if idx == 0 else 99}, s96")
                if amp == 30:
                    a("s_mov_b32 s99, s96")
                    a("s_mov_b32 s98, s94")
            if idx == 2 and amp in (20, 21):
                for i in range(4):
                    a(f"v_readlane_b32 s{92+i}, v40, {16*i}")
                a("s_nop 3")
                op = "s_min_u32" if amp == 20 else "s_max_u32"
                a(f"{op} s92, s92, s93")
                a(f"{op} s94, s94, s95")
                a(f"{op} s92, s92, s94")
                if amp == 20:
                    a("s_mov_b32 s99, s98")
                    a("s_min_u32 s98, s92, s98")
                else:
                    a("s_max_u32 s99, s92, s98")
        if STAMP and (opt.get('stmask', 0xffff) >> idx) & 1:
            a("s_memrealtime s[96:97]" if not opt.get('cyc') else "s_memtime s[96:97]")
            a("s_waitcnt lgkmcnt(0)")
            lg.clear()
            a("v_mov_b32 v14, s96")
            a("v_mov_b32 v15, s97")
            a("s_mov_b64 s[98:99], exec")
            a("s_mov_b64 exec, 1")
            a(f"buffer_store_dwordx2 v[14:15], v9, {sr(sST,4)}, 0 offen offset:{idx*8}")
            vm.issue('st')
            a("s_mov_b64 exec, s[98:99]")

    def wait(vtag=None, ltag=None):
        p = []
        if vtag is not None:
            n = vm.need(vtag)
            if n is not None:
                p.append(f"vmcnt({n})")
        if ltag is not None:
            tags = ltag if isinstance(ltag, (list, tuple)) else [ltag]
            ns = [lg.need(t) for t in tags]
            ns = [n for n in ns if n is not None]
            if ns:
                p.append(f"lgkmcnt({min(ns)})")
        if p:
            a("s_waitcnt " + " ".join(p))
            return True
        return False

    def stamp_setup():
        if STAMP:
            srd(a, sST, 100, 0x1000000)
            a("s_lshl_b32 s96, s2, 4")
            a(f"s_add_u32 s96, s96, s{sW}")
            a("s_lshl_b32 s96, s96, 7")
            a(f"s_add_u32 s96, s96, {STAMP_OFF}")
            a("v_mov_b32 v9, s96")

    a.raw(f".globl {name}")
    a.raw(".p2align 8")
    a.raw(f".type {name},@function")
    a.label(name)
    if opt.get('amp') == 30:
        a("s_memrealtime s[94:95]")
    a("s_cmp_ge_u32 s2, 256")
    a("s_cbranch_scc1 M_END")
    a("s_load_dwordx16 s[76:91], s[0:1], 0")
    a("s_load_dwordx4 s[4:7], s[0:1], 64")
    a("s_load_dwordx2 s[100:101], s[0:1], 80")
    a(f"v_and_b32 v{vLane}, 63, v0")
    a(f"v_lshrrev_b32 v{vT0}, 6, v0")
    a(f"v_lshlrev_b32 v{vT16}, 4, v0")
    a(f"v_readfirstlane_b32 s{sW}, v{vT0}")
    if opt.get('pfast', 1):
        a(f"s_cmp_lt_u32 s2, {NPROD}")
        a("s_cbranch_scc0 NOTP")
        a(f"s_mul_i32 s{sA}, s2, {CH*4}")
        a(f"s_add_u32 s40, s{sA}, 8192")
        a(f"s_add_u32 s41, s{sA}, 16384")
        for d in (sDST, sSRC):
            a(f"s_mov_b32 s{d+2}, {E*4}")
            a(f"s_mov_b32 s{d+3}, 0x00020000")
        a("s_waitcnt lgkmcnt(0)")
        a(f"s_mov_b32 s{sDST}, s80")
        a(f"s_and_b32 s{sDST+1}, s81, 0xffff")
        a(f"buffer_load_dwordx4 {vr(16,4)}, v{vT16}, {sr(sDST,4)}, s{sA} offen")
        a(f"buffer_load_dwordx4 {vr(24,4)}, v{vT16}, {sr(sDST,4)}, s40 offen")
        a(f"s_mov_b32 s{sSRC}, s78")
        a(f"s_and_b32 s{sSRC+1}, s79, 0xffff")
        a(f"s_cmp_lt_u32 s{sW}, 4")
        a("s_cbranch_scc0 P_E2")
        a(f"buffer_load_dwordx4 {vr(32,4)}, v{vT16}, {sr(sDST,4)}, s41 offen")
        a(f"buffer_load_dwordx4 {vr(36,4)}, v{vT16}, {sr(sSRC,4)}, s41 offen")
        a.label("P_E2")
        a(f"buffer_load_dwordx4 {vr(20,4)}, v{vT16}, {sr(sSRC,4)}, s{sA} offen")
        a(f"buffer_load_dwordx4 {vr(28,4)}, v{vT16}, {sr(sSRC,4)}, s40 offen")
        a("s_branch AUX")
        a.label("NOTP")
    a(f"s_cmp_lt_u32 s2, {C0}")
    if opt.get('cpre', 0):
        a("s_cbranch_scc0 CONS")
        a("s_getpc_b64 s[40:41]")
        a(f"v_lshlrev_b32 v{vT0}, 7, v0")
        a(f"v_cmp_gt_u32 vcc, {opt['cpre']}, v0")
        a("s_and_saveexec_b64 s[42:43], vcc")
        a("s_cbranch_execz CP_SK")
        a(f"global_load_dword v61, v{vT0}, s[40:41]")
        a.label("CP_SK")
        a("s_mov_b64 exec, s[42:43]")
        a("s_branch AUX")
        a.label("CONS")
    else:
        a("s_cbranch_scc1 AUX")

    a(f"s_sub_u32 s3, s2, {C0}")
    a(f"s_lshl_b32 s{sLB}, s3, 13")
    a(f"s_mul_i32 s3, s3, {BN}")
    a(f"v_mov_b32 v{vLB}, {LIST}")
    a("v_cmp_gt_u32 vcc, 384, v0")
    a(f"v_add_u32 v{vOff}, v{vLB}, v{vT16}")
    a("s_nop 0")
    a("v_cndmask_b32 v36, 0, -1, vcc")
    a("v_mov_b32 v37, v36")
    a("v_mov_b32 v38, v36")
    a("v_mov_b32 v39, v36")
    a(f"ds_write_b128 v{vOff}, v[36:39]")
    a(f"s_lshr_b32 s{sRot}, s2, 3")
    a(f"s_and_b32 s{sRot}, s{sRot}, 7")
    a(f"s_lshr_b32 s{sV}, s2, 4")
    a(f"s_and_b32 s{sV}, s{sV}, 4")
    a(f"s_and_b32 s{sA}, s{sRot}, 3")
    a(f"s_or_b32 s{sV}, s{sV}, s{sA}")
    a(f"s_xor_b32 s{sV}, s{sW}, s{sV}")
    a(f"v_bfe_u32 v{vT0}, v{vLane}, 1, 2")
    a(f"v_bfe_u32 v{vT1}, v{vLane}, 4, 1")
    a(f"v_xor_b32 v{vT0}, v{vT0}, v{vT1}")
    a(f"v_lshrrev_b32 v{vT1}, 3, v{vLane}")
    a(f"v_lshlrev_b32 v{vT1}, 10, v{vT1}")
    a(f"v_and_b32 v{vOff}, 1, v{vLane}")
    a(f"v_lshl_or_b32 v{vT1}, v{vOff}, 4, v{vT1}")
    a(f"s_lshl_b32 s{sA}, s{sV}, 7")
    a(f"v_or_b32 v{vT1}, s{sA}, v{vT1}")
    a(f"v_lshl_or_b32 v{vS1}, v{vT0}, 5, v{vT1}")
    a(f"v_xor_b32 v{vS1+1}, 64, v{vS1}")
    a(f"s_lshl_b32 s{sWL}, s{sW}, 13")
    a(f"s_add_u32 s{sWB}, s{sWL}, {WST}")
    a(f"s_lshl_b32 s{sB}, s{sRot}, 15")
    a("s_waitcnt lgkmcnt(0)")
    srd(a, sW1, 84, 256 * 1024)
    a("s_barrier")

    def slot_base(sl):
        return (sWB if sl < 2 else sWL), (sl % 2) * 4096

    def dma_unit(u):
        sb, off = slot_base(u % 4)
        for i in range(4):
            a(f"s_add_u32 m0, s{sb}, {off + i * 1024}")
            if u < 8:
                a(f"s_xor_b32 s{sA}, s{sB}, {(u * 32 + i * 8) * 1024}")
                a(f"buffer_load_dwordx4 v{vS1 + i % 2}, {sr(sW1,4)}, s{sA} offen lds")
            else:
                a(f"s_mov_b32 s{sA}, {((u - 8) * 64 + i * 16) * 512}")
                a(f"buffer_load_dwordx4 v{vN2}, {sr(sW2,4)}, s{sA} offen lds")
            vm.issue(f"u{u}")

    NR = opt.get('nr', 2)
    NU = 8 + NR
    vN2 = 28
    NBUB = opt.get('nb', 2)
    NINF = opt.get('ninf', 3)
    PPRIO = opt.get('pprio', 1)
    stamp_setup()
    st(0)
    if opt.get('dly_c'):
        a(f"s_sleep {opt['dly_c']}")
    if PPRIO:
        a("s_setprio 3")
    dma_unit(0)
    if PPRIO:
        a("s_setprio 2")
    a("s_load_dword s45, s[82:83], 0")
    SPF = opt.get('spf', 0)
    if SPF:
        a("s_and_b32 s40, s2, 7")
        a("s_mul_i32 s40, s40, 5000")
        a("s_lshr_b32 s41, s2, 3")
        a("s_lshl_b32 s41, s41, 3")
        a(f"s_add_u32 s41, s41, s{sW}")
        a(f"s_mul_i32 s41, s41, {SPF}")
        a("s_add_u32 s40, s40, s41")
        a(f"s_add_u32 s40, s40, {NH * 1024 + NP * 2048 - 40 * SPF}")
        a(f"s_sub_u32 s41, s40, {40000 - SPF}")
        a("s_min_u32 s40, s40, s41")
        a("s_lshl_b32 s40, s40, 7")
        a("s_add_u32 s40, s76, s40")
        a("s_addc_u32 s41, s77, 0")
        for r in range(SPF):
            a(f"s_load_dword s42, s[40:41], {128 * r}")
    for u in range(1, NINF):
        dma_unit(u)
    srd(a, sB1, 86, 1024)
    srd(a, sB2, 90, 512)
    a(f"v_lshlrev_b32 v{vC16}, 4, v{vLane}")
    a(f"s_cmp_eq_u32 s{sW}, 2")
    a("s_cbranch_scc0 C_SL2")
    a(f"buffer_load_dwordx4 {vr(vBI,4)}, v{vC16}, {sr(sB1,4)}, 0 offen")
    a.label("C_SL2")
    a(f"s_cmp_eq_u32 s{sW}, 3")
    a("s_cbranch_scc0 C_SL3")
    a(f"buffer_load_dwordx4 {vr(vBI,4)}, v{vC16}, {sr(sB2,4)}, 0 offen")
    a.label("C_SL3")
    a(f"v_lshrrev_b32 v{vT0}, 4, v{vLane}")
    a(f"v_lshlrev_b32 v{vT0}, 10, v{vT0}")
    a(f"v_bfe_u32 v{vT1}, v{vLane}, 2, 2")
    a(f"v_lshl_or_b32 v{vT0}, v{vT1}, 7, v{vT0}")
    a(f"v_and_b32 v{vT1}, 3, v{vLane}")
    a(f"v_lshl_or_b32 v{vT0}, v{vT1}, 3, v{vT0}")
    a(f"v_bfe_u32 v{vT1}, v{vLane}, 3, 2")
    for mt in range(4):
        a(f"v_xor_b32 v{vOff}, {mt}, v{vT1}")
        a(f"v_lshl_add_u32 v{vOff}, v{vOff}, 5, v{vT0}")
        a(f"v_add_u32 v{vTR+mt}, s{sWB}, v{vOff}")
        a(f"v_add_u32 v{vTR+4+mt}, s{sWL}, v{vOff}")

    def w2_addr(sLW, vsrc, vtb_list):
        a(f"v_lshrrev_b32 v{vT0}, 2, v{vLane}")
        a(f"v_lshlrev_b32 v{vT0}, 9, v{vT0}")
        a(f"v_and_b32 v{vT1}, 3, v{vLane}")
        a(f"v_lshl_or_b32 v{vT0}, v{vT1}, 4, v{vT0}")
        a(f"s_lshl_b32 s{sA}, s{sLW}, 6")
        a(f"v_or_b32 v{vsrc}, s{sA}, v{vT0}")
        for (v, sb) in vtb_list:
            a(f"v_lshl_add_u32 v{v}, v{vLane}, 4, s{sb}")

    def setup_a():
        a(f"s_lshl_b32 s{sA}, s{sV}, 15")
        a(f"s_add_u32 s{sA}, s{sA}, {W2F}")
        a(f"v_lshl_add_u32 v{vS2}, v{vLane}, 4, s{sA}")
        if NR:
            srd(a, sW2, 88, 256 * 1024)
            w2_addr(sV, vN2, [(vTB, sWB), (vTR2, sWL)])

    def setup_b():
        srd(a, sX, 76, N * 512)
        srd(a, sDBG, 6, 256)
        srd(a, sWS, 100, WS_BYTES)
        if opt.get('ctouch', 0):
            a(f"s_cmp_eq_u32 s{sW}, 0")
            a("s_cbranch_scc0 C_CT")
            a(f"v_mov_b32 v{vT0}, 0x1f0000")
            a(f"v_lshlrev_b32 v{vT1}, 20, v{vLane}")
            a("s_mov_b64 exec, 31")
            a(f"buffer_load_dword v31, v{vT0}, {sr(sWS,4)}, 0 offen")
            a(f"buffer_load_dword v30, v{vT1}, {sr(sX,4)}, 0 offen")
            a("s_mov_b64 exec, -1")
            a.label("C_CT")
        srd(a, sOUT, 4, N * 512)
        srd(a, sDST, 80, E * 4)
        srd(a, sSRC, 78, E * 4)

    def setup_c():
        a(f"v_lshrrev_b32 v{vT0}, 4, v{vLane}")
        a(f"v_lshrrev_b32 v{vT1}, 3, v{vLane}")
        a(f"v_xor_b32 v{vT0}, v{vT0}, v{vT1}")
        a(f"v_and_b32 v{vT0}, 1, v{vT0}")
        a(f"v_bfe_u32 v{vT1}, v{vLane}, 1, 2")
        a(f"v_lshl_or_b32 v{vT0}, v{vT0}, 2, v{vT1}")
        a(f"v_and_b32 v{vT1}, 1, v{vLane}")
        a(f"v_lshlrev_b32 v{vT1}, 4, v{vT1}")
        a("s_lshl_b32 s45, s45, 16")
        a("v_mov_b32 v40, s45")
        a("v_add_f32 v40, 1.0, v40")
        a("v_cvt_pk_bf16_f32 v40, v40, v40")
        a("v_and_b32 v40, 0xffff, v40")
        a("v_mov_b32 v41, 0x3f80")
        a(f"v_lshlrev_b32 v40, v{vT1}, v40")
        a(f"v_lshlrev_b32 v41, v{vT1}, v41")
        a(f"v_cmp_gt_u32 vcc, 32, v{vLane}")
        a("s_nop 1")
        a("v_cndmask_b32 v42, v40, 0, vcc")
        a("v_cndmask_b32 v40, 0, v40, vcc")
        for p in range(4):
            a(f"v_cmp_eq_u32 vcc, {p}, v{vT0}")
            a("s_nop 1")
            a(f"v_cndmask_b32 v{vA1+p}, 0, v41, vcc")
            a(f"v_cndmask_b32 v{vAS+p}, 0, v40, vcc")
            a(f"v_cndmask_b32 v{vAH+p}, 0, v42, vcc")

    def setup_d():
        a(f"v_lshrrev_b32 v{vSh}, 5, v{vLane}")
        a(f"v_lshlrev_b32 v{vSh}, 4, v{vSh}")
        a(f"v_and_b32 v{vT0}, 15, v{vLane}")
        a(f"v_lshlrev_b32 v{vFl}, 4, v{vT0}")
        a(f"v_lshl_or_b32 v{vFl}, v{vSh}, 4, v{vFl}")
        a(f"v_bfe_u32 v{vT0}, v{vLane}, 4, 1")
        a(f"v_lshl_or_b32 v{vFl}, v{vT0}, 3, v{vFl}")
        a(f"v_and_b32 v{vC16}, 31, v{vLane}")
        a(f"v_lshlrev_b32 v{vC16}, 4, v{vC16}")
        a(f"v_bfe_u32 v42, v{vLane}, 3, 2")
        a(f"s_lshl_b32 s{sA}, s{sW}, 4")
        a(f"v_lshl_add_u32 v42, v42, 2, s{sA}")
        a(f"v_and_b32 v43, {NW2H-1}, v{vLane}")
        a("v_lshlrev_b32 v43, 2, v43")
        a(f"s_lshl_b32 s{sA}, s{sW}, 9")
        a(f"v_lshl_add_u32 v41, v{vSh}, 8, v{vC16}")
        a(f"v_add_u32 v41, s{sA}, v41")
        a(f"s_mov_b32 s{sPC}, 0")
        a(f"s_mov_b32 s{sT}, {EMPTY}")
        a(f"v_lshrrev_b32 v{vT0}, 1, v{vLane}")
        a(f"v_lshlrev_b32 v{vT0}, 4, v{vT0}")
        a(f"v_and_b32 v{vT1}, 1, v{vLane}")
        a(f"v_or_b32 v{vT0}, v{vT0}, v{vT1}")
        a(f"s_lshl_b32 s{sNode}, s{sW}, 1")
        a(f"v_add_u32 v{vT0}, s{sNode}, v{vT0}")
        a(f"v_cmp_gt_u32 vcc, 6, v{vLane}")
        a(f"v_mov_b32 v{vT1}, 56")
        a("v_mov_b32 v62, 64")
        a(f"v_cndmask_b32 v{vT0}, v{vT1}, v{vT0}, vcc")
        a(f"v_lshl_add_u32 v61, v{vT0}, 2, v{vLB}")
        a(f"s_lshl_b32 s{sA}, s{sW}, 8")
        a(f"v_lshl_add_u32 v{vT1}, v{vLane}, 2, v{vLB}")
        a(f"v_add_u32 v60, s{sA}, v{vT1}")
        a("v_cndmask_b32 v62, 0, v62, vcc")
        set_xor()

    def set_xor():
        a(f"s_lshl_b32 s{sXor}, s{sNode}, 9")
        a(f"s_and_b32 s44, s{sNode}, 15")
        a("s_lshl_b32 s44, s44, 4")
        a(f"s_or_b32 s{sXor}, s{sXor}, s44")

    def cpf(r0, n):
        tot = opt.get('cpf', 0) + opt.get('cpf2', 0)
        a("s_and_b32 s4, s2, 7")
        a("s_mul_i32 s4, s4, 5000")
        a("s_lshr_b32 s5, s2, 3")
        a(f"s_mul_i32 s5, s5, {512 * tot}")
        a("s_add_u32 s4, s4, s5")
        for r in range(r0, r0 + n):
            a(f"s_add_u32 s5, s4, {NH * 1024 + NP * 2048 - 5 * 512 * tot + 512 * r}")
            a(f"v_add_u32 v{vT0}, s5, v0")
            a(f"v_subrev_u32 v{vT1}, 40000, v{vT0}")
            a(f"v_min_u32 v{vT0}, v{vT0}, v{vT1}")
            a(f"v_lshlrev_b32 v{vT0}, 7, v{vT0}")
            a(f"buffer_load_dword v{44+r}, v{vT0}, {sr(sX,4)}, 0 offen")
            vm.issue("cpf")

    def bias_to_lds():
        a(f"s_sub_u32 s{sA}, s{sW}, 2")
        a(f"s_cmp_lt_u32 s{sA}, 2")
        a("s_cbranch_scc0 C_NB")
        for x in range(4):
            a(f"v_lshlrev_b32 v{32+2*x}, 16, v{vBI+x}")
            a(f"v_and_b32 v{33+2*x}, 0xffff0000, v{vBI+x}")
        a(f"s_lshl_b32 s{sA}, s{sA}, 11")
        a(f"s_add_u32 s{sA}, s{sA}, {BIAS}")
        a(f"v_lshl_add_u32 v{vOff}, v{vLane}, 5, s{sA}")
        a(f"s_cmp_eq_u32 s{sW}, 3")
        a("s_cbranch_scc0 C_NB2")
        a("s_mov_b64 exec, 0xffffffff")
        a.label("C_NB2")
        a(f"ds_write_b128 v{vOff}, v[32:35]")
        a(f"ds_write_b128 v{vOff}, v[36:39] offset:16")
        a("s_mov_b64 exec, -1")
        a("s_waitcnt lgkmcnt(0)")
        a.label("C_NB")

    def tr_w2_ops(dst, vbase, off, tag, scr):
        ops = []
        for kk in range(2):
            for t in range(2):
                for hf in range(2):
                    ops.append(("ds", f"ds_read_b64_tr_b16 {vr(dst+8*kk+4*t+2*hf,2)}, v{vbase} offset:{off + kk*2048 + hf*1024 + 8*t}", tag))
        return ops

    def w2reg(k):
        return W2R + 16 * k if k < 4 else W + 16 * (k - 4)

    def w2_ops(k):
        ops = []
        for mt in range(4):
            ops.append(("vm2", [f"s_mov_b32 s{sA}, {k * 4096}"] if mt == 0 else [],
                        f"buffer_load_dwordx4 {vr(w2reg(k)+4*mt,4)}, v{vS2}, {sr(sWS,4)}, s{sA} offen offset:{mt*1024} sc1", f"w2_{k}"))
        return ops

    bars = []
    cur_q = [0]
    def emit(op):
        if isinstance(op, tuple):
            k = op[0]
            if k == "ds":
                a(op[1]); lg.issue(op[2]); return 1
            if k == "vm":
                a(op[1]); vm.issue(op[2]); return 1
            if k == "vm2":
                for l in op[1]:
                    a(l)
                a(op[2]); vm.issue(op[3]); return 1
            if k == "dma":
                for l in op[1]:
                    a(l)
                vm.issue(op[2]); return 2
            if k == "skip":
                return 2
            if k == "wl":
                return 1 if wait(ltag=op[1]) else 0
            if k == "wv":
                return 1 if wait(vtag=op[1]) else 0
            if k == "bar":
                wait(ltag=op[1])
                a("s_barrier")
                bars.append(cur_q[0])
                return 2
            raise ValueError(op)
        a(op)
        return 1

    def poll_issue():
        a(f"buffer_load_dword v40, v42, {sr(sDBG,4)}, 0 offen sc1")
        a(f"buffer_load_dword v39, v43, {sr(sDBG,4)}, 0 offen offset:128 sc1")
        a(f"buffer_load_dwordx4 v[32:35], v41, {sr(sWS,4)}, s{sLB} offen sc1")

    def unit_step(u):
        sl = u % 4
        hi = 0 if sl < 2 else 1
        off = (sl % 2) * 4096
        if not opt.get('nowait'):
            wait(vtag=f"u{u}")
        if opt.get('notr'):
            pass
        elif u < 8:
            for mt in range(4):
                for hf in range(2):
                    a(f"ds_read_b64_tr_b16 {vr(W+16*u+4*mt+2*hf,2)}, v{vTR+4*hi+mt} offset:{off + hf*512}")
                    lg.issue(f"t{u}")
        else:
            for op in tr_w2_ops(W2R + 16 * (u - 8), vTB if hi == 0 else vTR2, off, f"t{u}", [30, 31]):
                emit(op)
        nx = u + NINF
        if nx < NU:
            if nx - 4 >= 0:
                wait(ltag=f"t{nx-4}")
            dma_unit(nx)

    DEFER = opt.get('defer', 1)
    a("s_waitcnt lgkmcnt(0)")
    if not DEFER:
        setup_a()
        setup_b()
        setup_c()
        setup_d()
    if opt.get('sync0'):
        a("s_waitcnt vmcnt(0)")
        a("s_barrier")
    PU = opt.get('pu', 9)
    LATEF = opt.get('lateflag', 0)
    assert not LATEF or (NR == 0 and NBUB == 0)
    PU2 = opt.get('pu2', PU)
    SD = opt.get('sd', 5)
    def pollx():
        a(f"buffer_load_dword v40, v42, {sr(sDBG,4)}, 0 offen sc1")
        if not LATEF:
            a(f"buffer_load_dword v39, v43, {sr(sDBG,4)}, 0 offen offset:128 sc1")
            vm.issue("poll")
        else:
            a("v_mov_b32 v39, 1")
        a(f"buffer_load_dwordx4 v[32:35], v41, {sr(sWS,4)}, s{sLB} offen sc1")
        vm.issue("poll"); vm.issue("poll")
    def steps_from(u0, pu):
        for u in range(u0, NU):
            if PPRIO and u in (NU // 4, NU // 2 + 1):
                a(f"s_setprio {1 if u == NU // 4 else 0}")
            unit_step(u)
            {0: setup_a, 1: setup_b, 2: setup_c, SD: setup_d}.get(u, lambda: None)()
            if u == NINF:
                bias_to_lds()
            if pu is None and u == PU2:
                return
            if u == pu:
                pollx()
    if PU2 == PU:
        steps_from(0, PU)
    else:
        assert max(SD, NINF) <= PU2 < PU
        steps_from(0, None)
        a(f"s_cmp_lt_u32 s{sW}, {opt.get('ysplit', 4)}")
        a("s_cbranch_scc1 C_OLD")
        sv = (list(vm.q), list(lg.q))
        pollx()
        steps_from(PU2 + 1, -1)
        wait(vtag="poll")
        a("s_branch C_JOIN")
        vm.q, lg.q = sv
        a.label("C_OLD")
        steps_from(PU2 + 1, PU)
        wait(vtag="poll")
        a.label("C_JOIN")
    st(1)
    NPRE, NPOST = NR, 0
    wait(vtag="poll")
    a.label("POLL_CHK")
    a("v_lshrrev_b32 v16, 8, v33")
    a("v_lshrrev_b32 v17, 8, v35")
    a("v_xor_b32 v16, v16, v40")
    a("v_xor_b32 v17, v17, v40")
    a("v_or_b32 v16, v16, v17")
    a("v_alignbit_b32 v26, v35, v34, 20")
    a(f"v_cmp_ne_u32 {sr(sM,2)}, 0, v16")
    a("v_and_b32 v26, 0xfffff, v26")
    a("v_min_u32 v17, v40, v39")
    a(f"v_cmp_eq_u32 {sr(sM+2,2)}, 0, v17")
    a(f"v_cmp_ne_u32 vcc, s{sT}, v26")
    a("s_and_b32 s5, vcc_lo, 0x80808080")
    a("s_lshr_b32 s5, s5, 7")
    a("s_mul_i32 s5, s5, 255")
    a("s_mov_b32 s4, -1")
    a(f"s_and_b64 {sr(sM,2)}, {sr(sM,2)}, s[4:5]")
    a(f"s_or_b64 {sr(sM,2)}, {sr(sM,2)}, {sr(sM+2,2)}")
    a("s_cbranch_scc1 POLL_RETRY")
    a("v_and_b32 v20, 0xfffff, v32")
    a("v_alignbit_b32 v22, v33, v32, 20")
    a("v_and_b32 v22, 0xfffff, v22")
    a("v_and_b32 v24, 0xfffff, v34")
    a.label("POLL_OK")
    vm.clear()
    st(2)
    a(f"s_add_u32 s6, s3, s{sNode}")
    a("s_lshl_b32 s6, s6, 9")
    a(f"v_lshl_add_u32 v28, v{vLane}, 4, s6")
    a(f"buffer_load_dwordx4 {vr(vSF,4)}, v28, {sr(sX,4)}, 0 offen")
    a("v_add_u32 v29, 8192, v28")
    a(f"buffer_load_dwordx4 {vr(vSF+4,4)}, v29, {sr(sX,4)}, 0 offen")
    a("v_add_u32 v30, 16384, v28")
    a(f"buffer_load_dwordx4 {vr(vSF+8,4)}, v30, {sr(sX,4)}, 0 offen")
    a(f"v_mov_b32 v16, s{sT}")
    a("v_cndmask_b32 v20, v16, v20, s[4:5]")
    a(f"s_mov_b32 s4, {MARK}")
    a("v_mov_b32 v41, 1")
    ent = [20, 22, 24, 26]
    for k in range(4):
        a(f"v_bfe_u32 v{ent[k]+1}, v{ent[k]}, 14, 6")
        a(f"v_lshl_add_u32 v{16+k}, v{ent[k]+1}, 2, v{vLB}")
    for k in range(4):
        a(f"v_cmpx_gt_u32 vcc, s4, v{ent[k]}")
        a(f"ds_add_rtn_u32 v{16+k}, v{16+k}, v41 offset:{CNT-LIST}")
        a(f"s_mov_b64 {sr(sM+2*k,2)}, exec")
    a("s_mov_b64 exec, -1")
    a("v_cmp_eq_u32 vcc, s4, v20")
    a("s_and_saveexec_b64 s[6:7], vcc")
    a(f"ds_write_b32 v{vLB}, v41 offset:{FLAG-LIST}")
    a("s_mov_b64 exec, -1")
    for k in range(4):
        a(f"v_and_b32 v{ent[k]}, 0x3fff, v{ent[k]}")
        a(f"v_lshl_add_u32 v{ent[k]+1}, v{ent[k]+1}, 7, v{vLB}")
    a("s_waitcnt lgkmcnt(0)")
    for k in range(4):
        a(f"v_min_u32 v{16+k}, 63, v{16+k}")
        a(f"v_lshl_add_u32 v{ent[k]+1}, v{16+k}, 1, v{ent[k]+1}")
    for k in range(4):
        a(f"s_mov_b64 exec, {sr(sM+2*k,2)}")
        a(f"ds_write_b16 v{ent[k]+1}, v{ent[k]}")
    a("s_mov_b64 exec, -1")
    lg.clear()
    vL = [vSeq, 59, 60]
    vCnt = 61
    sFlush, sJ, sEnd, sLeft = sMask, sMask + 1, sT, sPC
    a(f"s_mov_b32 s{sFlush}, 0")
    a(f"s_mov_b32 s{sJ}, 0")
    a(f"s_mov_b32 s{sPI}, 0")
    a(f"s_mov_b32 s{sLeft}, {NPW}")
    if LATEF:
        a("v_mov_b32 v64, v43")
        a(f"buffer_load_dword v63, v43, {sr(sDBG,4)}, 0 offen offset:128 sc1")
    NBUB = max(NBUB, NPRE + NPOST)
    assert NBUB <= 3
    for k in range(NPRE + NPOST, NBUB):
        for op in w2_ops(k):
            emit(op)
    a("s_waitcnt lgkmcnt(0)")
    for _ in range(opt.get('dly_g', 0)):
        a("s_sleep 64")
    a("s_barrier")
    a(f"ds_read_b32 v{vCnt}, v61 offset:{CNT-LIST}")
    for i in range(3):
        a(f"ds_read_b32 v{vL[i]}, v60 offset:{2048*i}")
    GPRIO = opt.get('gprio', 1)
    if GPRIO:
        a("s_setprio 3")
    a("s_waitcnt lgkmcnt(2)")
    a(f"v_cmp_gt_u32 vcc, v{vCnt}, v62")
    a(f"v_add_u32 v{vCnt}, 1, v{vCnt}")
    a(f"v_lshrrev_b32 v{vCnt}, 1, v{vCnt}")
    a(f"v_max_u32 v{vCnt}, 1, v{vCnt}")
    a("s_cmp_lg_u64 vcc, 0")
    a("s_cbranch_scc1 M_SLOW")
    a(f"v_readlane_b32 s{sEnd}, v{vCnt}, 0")
    a("s_waitcnt lgkmcnt(0)")
    st(3)

    def flush():
        a(f"v_xor_b32 v{vT0}, s{sXor}, v{vFl}")
        a(f"v_cvt_pk_bf16_f32 v14, v{vAcc}, v{vAcc+1}")
        a(f"v_cvt_pk_bf16_f32 v15, v{vAcc+2}, v{vAcc+3}")
        a(f"ds_write_b64 v{vT0}, v[14:15] offset:{HH}")
        a(f"s_and_b32 s4, s{sNode}, 1")
        a("s_cselect_b64 s[6:7], -1, 0")
        for x in range(4):
            a(f"v_swap_b32 v{vAS+x}, v{vAH+x}")
        for x in range(8):
            a(f"v_cndmask_b32 v{vSF+x}, v{vSF+x}, v{vSF+4+x}, s[6:7]")
        a("s_mul_i32 s4, s4, 14")
        a(f"s_add_u32 s{sNode}, s{sNode}, s4")
        a(f"s_add_u32 s{sNode}, s{sNode}, 1")
        set_xor()

    acc = vr(vAcc, 4)
    def mf_norm(s):
        a(f"v_mfma_f32_16x16x32_bf16 {acc}, {vr(vA1,4)}, {vr(RS(s),4)}, {acc}")
    def mf_first(s):
        a(f"v_mfma_f32_16x16x32_bf16 {acc}, {vr(vAS,4)}, {vr(vSF,4)}, 0")
        mf_norm(s)
    def issue(s):
        a(f"v_bfe_u32 v{vOff}, s{sId}, v{vSh}, 16")
        a(f"v_lshl_add_u32 v{vOff}, v{vOff}, 9, v{vC16}")
        a(f"buffer_load_dwordx4 {vr(RS(s),4)}, v{vOff}, {sr(sX,4)}, 0 offen")
    swn = [0]
    def switch(s, lab_exit):
        a(f"s_bitset1_b32 s{sFlush}, {s}")
        a(f"s_add_u32 s{sJ}, s{sJ}, 1")
        a(f"s_cmp_eq_u32 s{sJ}, {NPW}")
        a(f"s_cbranch_scc1 {lab_exit}")
        a(f"v_readlane_b32 s{sEnd}, v{vCnt}, s{sJ}")
        a(f"s_and_b32 s{sPI}, s{sJ}, 1")
        a(f"s_cselect_b32 s4, 0, -1")
        a(f"s_mov_b32 s5, s4")
        a(f"s_lshl_b32 s{sPI}, s{sPI}, 5")
        a(f"v_cndmask_b32 v{vL[0]}, v{vL[0]}, v{vL[1]}, s[4:5]")
        a(f"v_cndmask_b32 v{vL[1]}, v{vL[1]}, v{vL[2]}, s[4:5]")
        a(f"s_add_u32 s{sEnd}, s{sEnd}, s{sPI}")
        if GPRIO:
            k = swn[0]; swn[0] += 1
            a(f"s_cmp_lt_u32 s{sJ}, 3")
            a(f"s_cbranch_scc1 SWP{k}")
            a("s_setprio 2")
            a(f"s_cmp_lt_u32 s{sJ}, 4")
            a(f"s_cbranch_scc1 SWP{k}")
            a("s_setprio 1")
            a(f"s_cmp_lt_u32 s{sJ}, 5")
            a(f"s_cbranch_scc1 SWP{k}")
            a("s_setprio 0")
            a.label(f"SWP{k}")

    for s in range(D):
        a.label(f"F_{s}")
        a(f"v_readlane_b32 s{sId}, v{vL[0]}, s{sPI}")
        a(f"s_add_u32 s{sPI}, s{sPI}, 1")
        a(f"s_cmp_eq_u32 s{sPI}, s{sEnd}")
        issue(s)
        a(f"s_cbranch_scc1 F_SW{s}")
    a("s_branch G_F0")
    for s in range(D):
        a.label(f"F_SW{s}")
        switch(s, "X_F0")
        a(f"s_branch {'F_%d' % (s+1) if s + 1 < D else 'G_F0'}")
    for s in range(D):
        n = (s + 1) % D
        a.label(f"G_N{s}")
        a(f"s_waitcnt vmcnt({D-1})")
        a(f"v_readlane_b32 s{sId}, v{vL[0]}, s{sPI}")
        mf_norm(s)
        a.label(f"G_C{s}")
        a(f"s_add_u32 s{sPI}, s{sPI}, 1")
        a(f"s_bitcmp1_b32 s{sFlush}, {s}")
        issue(s)
        a(f"s_cbranch_scc1 G_FL{s}")
        a(f"s_cmp_eq_u32 s{sPI}, s{sEnd}")
        a(f"s_cbranch_scc1 G_SN{s}")
        if n == 0:
            a("s_branch G_N0")
    for s in range(D):
        n = (s + 1) % D
        a.label(f"G_SN{s}")
        switch(s, f"X_N{n}")
        a(f"s_branch G_N{n}")
    for s in range(D):
        n = (s + 1) % D
        a.label(f"G_FL{s}")
        a(f"s_bitset0_b32 s{sFlush}, {s}")
        a(f"s_sub_u32 s{sLeft}, s{sLeft}, 1")
        a("s_nop 0")
        flush()
        a(f"s_cmp_eq_u32 s{sPI}, s{sEnd}")
        a(f"s_cbranch_scc0 G_F{n}")
        switch(s, f"X_F{n}")
        a.label(f"G_F{n}")
        a(f"s_waitcnt vmcnt({D-1})")
        a(f"v_readlane_b32 s{sId}, v{vL[0]}, s{sPI}")
        mf_first(n)
        a(f"s_branch G_C{n}")
    for s in range(D):
        a.label(f"X_N{s}")
        a("s_waitcnt vmcnt(0)")
        a(f"s_branch T_N{s}")
        a.label(f"X_F{s}")
        a("s_waitcnt vmcnt(0)")
        a(f"s_branch T_F{s}")
    for s in range(D):
        n = (s + 1) % D
        a.label(f"T_N{s}")
        mf_norm(s)
        a.label(f"T_C{s}")
        a(f"s_bitcmp1_b32 s{sFlush}, {s}")
        a(f"s_cbranch_scc1 T_FL{s}")
        if n == 0:
            a(f"s_cmp_eq_u32 s{sFlush}, 0")
            a("s_cbranch_scc1 M_GDONE")
            a("s_branch T_N0")
    for s in range(D):
        n = (s + 1) % D
        a.label(f"T_FL{s}")
        a(f"s_bitset0_b32 s{sFlush}, {s}")
        a(f"s_sub_u32 s{sLeft}, s{sLeft}, 1")
        a("s_nop 4")
        flush()
        a(f"s_cmp_eq_u32 s{sLeft}, 0")
        a(f"s_cbranch_scc1 M_GDONE")
        a.label(f"T_F{n}")
        mf_first(n)
        a(f"s_branch T_C{n}")

    a.label("POLL_RETRY")
    a(f"s_add_u32 s{sPC}, s{sPC}, 1")
    a(f"s_cmp_lt_u32 s{sPC}, {opt.get('spin', 30000)}")
    a("s_cbranch_scc0 POLL_GIVEUP")
    a(f"s_cmp_eq_u32 s{sPC}, 1")
    a("s_cbranch_scc1 POLL_NOSLEEP")
    a.label("POLL_SLEEP")
    a(f"s_sleep {opt.get('psleep', 4)}")
    a.label("POLL_NOSLEEP")
    a(f"s_cmp_eq_u64 {sr(sM+2,2)}, 0")
    a("s_cbranch_scc1 POLL_CELLS")
    a(f"buffer_load_dword v40, v42, {sr(sDBG,4)}, 0 offen sc1")
    if not LATEF:
        a(f"buffer_load_dword v39, v43, {sr(sDBG,4)}, 0 offen offset:128 sc1")
    a.label("POLL_CELLS")
    a(f"buffer_load_dwordx4 v[32:35], v41, {sr(sWS,4)}, s{sLB} offen sc1")
    a("s_waitcnt vmcnt(0)")
    a("s_branch POLL_CHK")
    a.label("POLL_GIVEUP")
    a(f"s_cmp_lt_u32 s{sPC}, {8 * opt.get('spin', 30000)}")
    a("s_cbranch_scc0 POLL_GO")
    a("v_cmp_eq_u32 vcc, 0, v39")
    a("s_cmp_lg_u64 vcc, 0")
    a("s_cbranch_scc1 POLL_SLEEP")
    a.label("POLL_GO")
    a(f"v_mov_b32 v20, {MARK}")
    a("s_mov_b64 s[4:5], -1")
    a("s_branch POLL_OK")

    if LATEF:
        a.label("FLG_RETRY")
        a(f"s_add_u32 s{sPC}, s{sPC}, 1")
        a(f"s_cmp_lt_u32 s{sPC}, {8 * opt.get('spin', 30000)}")
        a("s_cbranch_scc0 FLG_OK")
        a("s_sleep 8")
        a(f"buffer_load_dword v63, v64, {sr(sDBG,4)}, 0 offen offset:128 sc1")
        a("s_waitcnt vmcnt(0)")
        a("s_branch FLG_CHK")

    a.label("M_SLOW")
    SA = RING + 8
    a("s_waitcnt vmcnt(0) lgkmcnt(0)")
    a(f"v_mov_b32 v{vT0}, 0x7f000000")
    a(f"v_cmp_gt_u32 vcc, 32, v{vLane}")
    a("s_nop 1")
    a(f"v_cndmask_b32 v{vSeq}, v{vT0}, v{vC16}, vcc")
    a(f"s_add_u32 s40, s3, s{sNode}")
    for j in range(NPW):
        a(f"s_add_u32 s4, s40, {16*(j//2) + j%2}")
        a("s_lshl_b32 s4, s4, 9")
        a(f"v_add_u32 v{vOff}, s4, v{vSeq}")
        a(f"buffer_load_dwordx4 {vr(RING,4)}, v{vOff}, {sr(sX,4)}, 0 offen")
        a("s_waitcnt vmcnt(0)")
        a(f"v_mfma_f32_16x16x32_bf16 {vr(SA+4*j,4)}, {vr(vAS,4)}, {vr(RING,4)}, 0")
        a("s_nop 7")
    a(f"v_lshlrev_b32 v{vT0}, 2, v{vLane}")
    a("s_mov_b32 s41, 0")
    a.label("S_LOOP")
    a(f"buffer_load_dword v{RING+4}, v{vT0}, {sr(sDST,4)}, s41 offen")
    a(f"buffer_load_dword v{RING+5}, v{vT0}, {sr(sSRC,4)}, s41 offen")
    a("s_waitcnt vmcnt(0)")
    a(f"v_subrev_u32 v{RING+4}, s40, v{RING+4}")
    a(f"v_and_b32 v{RING+6}, 0xffffffce, v{RING+4}")
    a(f"v_cmp_eq_u32 vcc, 0, v{RING+6}")
    a(f"v_cmp_gt_u32 s[42:43], 48, v{RING+4}")
    a("s_nop 3")
    a("s_and_b64 s[42:43], s[42:43], vcc")
    a.label("S_IN")
    a("s_cmp_eq_u64 s[42:43], 0")
    a("s_cbranch_scc1 S_NEXT")
    a("s_ff1_i32_b64 s44, s[42:43]")
    a("s_bitset0_b64 s[42:43], s44")
    a(f"v_readlane_b32 s45, v{RING+4}, s44")
    a(f"v_readlane_b32 s46, v{RING+5}, s44")
    a("s_nop 3")
    a("s_lshl_b32 s46, s46, 9")
    a(f"v_add_u32 v{vOff}, s46, v{vSeq}")
    a(f"buffer_load_dwordx4 {vr(RING,4)}, v{vOff}, {sr(sX,4)}, 0 offen")
    a("s_waitcnt vmcnt(0)")
    for j in range(NPW):
        if j < NPW - 1:
            a(f"s_cmp_eq_u32 s45, {16*(j//2) + j%2}")
            a(f"s_cbranch_scc0 S_J{j+1}")
        a(f"v_mfma_f32_16x16x32_bf16 {vr(SA+4*j,4)}, {vr(vA1,4)}, {vr(RING,4)}, {vr(SA+4*j,4)}")
        a("s_nop 7")
        a("s_branch S_IN")
        if j < NPW - 1:
            a.label(f"S_J{j+1}")
    a.label("S_NEXT")
    a("s_add_u32 s41, s41, 256")
    a(f"s_cmp_lt_u32 s41, {E*4}")
    a("s_cbranch_scc1 S_LOOP")
    for j in range(NPW):
        for r in range(4):
            a(f"v_mov_b32 v{vAcc+r}, v{SA+4*j+r}")
        flush()

    a.label("M_GDONE")
    vm.clear(); lg.clear()
    st(4)
    if LATEF:
        a(f"s_mov_b32 s{sPC}, 0")
        a.label("FLG_CHK")
        a("v_cmp_eq_u32 vcc, 0, v63")
        a("s_cmp_lg_u64 vcc, 0")
        a("s_cbranch_scc1 FLG_RETRY")
        a.label("FLG_OK")
    NE = min(4, NBUB + opt.get('early', 2))
    for k in range(NBUB, NE):
        for op in w2_ops(k):
            emit(op)
    ACP = [16, 32, 16, W + 64, W + 72, W + 80]
    BFR = [48, 52, 58, 10]
    vRd = [2, 3, 4, 7, 8, 9, 14, 15]
    vBA, vWr, vRB2, vOut, vBA2 = 1, 57, 62, 5, 6
    tJ, tQ = 48, 49
    PRE = 3
    a(f"v_and_b32 v{tJ}, 15, v{vLane}")
    a(f"v_lshrrev_b32 v{tQ}, 4, v{vLane}")
    a(f"s_lshl_b32 s4, s{sV}, 8")
    a(f"s_add_u32 s4, s4, {BIAS}")
    a(f"v_lshl_add_u32 v{vBA}, v{tQ}, 4, s4")
    def bias_ops(p):
        A = ACP[p]
        if p < 3:
            return [("ds", f"ds_read_b128 {vr(A+4*mt,4)}, v{vBA} offset:{64*mt}", f"bias{p}") for mt in range(4)]
        return [("ds", f"ds_read_b128 {vr(A+4*mt,4)}, v{vBA2} offset:{16*mt}", f"bias{p}") for mt in range(2)]
    for op in bias_ops(0) + bias_ops(1):
        emit(op)
    a(f"s_lshl_b32 s4, s{sRot}, 2")
    a(f"v_xor_b32 v{vRB2}, v{tQ}, v{tJ}")
    a(f"v_xor_b32 v{vRd[0]}, s4, v{vRB2}")
    a(f"v_lshlrev_b32 v{vRd[0]}, 4, v{vRd[0]}")
    a(f"v_lshl_or_b32 v{vRd[0]}, v{tJ}, 9, v{vRd[0]}")
    for k in range(1, 8):
        a(f"v_xor_b32 v{vRd[k]}, {64*k}, v{vRd[0]}")
    a(f"v_lshlrev_b32 v{vRB2}, 4, v{vRB2}")
    a(f"v_lshl_or_b32 v{vRB2}, v{tJ}, 10, v{vRB2}")
    a(f"s_lshl_b32 s4, s{sV}, 3")
    a(f"v_or_b32 v{vWr}, s4, v{tQ}")
    a(f"v_xor_b32 v{vWr}, v{vWr}, v{tJ}")
    a(f"v_lshlrev_b32 v{vWr}, 4, v{vWr}")
    a(f"v_lshl_or_b32 v{vWr}, v{tJ}, 10, v{vWr}")
    a(f"s_lshl_b32 s4, s{sV}, 7")
    a(f"s_add_u32 s4, s4, {BIAS + 2048}")
    a(f"v_lshl_add_u32 v{vBA2}, v{tQ}, 5, s4")
    a("s_lshl_b32 s6, s3, 9")
    a(f"s_lshl_b32 s7, s{sV}, 6")
    a("s_add_u32 s6, s6, s7")
    a(f"v_lshlrev_b32 v{vOut}, 4, v{tQ}")
    a(f"v_lshl_or_b32 v{vOut}, v{tJ}, 9, v{vOut}")
    a(f"v_add_u32 v{vOut}, s6, v{vOut}")
    vR2 = [vRB2, 0, 63, vRd[0]]
    a(f"v_xor_b32 v{vR2[1]}, 64, v{vRB2}")
    a(f"v_xor_b32 v{vR2[2]}, 128, v{vRB2}")
    a("s_waitcnt lgkmcnt(0)")
    lg.clear()
    a("s_barrier")
    st(5)

    steps = [(p, s) for p in range(3) for s in range(8)]
    steps += [(p, s) for h in range(2) for p in (3, 4, 5) for s in range(4 * h, 4 * h + 4)]
    SI = {ps: i for i, ps in enumerate(steps)}
    frags = []
    for i, (p, s) in enumerate(steps):
        frags += [(i, 0)] if p < 3 else [(i, 0), (i, 1)]
    B2R = [32, 36, 40, 44]
    def fbuf(f):
        i, kk = frags[f]
        if i < 24 or kk == 0:
            return BFR[i % 4]
        return B2R[i % 4]
    def rd_op(f):
        i, kk = frags[f]
        p, s = steps[i]
        if p < 3:
            return ("ds", f"ds_read_b128 {vr(fbuf(f),4)}, v{vRd[s]} offset:{HH + p*8192}", f"b_{i}")
        ks = 2 * s + kk
        return ("ds", f"ds_read_b128 {vr(fbuf(f),4)}, v{vR2[ks%4]} offset:{ACT + (p-3)*16384 + (ks//4)*256}", f"b_{i}")
    FI = {fk: f for f, fk in enumerate(frags)}
    def epi_a(p):
        A = ACP[p]
        ops = []
        if p < 3:
            for aa in range(2):
                m = A + 8 * aa
                ops.append(f"v_cvt_pk_bf16_f32 v{m}, v{m}, v{m+1}")
                ops.append(f"v_cvt_pk_bf16_f32 v{m+1}, v{m+2}, v{m+3}")
                ops.append(f"v_cvt_pk_bf16_f32 v{m+2}, v{m+4}, v{m+5}")
                ops.append(f"v_cvt_pk_bf16_f32 v{m+3}, v{m+6}, v{m+7}")
                for x in range(4):
                    ops.append(f"v_pk_max_i16 v{m+x}, v{m+x}, 0")
                if aa == 1:
                    ops.append(f"v_xor_b32 v{m+4}, 64, v{vWr}")
                    ops.append(("ds", f"ds_write_b128 v{m+4}, {vr(m,4)} offset:{ACT + p*16384}", f"aw{p}"))
                else:
                    ops.append(("ds", f"ds_write_b128 v{vWr}, {vr(m,4)} offset:{ACT + p*16384}", f"aw{p}"))
        else:
            if p > 3:
                ops.append(f"v_add_u32 v{vOut}, 8192, v{vOut}")
            for x in range(4):
                ops.append(f"v_cvt_pk_bf16_f32 v{A+x}, v{A+2*x}, v{A+2*x+1}")
            ops.append(("vm", f"buffer_store_dwordx4 {vr(A,4)}, v{vOut}, {sr(sOUT,4)}, 0 offen" + ["", " sc1", " nt", " sc0 sc1", " sc1 nt"][opt.get('ost', 0)], "out"))
        return ops

    G = lambda p, s, mt=0: SI[(p, s)] * 4 + mt
    GI = lambda i, mt=0: i * 4 + mt
    first_rd = lambda p: SI[(p, 0)] - PRE
    done = lambda p: SI[(p, 7)] + 1
    streams = []
    def add(name, ops, start=0, dl=10**9, after=None, pri=0):
        streams.append(dict(name=name, ops=list(ops), start=start, dl=dl, after=after or [], done=None, pri=pri))
    lastw = None
    WSP = opt.get('wsp', 4)
    for k in range(NE, 8):
        for j, o in enumerate(w2_ops(k)):
            nm = f"w{k}_{j}"
            add(nm, [o], 1 if k < 4 else G(2, k - 4, 3), GI(SI[(3, k)] - 2, 3), after=[(lastw, WSP)] if lastw else [], pri=-1000)
            lastw = nm
    last = len(steps) - 1
    add("e0", epi_a(0), G(1, 1, 2), G(1, 6, 3))
    add("bias2", [("wl", "aw0")] + bias_ops(2), 0, G(1, 7, 2), after=[("e0", 1)])
    add("e1", epi_a(1), G(2, 1, 0), GI(first_rd(3) - 1, 1))
    add("bar1", [("bar", ["aw0", "aw1"])], 0, GI(first_rd(3) - 1, 3), after=[("e1", 2)])
    add("a2", [f"v_xor_b32 v{vR2[3]}, 192, v{vRB2}"], G(2, 0, 1), GI(first_rd(3) - 1, 3))
    add("bias3", bias_ops(3) + bias_ops(4), G(2, 5, 1), G(2, 7, 1))
    add("bias5", bias_ops(5), G(2, 6, 1), GI(SI[(5, 0)] - 1, 1))
    add("e2", epi_a(2), G(3, 1, 0), GI(first_rd(5) - 1, 1))
    add("bar2", [("bar", ["aw2"])], 0, GI(first_rd(5) - 1, 3), after=[("e2", 2), ("bar1", 0)])
    add("e3", epi_a(3), GI(done(3) + 1, 2), GI(done(3) + 3, 3))
    add("e4", epi_a(4), GI(done(4) + 1, 2), GI(last, 3), after=[("e3", 0)])
    byname = {s_['name']: s_ for s_ in streams}

    def ready(s_, g, force=False):
        if not s_['ops']:
            return False
        if g < s_['start']:
            return False
        for nm, dly in s_['after']:
            d = byname[nm]['done']
            if d is None or (g < d + dly and not force):
                return False
        return True
    def force_finish(s_, g):
        for nm, _ in s_['after']:
            force_finish(byname[nm], g)
        if s_['ops']:
            assert g >= s_['start'], (s_['name'], g)
            while s_['ops']:
                emit(s_['ops'].pop(0))
            s_['done'] = g
    BUD = opt.get('bud', 3)
    for i in range(PRE):
        emit(rd_op(i))
    segs = None
    if bars_hint is not None and opt.get('mprio', 1):
        pts = [0] + [b + 1 for b in bars_hint] + [len(steps)]
        segs = {}
        for x, y in zip(pts[:-1], pts[1:]):
            L = y - x
            for k in range(4):
                segs[x + k * L // 4] = 3 - k
    for i, (p, s) in enumerate(steps):
        cur_q[0] = i
        if segs and i in segs:
            a(f"s_setprio {segs[i]}")
        tags = [f"b_{i}"]
        if s == 0:
            tags.append(f"bias{p}")
        wait(vtag=f"w2_{s}" if p == 3 else None, ltag=tags)
        for mt in range(4):
            g = i * 4 + mt
            if p < 3:
                A = ACP[p] + 4 * mt
                a(f"v_mfma_f32_16x16x32_bf16 {vr(A,4)}, {vr(W+16*s+4*mt,4)}, {vr(fbuf(FI[(i,0)]),4)}, {vr(A,4)}")
            else:
                A = ACP[p] + 4 * (mt % 2)
                a(f"v_mfma_f32_16x16x32_bf16 {vr(A,4)}, {vr(w2reg(s)+4*mt,4)}, {vr(fbuf(FI[(i,mt//2)]),4)}, {vr(A,4)}")
            B_ = opt.get('bud23', 4) if 16 <= i < 32 else BUD
            bud = (B_ + (g % 2)) // 2
            if mt == 3:
                bud = min(bud, opt.get('bud3', 1))
            if mt in (0, 2) and (i + PRE, mt // 2) in FI:
                bud -= emit(rd_op(FI[(i + PRE, mt // 2)]))
            while bud > 0:
                cand = [s_ for s_ in streams if ready(s_, g)]
                if not cand:
                    break
                s_ = min(cand, key=lambda z: z['dl'] - len(z['ops']) + z['pri'])
                bud -= emit(s_['ops'].pop(0))
                if not s_['ops']:
                    s_['done'] = g
            for s_ in streams:
                if s_['ops'] and s_['dl'] <= g:
                    if opt.get('verbose'):
                        print("forced", s_['name'], len(s_['ops']), "ops at", p, s, mt, file=sys.stderr)
                    force_finish(s_, g)
        if p == 2 and s == 7:
            st(6)
    assert all(not s_['ops'] for s_ in streams)
    st(10)
    a("s_nop 6")
    for op in epi_a(5):
        emit(op)
    if opt.get('lst'):
        a("s_waitcnt vmcnt(0)")
        a(("s_memrealtime" if not opt.get('cyc') else "s_memtime") + " s[40:41]")
        srd(a, 76, 100, 0x1000000)
        a("s_lshl_b32 s42, s2, 4")
        a(f"s_add_u32 s42, s42, s{sW}")
        a("s_lshl_b32 s42, s42, 7")
        a(f"s_add_u32 s42, s42, {STAMP_OFF}")
        a("v_mov_b32 v9, s42")
        a("s_waitcnt lgkmcnt(0)")
        a("s_mov_b64 exec, 1")
        for idx, r in list(LST.items()) + [(7, 40)]:
            a(f"v_mov_b32 v14, s{r}")
            a(f"v_mov_b32 v15, s{r+1}")
            a(f"buffer_store_dwordx2 v[14:15], v9, s[76:79], 0 offen offset:{idx*8}")
    if STAMP:
        a("s_waitcnt vmcnt(0)")
        st(7)
    if opt.get('amp') is not None:
        a("s_waitcnt vmcnt(0)")
        st(7)
        a("s_sub_u32 s99, s99, s98")
        a("s_lshl_b32 s99, s99, 3")
        a("s_min_u32 s99, s99, 100000")
        a("s_memrealtime s[96:97]")
        a("s_waitcnt lgkmcnt(0)")
        a("s_mov_b32 s98, s96")
        a.label("AMP_L")
        a("s_sleep 2")
        a("s_memrealtime s[96:97]")
        a("s_waitcnt lgkmcnt(0)")
        a("s_sub_u32 s96, s96, s98")
        a("s_cmp_lt_u32 s96, s99")
        a("s_cbranch_scc1 AMP_L")
    a("s_endpgm")

    a.label("AUX")
    aux[0] = True
    vm.clear(); lg.clear()
    a("s_memrealtime s[96:97]")
    a(f"s_and_b32 s{sA}, s2, 7")
    a(f"s_mul_i32 s{sPI}, s{sA}, 5000")
    a(f"s_lshr_b32 s{sB}, s2, 3")
    a("s_waitcnt lgkmcnt(0)")
    if opt.get('stouch', 0):
        a("s_load_dword s40, s[78:79], 0")
        a("s_load_dword s41, s[100:101], 0xffffc")
        a("s_load_dword s42, s[6:7], 0xfc")
    srd(a, sX, 76, N * 512)

    def xpf(first, stride, n, vd):
        for r in range(n):
            a(f"v_add_u32 v{vT0}, {first + r*stride}, v{vSeq}")
            a(f"v_subrev_u32 v{vT1}, 40000, v{vT0}")
            a(f"v_min_u32 v{vT0}, v{vT0}, v{vT1}")
            a(f"v_lshlrev_b32 v{vT0}, 7, v{vT0}")
            a(f"buffer_load_dword v{vd+r}, v{vT0}, {sr(sX,4)}, 0 offen")

    a(f"s_cmp_lt_u32 s2, {NPROD}")
    a("s_cbranch_scc1 PROD")
    stamp_setup()
    st(0)
    a(f"s_sub_u32 s{sB}, s{sB}, 4")
    a(f"s_lshl_b32 s{sB}, s{sB}, 9")
    a(f"s_add_u32 s{sPI}, s{sPI}, s{sB}")
    a(f"v_add_u32 v{vSeq}, s{sPI}, v0")
    a(f"s_sub_u32 s{sId}, s2, {NPROD}")
    a(f"s_cmp_lt_u32 s{sId}, {NW2H}")
    a("s_cbranch_scc0 H_PF")
    srd(a, sW2, 88, 256 * 1024)
    srd(a, sDBG, 6, 256)
    srd(a, sWS, 100, WS_BYTES)
    a(f"s_lshl_b32 s{sWB}, s{sW}, 12")
    w2_addr(sW, vS2, [(vTB, sWB)])
    a(f"s_lshl_b32 s{sA}, s{sId}, 15")
    for i in range(4):
        a(f"s_add_u32 m0, s{sWB}, {i*1024}")
        a(f"s_add_u32 s45, s{sA}, {i*8192}")
        a(f"buffer_load_dwordx4 v{vS2}, {sr(sW2,4)}, s45 offen lds")
    a(f"s_lshl_b32 s{sA}, s{sW}, 15")
    a(f"s_lshl_b32 s45, s{sId}, 12")
    a(f"s_add_u32 s{sA}, s{sA}, s45")
    a(f"s_add_u32 s{sA}, s{sA}, {W2F}")
    a(f"v_lshl_add_u32 v{vOff}, v{vLane}, 4, s{sA}")
    a("s_waitcnt vmcnt(0)")
    for op in tr_w2_ops(64, vTB, 0, "h", None):
        a(op[1])
    a("s_waitcnt lgkmcnt(0)")
    for mt in range(4):
        a(f"buffer_store_dwordx4 {vr(64+4*mt,4)}, v{vOff}, {sr(sWS,4)}, 0 offen offset:{mt*1024} sc1")
    a("s_waitcnt vmcnt(0)")
    a("s_barrier")
    a(f"s_cmp_eq_u32 s{sW}, 0")
    a("s_cbranch_scc0 H_PF")
    a(f"s_lshl_b32 s{sA}, s{sId}, 2")
    a(f"v_mov_b32 v{vT1}, s{sA}")
    a(f"v_mov_b32 v{vT0}, 1")
    a("s_mov_b64 exec, 1")
    a(f"buffer_store_dword v{vT0}, v{vT1}, {sr(sDBG,4)}, 0 offen offset:128 sc1")
    a("s_mov_b64 exec, -1")
    st(12)
    a.label("H_PF")
    xpf(0, 1024, NH, 16)
    if STAMP:
        a("s_waitcnt vmcnt(0)")
        st(13)
    a("s_endpgm")
    a.label("PROD")
    if not opt.get('pfast', 1):
        srd(a, sDST, 80, E * 4)
        srd(a, sSRC, 78, E * 4)
        a(f"s_mul_i32 s{sA}, s2, {CH*4}")
        a(f"s_add_u32 s40, s{sA}, 8192")
        a(f"s_add_u32 s41, s{sA}, 16384")
        a(f"buffer_load_dwordx4 {vr(16,4)}, v{vT16}, {sr(sDST,4)}, s{sA} offen")
        a(f"buffer_load_dwordx4 {vr(24,4)}, v{vT16}, {sr(sDST,4)}, s40 offen")
        a(f"s_cmp_lt_u32 s{sW}, 4")
        a("s_cbranch_scc0 P_E2")
        a(f"buffer_load_dwordx4 {vr(32,4)}, v{vT16}, {sr(sDST,4)}, s41 offen")
        a(f"buffer_load_dwordx4 {vr(36,4)}, v{vT16}, {sr(sSRC,4)}, s41 offen")
        a.label("P_E2")
        a(f"buffer_load_dwordx4 {vr(20,4)}, v{vT16}, {sr(sSRC,4)}, s{sA} offen")
        a(f"buffer_load_dwordx4 {vr(28,4)}, v{vT16}, {sr(sSRC,4)}, s40 offen")
    vm.issue("dst")
    vm.issue("edges")
    srd(a, sDBG, 6, 256)
    srd(a, sWS, 100, CELLS_BYTES)
    a("v_lshrrev_b32 v46, 3, v0")
    a("v_and_b32 v47, 7, v0")
    a("v_lshlrev_b32 v50, 13, v46")
    a("v_lshl_or_b32 v50, v47, 4, v50")
    a(f"s_lshl_b32 s4, s2, 7")
    a(f"v_add_u32 v50, s4, v50")
    if opt.get('vtouch', 0):
        srd(a, sW1, 100, WS_BYTES)
        a(f"s_cmp_eq_u32 s{sW}, 6")
        a("s_cbranch_scc0 P_VT")
        a(f"v_mov_b32 v{vT0}, 0x1f0000")
        a(f"buffer_load_dword v60, v{vT0}, {sr(sW1,4)}, 0 offen")
        a.label("P_VT")
    vm.issue("edges")
    a(f"s_lshr_b32 s{sNode}, s96, 8")
    a(f"s_or_b32 s{sNode}, s{sNode}, 1")
    a(f"v_mov_b32 v51, {NONCE}")
    a(f"s_cmp_eq_u32 s{sW}, 7")
    a("s_cbranch_scc0 P_N1")
    a(f"v_mov_b32 v{vT0}, s{sNode}")
    a(f"s_lshl_b32 s4, s2, 2")
    a(f"v_mov_b32 v{vT1}, s4")
    a("s_mov_b64 exec, 1")
    a(f"buffer_store_dword v{vT0}, v{vT1}, {sr(sDBG,4)}, 0 offen sc1")
    a(f"ds_write_b32 v51, v{vT0}")
    a("s_mov_b64 exec, -1")
    a.label("P_N1")
    stamp_setup()
    st(0)
    a(f"v_mov_b32 v40, {EMPTY}")
    a("v_mov_b32 v41, v40")
    a("v_mov_b32 v42, v40")
    a("v_mov_b32 v43, v40")
    a(f"s_movk_i32 s4, {CST}")
    a(f"v_mov_b32 v55, {IMG}")
    a("v_mad_u32_u24 v56, v46, s4, v55")
    a("v_lshl_add_u32 v48, v47, 4, v56")
    a(f"v_add_u32 v49, {128*CST}, v48")
    def cp(i):
        return (48 + i // 2, (i % 2) * 64 * CST)
    for i in range(4):
        r, o = cp(i)
        a(f"ds_write_b128 v{r}, v[40:43] offset:{o}")
        a(f"ds_write_b128 v{r}, v[40:43] offset:{o + 128}")
    a(f"v_and_b32 v{vT0}, 255, v0")
    a(f"v_mad_u32_u24 v{vT1}, v{vT0}, s4, v55")
    a(f"v_lshlrev_b32 v{vT0}, 2, v{vT0}")
    a(f"ds_write_b32 v{vT0}, v{vT1} offset:{PCNT}")
    a("v_mov_b32 v44, 4")
    a(f"s_mov_b32 s{sT}, {-(48 << 14) & 0xffffffff}")
    a("v_lshlrev_b32 v45, 2, v46")
    a(f"v_mov_b32 v52, {MARK}")
    a(f"s_mov_b32 s{sA}, 43691")
    a(f"s_lshl_b32 s{sB}, s{sB}, 9")
    a(f"s_add_u32 s{sPI}, s{sPI}, s{sB}")
    a(f"v_add_u32 v{vSeq}, s{sPI}, v0")
    for i in range(4):
        a(f"v_add_u32 v{72+i}, {i*64*8192}, v50")
        a(f"v_add_u32 v{76+i}, {i*64*CST + 128}, v56")
    a(f"v_lshlrev_b32 v{vT0}, 2, v{vLane}")
    a(f"v_mad_u32_u24 v80, v{vT0}, s4, v55")
    a("v_add_u32 v80, 512, v80")
    a(f"v_lshlrev_b32 v84, 4, v{vLane}")
    a("s_waitcnt lgkmcnt(0)")
    a("s_barrier")
    a("ds_read_b32 v53, v51")
    a("s_waitcnt lgkmcnt(0)")
    a("v_lshlrev_b32 v53, 8, v53")
    if opt.get('ppf0', 0):
        xpf(NH * 1024 + NP * 2048, 2048, 1, 60)
        vm.issue("pf0")
    def w7(tag, k):
        n_ = vm.need(tag)
        a(f"s_cmp_eq_u32 s{sW}, 7")
        a(f"s_cbranch_scc1 P_W7{k}")
        a(f"s_waitcnt vmcnt({n_})")
        a.label(f"P_W7{k}")
        a(f"s_waitcnt vmcnt({n_ + 1})")
    w7("dst", 0)
    st(14)
    def bin_a(r):
        vd, vs, vb, va = 16 + 8 * r, 20 + 8 * r, 192 + 4 * r, 204 + 4 * r
        for k in range(4):
            a(f"v_mul_u32_u24 v{vb+k}, s{sA}, v{vd+k}")
            a(f"v_lshrrev_b32 v{vb+k}, 21, v{vb+k}")
            a(f"v_lshlrev_b32 v{va+k}, 2, v{vb+k}")
            a(f"ds_add_rtn_u32 v{va+k}, v{va+k}, v44 offset:{PCNT}")
    def bin_a2(r):
        vd, vs, vb, va = 16 + 8 * r, 20 + 8 * r, 192 + 4 * r, 204 + 4 * r
        for k in range(4):
            a(f"v_lshl_or_b32 v{vs+k}, v{vd+k}, 14, v{vs+k}")
            a(f"v_mad_i32_i24 v{vs+k}, v{vb+k}, s{sT}, v{vs+k}")
    def bin_b(r):
        vd, vs, vb, va = 16 + 8 * r, 20 + 8 * r, 192 + 4 * r, 204 + 4 * r
        for k in range(4):
            a(f"ds_write_b32 v{va+k}, v{vs+k}")
    bin_a(0)
    bin_a(1)
    a(f"s_cmp_lt_u32 s{sW}, 4")
    a("s_cbranch_scc0 P_R2")
    a(f"v_cmp_gt_u32 vcc, {CH//4 - 1024}, v0")
    a("s_and_saveexec_b64 s[4:5], vcc")
    bin_a(2)
    bin_a2(2)
    a("s_waitcnt lgkmcnt(0)")
    bin_b(2)
    a("s_mov_b64 exec, s[4:5]")
    a.label("P_R2")
    w7("edges", 1)
    bin_a2(0)
    bin_a2(1)
    a("s_waitcnt lgkmcnt(0)")
    bin_b(0)
    bin_b(1)
    a("s_waitcnt lgkmcnt(0)")
    a("s_barrier")
    st(15)
    a(f"ds_read_b128 v[88:91], v84 offset:{PCNT}")
    lg.issue("all")
    for i in range(4):
        r, o = cp(i)
        a(f"ds_read_b128 {vr(128+4*i,4)}, v{r} offset:{o}")
        lg.issue(f"c{i}")
    for i in range(4):
        r, o = cp(i)
        a(f"ds_read_b32 v{64+i}, v45 offset:{PCNT + i*256}")
        lg.issue(f"n{i}")
        a(f"ds_read_b128 {vr(144+4*i,4)}, v{r} offset:{o + 128}")
        lg.issue(f"d{i}")
    def pack(d):
        a(f"v_lshl_or_b32 v{d}, v{d+1}, 20, v{d}")
        a(f"v_lshrrev_b32 v{d+1}, 12, v{d+1}")
        a(f"v_or_b32 v{d+1}, v53, v{d+1}")
        a(f"v_lshl_or_b32 v{d+2}, v{d+3}, 20, v{d+2}")
        a(f"v_lshrrev_b32 v{d+3}, 12, v{d+3}")
        a(f"v_or_b32 v{d+3}, v53, v{d+3}")
    wait(ltag="all")
    for k in range(1, 4):
        a(f"v_subrev_u32 v{88+k}, {k*CST}, v{88+k}")
    a("v_max3_u32 v88, v88, v89, v90")
    a("v_max_u32 v88, v88, v91")
    a("v_cmp_gt_u32 vcc, v88, v80")
    a("s_cmp_lg_u64 vcc, 0")
    a("s_cbranch_scc1 P_OVF")
    a.label("P_OVR")
    for i in range(4):
        wait(ltag=f"c{i}")
        pack(128 + 4 * i)
        a(f"buffer_store_dwordx4 {vr(128+4*i,4)}, v{72+i}, {sr(sWS,4)}, 0 offen sc1")
    a("s_movk_i32 s6, 0x1000")
    for i in range(4):
        d = 144 + 4 * i
        wait(ltag=f"d{i}")
        a(f"v_cmp_le_u32 vcc, v{76+i}, v{64+i}")
        a("s_and_b64 exec, exec, vcc")
        a(f"s_cbranch_scc0 P_SK{i}")
        a(f"v_add_u32 v{76+i}, 128, v{76+i}")
        a(f"v_cmp_lt_u32 vcc, v{76+i}, v{64+i}")
        a("s_nop 1")
        a(f"v_cndmask_b32 v{d}, v{d}, v52, vcc")
        pack(d)
        a(f"buffer_store_dwordx4 {vr(d,4)}, v{72+i}, {sr(sWS,4)}, s6 offen sc1")
        a.label(f"P_SK{i}")
        a("s_mov_b64 exec, -1")
    if STAMP:
        st(1)
        a("s_waitcnt vmcnt(0)")
        st(2)
    a("s_barrier")
    if opt.get('ftouch', 1):
        srd(a, sW1, 100, WS_BYTES)
        a(f"v_and_b32 v{vT0}, {NW2H-1}, v{vLane}")
        a(f"v_lshlrev_b32 v{vT0}, 2, v{vT0}")
        a(f"buffer_load_dword v{vT1}, v{vT0}, {sr(sDBG,4)}, 0 offen offset:128 sc1")
        a(f"s_lshr_b32 s4, s2, 3")
        a("s_lshl_b32 s4, s4, 16")
        a(f"s_add_u32 s4, s4, {W2F}")
        a(f"v_lshlrev_b32 v{vT0}, 7, v0")
        a("s_waitcnt vmcnt(0)")
        a(f"v_cmp_eq_u32 vcc, 0, v{vT1}")
        a("s_cmp_lg_u64 vcc, 0")
        a("s_cbranch_scc1 P_NT")
        a(f"buffer_load_dword v60, v{vT0}, {sr(sW1,4)}, s4 offen sc1")
        a.label("P_NT")
    xpf(NH * 1024, 2048, NP, 16)
    if STAMP:
        a("s_waitcnt vmcnt(0)")
        st(13)
    a("s_endpgm")
    a.label("P_OVF")
    a("s_waitcnt lgkmcnt(0)")
    for i in range(4):
        a(f"v_mov_b32 v{128+4*i}, v52")
        a(f"v_mov_b32 v{64+i}, -1")
    a("s_branch P_OVR")
    a.label("M_END")
    a("s_endpgm")
    return LDS_TOTAL, bars


DOC = """
GIN layer, one fused kernel (generated by gen/gen21.py).  256 workgroups of 8 waves, one per CU:
  ids  0..31  producers : bin 5000 edges each by 48-node destination block (LDS counting), publish
              fixed-capacity cells in d_ws as 8-byte granules {2 x 20-bit entry, 24-bit launch tag}
              with sc1 stores; the tag is announced in d_debug[id].  Afterwards: L2 prefetch of x.
  ids 32..46  helpers   : 32..39 re-lay W2 into MFMA fragment order in d_ws (sc1 stores, drained,
              flag in d_debug[32+h]); all of them prefetch x into L2.
  ids 47..255 consumers : 48 nodes each.  W1 -> registers via LDS-DMA + transposing LDS reads,
              poll + sort their cells into per-node lists, gather x rows (two rows per load, summed
              in fp32 by one MFMA against a 0/1 selection matrix, self row scaled by bf16(1+eps)),
              then GEMM1 (+b1, relu) and GEMM2 (+b2) with bf16 MFMA.
  Any capacity overflow or hand-off timeout falls back to an exact scan of src/dst.
"""

def build(opt):
    name = "gather_scatter__isomorphism_gin_2__graph_kernel"
    _, bars = gen_main(Asm(), dict(opt, verbose=0), name)
    b = Asm()
    lds, bars2 = gen_main(b, opt, name, bars)
    assert bars == bars2
    a = Asm()
    a.raw(HEADER.rstrip())
    a.raw(f"; @launch grid=(256,1,1) block=(512,1,1) lds={lds}")
    a.raw('.amdgcn_target "amdgcn-amd-amdhsa--gfx950"')
    for l in DOC.strip().split("\n"):
        a.raw("; " + l)
    a.raw(".text")
    a.l += b.l
    a.raw('.section .rodata,"a"')
    a.raw(kd(name, 256, 102))
    return a.text()

if __name__ == "__main__":
    out = sys.argv[1]
    opt = {}
    for kv in sys.argv[2:]:
        k, v = kv.split("=")
        opt[k] = int(v)
    open(out, "w").write(build(opt))
```

```python
import sys
from gen2 import Asm, Ctr, vr, sr, srd, kd, HEADER

N = 10000
E = 160000
BN = 48
NBLK = 209
NPROD = 32
NHELP = 15
C0 = NPROD + NHELP
CH = E // NPROD
CELLS_BYTES = NBLK * 8192
W2F = 0x200000
WS_BYTES = W2F + 0x40000
STAMP_OFF = 0x400000
EMPTY = 63 << 14
MARK = 62 << 14
NW2H = 8
NPW = 6


def gen_main(a, opt, name, bars_hint=None):
    D = opt.get('depth', 8)
    NH = opt.get('nh', 8)
    NP = opt.get('np', 4)
    STAMP = opt.get('stamp')
    assert D <= 16
    HH = 0
    ACT = 24576
    WST = 73728
    LIST = 65536
    CNT = LIST + 6144
    FLAG = CNT + 56 * 4
    BIAS = WST + 65536
    LDS_TOTAL = BIAS + 3072
    IMG = 2048
    PCNT = 0
    NONCE = 1024
    CST = 528
    vLane, vC16, vSh, vSeq, vT0, vT1, vOff, vFl = 1, 2, 3, 4, 5, 6, 7, 8
    vAcc = 10
    RING = 16
    vA1, vAS = 48, 52
    RS = lambda s: RING + 4 * s if s < 8 else 68 + 4 * (s - 8)
    vS2, vT16, vLB, vTB = 56, 57, 58, 63
    W2R = 64
    vSF, vAH = 112, 124
    W = 128
    vS1 = 16
    vTR = 20
    vTR2 = 29
    vBI = 44
    sX, sWS, sOUT, sSRC, sDST, sB1, sB2, sW1, sW2, sDBG = 8, 12, 16, 20, 24, 28, 32, 64, 68, 72
    sW, sWB, sA, sB = 36, 37, 38, 39
    sLB, sRot, sWL, sV = 46, 47, 48, 49
    sPC, sPI, sT, sXor, sNode, sId = 50, 51, 52, 53, 54, 55
    sMask = 56
    sM = 76
    sST = 92

    vm = Ctr(63)
    lg = Ctr(15)
    aux = [False]

    LST = {0: 98, 1: 96, 2: 94, 3: 92, 4: 90, 5: 88, 6: 86, 10: 84}
    def st(idx):
        if opt.get('lst') and not aux[0]:
            if idx in LST:
                a(("s_memrealtime" if not opt.get('cyc') else "s_memtime") + f" {sr(LST[idx],2)}")
            return
        amp = opt.get('amp')
        pamp = opt.get('pamp')
        if pamp is not None and aux[0] and (idx == 0 or idx == pamp):
            a("s_memrealtime s[94:95]")
            a("s_waitcnt lgkmcnt(0)")
            lg.clear()
            a(f"s_mov_b32 s{98 if idx == 0 else 99}, s94")
        if amp is not None and not aux[0]:
            if (idx == 0 and not opt.get('ampf')) or idx == amp:
                a("s_memrealtime s[96:97]")
                a("s_waitcnt lgkmcnt(0)")
                lg.clear()
                a(f"s_mov_b32 s{98 if idx == 0 else 99}, s96")
                if amp == 30:
                    a("s_mov_b32 s99, s96")
                    a("s_mov_b32 s98, s94")
            if idx == 2 and amp in (20, 21):
                for i in range(4):
                    a(f"v_readlane_b32 s{92+i}, v40, {16*i}")
                a("s_nop 3")
                op = "s_min_u32" if amp == 20 else "s_max_u32"
                a(f"{op} s92, s92, s93")
                a(f"{op} s94, s94, s95")
                a(f"{op} s92, s92, s94")
                if amp == 20:
                    a("s_mov_b32 s99, s98")
                    a("s_min_u32 s98, s92, s98")
                else:
                    a("s_max_u32 s99, s92, s98")
        if STAMP and (opt.get('stmask', 0xffff) >> idx) & 1:
            a("s_memrealtime s[96:97]" if not opt.get('cyc') else "s_memtime s[96:97]")
            a("s_waitcnt lgkmcnt(0)")
            lg.clear()
            a("v_mov_b32 v14, s96")
            a("v_mov_b32 v15, s97")
            a("s_mov_b64 s[98:99], exec")
            a("s_mov_b64 exec, 1")
            a(f"buffer_store_dwordx2 v[14:15], v9, {sr(sST,4)}, 0 offen offset:{idx*8}")
            vm.issue('st')
            a("s_mov_b64 exec, s[98:99]")

    def wait(vtag=None, ltag=None):
        p = []
        if vtag is not None:
            n = vm.need(vtag)
            if n is not None:
                p.append(f"vmcnt({n})")
        if ltag is not None:
            tags = ltag if isinstance(ltag, (list, tuple)) else [ltag]
            ns = [lg.need(t) for t in tags]
            ns = [n for n in ns if n is not None]
            if ns:
                p.append(f"lgkmcnt({min(ns)})")
        if p:
            a("s_waitcnt " + " ".join(p))
            return True
        return False

    def stamp_setup():
        if STAMP:
            srd(a, sST, 100, 0x1000000)
            a("s_lshl_b32 s96, s2, 4")
            a(f"s_add_u32 s96, s96, s{sW}")
            a("s_lshl_b32 s96, s96, 7")
            a(f"s_add_u32 s96, s96, {STAMP_OFF}")
            a("v_mov_b32 v9, s96")

    a.raw(f".globl {name}")
    a.raw(".p2align 8")
    a.raw(f".type {name},@function")
    a.label(name)
    if opt.get('amp') == 30 or opt.get('ampf'):
        a("s_memrealtime s[94:95]")
    a("s_cmp_ge_u32 s2, 256")
    a("s_cbranch_scc1 M_END")
    a("s_load_dwordx16 s[76:91], s[0:1], 0")
    a("s_load_dwordx4 s[4:7], s[0:1], 64")
    a("s_load_dwordx2 s[100:101], s[0:1], 80")
    a(f"v_and_b32 v{vLane}, 63, v0")
    a(f"v_lshrrev_b32 v{vT0}, 6, v0")
    a(f"v_lshlrev_b32 v{vT16}, 4, v0")
    a(f"v_readfirstlane_b32 s{sW}, v{vT0}")
    if opt.get('pfast', 1):
        a(f"s_cmp_lt_u32 s2, {NPROD}")
        a("s_cbranch_scc0 NOTP")
        a(f"s_mul_i32 s{sA}, s2, {CH*4}")
        a(f"s_add_u32 s40, s{sA}, 8192")
        a(f"s_add_u32 s41, s{sA}, 16384")
        for d in (sDST, sSRC):
            a(f"s_mov_b32 s{d+2}, {E*4}")
            a(f"s_mov_b32 s{d+3}, 0x00020000")
        a("s_waitcnt lgkmcnt(0)")
        a(f"s_mov_b32 s{sDST}, s80")
        a(f"s_and_b32 s{sDST+1}, s81, 0xffff")
        a(f"buffer_load_dwordx4 {vr(16,4)}, v{vT16}, {sr(sDST,4)}, s{sA} offen")
        a(f"buffer_load_dwordx4 {vr(24,4)}, v{vT16}, {sr(sDST,4)}, s40 offen")
        a(f"s_mov_b32 s{sSRC}, s78")
        a(f"s_and_b32 s{sSRC+1}, s79, 0xffff")
        a(f"s_cmp_lt_u32 s{sW}, 4")
        a("s_cbranch_scc0 P_E2")
        a(f"buffer_load_dwordx4 {vr(32,4)}, v{vT16}, {sr(sDST,4)}, s41 offen")
        a(f"buffer_load_dwordx4 {vr(36,4)}, v{vT16}, {sr(sSRC,4)}, s41 offen")
        a.label("P_E2")
        a(f"buffer_load_dwordx4 {vr(20,4)}, v{vT16}, {sr(sSRC,4)}, s{sA} offen")
        a(f"buffer_load_dwordx4 {vr(28,4)}, v{vT16}, {sr(sSRC,4)}, s40 offen")
        a("s_branch AUX")
        a.label("NOTP")
    a(f"s_cmp_lt_u32 s2, {C0}")
    if opt.get('cpre', 0):
        a("s_cbranch_scc0 CONS")
        a("s_getpc_b64 s[40:41]")
        a(f"v_lshlrev_b32 v{vT0}, 7, v0")
        a(f"v_cmp_gt_u32 vcc, {opt['cpre']}, v0")
        a("s_and_saveexec_b64 s[42:43], vcc")
        a("s_cbranch_execz CP_SK")
        a(f"global_load_dword v61, v{vT0}, s[40:41]")
        a.label("CP_SK")
        a("s_mov_b64 exec, s[42:43]")
        a("s_branch AUX")
        a.label("CONS")
    else:
        a("s_cbranch_scc1 AUX")

    a(f"s_sub_u32 s3, s2, {C0}")
    a(f"s_lshl_b32 s{sLB}, s3, 13")
    a(f"s_mul_i32 s3, s3, {BN}")
    a(f"v_mov_b32 v{vLB}, {LIST}")
    a("v_cmp_gt_u32 vcc, 384, v0")
    a(f"v_add_u32 v{vOff}, v{vLB}, v{vT16}")
    a("s_nop 0")
    a("v_cndmask_b32 v36, 0, -1, vcc")
    a("v_mov_b32 v37, v36")
    a("v_mov_b32 v38, v36")
    a("v_mov_b32 v39, v36")
    a(f"ds_write_b128 v{vOff}, v[36:39]")
    a(f"s_lshr_b32 s{sRot}, s2, 3")
    a(f"s_and_b32 s{sRot}, s{sRot}, 7")
    a(f"s_lshr_b32 s{sV}, s2, 4")
    a(f"s_and_b32 s{sV}, s{sV}, 4")
    a(f"s_and_b32 s{sA}, s{sRot}, 3")
    a(f"s_or_b32 s{sV}, s{sV}, s{sA}")
    a(f"s_xor_b32 s{sV}, s{sW}, s{sV}")
    a(f"v_bfe_u32 v{vT0}, v{vLane}, 1, 2")
    a(f"v_bfe_u32 v{vT1}, v{vLane}, 4, 1")
    a(f"v_xor_b32 v{vT0}, v{vT0}, v{vT1}")
    a(f"v_lshrrev_b32 v{vT1}, 3, v{vLane}")
    a(f"v_lshlrev_b32 v{vT1}, 10, v{vT1}")
    a(f"v_and_b32 v{vOff}, 1, v{vLane}")
    a(f"v_lshl_or_b32 v{vT1}, v{vOff}, 4, v{vT1}")
    a(f"s_lshl_b32 s{sA}, s{sV}, 7")
    a(f"v_or_b32 v{vT1}, s{sA}, v{vT1}")
    a(f"v_lshl_or_b32 v{vS1}, v{vT0}, 5, v{vT1}")
    a(f"v_xor_b32 v{vS1+1}, 64, v{vS1}")
    a(f"s_lshl_b32 s{sWL}, s{sW}, 13")
    a(f"s_add_u32 s{sWB}, s{sWL}, {WST}")
    a(f"s_lshl_b32 s{sB}, s{sRot}, 15")
    a("s_waitcnt lgkmcnt(0)")
    srd(a, sW1, 84, 256 * 1024)
    B1AT = opt.get('b1at', 0)
    if B1AT == 0:
        a("s_barrier")

    def slot_base(sl):
        return (sWB if sl < 2 else sWL), (sl % 2) * 4096

    def dma_unit(u):
        sb, off = slot_base(u % 4)
        for i in range(4):
            a(f"s_add_u32 m0, s{sb}, {off + i * 1024}")
            if u < 8:
                a(f"s_xor_b32 s{sA}, s{sB}, {(u * 32 + i * 8) * 1024}")
                a(f"buffer_load_dwordx4 v{vS1 + i % 2}, {sr(sW1,4)}, s{sA} offen lds")
            else:
                a(f"s_mov_b32 s{sA}, {((u - 8) * 64 + i * 16) * 512}")
                a(f"buffer_load_dwordx4 v{vN2}, {sr(sW2,4)}, s{sA} offen lds")
            vm.issue(f"u{u}")

    NR = opt.get('nr', 2)
    NU = 8 + NR
    vN2 = 28
    NBUB = opt.get('nb', 2)
    NINF = opt.get('ninf', 3)
    PPRIO = opt.get('pprio', 1)
    stamp_setup()
    st(0)
    if opt.get('dly_c'):
        a(f"s_sleep {opt['dly_c']}")
    if PPRIO:
        a("s_setprio 3")
    dma_unit(0)
    if B1AT == 1:
        a("s_barrier")
    if PPRIO:
        a("s_setprio 2")
    a("s_load_dword s45, s[82:83], 0")
    SPF = opt.get('spf', 0)
    if SPF:
        a("s_and_b32 s40, s2, 7")
        a("s_mul_i32 s40, s40, 5000")
        a("s_lshr_b32 s41, s2, 3")
        a("s_lshl_b32 s41, s41, 3")
        a(f"s_add_u32 s41, s41, s{sW}")
        a(f"s_mul_i32 s41, s41, {SPF}")
        a("s_add_u32 s40, s40, s41")
        a(f"s_add_u32 s40, s40, {NH * 1024 + NP * 2048 - 40 * SPF}")
        a(f"s_sub_u32 s41, s40, {40000 - SPF}")
        a("s_min_u32 s40, s40, s41")
        a("s_lshl_b32 s40, s40, 7")
        a("s_add_u32 s40, s76, s40")
        a("s_addc_u32 s41, s77, 0")
        for r in range(SPF):
            a(f"s_load_dword s42, s[40:41], {128 * r}")
    for u in range(1, NINF):
        dma_unit(u)
    srd(a, sB1, 86, 1024)
    srd(a, sB2, 90, 512)
    a(f"v_lshlrev_b32 v{vC16}, 4, v{vLane}")
    a(f"s_cmp_eq_u32 s{sW}, 2")
    a("s_cbranch_scc0 C_SL2")
    a(f"buffer_load_dwordx4 {vr(vBI,4)}, v{vC16}, {sr(sB1,4)}, 0 offen")
    a.label("C_SL2")
    a(f"s_cmp_eq_u32 s{sW}, 3")
    a("s_cbranch_scc0 C_SL3")
    a(f"buffer_load_dwordx4 {vr(vBI,4)}, v{vC16}, {sr(sB2,4)}, 0 offen")
    a.label("C_SL3")
    a(f"v_lshrrev_b32 v{vT0}, 4, v{vLane}")
    a(f"v_lshlrev_b32 v{vT0}, 10, v{vT0}")
    a(f"v_bfe_u32 v{vT1}, v{vLane}, 2, 2")
    a(f"v_lshl_or_b32 v{vT0}, v{vT1}, 7, v{vT0}")
    a(f"v_and_b32 v{vT1}, 3, v{vLane}")
    a(f"v_lshl_or_b32 v{vT0}, v{vT1}, 3, v{vT0}")
    a(f"v_bfe_u32 v{vT1}, v{vLane}, 3, 2")
    for mt in range(4):
        a(f"v_xor_b32 v{vOff}, {mt}, v{vT1}")
        a(f"v_lshl_add_u32 v{vOff}, v{vOff}, 5, v{vT0}")
        a(f"v_add_u32 v{vTR+mt}, s{sWB}, v{vOff}")
        a(f"v_add_u32 v{vTR+4+mt}, s{sWL}, v{vOff}")

    def w2_addr(sLW, vsrc, vtb_list):
        a(f"v_lshrrev_b32 v{vT0}, 2, v{vLane}")
        a(f"v_lshlrev_b32 v{vT0}, 9, v{vT0}")
        a(f"v_and_b32 v{vT1}, 3, v{vLane}")
        a(f"v_lshl_or_b32 v{vT0}, v{vT1}, 4, v{vT0}")
        a(f"s_lshl_b32 s{sA}, s{sLW}, 6")
        a(f"v_or_b32 v{vsrc}, s{sA}, v{vT0}")
        for (v, sb) in vtb_list:
            a(f"v_lshl_add_u32 v{v}, v{vLane}, 4, s{sb}")

    def setup_a():
        a(f"s_lshl_b32 s{sA}, s{sV}, 15")
        a(f"s_add_u32 s{sA}, s{sA}, {W2F}")
        a(f"v_lshl_add_u32 v{vS2}, v{vLane}, 4, s{sA}")
        if NR:
            srd(a, sW2, 88, 256 * 1024)
            w2_addr(sV, vN2, [(vTB, sWB), (vTR2, sWL)])

    def setup_b():
        srd(a, sX, 76, N * 512)
        srd(a, sDBG, 6, 256)
        srd(a, sWS, 100, WS_BYTES)
        if opt.get('ctouch', 0):
            a(f"s_cmp_eq_u32 s{sW}, 0")
            a("s_cbranch_scc0 C_CT")
            a(f"v_mov_b32 v{vT0}, 0x1f0000")
            a(f"v_lshlrev_b32 v{vT1}, 20, v{vLane}")
            a("s_mov_b64 exec, 31")
            a(f"buffer_load_dword v31, v{vT0}, {sr(sWS,4)}, 0 offen")
            a(f"buffer_load_dword v30, v{vT1}, {sr(sX,4)}, 0 offen")
            a("s_mov_b64 exec, -1")
            a.label("C_CT")
        srd(a, sOUT, 4, N * 512)
        srd(a, sDST, 80, E * 4)
        srd(a, sSRC, 78, E * 4)

    def setup_c():
        a(f"v_lshrrev_b32 v{vT0}, 4, v{vLane}")
        a(f"v_lshrrev_b32 v{vT1}, 3, v{vLane}")
        a(f"v_xor_b32 v{vT0}, v{vT0}, v{vT1}")
        a(f"v_and_b32 v{vT0}, 1, v{vT0}")
        a(f"v_bfe_u32 v{vT1}, v{vLane}, 1, 2")
        a(f"v_lshl_or_b32 v{vT0}, v{vT0}, 2, v{vT1}")
        a(f"v_and_b32 v{vT1}, 1, v{vLane}")
        a(f"v_lshlrev_b32 v{vT1}, 4, v{vT1}")
        a("s_lshl_b32 s45, s45, 16")
        a("v_mov_b32 v40, s45")
        a("v_add_f32 v40, 1.0, v40")
        a("v_cvt_pk_bf16_f32 v40, v40, v40")
        a("v_and_b32 v40, 0xffff, v40")
        a("v_mov_b32 v41, 0x3f80")
        a(f"v_lshlrev_b32 v40, v{vT1}, v40")
        a(f"v_lshlrev_b32 v41, v{vT1}, v41")
        a(f"v_cmp_gt_u32 vcc, 32, v{vLane}")
        a("s_nop 1")
        a("v_cndmask_b32 v42, v40, 0, vcc")
        a("v_cndmask_b32 v40, 0, v40, vcc")
        for p in range(4):
            a(f"v_cmp_eq_u32 vcc, {p}, v{vT0}")
            a("s_nop 1")
            a(f"v_cndmask_b32 v{vA1+p}, 0, v41, vcc")
            a(f"v_cndmask_b32 v{vAS+p}, 0, v40, vcc")
            a(f"v_cndmask_b32 v{vAH+p}, 0, v42, vcc")

    def setup_d():
        a(f"v_lshrrev_b32 v{vSh}, 5, v{vLane}")
        a(f"v_lshlrev_b32 v{vSh}, 4, v{vSh}")
        a(f"v_and_b32 v{vT0}, 15, v{vLane}")
        a(f"v_lshlrev_b32 v{vFl}, 4, v{vT0}")
        a(f"v_lshl_or_b32 v{vFl}, v{vSh}, 4, v{vFl}")
        a(f"v_bfe_u32 v{vT0}, v{vLane}, 4, 1")
        a(f"v_lshl_or_b32 v{vFl}, v{vT0}, 3, v{vFl}")
        a(f"v_and_b32 v{vC16}, 31, v{vLane}")
        a(f"v_lshlrev_b32 v{vC16}, 4, v{vC16}")
        a(f"v_bfe_u32 v42, v{vLane}, 3, 2")
        a(f"s_lshl_b32 s{sA}, s{sW}, 4")
        a(f"v_lshl_add_u32 v42, v42, 2, s{sA}")
        a(f"v_and_b32 v43, {NW2H-1}, v{vLane}")
        a("v_lshlrev_b32 v43, 2, v43")
        a(f"s_lshl_b32 s{sA}, s{sW}, 9")
        a(f"v_lshl_add_u32 v41, v{vSh}, 8, v{vC16}")
        a(f"v_add_u32 v41, s{sA}, v41")
        a(f"s_mov_b32 s{sPC}, 0")
        a(f"s_mov_b32 s{sT}, {EMPTY}")
        a(f"v_lshrrev_b32 v{vT0}, 1, v{vLane}")
        a(f"v_lshlrev_b32 v{vT0}, 4, v{vT0}")
        a(f"v_and_b32 v{vT1}, 1, v{vLane}")
        a(f"v_or_b32 v{vT0}, v{vT0}, v{vT1}")
        a(f"s_lshl_b32 s{sNode}, s{sW}, 1")
        a(f"v_add_u32 v{vT0}, s{sNode}, v{vT0}")
        a(f"v_cmp_gt_u32 vcc, 6, v{vLane}")
        a(f"v_mov_b32 v{vT1}, 56")
        a("v_mov_b32 v62, 64")
        a(f"v_cndmask_b32 v{vT0}, v{vT1}, v{vT0}, vcc")
        a(f"v_lshl_add_u32 v61, v{vT0}, 2, v{vLB}")
        a(f"s_lshl_b32 s{sA}, s{sW}, 8")
        a(f"v_lshl_add_u32 v{vT1}, v{vLane}, 2, v{vLB}")
        a(f"v_add_u32 v60, s{sA}, v{vT1}")
        a("v_cndmask_b32 v62, 0, v62, vcc")
        set_xor()

    def set_xor():
        a(f"s_lshl_b32 s{sXor}, s{sNode}, 9")
        a(f"s_and_b32 s44, s{sNode}, 15")
        a("s_lshl_b32 s44, s44, 4")
        a(f"s_or_b32 s{sXor}, s{sXor}, s44")

    def cpf(r0, n):
        tot = opt.get('cpf', 0) + opt.get('cpf2', 0)
        a("s_and_b32 s4, s2, 7")
        a("s_mul_i32 s4, s4, 5000")
        a("s_lshr_b32 s5, s2, 3")
        a(f"s_mul_i32 s5, s5, {512 * tot}")
        a("s_add_u32 s4, s4, s5")
        for r in range(r0, r0 + n):
            a(f"s_add_u32 s5, s4, {NH * 1024 + NP * 2048 - 5 * 512 * tot + 512 * r}")
            a(f"v_add_u32 v{vT0}, s5, v0")
            a(f"v_subrev_u32 v{vT1}, 40000, v{vT0}")
            a(f"v_min_u32 v{vT0}, v{vT0}, v{vT1}")
            a(f"v_lshlrev_b32 v{vT0}, 7, v{vT0}")
            a(f"buffer_load_dword v{44+r}, v{vT0}, {sr(sX,4)}, 0 offen")
            vm.issue("cpf")

    def bias_to_lds():
        a(f"s_sub_u32 s{sA}, s{sW}, 2")
        a(f"s_cmp_lt_u32 s{sA}, 2")
        a("s_cbranch_scc0 C_NB")
        for x in range(4):
            a(f"v_lshlrev_b32 v{32+2*x}, 16, v{vBI+x}")
            a(f"v_and_b32 v{33+2*x}, 0xffff0000, v{vBI+x}")
        a(f"s_lshl_b32 s{sA}, s{sA}, 11")
        a(f"s_add_u32 s{sA}, s{sA}, {BIAS}")
        a(f"v_lshl_add_u32 v{vOff}, v{vLane}, 5, s{sA}")
        a(f"s_cmp_eq_u32 s{sW}, 3")
        a("s_cbranch_scc0 C_NB2")
        a("s_mov_b64 exec, 0xffffffff")
        a.label("C_NB2")
        a(f"ds_write_b128 v{vOff}, v[32:35]")
        a(f"ds_write_b128 v{vOff}, v[36:39] offset:16")
        a("s_mov_b64 exec, -1")
        a("s_waitcnt lgkmcnt(0)")
        a.label("C_NB")

    def tr_w2_ops(dst, vbase, off, tag, scr):
        ops = []
        for kk in range(2):
            for t in range(2):
                for hf in range(2):
                    ops.append(("ds", f"ds_read_b64_tr_b16 {vr(dst+8*kk+4*t+2*hf,2)}, v{vbase} offset:{off + kk*2048 + hf*1024 + 8*t}", tag))
        return ops

    def w2reg(k):
        return W2R + 16 * k if k < 4 else W + 16 * (k - 4)

    def w2_ops(k):
        ops = []
        for mt in range(4):
            ops.append(("vm2", [f"s_mov_b32 s{sA}, {k * 4096}"] if mt == 0 else [],
                        f"buffer_load_dwordx4 {vr(w2reg(k)+4*mt,4)}, v{vS2}, {sr(sWS,4)}, s{sA} offen offset:{mt*1024} sc1", f"w2_{k}"))
        return ops

    bars = []
    cur_q = [0]
    def emit(op):
        if isinstance(op, tuple):
            k = op[0]
            if k == "ds":
                a(op[1]); lg.issue(op[2]); return 1
            if k == "vm":
                a(op[1]); vm.issue(op[2]); return 1
            if k == "vm2":
                for l in op[1]:
                    a(l)
                a(op[2]); vm.issue(op[3]); return 1
            if k == "dma":
                for l in op[1]:
                    a(l)
                vm.issue(op[2]); return 2
            if k == "skip":
                return 2
            if k == "wl":
                return 1 if wait(ltag=op[1]) else 0
            if k == "wv":
                return 1 if wait(vtag=op[1]) else 0
            if k == "bar":
                wait(ltag=op[1])
                a("s_barrier")
                bars.append(cur_q[0])
                return 2
            raise ValueError(op)
        a(op)
        return 1

    def poll_issue():
        a(f"buffer_load_dword v40, v42, {sr(sDBG,4)}, 0 offen sc1")
        a(f"buffer_load_dword v39, v43, {sr(sDBG,4)}, 0 offen offset:128 sc1")
        a(f"buffer_load_dwordx4 v[32:35], v41, {sr(sWS,4)}, s{sLB} offen sc1")

    def unit_step(u):
        sl = u % 4
        hi = 0 if sl < 2 else 1
        off = (sl % 2) * 4096
        if not opt.get('nowait'):
            wait(vtag=f"u{u}")
        if opt.get('notr'):
            pass
        elif u < 8:
            for mt in range(4):
                for hf in range(2):
                    a(f"ds_read_b64_tr_b16 {vr(W+16*u+4*mt+2*hf,2)}, v{vTR+4*hi+mt} offset:{off + hf*512}")
                    lg.issue(f"t{u}")
        else:
            for op in tr_w2_ops(W2R + 16 * (u - 8), vTB if hi == 0 else vTR2, off, f"t{u}", [30, 31]):
                emit(op)
        nx = u + NINF
        if nx < NU:
            if nx - 4 >= 0:
                wait(ltag=f"t{nx-4}")
            dma_unit(nx)

    DEFER = opt.get('defer', 1)
    a("s_waitcnt lgkmcnt(0)")
    if not DEFER:
        setup_a()
        setup_b()
        setup_c()
        setup_d()
    if opt.get('sync0'):
        a("s_waitcnt vmcnt(0)")
        a("s_barrier")
    PU = opt.get('pu', 9)
    LATEF = opt.get('lateflag', 0)
    assert not LATEF or (NR == 0 and NBUB == 0)
    PU2 = opt.get('pu2', PU)
    SD = opt.get('sd', 5)
    def pollx():
        a(f"buffer_load_dword v40, v42, {sr(sDBG,4)}, 0 offen sc1")
        if not LATEF:
            a(f"buffer_load_dword v39, v43, {sr(sDBG,4)}, 0 offen offset:128 sc1")
            vm.issue("poll")
        else:
            a("v_mov_b32 v39, 1")
        a(f"buffer_load_dwordx4 v[32:35], v41, {sr(sWS,4)}, s{sLB} offen sc1")
        vm.issue("poll"); vm.issue("poll")
    def steps_from(u0, pu):
        for u in range(u0, NU):
            if PPRIO and u in (NU // 4, NU // 2 + 1):
                a(f"s_setprio {1 if u == NU // 4 else 0}")
            unit_step(u)
            {0: setup_a, 1: setup_b, 2: setup_c, SD: setup_d}.get(u, lambda: None)()
            if u == NINF:
                bias_to_lds()
            if pu is None and u == PU2:
                return
            if u == pu:
                pollx()
    if PU2 == PU:
        steps_from(0, PU)
    else:
        assert max(SD, NINF) <= PU2 < PU
        steps_from(0, None)
        a(f"s_cmp_lt_u32 s{sW}, {opt.get('ysplit', 4)}")
        a("s_cbranch_scc1 C_OLD")
        sv = (list(vm.q), list(lg.q))
        pollx()
        steps_from(PU2 + 1, -1)
        wait(vtag="poll")
        a("s_branch C_JOIN")
        vm.q, lg.q = sv
        a.label("C_OLD")
        steps_from(PU2 + 1, PU)
        wait(vtag="poll")
        a.label("C_JOIN")
    st(1)
    NPRE, NPOST = NR, 0
    wait(vtag="poll")
    a.label("POLL_CHK")
    a("v_lshrrev_b32 v16, 8, v33")
    a("v_lshrrev_b32 v17, 8, v35")
    a("v_xor_b32 v16, v16, v40")
    a("v_xor_b32 v17, v17, v40")
    a("v_or_b32 v16, v16, v17")
    a("v_alignbit_b32 v26, v35, v34, 20")
    a(f"v_cmp_ne_u32 {sr(sM,2)}, 0, v16")
    a("v_and_b32 v26, 0xfffff, v26")
    a("v_min_u32 v17, v40, v39")
    a(f"v_cmp_eq_u32 {sr(sM+2,2)}, 0, v17")
    a(f"v_cmp_ne_u32 vcc, s{sT}, v26")
    a("s_and_b32 s5, vcc_lo, 0x80808080")
    a("s_lshr_b32 s5, s5, 7")
    a("s_mul_i32 s5, s5, 255")
    a("s_mov_b32 s4, -1")
    a(f"s_and_b64 {sr(sM,2)}, {sr(sM,2)}, s[4:5]")
    a(f"s_or_b64 {sr(sM,2)}, {sr(sM,2)}, {sr(sM+2,2)}")
    a("s_cbranch_scc1 POLL_RETRY")
    a("v_and_b32 v20, 0xfffff, v32")
    a("v_alignbit_b32 v22, v33, v32, 20")
    a("v_and_b32 v22, 0xfffff, v22")
    a("v_and_b32 v24, 0xfffff, v34")
    a.label("POLL_OK")
    vm.clear()
    st(2)
    a(f"s_add_u32 s6, s3, s{sNode}")
    a("s_lshl_b32 s6, s6, 9")
    a(f"v_lshl_add_u32 v28, v{vLane}, 4, s6")
    a(f"buffer_load_dwordx4 {vr(vSF,4)}, v28, {sr(sX,4)}, 0 offen")
    a("v_add_u32 v29, 8192, v28")
    a(f"buffer_load_dwordx4 {vr(vSF+4,4)}, v29, {sr(sX,4)}, 0 offen")
    a("v_add_u32 v30, 16384, v28")
    a(f"buffer_load_dwordx4 {vr(vSF+8,4)}, v30, {sr(sX,4)}, 0 offen")
    a(f"v_mov_b32 v16, s{sT}")
    a("v_cndmask_b32 v20, v16, v20, s[4:5]")
    a(f"s_mov_b32 s4, {MARK}")
    a("v_mov_b32 v41, 1")
    ent = [20, 22, 24, 26]
    for k in range(4):
        a(f"v_bfe_u32 v{ent[k]+1}, v{ent[k]}, 14, 6")
        a(f"v_lshl_add_u32 v{16+k}, v{ent[k]+1}, 2, v{vLB}")
    for k in range(4):
        a(f"v_cmpx_gt_u32 vcc, s4, v{ent[k]}")
        a(f"ds_add_rtn_u32 v{16+k}, v{16+k}, v41 offset:{CNT-LIST}")
        a(f"s_mov_b64 {sr(sM+2*k,2)}, exec")
    a("s_mov_b64 exec, -1")
    a("v_cmp_eq_u32 vcc, s4, v20")
    a("s_and_saveexec_b64 s[6:7], vcc")
    a(f"ds_write_b32 v{vLB}, v41 offset:{FLAG-LIST}")
    a("s_mov_b64 exec, -1")
    for k in range(4):
        a(f"v_and_b32 v{ent[k]}, 0x3fff, v{ent[k]}")
        a(f"v_lshl_add_u32 v{ent[k]+1}, v{ent[k]+1}, 7, v{vLB}")
    a("s_waitcnt lgkmcnt(0)")
    for k in range(4):
        a(f"v_min_u32 v{16+k}, 63, v{16+k}")
        a(f"v_lshl_add_u32 v{ent[k]+1}, v{16+k}, 1, v{ent[k]+1}")
    for k in range(4):
        a(f"s_mov_b64 exec, {sr(sM+2*k,2)}")
        a(f"ds_write_b16 v{ent[k]+1}, v{ent[k]}")
    a("s_mov_b64 exec, -1")
    lg.clear()
    vL = [vSeq, 59, 60]
    vCnt = 61
    sFlush, sJ, sEnd, sLeft = sMask, sMask + 1, sT, sPC
    a(f"s_mov_b32 s{sFlush}, 0")
    a(f"s_mov_b32 s{sJ}, 0")
    a(f"s_mov_b32 s{sPI}, 0")
    a(f"s_mov_b32 s{sLeft}, {NPW}")
    if LATEF:
        a("v_mov_b32 v64, v43")
        a(f"buffer_load_dword v63, v43, {sr(sDBG,4)}, 0 offen offset:128 sc1")
    NBUB = max(NBUB, NPRE + NPOST)
    assert NBUB <= 3
    for k in range(NPRE + NPOST, NBUB):
        for op in w2_ops(k):
            emit(op)
    a("s_waitcnt lgkmcnt(0)")
    for _ in range(opt.get('dly_g', 0)):
        a("s_sleep 64")
    a("s_barrier")
    a(f"ds_read_b32 v{vCnt}, v61 offset:{CNT-LIST}")
    for i in range(3):
        a(f"ds_read_b32 v{vL[i]}, v60 offset:{2048*i}")
    GPRIO = opt.get('gprio', 1)
    if GPRIO:
        a("s_setprio 3")
    a("s_waitcnt lgkmcnt(2)")
    a(f"v_cmp_gt_u32 vcc, v{vCnt}, v62")
    a(f"v_add_u32 v{vCnt}, 1, v{vCnt}")
    a(f"v_lshrrev_b32 v{vCnt}, 1, v{vCnt}")
    a(f"v_max_u32 v{vCnt}, 1, v{vCnt}")
    a("s_cmp_lg_u64 vcc, 0")
    a("s_cbranch_scc1 M_SLOW")
    a(f"v_readlane_b32 s{sEnd}, v{vCnt}, 0")
    a("s_waitcnt lgkmcnt(0)")
    st(3)

    def flush():
        a(f"v_xor_b32 v{vT0}, s{sXor}, v{vFl}")
        a(f"v_cvt_pk_bf16_f32 v14, v{vAcc}, v{vAcc+1}")
        a(f"v_cvt_pk_bf16_f32 v15, v{vAcc+2}, v{vAcc+3}")
        a(f"ds_write_b64 v{vT0}, v[14:15] offset:{HH}")
        a(f"s_and_b32 s4, s{sNode}, 1")
        a("s_cselect_b64 s[6:7], -1, 0")
        for x in range(4):
            a(f"v_swap_b32 v{vAS+x}, v{vAH+x}")
        for x in range(8):
            a(f"v_cndmask_b32 v{vSF+x}, v{vSF+x}, v{vSF+4+x}, s[6:7]")
        a("s_mul_i32 s4, s4, 14")
        a(f"s_add_u32 s{sNode}, s{sNode}, s4")
        a(f"s_add_u32 s{sNode}, s{sNode}, 1")
        set_xor()

    acc = vr(vAcc, 4)
    def mf_norm(s):
        a(f"v_mfma_f32_16x16x32_bf16 {acc}, {vr(vA1,4)}, {vr(RS(s),4)}, {acc}")
    def mf_first(s):
        a(f"v_mfma_f32_16x16x32_bf16 {acc}, {vr(vAS,4)}, {vr(vSF,4)}, 0")
        mf_norm(s)
    def issue(s):
        a(f"v_bfe_u32 v{vOff}, s{sId}, v{vSh}, 16")
        a(f"v_lshl_add_u32 v{vOff}, v{vOff}, 9, v{vC16}")
        a(f"buffer_load_dwordx4 {vr(RS(s),4)}, v{vOff}, {sr(sX,4)}, 0 offen")
    swn = [0]
    def switch(s, lab_exit):
        a(f"s_bitset1_b32 s{sFlush}, {s}")
        a(f"s_add_u32 s{sJ}, s{sJ}, 1")
        a(f"s_cmp_eq_u32 s{sJ}, {NPW}")
        a(f"s_cbranch_scc1 {lab_exit}")
        a(f"v_readlane_b32 s{sEnd}, v{vCnt}, s{sJ}")
        a(f"s_and_b32 s{sPI}, s{sJ}, 1")
        a(f"s_cselect_b32 s4, 0, -1")
        a(f"s_mov_b32 s5, s4")
        a(f"s_lshl_b32 s{sPI}, s{sPI}, 5")
        a(f"v_cndmask_b32 v{vL[0]}, v{vL[0]}, v{vL[1]}, s[4:5]")
        a(f"v_cndmask_b32 v{vL[1]}, v{vL[1]}, v{vL[2]}, s[4:5]")
        a(f"s_add_u32 s{sEnd}, s{sEnd}, s{sPI}")
        if GPRIO:
            k = swn[0]; swn[0] += 1
            a(f"s_cmp_lt_u32 s{sJ}, 3")
            a(f"s_cbranch_scc1 SWP{k}")
            a("s_setprio 2")
            a(f"s_cmp_lt_u32 s{sJ}, 4")
            a(f"s_cbranch_scc1 SWP{k}")
            a("s_setprio 1")
            a(f"s_cmp_lt_u32 s{sJ}, 5")
            a(f"s_cbranch_scc1 SWP{k}")
            a("s_setprio 0")
            a.label(f"SWP{k}")

    for s in range(D):
        a.label(f"F_{s}")
        a(f"v_readlane_b32 s{sId}, v{vL[0]}, s{sPI}")
        a(f"s_add_u32 s{sPI}, s{sPI}, 1")
        a(f"s_cmp_eq_u32 s{sPI}, s{sEnd}")
        issue(s)
        a(f"s_cbranch_scc1 F_SW{s}")
    a("s_branch G_F0")
    for s in range(D):
        a.label(f"F_SW{s}")
        switch(s, "X_F0")
        a(f"s_branch {'F_%d' % (s+1) if s + 1 < D else 'G_F0'}")
    for s in range(D):
        n = (s + 1) % D
        a.label(f"G_N{s}")
        a(f"s_waitcnt vmcnt({D-1})")
        a(f"v_readlane_b32 s{sId}, v{vL[0]}, s{sPI}")
        mf_norm(s)
        a.label(f"G_C{s}")
        a(f"s_add_u32 s{sPI}, s{sPI}, 1")
        a(f"s_bitcmp1_b32 s{sFlush}, {s}")
        issue(s)
        a(f"s_cbranch_scc1 G_FL{s}")
        a(f"s_cmp_eq_u32 s{sPI}, s{sEnd}")
        a(f"s_cbranch_scc1 G_SN{s}")
        if n == 0:
            a("s_branch G_N0")
    for s in range(D):
        n = (s + 1) % D
        a.label(f"G_SN{s}")
        switch(s, f"X_N{n}")
        a(f"s_branch G_N{n}")
    for s in range(D):
        n = (s + 1) % D
        a.label(f"G_FL{s}")
        a(f"s_bitset0_b32 s{sFlush}, {s}")
        a(f"s_sub_u32 s{sLeft}, s{sLeft}, 1")
        a("s_nop 0")
        flush()
        a(f"s_cmp_eq_u32 s{sPI}, s{sEnd}")
        a(f"s_cbranch_scc0 G_F{n}")
        switch(s, f"X_F{n}")
        a.label(f"G_F{n}")
        a(f"s_waitcnt vmcnt({D-1})")
        a(f"v_readlane_b32 s{sId}, v{vL[0]}, s{sPI}")
        mf_first(n)
        a(f"s_branch G_C{n}")
    for s in range(D):
        a.label(f"X_N{s}")
        a("s_waitcnt vmcnt(0)")
        a(f"s_branch T_N{s}")
        a.label(f"X_F{s}")
        a("s_waitcnt vmcnt(0)")
        a(f"s_branch T_F{s}")
    for s in range(D):
        n = (s + 1) % D
        a.label(f"T_N{s}")
        mf_norm(s)
        a.label(f"T_C{s}")
        a(f"s_bitcmp1_b32 s{sFlush}, {s}")
        a(f"s_cbranch_scc1 T_FL{s}")
        if n == 0:
            a(f"s_cmp_eq_u32 s{sFlush}, 0")
            a("s_cbranch_scc1 M_GDONE")
            a("s_branch T_N0")
    for s in range(D):
        n = (s + 1) % D
        a.label(f"T_FL{s}")
        a(f"s_bitset0_b32 s{sFlush}, {s}")
        a(f"s_sub_u32 s{sLeft}, s{sLeft}, 1")
        a("s_nop 4")
        flush()
        a(f"s_cmp_eq_u32 s{sLeft}, 0")
        a(f"s_cbranch_scc1 M_GDONE")
        a.label(f"T_F{n}")
        mf_first(n)
        a(f"s_branch T_C{n}")

    a.label("POLL_RETRY")
    a(f"s_add_u32 s{sPC}, s{sPC}, 1")
    a(f"s_cmp_lt_u32 s{sPC}, {opt.get('spin', 30000)}")
    a("s_cbranch_scc0 POLL_GIVEUP")
    a(f"s_cmp_eq_u32 s{sPC}, 1")
    a("s_cbranch_scc1 POLL_NOSLEEP")
    a.label("POLL_SLEEP")
    a(f"s_sleep {opt.get('psleep', 4)}")
    a.label("POLL_NOSLEEP")
    a(f"s_cmp_eq_u64 {sr(sM+2,2)}, 0")
    a("s_cbranch_scc1 POLL_CELLS")
    a(f"buffer_load_dword v40, v42, {sr(sDBG,4)}, 0 offen sc1")
    if not LATEF:
        a(f"buffer_load_dword v39, v43, {sr(sDBG,4)}, 0 offen offset:128 sc1")
    a.label("POLL_CELLS")
    a(f"buffer_load_dwordx4 v[32:35], v41, {sr(sWS,4)}, s{sLB} offen sc1")
    a("s_waitcnt vmcnt(0)")
    a("s_branch POLL_CHK")
    a.label("POLL_GIVEUP")
    a(f"s_cmp_lt_u32 s{sPC}, {8 * opt.get('spin', 30000)}")
    a("s_cbranch_scc0 POLL_GO")
    a("v_cmp_eq_u32 vcc, 0, v39")
    a("s_cmp_lg_u64 vcc, 0")
    a("s_cbranch_scc1 POLL_SLEEP")
    a.label("POLL_GO")
    a(f"v_mov_b32 v20, {MARK}")
    a("s_mov_b64 s[4:5], -1")
    a("s_branch POLL_OK")

    if LATEF:
        a.label("FLG_RETRY")
        a(f"s_add_u32 s{sPC}, s{sPC}, 1")
        a(f"s_cmp_lt_u32 s{sPC}, {8 * opt.get('spin', 30000)}")
        a("s_cbranch_scc0 FLG_OK")
        a("s_sleep 8")
        a(f"buffer_load_dword v63, v64, {sr(sDBG,4)}, 0 offen offset:128 sc1")
        a("s_waitcnt vmcnt(0)")
        a("s_branch FLG_CHK")

    a.label("M_SLOW")
    SA = RING + 8
    a("s_waitcnt vmcnt(0) lgkmcnt(0)")
    a(f"v_mov_b32 v{vT0}, 0x7f000000")
    a(f"v_cmp_gt_u32 vcc, 32, v{vLane}")
    a("s_nop 1")
    a(f"v_cndmask_b32 v{vSeq}, v{vT0}, v{vC16}, vcc")
    a(f"s_add_u32 s40, s3, s{sNode}")
    for j in range(NPW):
        a(f"s_add_u32 s4, s40, {16*(j//2) + j%2}")
        a("s_lshl_b32 s4, s4, 9")
        a(f"v_add_u32 v{vOff}, s4, v{vSeq}")
        a(f"buffer_load_dwordx4 {vr(RING,4)}, v{vOff}, {sr(sX,4)}, 0 offen")
        a("s_waitcnt vmcnt(0)")
        a(f"v_mfma_f32_16x16x32_bf16 {vr(SA+4*j,4)}, {vr(vAS,4)}, {vr(RING,4)}, 0")
        a("s_nop 7")
    a(f"v_lshlrev_b32 v{vT0}, 2, v{vLane}")
    a("s_mov_b32 s41, 0")
    a.label("S_LOOP")
    a(f"buffer_load_dword v{RING+4}, v{vT0}, {sr(sDST,4)}, s41 offen")
    a(f"buffer_load_dword v{RING+5}, v{vT0}, {sr(sSRC,4)}, s41 offen")
    a("s_waitcnt vmcnt(0)")
    a(f"v_subrev_u32 v{RING+4}, s40, v{RING+4}")
    a(f"v_and_b32 v{RING+6}, 0xffffffce, v{RING+4}")
    a(f"v_cmp_eq_u32 vcc, 0, v{RING+6}")
    a(f"v_cmp_gt_u32 s[42:43], 48, v{RING+4}")
    a("s_nop 3")
    a("s_and_b64 s[42:43], s[42:43], vcc")
    a.label("S_IN")
    a("s_cmp_eq_u64 s[42:43], 0")
    a("s_cbranch_scc1 S_NEXT")
    a("s_ff1_i32_b64 s44, s[42:43]")
    a("s_bitset0_b64 s[42:43], s44")
    a(f"v_readlane_b32 s45, v{RING+4}, s44")
    a(f"v_readlane_b32 s46, v{RING+5}, s44")
    a("s_nop 3")
    a("s_lshl_b32 s46, s46, 9")
    a(f"v_add_u32 v{vOff}, s46, v{vSeq}")
    a(f"buffer_load_dwordx4 {vr(RING,4)}, v{vOff}, {sr(sX,4)}, 0 offen")
    a("s_waitcnt vmcnt(0)")
    for j in range(NPW):
        if j < NPW - 1:
            a(f"s_cmp_eq_u32 s45, {16*(j//2) + j%2}")
            a(f"s_cbranch_scc0 S_J{j+1}")
        a(f"v_mfma_f32_16x16x32_bf16 {vr(SA+4*j,4)}, {vr(vA1,4)}, {vr(RING,4)}, {vr(SA+4*j,4)}")
        a("s_nop 7")
        a("s_branch S_IN")
        if j < NPW - 1:
            a.label(f"S_J{j+1}")
    a.label("S_NEXT")
    a("s_add_u32 s41, s41, 256")
    a(f"s_cmp_lt_u32 s41, {E*4}")
    a("s_cbranch_scc1 S_LOOP")
    for j in range(NPW):
        for r in range(4):
            a(f"v_mov_b32 v{vAcc+r}, v{SA+4*j+r}")
        flush()

    a.label("M_GDONE")
    vm.clear(); lg.clear()
    st(4)
    if LATEF:
        a(f"s_mov_b32 s{sPC}, 0")
        a.label("FLG_CHK")
        a("v_cmp_eq_u32 vcc, 0, v63")
        a("s_cmp_lg_u64 vcc, 0")
        a("s_cbranch_scc1 FLG_RETRY")
        a.label("FLG_OK")
    NE = min(4, NBUB + opt.get('early', 2))
    for k in range(NBUB, NE):
        for op in w2_ops(k):
            emit(op)
    ACP = [16, 32, 16, W + 64, W + 72, W + 80]
    BFR = [48, 52, 58, 10]
    vRd = [2, 3, 4, 7, 8, 9, 14, 15]
    vBA, vWr, vRB2, vOut, vBA2 = 1, 57, 62, 5, 6
    tJ, tQ = 48, 49
    PRE = 3
    a(f"v_and_b32 v{tJ}, 15, v{vLane}")
    a(f"v_lshrrev_b32 v{tQ}, 4, v{vLane}")
    a(f"s_lshl_b32 s4, s{sV}, 8")
    a(f"s_add_u32 s4, s4, {BIAS}")
    a(f"v_lshl_add_u32 v{vBA}, v{tQ}, 4, s4")
    def bias_ops(p):
        A = ACP[p]
        if p < 3:
            return [("ds", f"ds_read_b128 {vr(A+4*mt,4)}, v{vBA} offset:{64*mt}", f"bias{p}") for mt in range(4)]
        return [("ds", f"ds_read_b128 {vr(A+4*mt,4)}, v{vBA2} offset:{16*mt}", f"bias{p}") for mt in range(2)]
    for op in bias_ops(0) + bias_ops(1):
        emit(op)
    a(f"s_lshl_b32 s4, s{sRot}, 2")
    a(f"v_xor_b32 v{vRB2}, v{tQ}, v{tJ}")
    a(f"v_xor_b32 v{vRd[0]}, s4, v{vRB2}")
    a(f"v_lshlrev_b32 v{vRd[0]}, 4, v{vRd[0]}")
    a(f"v_lshl_or_b32 v{vRd[0]}, v{tJ}, 9, v{vRd[0]}")
    for k in range(1, 8):
        a(f"v_xor_b32 v{vRd[k]}, {64*k}, v{vRd[0]}")
    a(f"v_lshlrev_b32 v{vRB2}, 4, v{vRB2}")
    a(f"v_lshl_or_b32 v{vRB2}, v{tJ}, 10, v{vRB2}")
    a(f"s_lshl_b32 s4, s{sV}, 3")
    a(f"v_or_b32 v{vWr}, s4, v{tQ}")
    a(f"v_xor_b32 v{vWr}, v{vWr}, v{tJ}")
    a(f"v_lshlrev_b32 v{vWr}, 4, v{vWr}")
    a(f"v_lshl_or_b32 v{vWr}, v{tJ}, 10, v{vWr}")
    a(f"s_lshl_b32 s4, s{sV}, 7")
    a(f"s_add_u32 s4, s4, {BIAS + 2048}")
    a(f"v_lshl_add_u32 v{vBA2}, v{tQ}, 5, s4")
    a("s_lshl_b32 s6, s3, 9")
    a(f"s_lshl_b32 s7, s{sV}, 6")
    a("s_add_u32 s6, s6, s7")
    a(f"v_lshlrev_b32 v{vOut}, 4, v{tQ}")
    a(f"v_lshl_or_b32 v{vOut}, v{tJ}, 9, v{vOut}")
    a(f"v_add_u32 v{vOut}, s6, v{vOut}")
    vR2 = [vRB2, 0, 63, vRd[0]]
    a(f"v_xor_b32 v{vR2[1]}, 64, v{vRB2}")
    a(f"v_xor_b32 v{vR2[2]}, 128, v{vRB2}")
    a("s_waitcnt lgkmcnt(0)")
    lg.clear()
    a("s_barrier")
    st(5)

    steps = [(p, s) for p in range(3) for s in range(8)]
    steps += [(p, s) for h in range(2) for p in (3, 4, 5) for s in range(4 * h, 4 * h + 4)]
    SI = {ps: i for i, ps in enumerate(steps)}
    frags = []
    for i, (p, s) in enumerate(steps):
        frags += [(i, 0)] if p < 3 else [(i, 0), (i, 1)]
    B2R = [32, 36, 40, 44]
    def fbuf(f):
        i, kk = frags[f]
        if i < 24 or kk == 0:
            return BFR[i % 4]
        return B2R[i % 4]
    def rd_op(f):
        i, kk = frags[f]
        p, s = steps[i]
        if p < 3:
            return ("ds", f"ds_read_b128 {vr(fbuf(f),4)}, v{vRd[s]} offset:{HH + p*8192}", f"b_{i}")
        ks = 2 * s + kk
        return ("ds", f"ds_read_b128 {vr(fbuf(f),4)}, v{vR2[ks%4]} offset:{ACT + (p-3)*16384 + (ks//4)*256}", f"b_{i}")
    FI = {fk: f for f, fk in enumerate(frags)}
    def epi_a(p):
        A = ACP[p]
        ops = []
        if p < 3:
            for aa in range(2):
                m = A + 8 * aa
                ops.append(f"v_cvt_pk_bf16_f32 v{m}, v{m}, v{m+1}")
                ops.append(f"v_cvt_pk_bf16_f32 v{m+1}, v{m+2}, v{m+3}")
                ops.append(f"v_cvt_pk_bf16_f32 v{m+2}, v{m+4}, v{m+5}")
                ops.append(f"v_cvt_pk_bf16_f32 v{m+3}, v{m+6}, v{m+7}")
                for x in range(4):
                    ops.append(f"v_pk_max_i16 v{m+x}, v{m+x}, 0")
                if aa == 1:
                    ops.append(f"v_xor_b32 v{m+4}, 64, v{vWr}")
                    ops.append(("ds", f"ds_write_b128 v{m+4}, {vr(m,4)} offset:{ACT + p*16384}", f"aw{p}"))
                else:
                    ops.append(("ds", f"ds_write_b128 v{vWr}, {vr(m,4)} offset:{ACT + p*16384}", f"aw{p}"))
        else:
            if p > 3:
                ops.append(f"v_add_u32 v{vOut}, 8192, v{vOut}")
            for x in range(4):
                ops.append(f"v_cvt_pk_bf16_f32 v{A+x}, v{A+2*x}, v{A+2*x+1}")
            ops.append(("vm", f"buffer_store_dwordx4 {vr(A,4)}, v{vOut}, {sr(sOUT,4)}, 0 offen" + ["", " sc1", " nt", " sc0 sc1", " sc1 nt"][opt.get('ost', 0)], "out"))
        return ops

    G = lambda p, s, mt=0: SI[(p, s)] * 4 + mt
    GI = lambda i, mt=0: i * 4 + mt
    first_rd = lambda p: SI[(p, 0)] - PRE
    done = lambda p: SI[(p, 7)] + 1
    streams = []
    def add(name, ops, start=0, dl=10**9, after=None, pri=0):
        streams.append(dict(name=name, ops=list(ops), start=start, dl=dl, after=after or [], done=None, pri=pri))
    lastw = None
    WSP = opt.get('wsp', 4)
    for k in range(NE, 8):
        for j, o in enumerate(w2_ops(k)):
            nm = f"w{k}_{j}"
            add(nm, [o], 1 if k < 4 else G(2, k - 4, 3), GI(SI[(3, k)] - 2, 3), after=[(lastw, WSP)] if lastw else [], pri=-1000)
            lastw = nm
    last = len(steps) - 1
    add("e0", epi_a(0), G(1, 1, 2), G(1, 6, 3))
    add("bias2", [("wl", "aw0")] + bias_ops(2), 0, G(1, 7, 2), after=[("e0", 1)])
    add("e1", epi_a(1), G(2, 1, 0), GI(first_rd(3) - 1, 1))
    add("bar1", [("bar", ["aw0", "aw1"])], 0, GI(first_rd(3) - 1, 3), after=[("e1", 2)])
    add("a2", [f"v_xor_b32 v{vR2[3]}, 192, v{vRB2}"], G(2, 0, 1), GI(first_rd(3) - 1, 3))
    add("bias3", bias_ops(3) + bias_ops(4), G(2, 5, 1), G(2, 7, 1))
    add("bias5", bias_ops(5), G(2, 6, 1), GI(SI[(5, 0)] - 1, 1))
    add("e2", epi_a(2), G(3, 1, 0), GI(first_rd(5) - 1, 1))
    add("bar2", [("bar", ["aw2"])], 0, GI(first_rd(5) - 1, 3), after=[("e2", 2), ("bar1", 0)])
    add("e3", epi_a(3), GI(done(3) + 1, 2), GI(done(3) + 3, 3))
    add("e4", epi_a(4), GI(done(4) + 1, 2), GI(last, 3), after=[("e3", 0)])
    byname = {s_['name']: s_ for s_ in streams}

    def ready(s_, g, force=False):
        if not s_['ops']:
            return False
        if g < s_['start']:
            return False
        for nm, dly in s_['after']:
            d = byname[nm]['done']
            if d is None or (g < d + dly and not force):
                return False
        return True
    def force_finish(s_, g):
        for nm, _ in s_['after']:
            force_finish(byname[nm], g)
        if s_['ops']:
            assert g >= s_['start'], (s_['name'], g)
            while s_['ops']:
                emit(s_['ops'].pop(0))
            s_['done'] = g
    BUD = opt.get('bud', 3)
    for i in range(PRE):
        emit(rd_op(i))
    segs = None
    if bars_hint is not None and opt.get('mprio', 1):
        pts = [0] + [b + 1 for b in bars_hint] + [len(steps)]
        segs = {}
        for x, y in zip(pts[:-1], pts[1:]):
            L = y - x
            for k in range(4):
                segs[x + k * L // 4] = 3 - k
    for i, (p, s) in enumerate(steps):
        cur_q[0] = i
        if segs and i in segs:
            a(f"s_setprio {segs[i]}")
        tags = [f"b_{i}"]
        if s == 0:
            tags.append(f"bias{p}")
        wait(vtag=f"w2_{s}" if p == 3 else None, ltag=tags)
        for mt in range(4):
            g = i * 4 + mt
            if p < 3:
                A = ACP[p] + 4 * mt
                a(f"v_mfma_f32_16x16x32_bf16 {vr(A,4)}, {vr(W+16*s+4*mt,4)}, {vr(fbuf(FI[(i,0)]),4)}, {vr(A,4)}")
            else:
                A = ACP[p] + 4 * (mt % 2)
                a(f"v_mfma_f32_16x16x32_bf16 {vr(A,4)}, {vr(w2reg(s)+4*mt,4)}, {vr(fbuf(FI[(i,mt//2)]),4)}, {vr(A,4)}")
            B_ = opt.get('bud23', 4) if 16 <= i < 32 else BUD
            bud = (B_ + (g % 2)) // 2
            if mt == 3:
                bud = min(bud, opt.get('bud3', 1))
            if mt in (0, 2) and (i + PRE, mt // 2) in FI:
                bud -= emit(rd_op(FI[(i + PRE, mt // 2)]))
            while bud > 0:
                cand = [s_ for s_ in streams if ready(s_, g)]
                if not cand:
                    break
                s_ = min(cand, key=lambda z: z['dl'] - len(z['ops']) + z['pri'])
                bud -= emit(s_['ops'].pop(0))
                if not s_['ops']:
                    s_['done'] = g
            for s_ in streams:
                if s_['ops'] and s_['dl'] <= g:
                    if opt.get('verbose'):
                        print("forced", s_['name'], len(s_['ops']), "ops at", p, s, mt, file=sys.stderr)
                    force_finish(s_, g)
        if p == 2 and s == 7:
            st(6)
    assert all(not s_['ops'] for s_ in streams)
    st(10)
    a("s_nop 6")
    for op in epi_a(5):
        emit(op)
    if opt.get('lst'):
        a("s_waitcnt vmcnt(0)")
        a(("s_memrealtime" if not opt.get('cyc') else "s_memtime") + " s[40:41]")
        srd(a, 76, 100, 0x1000000)
        a("s_lshl_b32 s42, s2, 4")
        a(f"s_add_u32 s42, s42, s{sW}")
        a("s_lshl_b32 s42, s42, 7")
        a(f"s_add_u32 s42, s42, {STAMP_OFF}")
        a("v_mov_b32 v9, s42")
        a("s_waitcnt lgkmcnt(0)")
        a("s_mov_b64 exec, 1")
        for idx, r in list(LST.items()) + [(7, 40)]:
            a(f"v_mov_b32 v14, s{r}")
            a(f"v_mov_b32 v15, s{r+1}")
            a(f"buffer_store_dwordx2 v[14:15], v9, s[76:79], 0 offen offset:{idx*8}")
    if STAMP:
        a("s_waitcnt vmcnt(0)")
        st(7)
    if opt.get('amp') is not None:
        a("s_waitcnt vmcnt(0)")
        st(7)
        if opt.get('ampf'):
            a("s_mov_b32 s98, s94")
        a("s_sub_u32 s99, s99, s98")
        a("s_lshl_b32 s99, s99, 3")
        a("s_min_u32 s99, s99, 100000")
        a("s_memrealtime s[96:97]")
        a("s_waitcnt lgkmcnt(0)")
        a("s_mov_b32 s98, s96")
        a.label("AMP_L")
        a("s_sleep 2")
        a("s_memrealtime s[96:97]")
        a("s_waitcnt lgkmcnt(0)")
        a("s_sub_u32 s96, s96, s98")
        a("s_cmp_lt_u32 s96, s99")
        a("s_cbranch_scc1 AMP_L")
    a("s_endpgm")

    a.label("AUX")
    aux[0] = True
    vm.clear(); lg.clear()
    a("s_memrealtime s[96:97]")
    a(f"s_and_b32 s{sA}, s2, 7")
    a(f"s_mul_i32 s{sPI}, s{sA}, 5000")
    a(f"s_lshr_b32 s{sB}, s2, 3")
    a("s_waitcnt lgkmcnt(0)")
    if opt.get('stouch', 0):
        a("s_load_dword s40, s[78:79], 0")
        a("s_load_dword s41, s[100:101], 0xffffc")
        a("s_load_dword s42, s[6:7], 0xfc")
    srd(a, sX, 76, N * 512)

    def xpf(first, stride, n, vd):
        for r in range(n):
            a(f"v_add_u32 v{vT0}, {first + r*stride}, v{vSeq}")
            a(f"v_subrev_u32 v{vT1}, 40000, v{vT0}")
            a(f"v_min_u32 v{vT0}, v{vT0}, v{vT1}")
            a(f"v_lshlrev_b32 v{vT0}, 7, v{vT0}")
            a(f"buffer_load_dword v{vd+r}, v{vT0}, {sr(sX,4)}, 0 offen")

    a(f"s_cmp_lt_u32 s2, {NPROD}")
    a("s_cbranch_scc1 PROD")
    stamp_setup()
    st(0)
    a(f"s_sub_u32 s{sB}, s{sB}, 4")
    a(f"s_lshl_b32 s{sB}, s{sB}, 9")
    a(f"s_add_u32 s{sPI}, s{sPI}, s{sB}")
    a(f"v_add_u32 v{vSeq}, s{sPI}, v0")
    a(f"s_sub_u32 s{sId}, s2, {NPROD}")
    a(f"s_cmp_lt_u32 s{sId}, {NW2H}")
    a("s_cbranch_scc0 H_PF")
    srd(a, sW2, 88, 256 * 1024)
    srd(a, sDBG, 6, 256)
    srd(a, sWS, 100, WS_BYTES)
    a(f"s_lshl_b32 s{sWB}, s{sW}, 12")
    w2_addr(sW, vS2, [(vTB, sWB)])
    a(f"s_lshl_b32 s{sA}, s{sId}, 15")
    for i in range(4):
        a(f"s_add_u32 m0, s{sWB}, {i*1024}")
        a(f"s_add_u32 s45, s{sA}, {i*8192}")
        a(f"buffer_load_dwordx4 v{vS2}, {sr(sW2,4)}, s45 offen lds")
    a(f"s_lshl_b32 s{sA}, s{sW}, 15")
    a(f"s_lshl_b32 s45, s{sId}, 12")
    a(f"s_add_u32 s{sA}, s{sA}, s45")
    a(f"s_add_u32 s{sA}, s{sA}, {W2F}")
    a(f"v_lshl_add_u32 v{vOff}, v{vLane}, 4, s{sA}")
    a("s_waitcnt vmcnt(0)")
    for op in tr_w2_ops(64, vTB, 0, "h", None):
        a(op[1])
    a("s_waitcnt lgkmcnt(0)")
    for mt in range(4):
        a(f"buffer_store_dwordx4 {vr(64+4*mt,4)}, v{vOff}, {sr(sWS,4)}, 0 offen offset:{mt*1024} sc1")
    a("s_waitcnt vmcnt(0)")
    a("s_barrier")
    a(f"s_cmp_eq_u32 s{sW}, 0")
    a("s_cbranch_scc0 H_PF")
    a(f"s_lshl_b32 s{sA}, s{sId}, 2")
    a(f"v_mov_b32 v{vT1}, s{sA}")
    a(f"v_mov_b32 v{vT0}, 1")
    a("s_mov_b64 exec, 1")
    a(f"buffer_store_dword v{vT0}, v{vT1}, {sr(sDBG,4)}, 0 offen offset:128 sc1")
    a("s_mov_b64 exec, -1")
    st(12)
    a.label("H_PF")
    xpf(0, 1024, NH, 16)
    if STAMP:
        a("s_waitcnt vmcnt(0)")
        st(13)
    a("s_endpgm")
    a.label("PROD")
    if not opt.get('pfast', 1):
        srd(a, sDST, 80, E * 4)
        srd(a, sSRC, 78, E * 4)
        a(f"s_mul_i32 s{sA}, s2, {CH*4}")
        a(f"s_add_u32 s40, s{sA}, 8192")
        a(f"s_add_u32 s41, s{sA}, 16384")
        a(f"buffer_load_dwordx4 {vr(16,4)}, v{vT16}, {sr(sDST,4)}, s{sA} offen")
        a(f"buffer_load_dwordx4 {vr(24,4)}, v{vT16}, {sr(sDST,4)}, s40 offen")
        a(f"s_cmp_lt_u32 s{sW}, 4")
        a("s_cbranch_scc0 P_E2")
        a(f"buffer_load_dwordx4 {vr(32,4)}, v{vT16}, {sr(sDST,4)}, s41 offen")
        a(f"buffer_load_dwordx4 {vr(36,4)}, v{vT16}, {sr(sSRC,4)}, s41 offen")
        a.label("P_E2")
        a(f"buffer_load_dwordx4 {vr(20,4)}, v{vT16}, {sr(sSRC,4)}, s{sA} offen")
        a(f"buffer_load_dwordx4 {vr(28,4)}, v{vT16}, {sr(sSRC,4)}, s40 offen")
    vm.issue("dst")
    vm.issue("edges")
    srd(a, sDBG, 6, 256)
    srd(a, sWS, 100, CELLS_BYTES)
    a("v_lshrrev_b32 v46, 3, v0")
    a("v_and_b32 v47, 7, v0")
    a("v_lshlrev_b32 v50, 13, v46")
    a("v_lshl_or_b32 v50, v47, 4, v50")
    a(f"s_lshl_b32 s4, s2, 7")
    a(f"v_add_u32 v50, s4, v50")
    if opt.get('vtouch', 0):
        srd(a, sW1, 100, WS_BYTES)
        a(f"s_cmp_eq_u32 s{sW}, 6")
        a("s_cbranch_scc0 P_VT")
        a(f"v_mov_b32 v{vT0}, 0x1f0000")
        a(f"buffer_load_dword v60, v{vT0}, {sr(sW1,4)}, 0 offen")
        a.label("P_VT")
    vm.issue("edges")
    a(f"s_lshr_b32 s{sNode}, s96, 8")
    a(f"s_or_b32 s{sNode}, s{sNode}, 1")
    a(f"v_mov_b32 v51, {NONCE}")
    a(f"s_cmp_eq_u32 s{sW}, 7")
    a("s_cbranch_scc0 P_N1")
    a(f"v_mov_b32 v{vT0}, s{sNode}")
    a(f"s_lshl_b32 s4, s2, 2")
    a(f"v_mov_b32 v{vT1}, s4")
    a("s_mov_b64 exec, 1")
    a(f"buffer_store_dword v{vT0}, v{vT1}, {sr(sDBG,4)}, 0 offen sc1")
    a(f"ds_write_b32 v51, v{vT0}")
    a("s_mov_b64 exec, -1")
    a.label("P_N1")
    stamp_setup()
    st(0)
    a(f"v_mov_b32 v40, {EMPTY}")
    a("v_mov_b32 v41, v40")
    a("v_mov_b32 v42, v40")
    a("v_mov_b32 v43, v40")
    a(f"s_movk_i32 s4, {CST}")
    a(f"v_mov_b32 v55, {IMG}")
    a("v_mad_u32_u24 v56, v46, s4, v55")
    a("v_lshl_add_u32 v48, v47, 4, v56")
    a(f"v_add_u32 v49, {128*CST}, v48")
    def cp(i):
        return (48 + i // 2, (i % 2) * 64 * CST)
    for i in range(4):
        r, o = cp(i)
        a(f"ds_write_b128 v{r}, v[40:43] offset:{o}")
        a(f"ds_write_b128 v{r}, v[40:43] offset:{o + 128}")
    a(f"v_and_b32 v{vT0}, 255, v0")
    a(f"v_mad_u32_u24 v{vT1}, v{vT0}, s4, v55")
    a(f"v_lshlrev_b32 v{vT0}, 2, v{vT0}")
    a(f"ds_write_b32 v{vT0}, v{vT1} offset:{PCNT}")
    a("v_mov_b32 v44, 4")
    a(f"s_mov_b32 s{sT}, {-(48 << 14) & 0xffffffff}")
    a("v_lshlrev_b32 v45, 2, v46")
    a(f"v_mov_b32 v52, {MARK}")
    a(f"s_mov_b32 s{sA}, 43691")
    a(f"s_lshl_b32 s{sB}, s{sB}, 9")
    a(f"s_add_u32 s{sPI}, s{sPI}, s{sB}")
    a(f"v_add_u32 v{vSeq}, s{sPI}, v0")
    for i in range(4):
        a(f"v_add_u32 v{72+i}, {i*64*8192}, v50")
        a(f"v_add_u32 v{76+i}, {i*64*CST + 128}, v56")
    a(f"v_lshlrev_b32 v{vT0}, 2, v{vLane}")
    a(f"v_mad_u32_u24 v80, v{vT0}, s4, v55")
    a("v_add_u32 v80, 512, v80")
    a(f"v_lshlrev_b32 v84, 4, v{vLane}")
    a("s_waitcnt lgkmcnt(0)")
    a("s_barrier")
    a("ds_read_b32 v53, v51")
    a("s_waitcnt lgkmcnt(0)")
    a("v_lshlrev_b32 v53, 8, v53")
    if opt.get('ppf0', 0):
        xpf(NH * 1024 + NP * 2048, 2048, 1, 60)
        vm.issue("pf0")
    def w7(tag, k):
        n_ = vm.need(tag)
        a(f"s_cmp_eq_u32 s{sW}, 7")
        a(f"s_cbranch_scc1 P_W7{k}")
        a(f"s_waitcnt vmcnt({n_})")
        a.label(f"P_W7{k}")
        a(f"s_waitcnt vmcnt({n_ + 1})")
    w7("dst", 0)
    st(14)
    def bin_a(r):
        vd, vs, vb, va = 16 + 8 * r, 20 + 8 * r, 192 + 4 * r, 204 + 4 * r
        for k in range(4):
            a(f"v_mul_u32_u24 v{vb+k}, s{sA}, v{vd+k}")
            a(f"v_lshrrev_b32 v{vb+k}, 21, v{vb+k}")
            a(f"v_lshlrev_b32 v{va+k}, 2, v{vb+k}")
            a(f"ds_add_rtn_u32 v{va+k}, v{va+k}, v44 offset:{PCNT}")
    def bin_a2(r):
        vd, vs, vb, va = 16 + 8 * r, 20 + 8 * r, 192 + 4 * r, 204 + 4 * r
        for k in range(4):
            a(f"v_lshl_or_b32 v{vs+k}, v{vd+k}, 14, v{vs+k}")
            a(f"v_mad_i32_i24 v{vs+k}, v{vb+k}, s{sT}, v{vs+k}")
    def bin_b(r):
        vd, vs, vb, va = 16 + 8 * r, 20 + 8 * r, 192 + 4 * r, 204 + 4 * r
        for k in range(4):
            a(f"ds_write_b32 v{va+k}, v{vs+k}")
    bin_a(0)
    bin_a(1)
    a(f"s_cmp_lt_u32 s{sW}, 4")
    a("s_cbranch_scc0 P_R2")
    a(f"v_cmp_gt_u32 vcc, {CH//4 - 1024}, v0")
    a("s_and_saveexec_b64 s[4:5], vcc")
    bin_a(2)
    bin_a2(2)
    a("s_waitcnt lgkmcnt(0)")
    bin_b(2)
    a("s_mov_b64 exec, s[4:5]")
    a.label("P_R2")
    w7("edges", 1)
    bin_a2(0)
    bin_a2(1)
    a("s_waitcnt lgkmcnt(0)")
    bin_b(0)
    bin_b(1)
    a("s_waitcnt lgkmcnt(0)")
    a("s_barrier")
    st(15)
    a(f"ds_read_b128 v[88:91], v84 offset:{PCNT}")
    lg.issue("all")
    for i in range(4):
        r, o = cp(i)
        a(f"ds_read_b128 {vr(128+4*i,4)}, v{r} offset:{o}")
        lg.issue(f"c{i}")
    for i in range(4):
        r, o = cp(i)
        a(f"ds_read_b32 v{64+i}, v45 offset:{PCNT + i*256}")
        lg.issue(f"n{i}")
        a(f"ds_read_b128 {vr(144+4*i,4)}, v{r} offset:{o + 128}")
        lg.issue(f"d{i}")
    def pack(d):
        a(f"v_lshl_or_b32 v{d}, v{d+1}, 20, v{d}")
        a(f"v_lshrrev_b32 v{d+1}, 12, v{d+1}")
        a(f"v_or_b32 v{d+1}, v53, v{d+1}")
        a(f"v_lshl_or_b32 v{d+2}, v{d+3}, 20, v{d+2}")
        a(f"v_lshrrev_b32 v{d+3}, 12, v{d+3}")
        a(f"v_or_b32 v{d+3}, v53, v{d+3}")
    wait(ltag="all")
    for k in range(1, 4):
        a(f"v_subrev_u32 v{88+k}, {k*CST}, v{88+k}")
    a("v_max3_u32 v88, v88, v89, v90")
    a("v_max_u32 v88, v88, v91")
    a("v_cmp_gt_u32 vcc, v88, v80")
    a("s_cmp_lg_u64 vcc, 0")
    a("s_cbranch_scc1 P_OVF")
    a.label("P_OVR")
    for i in range(4):
        wait(ltag=f"c{i}")
        pack(128 + 4 * i)
        a(f"buffer_store_dwordx4 {vr(128+4*i,4)}, v{72+i}, {sr(sWS,4)}, 0 offen sc1")
    a("s_movk_i32 s6, 0x1000")
    for i in range(4):
        d = 144 + 4 * i
        wait(ltag=f"d{i}")
        a(f"v_cmp_le_u32 vcc, v{76+i}, v{64+i}")
        a("s_and_b64 exec, exec, vcc")
        a(f"s_cbranch_scc0 P_SK{i}")
        a(f"v_add_u32 v{76+i}, 128, v{76+i}")
        a(f"v_cmp_lt_u32 vcc, v{76+i}, v{64+i}")
        a("s_nop 1")
        a(f"v_cndmask_b32 v{d}, v{d}, v52, vcc")
        pack(d)
        a(f"buffer_store_dwordx4 {vr(d,4)}, v{72+i}, {sr(sWS,4)}, s6 offen sc1")
        a.label(f"P_SK{i}")
        a("s_mov_b64 exec, -1")
    if STAMP:
        st(1)
        a("s_waitcnt vmcnt(0)")
        st(2)
    a("s_barrier")
    if opt.get('ftouch', 1):
        srd(a, sW1, 100, WS_BYTES)
        a(f"v_and_b32 v{vT0}, {NW2H-1}, v{vLane}")
        a(f"v_lshlrev_b32 v{vT0}, 2, v{vT0}")
        a(f"buffer_load_dword v{vT1}, v{vT0}, {sr(sDBG,4)}, 0 offen offset:128 sc1")
        a(f"s_lshr_b32 s4, s2, 3")
        a("s_lshl_b32 s4, s4, 16")
        a(f"s_add_u32 s4, s4, {W2F}")
        a(f"v_lshlrev_b32 v{vT0}, 7, v0")
        a("s_waitcnt vmcnt(0)")
        a(f"v_cmp_eq_u32 vcc, 0, v{vT1}")
        a("s_cmp_lg_u64 vcc, 0")
        a("s_cbranch_scc1 P_NT")
        a(f"buffer_load_dword v60, v{vT0}, {sr(sW1,4)}, s4 offen sc1")
        a.label("P_NT")
    xpf(NH * 1024, 2048, NP, 16)
    if STAMP:
        a("s_waitcnt vmcnt(0)")
        st(13)
    a("s_endpgm")
    a.label("P_OVF")
    a("s_waitcnt lgkmcnt(0)")
    for i in range(4):
        a(f"v_mov_b32 v{128+4*i}, v52")
        a(f"v_mov_b32 v{64+i}, -1")
    a("s_branch P_OVR")
    a.label("M_END")
    a("s_endpgm")
    return LDS_TOTAL, bars


DOC = """
GIN layer, one fused kernel (generated by gen/gen21.py).  256 workgroups of 8 waves, one per CU:
  ids  0..31  producers : bin 5000 edges each by 48-node destination block (LDS counting), publish
              fixed-capacity cells in d_ws as 8-byte granules {2 x 20-bit entry, 24-bit launch tag}
              with sc1 stores; the tag is announced in d_debug[id].  Afterwards: L2 prefetch of x.
  ids 32..46  helpers   : 32..39 re-lay W2 into MFMA fragment order in d_ws (sc1 stores, drained,
              flag in d_debug[32+h]); all of them prefetch x into L2.
  ids 47..255 consumers : 48 nodes each.  W1 -> registers via LDS-DMA + transposing LDS reads,
              poll + sort their cells into per-node lists, gather x rows (two rows per load, summed
              in fp32 by one MFMA against a 0/1 selection matrix, self row scaled by bf16(1+eps)),
              then GEMM1 (+b1, relu) and GEMM2 (+b2) with bf16 MFMA.
  Any capacity overflow or hand-off timeout falls back to an exact scan of src/dst.
"""

def build(opt):
    name = "gather_scatter__isomorphism_gin_2__graph_kernel"
    _, bars = gen_main(Asm(), dict(opt, verbose=0), name)
    b = Asm()
    lds, bars2 = gen_main(b, opt, name, bars)
    assert bars == bars2
    a = Asm()
    a.raw(HEADER.rstrip())
    a.raw(f"; @launch grid=(256,1,1) block=(512,1,1) lds={lds}")
    a.raw('.amdgcn_target "amdgcn-amd-amdhsa--gfx950"')
    for l in DOC.strip().split("\n"):
        a.raw("; " + l)
    a.raw(".text")
    a.l += b.l
    a.raw('.section .rodata,"a"')
    a.raw(kd(name, 256, 102))
    return a.text()

if __name__ == "__main__":
    out = sys.argv[1]
    opt = {}
    for kv in sys.argv[2:]:
        k, v = kv.split("=")
        opt[k] = int(v)
    open(out, "w").write(build(opt))
```

```python
import sys
from gen2 import Asm, Ctr, vr, sr, srd, kd, HEADER

N = 10000
E = 160000
BN = 48
NBLK = 209
NPROD = 32
NHELP = 15
C0 = NPROD + NHELP
CH = E // NPROD
CELLS_BYTES = NBLK * 8192
W2F = 0x200000
WS_BYTES = W2F + 0x40000
STAMP_OFF = 0x400000
EMPTY = 63 << 14
MARK = 62 << 14
NW2H = 8
NPW = 6


def gen_main(a, opt, name, bars_hint=None):
    D = opt.get('depth', 8)
    NH = opt.get('nh', 8)
    NP = opt.get('np', 4)
    STAMP = opt.get('stamp')
    assert D <= 16
    HH = 0
    ACT = 24576
    WST = 73728
    LIST = 65536
    CNT = LIST + 6144
    FLAG = CNT + 56 * 4
    BIAS = WST + 65536
    LDS_TOTAL = BIAS + 3072
    IMG = 2048
    PCNT = 0
    NONCE = 1024
    CST = 528
    vLane, vC16, vSh, vSeq, vT0, vT1, vOff, vFl = 1, 2, 3, 4, 5, 6, 7, 8
    vAcc = 10
    RING = 16
    vA1, vAS = 48, 52
    RS = lambda s: RING + 4 * s if s < 8 else 68 + 4 * (s - 8)
    vS2, vT16, vLB, vTB = 56, 57, 58, 63
    W2R = 64
    vSF, vAH = 112, 124
    W = 128
    vS1 = 16
    vTR = 20
    vTR2 = 29
    vBI = 44
    sX, sWS, sOUT, sSRC, sDST, sB1, sB2, sW1, sW2, sDBG = 8, 12, 16, 20, 24, 28, 32, 64, 68, 72
    sW, sWB, sA, sB = 36, 37, 38, 39
    sLB, sRot, sWL, sV = 46, 47, 48, 49
    sPC, sPI, sT, sXor, sNode, sId = 50, 51, 52, 53, 54, 55
    sMask = 56
    sM = 76
    sST = 92

    vm = Ctr(63)
    lg = Ctr(15)
    aux = [False]

    LST = {0: 98, 1: 96, 2: 94, 3: 92, 4: 90, 5: 88, 6: 86, 10: 84}
    def st(idx):
        if opt.get('lst') and not aux[0]:
            if idx in LST:
                a(("s_memrealtime" if not opt.get('cyc') else "s_memtime") + f" {sr(LST[idx],2)}")
            return
        amp = opt.get('amp')
        pamp = opt.get('pamp')
        if pamp is not None and aux[0] and (idx == 0 or idx == pamp):
            a("s_memrealtime s[94:95]")
            a("s_waitcnt lgkmcnt(0)")
            lg.clear()
            a(f"s_mov_b32 s{98 if idx == 0 else 99}, s94")
        if amp is not None and not aux[0]:
            if (idx == 0 and not opt.get('ampf')) or idx == amp:
                a("s_memrealtime s[96:97]")
                a("s_waitcnt lgkmcnt(0)")
                lg.clear()
                a(f"s_mov_b32 s{98 if idx == 0 else 99}, s96")
                if amp == 30:
                    a("s_mov_b32 s99, s96")
                    a("s_mov_b32 s98, s94")
            if idx == 2 and amp in (20, 21):
                for i in range(4):
                    a(f"v_readlane_b32 s{92+i}, v40, {16*i}")
                a("s_nop 3")
                op = "s_min_u32" if amp == 20 else "s_max_u32"
                a(f"{op} s92, s92, s93")
                a(f"{op} s94, s94, s95")
                a(f"{op} s92, s92, s94")
                if amp == 20:
                    a("s_mov_b32 s99, s98")
                    a("s_min_u32 s98, s92, s98")
                else:
                    a("s_max_u32 s99, s92, s98")
        if STAMP and (opt.get('stmask', 0xffff) >> idx) & 1:
            a("s_memrealtime s[96:97]" if not opt.get('cyc') else "s_memtime s[96:97]")
            a("s_waitcnt lgkmcnt(0)")
            lg.clear()
            a("v_mov_b32 v14, s96")
            a("v_mov_b32 v15, s97")
            a("s_mov_b64 s[98:99], exec")
            a("s_mov_b64 exec, 1")
            a(f"buffer_store_dwordx2 v[14:15], v9, {sr(sST,4)}, 0 offen offset:{idx*8}")
            vm.issue('st')
            a("s_mov_b64 exec, s[98:99]")

    def wait(vtag=None, ltag=None):
        p = []
        if vtag is not None:
            n = vm.need(vtag)
            if n is not None:
                p.append(f"vmcnt({n})")
        if ltag is not None:
            tags = ltag if isinstance(ltag, (list, tuple)) else [ltag]
            ns = [lg.need(t) for t in tags]
            ns = [n for n in ns if n is not None]
            if ns:
                p.append(f"lgkmcnt({min(ns)})")
        if p:
            a("s_waitcnt " + " ".join(p))
            return True
        return False

    def stamp_setup():
        if STAMP:
            srd(a, sST, 100, 0x1000000)
            a("s_lshl_b32 s96, s2, 4")
            a(f"s_add_u32 s96, s96, s{sW}")
            a("s_lshl_b32 s96, s96, 7")
            a(f"s_add_u32 s96, s96, {STAMP_OFF}")
            a("v_mov_b32 v9, s96")

    a.raw(f".globl {name}")
    a.raw(".p2align 8")
    a.raw(f".type {name},@function")
    a.label(name)
    if opt.get('amp') == 30 or opt.get('ampf'):
        a("s_memrealtime s[94:95]")
    a("s_cmp_ge_u32 s2, 256")
    a("s_cbranch_scc1 M_END")
    a("s_load_dwordx16 s[76:91], s[0:1], 0")
    a("s_load_dwordx4 s[4:7], s[0:1], 64")
    a("s_load_dwordx2 s[100:101], s[0:1], 80")
    a(f"v_and_b32 v{vLane}, 63, v0")
    a(f"v_lshrrev_b32 v{vT0}, 6, v0")
    a(f"v_lshlrev_b32 v{vT16}, 4, v0")
    a(f"v_readfirstlane_b32 s{sW}, v{vT0}")
    if opt.get('pfast', 1):
        a(f"s_cmp_lt_u32 s2, {NPROD}")
        a("s_cbranch_scc0 NOTP")
        a(f"s_mul_i32 s{sA}, s2, {CH*4}")
        a(f"s_add_u32 s40, s{sA}, 8192")
        a(f"s_add_u32 s41, s{sA}, 16384")
        for d in (sDST, sSRC):
            a(f"s_mov_b32 s{d+2}, {E*4}")
            a(f"s_mov_b32 s{d+3}, 0x00020000")
        a("s_waitcnt lgkmcnt(0)")
        a(f"s_mov_b32 s{sDST}, s80")
        a(f"s_and_b32 s{sDST+1}, s81, 0xffff")
        a(f"buffer_load_dwordx4 {vr(16,4)}, v{vT16}, {sr(sDST,4)}, s{sA} offen")
        a(f"buffer_load_dwordx4 {vr(24,4)}, v{vT16}, {sr(sDST,4)}, s40 offen")
        a(f"s_mov_b32 s{sSRC}, s78")
        a(f"s_and_b32 s{sSRC+1}, s79, 0xffff")
        a(f"s_cmp_lt_u32 s{sW}, 4")
        a("s_cbranch_scc0 P_E2")
        a(f"buffer_load_dwordx4 {vr(32,4)}, v{vT16}, {sr(sDST,4)}, s41 offen")
        a(f"buffer_load_dwordx4 {vr(36,4)}, v{vT16}, {sr(sSRC,4)}, s41 offen")
        a.label("P_E2")
        a(f"buffer_load_dwordx4 {vr(20,4)}, v{vT16}, {sr(sSRC,4)}, s{sA} offen")
        a(f"buffer_load_dwordx4 {vr(28,4)}, v{vT16}, {sr(sSRC,4)}, s40 offen")
        a("s_branch AUX")
        a.label("NOTP")
    a(f"s_cmp_lt_u32 s2, {C0}")
    if opt.get('cpre', 0):
        a("s_cbranch_scc0 CONS")
        a("s_getpc_b64 s[40:41]")
        a(f"v_lshlrev_b32 v{vT0}, 7, v0")
        a(f"v_cmp_gt_u32 vcc, {opt['cpre']}, v0")
        a("s_and_saveexec_b64 s[42:43], vcc")
        a("s_cbranch_execz CP_SK")
        a(f"global_load_dword v61, v{vT0}, s[40:41]")
        a.label("CP_SK")
        a("s_mov_b64 exec, s[42:43]")
        a("s_branch AUX")
        a.label("CONS")
    else:
        a("s_cbranch_scc1 AUX")

    a(f"s_sub_u32 s3, s2, {C0}")
    a(f"s_lshl_b32 s{sLB}, s3, 13")
    a(f"s_mul_i32 s3, s3, {BN}")
    a(f"v_mov_b32 v{vLB}, {LIST}")
    a("v_cmp_gt_u32 vcc, 384, v0")
    a(f"v_add_u32 v{vOff}, v{vLB}, v{vT16}")
    a("s_nop 0")
    a("v_cndmask_b32 v36, 0, -1, vcc")
    a("v_mov_b32 v37, v36")
    a("v_mov_b32 v38, v36")
    a("v_mov_b32 v39, v36")
    a(f"ds_write_b128 v{vOff}, v[36:39]")
    a(f"s_lshr_b32 s{sRot}, s2, 3")
    a(f"s_and_b32 s{sRot}, s{sRot}, 7")
    a(f"s_lshr_b32 s{sV}, s2, 4")
    a(f"s_and_b32 s{sV}, s{sV}, 4")
    a(f"s_and_b32 s{sA}, s{sRot}, 3")
    a(f"s_or_b32 s{sV}, s{sV}, s{sA}")
    a(f"s_xor_b32 s{sV}, s{sW}, s{sV}")
    a(f"v_bfe_u32 v{vT0}, v{vLane}, 1, 2")
    a(f"v_bfe_u32 v{vT1}, v{vLane}, 4, 1")
    a(f"v_xor_b32 v{vT0}, v{vT0}, v{vT1}")
    a(f"v_lshrrev_b32 v{vT1}, 3, v{vLane}")
    a(f"v_lshlrev_b32 v{vT1}, 10, v{vT1}")
    a(f"v_and_b32 v{vOff}, 1, v{vLane}")
    a(f"v_lshl_or_b32 v{vT1}, v{vOff}, 4, v{vT1}")
    a(f"s_lshl_b32 s{sA}, s{sV}, 7")
    a(f"v_or_b32 v{vT1}, s{sA}, v{vT1}")
    a(f"v_lshl_or_b32 v{vS1}, v{vT0}, 5, v{vT1}")
    a(f"v_xor_b32 v{vS1+1}, 64, v{vS1}")
    a(f"s_lshl_b32 s{sWL}, s{sW}, 13")
    a(f"s_add_u32 s{sWB}, s{sWL}, {WST}")
    a(f"s_lshl_b32 s{sB}, s{sRot}, 15")
    a("s_waitcnt lgkmcnt(0)")
    srd(a, sW1, 84, 256 * 1024)
    B1AT = opt.get('b1at', 0)
    if B1AT == 0:
        a("s_barrier")

    def slot_base(sl):
        return (sWB if sl < 2 else sWL), (sl % 2) * 4096

    def dma_unit(u):
        sb, off = slot_base(u % 4)
        for i in range(4):
            a(f"s_add_u32 m0, s{sb}, {off + i * 1024}")
            if u < 8:
                a(f"s_xor_b32 s{sA}, s{sB}, {(u * 32 + i * 8) * 1024}")
                a(f"buffer_load_dwordx4 v{vS1 + i % 2}, {sr(sW1,4)}, s{sA} offen lds")
            else:
                a(f"s_mov_b32 s{sA}, {((u - 8) * 64 + i * 16) * 512}")
                a(f"buffer_load_dwordx4 v{vN2}, {sr(sW2,4)}, s{sA} offen lds")
            vm.issue(f"u{u}")

    NR = opt.get('nr', 2)
    NU = 8 + NR
    vN2 = 28
    NBUB = opt.get('nb', 2)
    NINF = opt.get('ninf', 3)
    PPRIO = opt.get('pprio', 1)
    stamp_setup()
    st(0)
    if opt.get('dly_c'):
        a(f"s_sleep {opt['dly_c']}")
    if PPRIO:
        a("s_setprio 3")
    dma_unit(0)
    if B1AT == 1:
        a("s_barrier")
    if PPRIO:
        a("s_setprio 2")
    a("s_load_dword s45, s[82:83], 0")
    SPF = opt.get('spf', 0)
    if SPF:
        a("s_and_b32 s40, s2, 7")
        a("s_mul_i32 s40, s40, 5000")
        a("s_lshr_b32 s41, s2, 3")
        a("s_lshl_b32 s41, s41, 3")
        a(f"s_add_u32 s41, s41, s{sW}")
        a(f"s_mul_i32 s41, s41, {SPF}")
        a("s_add_u32 s40, s40, s41")
        a(f"s_add_u32 s40, s40, {NH * 1024 + NP * 2048 - 40 * SPF}")
        a(f"s_sub_u32 s41, s40, {40000 - SPF}")
        a("s_min_u32 s40, s40, s41")
        a("s_lshl_b32 s40, s40, 7")
        a("s_add_u32 s40, s76, s40")
        a("s_addc_u32 s41, s77, 0")
        for r in range(SPF):
            a(f"s_load_dword s42, s[40:41], {128 * r}")
    for u in range(1, NINF):
        dma_unit(u)
    srd(a, sB1, 86, 1024)
    srd(a, sB2, 90, 512)
    a(f"v_lshlrev_b32 v{vC16}, 4, v{vLane}")
    a(f"s_cmp_eq_u32 s{sW}, 2")
    a("s_cbranch_scc0 C_SL2")
    a(f"buffer_load_dwordx4 {vr(vBI,4)}, v{vC16}, {sr(sB1,4)}, 0 offen")
    a.label("C_SL2")
    a(f"s_cmp_eq_u32 s{sW}, 3")
    a("s_cbranch_scc0 C_SL3")
    a(f"buffer_load_dwordx4 {vr(vBI,4)}, v{vC16}, {sr(sB2,4)}, 0 offen")
    a.label("C_SL3")
    a(f"v_lshrrev_b32 v{vT0}, 4, v{vLane}")
    a(f"v_lshlrev_b32 v{vT0}, 10, v{vT0}")
    a(f"v_bfe_u32 v{vT1}, v{vLane}, 2, 2")
    a(f"v_lshl_or_b32 v{vT0}, v{vT1}, 7, v{vT0}")
    a(f"v_and_b32 v{vT1}, 3, v{vLane}")
    a(f"v_lshl_or_b32 v{vT0}, v{vT1}, 3, v{vT0}")
    a(f"v_bfe_u32 v{vT1}, v{vLane}, 3, 2")
    for mt in range(4):
        a(f"v_xor_b32 v{vOff}, {mt}, v{vT1}")
        a(f"v_lshl_add_u32 v{vOff}, v{vOff}, 5, v{vT0}")
        a(f"v_add_u32 v{vTR+mt}, s{sWB}, v{vOff}")
        a(f"v_add_u32 v{vTR+4+mt}, s{sWL}, v{vOff}")

    def w2_addr(sLW, vsrc, vtb_list):
        a(f"v_lshrrev_b32 v{vT0}, 2, v{vLane}")
        a(f"v_lshlrev_b32 v{vT0}, 9, v{vT0}")
        a(f"v_and_b32 v{vT1}, 3, v{vLane}")
        a(f"v_lshl_or_b32 v{vT0}, v{vT1}, 4, v{vT0}")
        a(f"s_lshl_b32 s{sA}, s{sLW}, 6")
        a(f"v_or_b32 v{vsrc}, s{sA}, v{vT0}")
        for (v, sb) in vtb_list:
            a(f"v_lshl_add_u32 v{v}, v{vLane}, 4, s{sb}")

    def setup_a():
        a(f"s_lshl_b32 s{sA}, s{sV}, 15")
        a(f"s_add_u32 s{sA}, s{sA}, {W2F}")
        a(f"v_lshl_add_u32 v{vS2}, v{vLane}, 4, s{sA}")
        if NR:
            srd(a, sW2, 88, 256 * 1024)
            w2_addr(sV, vN2, [(vTB, sWB), (vTR2, sWL)])

    def setup_b():
        srd(a, sX, 76, N * 512)
        srd(a, sDBG, 6, 256)
        srd(a, sWS, 100, WS_BYTES)
        if opt.get('ctouch', 0):
            a(f"s_cmp_eq_u32 s{sW}, 0")
            a("s_cbranch_scc0 C_CT")
            a(f"v_mov_b32 v{vT0}, 0x1f0000")
            a(f"v_lshlrev_b32 v{vT1}, 20, v{vLane}")
            a("s_mov_b64 exec, 31")
            a(f"buffer_load_dword v31, v{vT0}, {sr(sWS,4)}, 0 offen")
            a(f"buffer_load_dword v30, v{vT1}, {sr(sX,4)}, 0 offen")
            a("s_mov_b64 exec, -1")
            a.label("C_CT")
        srd(a, sOUT, 4, N * 512)
        srd(a, sDST, 80, E * 4)
        srd(a, sSRC, 78, E * 4)

    def setup_c():
        a(f"v_lshrrev_b32 v{vT0}, 4, v{vLane}")
        a(f"v_lshrrev_b32 v{vT1}, 3, v{vLane}")
        a(f"v_xor_b32 v{vT0}, v{vT0}, v{vT1}")
        a(f"v_and_b32 v{vT0}, 1, v{vT0}")
        a(f"v_bfe_u32 v{vT1}, v{vLane}, 1, 2")
        a(f"v_lshl_or_b32 v{vT0}, v{vT0}, 2, v{vT1}")
        a(f"v_and_b32 v{vT1}, 1, v{vLane}")
        a(f"v_lshlrev_b32 v{vT1}, 4, v{vT1}")
        a("s_lshl_b32 s45, s45, 16")
        a("v_mov_b32 v40, s45")
        a("v_add_f32 v40, 1.0, v40")
        a("v_cvt_pk_bf16_f32 v40, v40, v40")
        a("v_and_b32 v40, 0xffff, v40")
        a("v_mov_b32 v41, 0x3f80")
        a(f"v_lshlrev_b32 v40, v{vT1}, v40")
        a(f"v_lshlrev_b32 v41, v{vT1}, v41")
        a(f"v_cmp_gt_u32 vcc, 32, v{vLane}")
        a("s_nop 1")
        a("v_cndmask_b32 v42, v40, 0, vcc")
        a("v_cndmask_b32 v40, 0, v40, vcc")
        for p in range(4):
            a(f"v_cmp_eq_u32 vcc, {p}, v{vT0}")
            a("s_nop 1")
            a(f"v_cndmask_b32 v{vA1+p}, 0, v41, vcc")
            a(f"v_cndmask_b32 v{vAS+p}, 0, v40, vcc")
            a(f"v_cndmask_b32 v{vAH+p}, 0, v42, vcc")

    def setup_d():
        a(f"v_lshrrev_b32 v{vSh}, 5, v{vLane}")
        a(f"v_lshlrev_b32 v{vSh}, 4, v{vSh}")
        a(f"v_and_b32 v{vT0}, 15, v{vLane}")
        a(f"v_lshlrev_b32 v{vFl}, 4, v{vT0}")
        a(f"v_lshl_or_b32 v{vFl}, v{vSh}, 4, v{vFl}")
        a(f"v_bfe_u32 v{vT0}, v{vLane}, 4, 1")
        a(f"v_lshl_or_b32 v{vFl}, v{vT0}, 3, v{vFl}")
        a(f"v_and_b32 v{vC16}, 31, v{vLane}")
        a(f"v_lshlrev_b32 v{vC16}, 4, v{vC16}")
        a(f"v_bfe_u32 v42, v{vLane}, 3, 2")
        a(f"s_lshl_b32 s{sA}, s{sW}, 4")
        a(f"v_lshl_add_u32 v42, v42, 2, s{sA}")
        a(f"v_and_b32 v43, {NW2H-1}, v{vLane}")
        a("v_lshlrev_b32 v43, 2, v43")
        a(f"s_lshl_b32 s{sA}, s{sW}, 9")
        a(f"v_lshl_add_u32 v41, v{vSh}, 8, v{vC16}")
        a(f"v_add_u32 v41, s{sA}, v41")
        a(f"s_mov_b32 s{sPC}, 0")
        a(f"s_mov_b32 s{sT}, {EMPTY}")
        a(f"v_lshrrev_b32 v{vT0}, 1, v{vLane}")
        a(f"v_lshlrev_b32 v{vT0}, 4, v{vT0}")
        a(f"v_and_b32 v{vT1}, 1, v{vLane}")
        a(f"v_or_b32 v{vT0}, v{vT0}, v{vT1}")
        a(f"s_lshl_b32 s{sNode}, s{sW}, 1")
        a(f"v_add_u32 v{vT0}, s{sNode}, v{vT0}")
        a(f"v_cmp_gt_u32 vcc, 6, v{vLane}")
        a(f"v_mov_b32 v{vT1}, 56")
        a("v_mov_b32 v62, 64")
        a(f"v_cndmask_b32 v{vT0}, v{vT1}, v{vT0}, vcc")
        a(f"v_lshl_add_u32 v61, v{vT0}, 2, v{vLB}")
        a(f"s_lshl_b32 s{sA}, s{sW}, 8")
        a(f"v_lshl_add_u32 v{vT1}, v{vLane}, 2, v{vLB}")
        a(f"v_add_u32 v60, s{sA}, v{vT1}")
        a("v_cndmask_b32 v62, 0, v62, vcc")
        set_xor()

    def set_xor():
        a(f"s_lshl_b32 s{sXor}, s{sNode}, 9")
        a(f"s_and_b32 s44, s{sNode}, 15")
        a("s_lshl_b32 s44, s44, 4")
        a(f"s_or_b32 s{sXor}, s{sXor}, s44")

    def cpf(r0, n):
        tot = opt.get('cpf', 0) + opt.get('cpf2', 0)
        a("s_and_b32 s4, s2, 7")
        a("s_mul_i32 s4, s4, 5000")
        a("s_lshr_b32 s5, s2, 3")
        a(f"s_mul_i32 s5, s5, {512 * tot}")
        a("s_add_u32 s4, s4, s5")
        for r in range(r0, r0 + n):
            a(f"s_add_u32 s5, s4, {NH * 1024 + NP * 2048 - 5 * 512 * tot + 512 * r}")
            a(f"v_add_u32 v{vT0}, s5, v0")
            a(f"v_subrev_u32 v{vT1}, 40000, v{vT0}")
            a(f"v_min_u32 v{vT0}, v{vT0}, v{vT1}")
            a(f"v_lshlrev_b32 v{vT0}, 7, v{vT0}")
            a(f"buffer_load_dword v{44+r}, v{vT0}, {sr(sX,4)}, 0 offen")
            vm.issue("cpf")

    def bias_to_lds():
        a(f"s_sub_u32 s{sA}, s{sW}, 2")
        a(f"s_cmp_lt_u32 s{sA}, 2")
        a("s_cbranch_scc0 C_NB")
        for x in range(4):
            a(f"v_lshlrev_b32 v{32+2*x}, 16, v{vBI+x}")
            a(f"v_and_b32 v{33+2*x}, 0xffff0000, v{vBI+x}")
        a(f"s_lshl_b32 s{sA}, s{sA}, 11")
        a(f"s_add_u32 s{sA}, s{sA}, {BIAS}")
        a(f"v_lshl_add_u32 v{vOff}, v{vLane}, 5, s{sA}")
        a(f"s_cmp_eq_u32 s{sW}, 3")
        a("s_cbranch_scc0 C_NB2")
        a("s_mov_b64 exec, 0xffffffff")
        a.label("C_NB2")
        a(f"ds_write_b128 v{vOff}, v[32:35]")
        a(f"ds_write_b128 v{vOff}, v[36:39] offset:16")
        a("s_mov_b64 exec, -1")
        a("s_waitcnt lgkmcnt(0)")
        a.label("C_NB")

    def tr_w2_ops(dst, vbase, off, tag, scr):
        ops = []
        for kk in range(2):
            for t in range(2):
                for hf in range(2):
                    ops.append(("ds", f"ds_read_b64_tr_b16 {vr(dst+8*kk+4*t+2*hf,2)}, v{vbase} offset:{off + kk*2048 + hf*1024 + 8*t}", tag))
        return ops

    def w2reg(k):
        return W2R + 16 * k if k < 4 else W + 16 * (k - 4)

    def w2_ops(k):
        ops = []
        for mt in range(4):
            ops.append(("vm2", [f"s_mov_b32 s{sA}, {k * 4096}"] if mt == 0 else [],
                        f"buffer_load_dwordx4 {vr(w2reg(k)+4*mt,4)}, v{vS2}, {sr(sWS,4)}, s{sA} offen offset:{mt*1024} sc1", f"w2_{k}"))
        return ops

    bars = []
    cur_q = [0]
    def emit(op):
        if isinstance(op, tuple):
            k = op[0]
            if k == "ds":
                a(op[1]); lg.issue(op[2]); return 1
            if k == "vm":
                a(op[1]); vm.issue(op[2]); return 1
            if k == "vm2":
                for l in op[1]:
                    a(l)
                a(op[2]); vm.issue(op[3]); return 1
            if k == "dma":
                for l in op[1]:
                    a(l)
                vm.issue(op[2]); return 2
            if k == "skip":
                return 2
            if k == "wl":
                return 1 if wait(ltag=op[1]) else 0
            if k == "wv":
                return 1 if wait(vtag=op[1]) else 0
            if k == "bar":
                wait(ltag=op[1])
                a("s_barrier")
                bars.append(cur_q[0])
                return 2
            raise ValueError(op)
        a(op)
        return 1

    def poll_issue():
        a(f"buffer_load_dword v40, v42, {sr(sDBG,4)}, 0 offen sc1")
        a(f"buffer_load_dword v39, v43, {sr(sDBG,4)}, 0 offen offset:128 sc1")
        a(f"buffer_load_dwordx4 v[32:35], v41, {sr(sWS,4)}, s{sLB} offen sc1")

    def unit_step(u):
        sl = u % 4
        hi = 0 if sl < 2 else 1
        off = (sl % 2) * 4096
        if not opt.get('nowait'):
            wait(vtag=f"u{u}")
        if opt.get('notr'):
            pass
        elif u < 8:
            for mt in range(4):
                for hf in range(2):
                    a(f"ds_read_b64_tr_b16 {vr(W+16*u+4*mt+2*hf,2)}, v{vTR+4*hi+mt} offset:{off + hf*512}")
                    lg.issue(f"t{u}")
        else:
            for op in tr_w2_ops(W2R + 16 * (u - 8), vTB if hi == 0 else vTR2, off, f"t{u}", [30, 31]):
                emit(op)
        nx = u + NINF
        if nx < NU:
            if nx - 4 >= 0:
                wait(ltag=f"t{nx-4}")
            dma_unit(nx)

    DEFER = opt.get('defer', 1)
    a("s_waitcnt lgkmcnt(0)")
    if not DEFER:
        setup_a()
        setup_b()
        setup_c()
        setup_d()
    if opt.get('sync0'):
        a("s_waitcnt vmcnt(0)")
        a("s_barrier")
    PU = opt.get('pu', 9)
    LATEF = opt.get('lateflag', 0)
    assert not LATEF or (NR == 0 and NBUB == 0)
    PU2 = opt.get('pu2', PU)
    SD = opt.get('sd', 5)
    def pollx():
        a(f"buffer_load_dword v40, v42, {sr(sDBG,4)}, 0 offen sc1")
        if not LATEF:
            a(f"buffer_load_dword v39, v43, {sr(sDBG,4)}, 0 offen offset:128 sc1")
            vm.issue("poll")
        else:
            a("v_mov_b32 v39, 1")
        a(f"buffer_load_dwordx4 v[32:35], v41, {sr(sWS,4)}, s{sLB} offen sc1")
        vm.issue("poll"); vm.issue("poll")
    def steps_from(u0, pu):
        for u in range(u0, NU):
            if PPRIO and u in (NU // 4, NU // 2 + 1):
                a(f"s_setprio {1 if u == NU // 4 else 0}")
            unit_step(u)
            {0: setup_a, 1: setup_b, 2: setup_c, SD: setup_d}.get(u, lambda: None)()
            if u == NINF:
                bias_to_lds()
            if pu is None and u == PU2:
                return
            if u == pu:
                pollx()
    if PU2 == PU:
        steps_from(0, PU)
    else:
        assert max(SD, NINF) <= PU2 < PU
        steps_from(0, None)
        a(f"s_cmp_lt_u32 s{sW}, {opt.get('ysplit', 4)}")
        a("s_cbranch_scc1 C_OLD")
        sv = (list(vm.q), list(lg.q))
        pollx()
        steps_from(PU2 + 1, -1)
        wait(vtag="poll")
        a("s_branch C_JOIN")
        vm.q, lg.q = sv
        a.label("C_OLD")
        steps_from(PU2 + 1, PU)
        wait(vtag="poll")
        a.label("C_JOIN")
    st(1)
    NPRE, NPOST = NR, 0
    wait(vtag="poll")
    a.label("POLL_CHK")
    a("v_lshrrev_b32 v16, 8, v33")
    a("v_lshrrev_b32 v17, 8, v35")
    a("v_xor_b32 v16, v16, v40")
    a("v_xor_b32 v17, v17, v40")
    a("v_or_b32 v16, v16, v17")
    a("v_alignbit_b32 v26, v35, v34, 20")
    a(f"v_cmp_ne_u32 {sr(sM,2)}, 0, v16")
    a("v_and_b32 v26, 0xfffff, v26")
    a("v_min_u32 v17, v40, v39")
    a(f"v_cmp_eq_u32 {sr(sM+2,2)}, 0, v17")
    a(f"v_cmp_ne_u32 vcc, s{sT}, v26")
    a("s_and_b32 s5, vcc_lo, 0x80808080")
    a("s_lshr_b32 s5, s5, 7")
    a("s_mul_i32 s5, s5, 255")
    a("s_mov_b32 s4, -1")
    a(f"s_and_b64 {sr(sM,2)}, {sr(sM,2)}, s[4:5]")
    a(f"s_or_b64 {sr(sM,2)}, {sr(sM,2)}, {sr(sM+2,2)}")
    a("s_cbranch_scc1 POLL_RETRY")
    a("v_and_b32 v20, 0xfffff, v32")
    a("v_alignbit_b32 v22, v33, v32, 20")
    a("v_and_b32 v22, 0xfffff, v22")
    a("v_and_b32 v24, 0xfffff, v34")
    a.label("POLL_OK")
    vm.clear()
    st(2)
    a(f"s_add_u32 s6, s3, s{sNode}")
    a("s_lshl_b32 s6, s6, 9")
    a(f"v_lshl_add_u32 v28, v{vLane}, 4, s6")
    a(f"buffer_load_dwordx4 {vr(vSF,4)}, v28, {sr(sX,4)}, 0 offen")
    a("v_add_u32 v29, 8192, v28")
    a(f"buffer_load_dwordx4 {vr(vSF+4,4)}, v29, {sr(sX,4)}, 0 offen")
    a("v_add_u32 v30, 16384, v28")
    a(f"buffer_load_dwordx4 {vr(vSF+8,4)}, v30, {sr(sX,4)}, 0 offen")
    a(f"v_mov_b32 v16, s{sT}")
    a("v_cndmask_b32 v20, v16, v20, s[4:5]")
    a(f"s_mov_b32 s4, {MARK}")
    a("v_mov_b32 v41, 1")
    ent = [20, 22, 24, 26]
    for k in range(4):
        a(f"v_bfe_u32 v{ent[k]+1}, v{ent[k]}, 14, 6")
        a(f"v_lshl_add_u32 v{16+k}, v{ent[k]+1}, 2, v{vLB}")
    for k in range(4):
        a(f"v_cmpx_gt_u32 vcc, s4, v{ent[k]}")
        a(f"ds_add_rtn_u32 v{16+k}, v{16+k}, v41 offset:{CNT-LIST}")
        a(f"s_mov_b64 {sr(sM+2*k,2)}, exec")
    a("s_mov_b64 exec, -1")
    a("v_cmp_eq_u32 vcc, s4, v20")
    a("s_and_saveexec_b64 s[6:7], vcc")
    a(f"ds_write_b32 v{vLB}, v41 offset:{FLAG-LIST}")
    a("s_mov_b64 exec, -1")
    for k in range(4):
        a(f"v_and_b32 v{ent[k]}, 0x3fff, v{ent[k]}")
        a(f"v_lshl_add_u32 v{ent[k]+1}, v{ent[k]+1}, 7, v{vLB}")
    a("s_waitcnt lgkmcnt(0)")
    for k in range(4):
        a(f"v_min_u32 v{16+k}, 63, v{16+k}")
        a(f"v_lshl_add_u32 v{ent[k]+1}, v{16+k}, 1, v{ent[k]+1}")
    for k in range(4):
        a(f"s_mov_b64 exec, {sr(sM+2*k,2)}")
        a(f"ds_write_b16 v{ent[k]+1}, v{ent[k]}")
    a("s_mov_b64 exec, -1")
    lg.clear()
    vL = [vSeq, 59, 60]
    vCnt = 61
    sFlush, sJ, sEnd, sLeft = sMask, sMask + 1, sT, sPC
    a(f"s_mov_b32 s{sFlush}, 0")
    a(f"s_mov_b32 s{sJ}, 0")
    a(f"s_mov_b32 s{sPI}, 0")
    a(f"s_mov_b32 s{sLeft}, {NPW}")
    if LATEF:
        a("v_mov_b32 v64, v43")
        if opt.get('hlast', 0) or opt.get('xflag', 0):
            a("v_mov_b32 v63, 0")
        else:
            a(f"buffer_load_dword v63, v43, {sr(sDBG,4)}, 0 offen offset:128 sc1")
    NBUB = max(NBUB, NPRE + NPOST)
    assert NBUB <= 3
    for k in range(NPRE + NPOST, NBUB):
        for op in w2_ops(k):
            emit(op)
    a("s_waitcnt lgkmcnt(0)")
    for _ in range(opt.get('dly_g', 0)):
        a("s_sleep 64")
    a("s_barrier")
    a(f"ds_read_b32 v{vCnt}, v61 offset:{CNT-LIST}")
    for i in range(3):
        a(f"ds_read_b32 v{vL[i]}, v60 offset:{2048*i}")
    GPRIO = opt.get('gprio', 1)
    if GPRIO:
        a("s_setprio 3")
    a("s_waitcnt lgkmcnt(2)")
    a(f"v_cmp_gt_u32 vcc, v{vCnt}, v62")
    a(f"v_add_u32 v{vCnt}, 1, v{vCnt}")
    a(f"v_lshrrev_b32 v{vCnt}, 1, v{vCnt}")
    a(f"v_max_u32 v{vCnt}, 1, v{vCnt}")
    a("s_cmp_lg_u64 vcc, 0")
    a("s_cbranch_scc1 M_SLOW")
    a(f"v_readlane_b32 s{sEnd}, v{vCnt}, 0")
    a("s_waitcnt lgkmcnt(0)")
    st(3)

    def flush():
        a(f"v_xor_b32 v{vT0}, s{sXor}, v{vFl}")
        a(f"v_cvt_pk_bf16_f32 v14, v{vAcc}, v{vAcc+1}")
        a(f"v_cvt_pk_bf16_f32 v15, v{vAcc+2}, v{vAcc+3}")
        a(f"ds_write_b64 v{vT0}, v[14:15] offset:{HH}")
        a(f"s_and_b32 s4, s{sNode}, 1")
        a("s_cselect_b64 s[6:7], -1, 0")
        for x in range(4):
            a(f"v_swap_b32 v{vAS+x}, v{vAH+x}")
        for x in range(8):
            a(f"v_cndmask_b32 v{vSF+x}, v{vSF+x}, v{vSF+4+x}, s[6:7]")
        a("s_mul_i32 s4, s4, 14")
        a(f"s_add_u32 s{sNode}, s{sNode}, s4")
        a(f"s_add_u32 s{sNode}, s{sNode}, 1")
        set_xor()

    acc = vr(vAcc, 4)
    def mf_norm(s):
        a(f"v_mfma_f32_16x16x32_bf16 {acc}, {vr(vA1,4)}, {vr(RS(s),4)}, {acc}")
    def mf_first(s):
        a(f"v_mfma_f32_16x16x32_bf16 {acc}, {vr(vAS,4)}, {vr(vSF,4)}, 0")
        mf_norm(s)
    def issue(s):
        a(f"v_bfe_u32 v{vOff}, s{sId}, v{vSh}, 16")
        a(f"v_lshl_add_u32 v{vOff}, v{vOff}, 9, v{vC16}")
        a(f"buffer_load_dwordx4 {vr(RS(s),4)}, v{vOff}, {sr(sX,4)}, 0 offen")
    swn = [0]
    def switch(s, lab_exit):
        a(f"s_bitset1_b32 s{sFlush}, {s}")
        a(f"s_add_u32 s{sJ}, s{sJ}, 1")
        a(f"s_cmp_eq_u32 s{sJ}, {NPW}")
        a(f"s_cbranch_scc1 {lab_exit}")
        a(f"v_readlane_b32 s{sEnd}, v{vCnt}, s{sJ}")
        a(f"s_and_b32 s{sPI}, s{sJ}, 1")
        a(f"s_cselect_b32 s4, 0, -1")
        a(f"s_mov_b32 s5, s4")
        a(f"s_lshl_b32 s{sPI}, s{sPI}, 5")
        a(f"v_cndmask_b32 v{vL[0]}, v{vL[0]}, v{vL[1]}, s[4:5]")
        a(f"v_cndmask_b32 v{vL[1]}, v{vL[1]}, v{vL[2]}, s[4:5]")
        a(f"s_add_u32 s{sEnd}, s{sEnd}, s{sPI}")
        if GPRIO:
            k = swn[0]; swn[0] += 1
            a(f"s_cmp_lt_u32 s{sJ}, 3")
            a(f"s_cbranch_scc1 SWP{k}")
            a("s_setprio 2")
            a(f"s_cmp_lt_u32 s{sJ}, 4")
            a(f"s_cbranch_scc1 SWP{k}")
            a("s_setprio 1")
            a(f"s_cmp_lt_u32 s{sJ}, 5")
            a(f"s_cbranch_scc1 SWP{k}")
            a("s_setprio 0")
            a.label(f"SWP{k}")

    for s in range(D):
        a.label(f"F_{s}")
        a(f"v_readlane_b32 s{sId}, v{vL[0]}, s{sPI}")
        a(f"s_add_u32 s{sPI}, s{sPI}, 1")
        a(f"s_cmp_eq_u32 s{sPI}, s{sEnd}")
        issue(s)
        a(f"s_cbranch_scc1 F_SW{s}")
    a("s_branch G_F0")
    for s in range(D):
        a.label(f"F_SW{s}")
        switch(s, "X_F0")
        a(f"s_branch {'F_%d' % (s+1) if s + 1 < D else 'G_F0'}")
    for s in range(D):
        n = (s + 1) % D
        a.label(f"G_N{s}")
        a(f"s_waitcnt vmcnt({D-1})")
        a(f"v_readlane_b32 s{sId}, v{vL[0]}, s{sPI}")
        mf_norm(s)
        a.label(f"G_C{s}")
        a(f"s_add_u32 s{sPI}, s{sPI}, 1")
        a(f"s_bitcmp1_b32 s{sFlush}, {s}")
        issue(s)
        a(f"s_cbranch_scc1 G_FL{s}")
        a(f"s_cmp_eq_u32 s{sPI}, s{sEnd}")
        a(f"s_cbranch_scc1 G_SN{s}")
        if n == 0:
            a("s_branch G_N0")
    for s in range(D):
        n = (s + 1) % D
        a.label(f"G_SN{s}")
        switch(s, f"X_N{n}")
        a(f"s_branch G_N{n}")
    for s in range(D):
        n = (s + 1) % D
        a.label(f"G_FL{s}")
        a(f"s_bitset0_b32 s{sFlush}, {s}")
        a(f"s_sub_u32 s{sLeft}, s{sLeft}, 1")
        a("s_nop 0")
        flush()
        a(f"s_cmp_eq_u32 s{sPI}, s{sEnd}")
        a(f"s_cbranch_scc0 G_F{n}")
        switch(s, f"X_F{n}")
        a.label(f"G_F{n}")
        a(f"s_waitcnt vmcnt({D-1})")
        a(f"v_readlane_b32 s{sId}, v{vL[0]}, s{sPI}")
        mf_first(n)
        a(f"s_branch G_C{n}")
    for s in range(D):
        a.label(f"X_N{s}")
        if opt.get('hlast', 0) or opt.get('xflag', 0):
            a(f"buffer_load_dword v63, v64, {sr(sDBG,4)}, 0 offen offset:128 sc1")
        a("s_waitcnt vmcnt(0)")
        a(f"s_branch T_N{s}")
        a.label(f"X_F{s}")
        if opt.get('hlast', 0) or opt.get('xflag', 0):
            a(f"buffer_load_dword v63, v64, {sr(sDBG,4)}, 0 offen offset:128 sc1")
        a("s_waitcnt vmcnt(0)")
        a(f"s_branch T_F{s}")
    for s in range(D):
        n = (s + 1) % D
        a.label(f"T_N{s}")
        mf_norm(s)
        a.label(f"T_C{s}")
        a(f"s_bitcmp1_b32 s{sFlush}, {s}")
        a(f"s_cbranch_scc1 T_FL{s}")
        if n == 0:
            a(f"s_cmp_eq_u32 s{sFlush}, 0")
            a("s_cbranch_scc1 M_GDONE")
            a("s_branch T_N0")
    for s in range(D):
        n = (s + 1) % D
        a.label(f"T_FL{s}")
        a(f"s_bitset0_b32 s{sFlush}, {s}")
        a(f"s_sub_u32 s{sLeft}, s{sLeft}, 1")
        a("s_nop 4")
        flush()
        a(f"s_cmp_eq_u32 s{sLeft}, 0")
        a(f"s_cbranch_scc1 M_GDONE")
        a.label(f"T_F{n}")
        mf_first(n)
        a(f"s_branch T_C{n}")

    a.label("POLL_RETRY")
    a(f"s_add_u32 s{sPC}, s{sPC}, 1")
    a(f"s_cmp_lt_u32 s{sPC}, {opt.get('spin', 30000)}")
    a("s_cbranch_scc0 POLL_GIVEUP")
    a(f"s_cmp_eq_u32 s{sPC}, 1")
    a("s_cbranch_scc1 POLL_NOSLEEP")
    a.label("POLL_SLEEP")
    a(f"s_sleep {opt.get('psleep', 4)}")
    a.label("POLL_NOSLEEP")
    a(f"s_cmp_eq_u64 {sr(sM+2,2)}, 0")
    a("s_cbranch_scc1 POLL_CELLS")
    a(f"buffer_load_dword v40, v42, {sr(sDBG,4)}, 0 offen sc1")
    if not LATEF:
        a(f"buffer_load_dword v39, v43, {sr(sDBG,4)}, 0 offen offset:128 sc1")
    a.label("POLL_CELLS")
    a(f"buffer_load_dwordx4 v[32:35], v41, {sr(sWS,4)}, s{sLB} offen sc1")
    a("s_waitcnt vmcnt(0)")
    a("s_branch POLL_CHK")
    a.label("POLL_GIVEUP")
    a(f"s_cmp_lt_u32 s{sPC}, {8 * opt.get('spin', 30000)}")
    a("s_cbranch_scc0 POLL_GO")
    a("v_cmp_eq_u32 vcc, 0, v39")
    a("s_cmp_lg_u64 vcc, 0")
    a("s_cbranch_scc1 POLL_SLEEP")
    a.label("POLL_GO")
    a(f"v_mov_b32 v20, {MARK}")
    a("s_mov_b64 s[4:5], -1")
    a("s_branch POLL_OK")

    if LATEF:
        a.label("FLG_RETRY")
        a(f"s_add_u32 s{sPC}, s{sPC}, 1")
        a(f"s_cmp_lt_u32 s{sPC}, {8 * opt.get('spin', 30000)}")
        a("s_cbranch_scc0 FLG_OK")
        a("s_sleep 8")
        a(f"buffer_load_dword v63, v64, {sr(sDBG,4)}, 0 offen offset:128 sc1")
        a("s_waitcnt vmcnt(0)")
        a("s_branch FLG_CHK")

    a.label("M_SLOW")
    SA = RING + 8
    a("s_waitcnt vmcnt(0) lgkmcnt(0)")
    a(f"v_mov_b32 v{vT0}, 0x7f000000")
    a(f"v_cmp_gt_u32 vcc, 32, v{vLane}")
    a("s_nop 1")
    a(f"v_cndmask_b32 v{vSeq}, v{vT0}, v{vC16}, vcc")
    a(f"s_add_u32 s40, s3, s{sNode}")
    for j in range(NPW):
        a(f"s_add_u32 s4, s40, {16*(j//2) + j%2}")
        a("s_lshl_b32 s4, s4, 9")
        a(f"v_add_u32 v{vOff}, s4, v{vSeq}")
        a(f"buffer_load_dwordx4 {vr(RING,4)}, v{vOff}, {sr(sX,4)}, 0 offen")
        a("s_waitcnt vmcnt(0)")
        a(f"v_mfma_f32_16x16x32_bf16 {vr(SA+4*j,4)}, {vr(vAS,4)}, {vr(RING,4)}, 0")
        a("s_nop 7")
    a(f"v_lshlrev_b32 v{vT0}, 2, v{vLane}")
    a("s_mov_b32 s41, 0")
    a.label("S_LOOP")
    a(f"buffer_load_dword v{RING+4}, v{vT0}, {sr(sDST,4)}, s41 offen")
    a(f"buffer_load_dword v{RING+5}, v{vT0}, {sr(sSRC,4)}, s41 offen")
    a("s_waitcnt vmcnt(0)")
    a(f"v_subrev_u32 v{RING+4}, s40, v{RING+4}")
    a(f"v_and_b32 v{RING+6}, 0xffffffce, v{RING+4}")
    a(f"v_cmp_eq_u32 vcc, 0, v{RING+6}")
    a(f"v_cmp_gt_u32 s[42:43], 48, v{RING+4}")
    a("s_nop 3")
    a("s_and_b64 s[42:43], s[42:43], vcc")
    a.label("S_IN")
    a("s_cmp_eq_u64 s[42:43], 0")
    a("s_cbranch_scc1 S_NEXT")
    a("s_ff1_i32_b64 s44, s[42:43]")
    a("s_bitset0_b64 s[42:43], s44")
    a(f"v_readlane_b32 s45, v{RING+4}, s44")
    a(f"v_readlane_b32 s46, v{RING+5}, s44")
    a("s_nop 3")
    a("s_lshl_b32 s46, s46, 9")
    a(f"v_add_u32 v{vOff}, s46, v{vSeq}")
    a(f"buffer_load_dwordx4 {vr(RING,4)}, v{vOff}, {sr(sX,4)}, 0 offen")
    a("s_waitcnt vmcnt(0)")
    for j in range(NPW):
        if j < NPW - 1:
            a(f"s_cmp_eq_u32 s45, {16*(j//2) + j%2}")
            a(f"s_cbranch_scc0 S_J{j+1}")
        a(f"v_mfma_f32_16x16x32_bf16 {vr(SA+4*j,4)}, {vr(vA1,4)}, {vr(RING,4)}, {vr(SA+4*j,4)}")
        a("s_nop 7")
        a("s_branch S_IN")
        if j < NPW - 1:
            a.label(f"S_J{j+1}")
    a.label("S_NEXT")
    a("s_add_u32 s41, s41, 256")
    a(f"s_cmp_lt_u32 s41, {E*4}")
    a("s_cbranch_scc1 S_LOOP")
    for j in range(NPW):
        for r in range(4):
            a(f"v_mov_b32 v{vAcc+r}, v{SA+4*j+r}")
        flush()

    a.label("M_GDONE")
    vm.clear(); lg.clear()
    st(4)
    if LATEF:
        a(f"s_mov_b32 s{sPC}, 0")
        a.label("FLG_CHK")
        a("v_cmp_eq_u32 vcc, 0, v63")
        a("s_cmp_lg_u64 vcc, 0")
        a("s_cbranch_scc1 FLG_RETRY")
        a.label("FLG_OK")
    NE = min(4, NBUB + opt.get('early', 2))
    for k in range(NBUB, NE):
        for op in w2_ops(k):
            emit(op)
    ACP = [16, 32, 16, W + 64, W + 72, W + 80]
    BFR = [48, 52, 58, 10]
    vRd = [2, 3, 4, 7, 8, 9, 14, 15]
    vBA, vWr, vRB2, vOut, vBA2 = 1, 57, 62, 5, 6
    tJ, tQ = 48, 49
    PRE = 3
    a(f"v_and_b32 v{tJ}, 15, v{vLane}")
    a(f"v_lshrrev_b32 v{tQ}, 4, v{vLane}")
    a(f"s_lshl_b32 s4, s{sV}, 8")
    a(f"s_add_u32 s4, s4, {BIAS}")
    a(f"v_lshl_add_u32 v{vBA}, v{tQ}, 4, s4")
    def bias_ops(p):
        A = ACP[p]
        if p < 3:
            return [("ds", f"ds_read_b128 {vr(A+4*mt,4)}, v{vBA} offset:{64*mt}", f"bias{p}") for mt in range(4)]
        return [("ds", f"ds_read_b128 {vr(A+4*mt,4)}, v{vBA2} offset:{16*mt}", f"bias{p}") for mt in range(2)]
    for op in bias_ops(0) + bias_ops(1):
        emit(op)
    a(f"s_lshl_b32 s4, s{sRot}, 2")
    a(f"v_xor_b32 v{vRB2}, v{tQ}, v{tJ}")
    a(f"v_xor_b32 v{vRd[0]}, s4, v{vRB2}")
    a(f"v_lshlrev_b32 v{vRd[0]}, 4, v{vRd[0]}")
    a(f"v_lshl_or_b32 v{vRd[0]}, v{tJ}, 9, v{vRd[0]}")
    for k in range(1, 8):
        a(f"v_xor_b32 v{vRd[k]}, {64*k}, v{vRd[0]}")
    a(f"v_lshlrev_b32 v{vRB2}, 4, v{vRB2}")
    a(f"v_lshl_or_b32 v{vRB2}, v{tJ}, 10, v{vRB2}")
    a(f"s_lshl_b32 s4, s{sV}, 3")
    a(f"v_or_b32 v{vWr}, s4, v{tQ}")
    a(f"v_xor_b32 v{vWr}, v{vWr}, v{tJ}")
    a(f"v_lshlrev_b32 v{vWr}, 4, v{vWr}")
    a(f"v_lshl_or_b32 v{vWr}, v{tJ}, 10, v{vWr}")
    a(f"s_lshl_b32 s4, s{sV}, 7")
    a(f"s_add_u32 s4, s4, {BIAS + 2048}")
    a(f"v_lshl_add_u32 v{vBA2}, v{tQ}, 5, s4")
    a("s_lshl_b32 s6, s3, 9")
    a(f"s_lshl_b32 s7, s{sV}, 6")
    a("s_add_u32 s6, s6, s7")
    a(f"v_lshlrev_b32 v{vOut}, 4, v{tQ}")
    a(f"v_lshl_or_b32 v{vOut}, v{tJ}, 9, v{vOut}")
    a(f"v_add_u32 v{vOut}, s6, v{vOut}")
    vR2 = [vRB2, 0, 63, vRd[0]]
    a(f"v_xor_b32 v{vR2[1]}, 64, v{vRB2}")
    a(f"v_xor_b32 v{vR2[2]}, 128, v{vRB2}")
    a("s_waitcnt lgkmcnt(0)")
    lg.clear()
    a("s_barrier")
    st(5)

    steps = [(p, s) for p in range(3) for s in range(8)]
    steps += [(p, s) for h in range(2) for p in (3, 4, 5) for s in range(4 * h, 4 * h + 4)]
    SI = {ps: i for i, ps in enumerate(steps)}
    frags = []
    for i, (p, s) in enumerate(steps):
        frags += [(i, 0)] if p < 3 else [(i, 0), (i, 1)]
    B2R = [32, 36, 40, 44]
    def fbuf(f):
        i, kk = frags[f]
        if i < 24 or kk == 0:
            return BFR[i % 4]
        return B2R[i % 4]
    def rd_op(f):
        i, kk = frags[f]
        p, s = steps[i]
        if p < 3:
            return ("ds", f"ds_read_b128 {vr(fbuf(f),4)}, v{vRd[s]} offset:{HH + p*8192}", f"b_{i}")
        ks = 2 * s + kk
        return ("ds", f"ds_read_b128 {vr(fbuf(f),4)}, v{vR2[ks%4]} offset:{ACT + (p-3)*16384 + (ks//4)*256}", f"b_{i}")
    FI = {fk: f for f, fk in enumerate(frags)}
    def epi_a(p):
        A = ACP[p]
        ops = []
        if p < 3:
            for aa in range(2):
                m = A + 8 * aa
                ops.append(f"v_cvt_pk_bf16_f32 v{m}, v{m}, v{m+1}")
                ops.append(f"v_cvt_pk_bf16_f32 v{m+1}, v{m+2}, v{m+3}")
                ops.append(f"v_cvt_pk_bf16_f32 v{m+2}, v{m+4}, v{m+5}")
                ops.append(f"v_cvt_pk_bf16_f32 v{m+3}, v{m+6}, v{m+7}")
                for x in range(4):
                    ops.append(f"v_pk_max_i16 v{m+x}, v{m+x}, 0")
                if aa == 1:
                    ops.append(f"v_xor_b32 v{m+4}, 64, v{vWr}")
                    ops.append(("ds", f"ds_write_b128 v{m+4}, {vr(m,4)} offset:{ACT + p*16384}", f"aw{p}"))
                else:
                    ops.append(("ds", f"ds_write_b128 v{vWr}, {vr(m,4)} offset:{ACT + p*16384}", f"aw{p}"))
        else:
            if p > 3:
                ops.append(f"v_add_u32 v{vOut}, 8192, v{vOut}")
            for x in range(4):
                ops.append(f"v_cvt_pk_bf16_f32 v{A+x}, v{A+2*x}, v{A+2*x+1}")
            ops.append(("vm", f"buffer_store_dwordx4 {vr(A,4)}, v{vOut}, {sr(sOUT,4)}, 0 offen" + ["", " sc1", " nt", " sc0 sc1", " sc1 nt"][opt.get('ost', 0)], "out"))
        return ops

    G = lambda p, s, mt=0: SI[(p, s)] * 4 + mt
    GI = lambda i, mt=0: i * 4 + mt
    first_rd = lambda p: SI[(p, 0)] - PRE
    done = lambda p: SI[(p, 7)] + 1
    streams = []
    def add(name, ops, start=0, dl=10**9, after=None, pri=0):
        streams.append(dict(name=name, ops=list(ops), start=start, dl=dl, after=after or [], done=None, pri=pri))
    lastw = None
    WSP = opt.get('wsp', 4)
    for k in range(NE, 8):
        for j, o in enumerate(w2_ops(k)):
            nm = f"w{k}_{j}"
            add(nm, [o], 1 if k < 4 else G(2, k - 4, 3), GI(SI[(3, k)] - 2, 3), after=[(lastw, WSP)] if lastw else [], pri=-1000)
            lastw = nm
    last = len(steps) - 1
    add("e0", epi_a(0), G(1, 1, 2), G(1, 6, 3))
    add("bias2", [("wl", "aw0")] + bias_ops(2), 0, G(1, 7, 2), after=[("e0", 1)])
    add("e1", epi_a(1), G(2, 1, 0), GI(first_rd(3) - 1, 1))
    add("bar1", [("bar", ["aw0", "aw1"])], 0, GI(first_rd(3) - 1, 3), after=[("e1", 2)])
    add("a2", [f"v_xor_b32 v{vR2[3]}, 192, v{vRB2}"], G(2, 0, 1), GI(first_rd(3) - 1, 3))
    add("bias3", bias_ops(3) + bias_ops(4), G(2, 5, 1), G(2, 7, 1))
    add("bias5", bias_ops(5), G(2, 6, 1), GI(SI[(5, 0)] - 1, 1))
    add("e2", epi_a(2), G(3, 1, 0), GI(first_rd(5) - 1, 1))
    add("bar2", [("bar", ["aw2"])], 0, GI(first_rd(5) - 1, 3), after=[("e2", 2), ("bar1", 0)])
    add("e3", epi_a(3), GI(done(3) + 1, 2), GI(done(3) + 3, 3))
    add("e4", epi_a(4), GI(done(4) + 1, 2), GI(last, 3), after=[("e3", 0)])
    byname = {s_['name']: s_ for s_ in streams}

    def ready(s_, g, force=False):
        if not s_['ops']:
            return False
        if g < s_['start']:
            return False
        for nm, dly in s_['after']:
            d = byname[nm]['done']
            if d is None or (g < d + dly and not force):
                return False
        return True
    def force_finish(s_, g):
        for nm, _ in s_['after']:
            force_finish(byname[nm], g)
        if s_['ops']:
            assert g >= s_['start'], (s_['name'], g)
            while s_['ops']:
                emit(s_['ops'].pop(0))
            s_['done'] = g
    BUD = opt.get('bud', 3)
    for i in range(PRE):
        emit(rd_op(i))
    segs = None
    if bars_hint is not None and opt.get('mprio', 1):
        pts = [0] + [b + 1 for b in bars_hint] + [len(steps)]
        segs = {}
        for x, y in zip(pts[:-1], pts[1:]):
            L = y - x
            for k in range(4):
                segs[x + k * L // 4] = 3 - k
    for i, (p, s) in enumerate(steps):
        cur_q[0] = i
        if segs and i in segs:
            a(f"s_setprio {segs[i]}")
        tags = [f"b_{i}"]
        if s == 0:
            tags.append(f"bias{p}")
        wait(vtag=f"w2_{s}" if p == 3 else None, ltag=tags)
        for mt in range(4):
            g = i * 4 + mt
            if p < 3:
                A = ACP[p] + 4 * mt
                a(f"v_mfma_f32_16x16x32_bf16 {vr(A,4)}, {vr(W+16*s+4*mt,4)}, {vr(fbuf(FI[(i,0)]),4)}, {vr(A,4)}")
            else:
                A = ACP[p] + 4 * (mt % 2)
                a(f"v_mfma_f32_16x16x32_bf16 {vr(A,4)}, {vr(w2reg(s)+4*mt,4)}, {vr(fbuf(FI[(i,mt//2)]),4)}, {vr(A,4)}")
            B_ = opt.get('bud23', 4) if 16 <= i < 32 else BUD
            bud = (B_ + (g % 2)) // 2
            if mt == 3:
                bud = min(bud, opt.get('bud3', 1))
            if mt in (0, 2) and (i + PRE, mt // 2) in FI:
                bud -= emit(rd_op(FI[(i + PRE, mt // 2)]))
            while bud > 0:
                cand = [s_ for s_ in streams if ready(s_, g)]
                if not cand:
                    break
                s_ = min(cand, key=lambda z: z['dl'] - len(z['ops']) + z['pri'])
                bud -= emit(s_['ops'].pop(0))
                if not s_['ops']:
                    s_['done'] = g
            for s_ in streams:
                if s_['ops'] and s_['dl'] <= g:
                    if opt.get('verbose'):
                        print("forced", s_['name'], len(s_['ops']), "ops at", p, s, mt, file=sys.stderr)
                    force_finish(s_, g)
        if p == 2 and s == 7:
            st(6)
    assert all(not s_['ops'] for s_ in streams)
    st(10)
    a("s_nop 6")
    for op in epi_a(5):
        emit(op)
    if opt.get('lst'):
        a("s_waitcnt vmcnt(0)")
        a(("s_memrealtime" if not opt.get('cyc') else "s_memtime") + " s[40:41]")
        srd(a, 76, 100, 0x1000000)
        a("s_lshl_b32 s42, s2, 4")
        a(f"s_add_u32 s42, s42, s{sW}")
        a("s_lshl_b32 s42, s42, 7")
        a(f"s_add_u32 s42, s42, {STAMP_OFF}")
        a("v_mov_b32 v9, s42")
        a("s_waitcnt lgkmcnt(0)")
        a("s_mov_b64 exec, 1")
        for idx, r in list(LST.items()) + [(7, 40)]:
            a(f"v_mov_b32 v14, s{r}")
            a(f"v_mov_b32 v15, s{r+1}")
            a(f"buffer_store_dwordx2 v[14:15], v9, s[76:79], 0 offen offset:{idx*8}")
    if STAMP:
        a("s_waitcnt vmcnt(0)")
        st(7)
    if opt.get('amp') is not None:
        a("s_waitcnt vmcnt(0)")
        st(7)
        if opt.get('ampf'):
            a("s_mov_b32 s98, s94")
        a("s_sub_u32 s99, s99, s98")
        a("s_lshl_b32 s99, s99, 3")
        a("s_min_u32 s99, s99, 100000")
        a("s_memrealtime s[96:97]")
        a("s_waitcnt lgkmcnt(0)")
        a("s_mov_b32 s98, s96")
        a.label("AMP_L")
        a("s_sleep 2")
        a("s_memrealtime s[96:97]")
        a("s_waitcnt lgkmcnt(0)")
        a("s_sub_u32 s96, s96, s98")
        a("s_cmp_lt_u32 s96, s99")
        a("s_cbranch_scc1 AMP_L")
    a("s_endpgm")

    a.label("AUX")
    aux[0] = True
    vm.clear(); lg.clear()
    a("s_memrealtime s[96:97]")
    a(f"s_and_b32 s{sA}, s2, 7")
    a(f"s_mul_i32 s{sPI}, s{sA}, 5000")
    a(f"s_lshr_b32 s{sB}, s2, 3")
    a("s_waitcnt lgkmcnt(0)")
    if opt.get('stouch', 0):
        a("s_load_dword s40, s[78:79], 0")
        a("s_load_dword s41, s[100:101], 0xffffc")
        a("s_load_dword s42, s[6:7], 0xfc")
    srd(a, sX, 76, N * 512)

    def xpf(first, stride, n, vd):
        for r in range(n):
            a(f"v_add_u32 v{vT0}, {first + r*stride}, v{vSeq}")
            a(f"v_subrev_u32 v{vT1}, 40000, v{vT0}")
            a(f"v_min_u32 v{vT0}, v{vT0}, v{vT1}")
            a(f"v_lshlrev_b32 v{vT0}, 7, v{vT0}")
            a(f"buffer_load_dword v{vd+r}, v{vT0}, {sr(sX,4)}, 0 offen")

    a(f"s_cmp_lt_u32 s2, {NPROD}")
    a("s_cbranch_scc1 PROD")
    stamp_setup()
    st(0)
    a(f"s_sub_u32 s{sB}, s{sB}, 4")
    a(f"s_lshl_b32 s{sB}, s{sB}, 9")
    a(f"s_add_u32 s{sPI}, s{sPI}, s{sB}")
    a(f"v_add_u32 v{vSeq}, s{sPI}, v0")
    HL = opt.get('hlast', 0)
    if HL:
        xpf(0, 1024, HL, 16)
    a(f"s_sub_u32 s{sId}, s2, {NPROD}")
    a(f"s_cmp_lt_u32 s{sId}, {NW2H}")
    a("s_cbranch_scc0 H_PF")
    srd(a, sW2, 88, 256 * 1024)
    srd(a, sDBG, 6, 256)
    srd(a, sWS, 100, WS_BYTES)
    a(f"s_lshl_b32 s{sWB}, s{sW}, 12")
    w2_addr(sW, vS2, [(vTB, sWB)])
    a(f"s_lshl_b32 s{sA}, s{sId}, 15")
    for i in range(4):
        a(f"s_add_u32 m0, s{sWB}, {i*1024}")
        a(f"s_add_u32 s45, s{sA}, {i*8192}")
        a(f"buffer_load_dwordx4 v{vS2}, {sr(sW2,4)}, s45 offen lds")
    a(f"s_lshl_b32 s{sA}, s{sW}, 15")
    a(f"s_lshl_b32 s45, s{sId}, 12")
    a(f"s_add_u32 s{sA}, s{sA}, s45")
    a(f"s_add_u32 s{sA}, s{sA}, {W2F}")
    a(f"v_lshl_add_u32 v{vOff}, v{vLane}, 4, s{sA}")
    a("s_waitcnt vmcnt(0)")
    for op in tr_w2_ops(64, vTB, 0, "h", None):
        a(op[1])
    a("s_waitcnt lgkmcnt(0)")
    for mt in range(4):
        a(f"buffer_store_dwordx4 {vr(64+4*mt,4)}, v{vOff}, {sr(sWS,4)}, 0 offen offset:{mt*1024} sc1")
    a("s_waitcnt vmcnt(0)")
    a("s_barrier")
    a(f"s_cmp_eq_u32 s{sW}, 0")
    a("s_cbranch_scc0 H_PF")
    a(f"s_lshl_b32 s{sA}, s{sId}, 2")
    a(f"v_mov_b32 v{vT1}, s{sA}")
    a(f"v_mov_b32 v{vT0}, 1")
    a("s_mov_b64 exec, 1")
    a(f"buffer_store_dword v{vT0}, v{vT1}, {sr(sDBG,4)}, 0 offen offset:128 sc1")
    a("s_mov_b64 exec, -1")
    st(12)
    a.label("H_PF")
    xpf(HL * 1024, 1024, NH - HL, 16 + HL)
    if STAMP:
        a("s_waitcnt vmcnt(0)")
        st(13)
    a("s_endpgm")
    a.label("PROD")
    if not opt.get('pfast', 1):
        srd(a, sDST, 80, E * 4)
        srd(a, sSRC, 78, E * 4)
        a(f"s_mul_i32 s{sA}, s2, {CH*4}")
        a(f"s_add_u32 s40, s{sA}, 8192")
        a(f"s_add_u32 s41, s{sA}, 16384")
        a(f"buffer_load_dwordx4 {vr(16,4)}, v{vT16}, {sr(sDST,4)}, s{sA} offen")
        a(f"buffer_load_dwordx4 {vr(24,4)}, v{vT16}, {sr(sDST,4)}, s40 offen")
        a(f"s_cmp_lt_u32 s{sW}, 4")
        a("s_cbranch_scc0 P_E2")
        a(f"buffer_load_dwordx4 {vr(32,4)}, v{vT16}, {sr(sDST,4)}, s41 offen")
        a(f"buffer_load_dwordx4 {vr(36,4)}, v{vT16}, {sr(sSRC,4)}, s41 offen")
        a.label("P_E2")
        a(f"buffer_load_dwordx4 {vr(20,4)}, v{vT16}, {sr(sSRC,4)}, s{sA} offen")
        a(f"buffer_load_dwordx4 {vr(28,4)}, v{vT16}, {sr(sSRC,4)}, s40 offen")
    vm.issue("dst")
    vm.issue("edges")
    srd(a, sDBG, 6, 256)
    srd(a, sWS, 100, CELLS_BYTES)
    a("v_lshrrev_b32 v46, 3, v0")
    a("v_and_b32 v47, 7, v0")
    a("v_lshlrev_b32 v50, 13, v46")
    a("v_lshl_or_b32 v50, v47, 4, v50")
    a(f"s_lshl_b32 s4, s2, 7")
    a(f"v_add_u32 v50, s4, v50")
    if opt.get('vtouch', 0):
        srd(a, sW1, 100, WS_BYTES)
        a(f"s_cmp_eq_u32 s{sW}, 6")
        a("s_cbranch_scc0 P_VT")
        a(f"v_mov_b32 v{vT0}, 0x1f0000")
        a(f"buffer_load_dword v60, v{vT0}, {sr(sW1,4)}, 0 offen")
        a.label("P_VT")
    vm.issue("edges")
    a(f"s_lshr_b32 s{sNode}, s96, 8")
    a(f"s_or_b32 s{sNode}, s{sNode}, 1")
    a(f"v_mov_b32 v51, {NONCE}")
    a(f"s_cmp_eq_u32 s{sW}, 7")
    a("s_cbranch_scc0 P_N1")
    a(f"v_mov_b32 v{vT0}, s{sNode}")
    a(f"s_lshl_b32 s4, s2, 2")
    a(f"v_mov_b32 v{vT1}, s4")
    a("s_mov_b64 exec, 1")
    a(f"buffer_store_dword v{vT0}, v{vT1}, {sr(sDBG,4)}, 0 offen sc1")
    a(f"ds_write_b32 v51, v{vT0}")
    a("s_mov_b64 exec, -1")
    a.label("P_N1")
    stamp_setup()
    st(0)
    a(f"v_mov_b32 v40, {EMPTY}")
    a("v_mov_b32 v41, v40")
    a("v_mov_b32 v42, v40")
    a("v_mov_b32 v43, v40")
    a(f"s_movk_i32 s4, {CST}")
    a(f"v_mov_b32 v55, {IMG}")
    a("v_mad_u32_u24 v56, v46, s4, v55")
    a("v_lshl_add_u32 v48, v47, 4, v56")
    a(f"v_add_u32 v49, {128*CST}, v48")
    def cp(i):
        return (48 + i // 2, (i % 2) * 64 * CST)
    for i in range(4):
        r, o = cp(i)
        a(f"ds_write_b128 v{r}, v[40:43] offset:{o}")
        a(f"ds_write_b128 v{r}, v[40:43] offset:{o + 128}")
    a(f"v_and_b32 v{vT0}, 255, v0")
    a(f"v_mad_u32_u24 v{vT1}, v{vT0}, s4, v55")
    a(f"v_lshlrev_b32 v{vT0}, 2, v{vT0}")
    a(f"ds_write_b32 v{vT0}, v{vT1} offset:{PCNT}")
    a("v_mov_b32 v44, 4")
    a(f"s_mov_b32 s{sT}, {-(48 << 14) & 0xffffffff}")
    a("v_lshlrev_b32 v45, 2, v46")
    a(f"v_mov_b32 v52, {MARK}")
    a(f"s_mov_b32 s{sA}, 43691")
    a(f"s_lshl_b32 s{sB}, s{sB}, 9")
    a(f"s_add_u32 s{sPI}, s{sPI}, s{sB}")
    a(f"v_add_u32 v{vSeq}, s{sPI}, v0")
    for i in range(4):
        a(f"v_add_u32 v{72+i}, {i*64*8192}, v50")
        a(f"v_add_u32 v{76+i}, {i*64*CST + 128}, v56")
    a(f"v_lshlrev_b32 v{vT0}, 2, v{vLane}")
    a(f"v_mad_u32_u24 v80, v{vT0}, s4, v55")
    a("v_add_u32 v80, 512, v80")
    a(f"v_lshlrev_b32 v84, 4, v{vLane}")
    a("s_waitcnt lgkmcnt(0)")
    a("s_barrier")
    a("ds_read_b32 v53, v51")
    a("s_waitcnt lgkmcnt(0)")
    a("v_lshlrev_b32 v53, 8, v53")
    if opt.get('ppf0', 0):
        xpf(NH * 1024 + NP * 2048, 2048, 1, 60)
        vm.issue("pf0")
    def w7(tag, k):
        n_ = vm.need(tag)
        a(f"s_cmp_eq_u32 s{sW}, 7")
        a(f"s_cbranch_scc1 P_W7{k}")
        a(f"s_waitcnt vmcnt({n_})")
        a.label(f"P_W7{k}")
        a(f"s_waitcnt vmcnt({n_ + 1})")
    w7("dst", 0)
    st(14)
    def bin_a(r):
        vd, vs, vb, va = 16 + 8 * r, 20 + 8 * r, 192 + 4 * r, 204 + 4 * r
        for k in range(4):
            a(f"v_mul_u32_u24 v{vb+k}, s{sA}, v{vd+k}")
            a(f"v_lshrrev_b32 v{vb+k}, 21, v{vb+k}")
            a(f"v_lshlrev_b32 v{va+k}, 2, v{vb+k}")
            a(f"ds_add_rtn_u32 v{va+k}, v{va+k}, v44 offset:{PCNT}")
    def bin_a2(r):
        vd, vs, vb, va = 16 + 8 * r, 20 + 8 * r, 192 + 4 * r, 204 + 4 * r
        for k in range(4):
            a(f"v_lshl_or_b32 v{vs+k}, v{vd+k}, 14, v{vs+k}")
            a(f"v_mad_i32_i24 v{vs+k}, v{vb+k}, s{sT}, v{vs+k}")
    def bin_b(r):
        vd, vs, vb, va = 16 + 8 * r, 20 + 8 * r, 192 + 4 * r, 204 + 4 * r
        for k in range(4):
            a(f"ds_write_b32 v{va+k}, v{vs+k}")
    bin_a(0)
    bin_a(1)
    a(f"s_cmp_lt_u32 s{sW}, 4")
    a("s_cbranch_scc0 P_R2")
    a(f"v_cmp_gt_u32 vcc, {CH//4 - 1024}, v0")
    a("s_and_saveexec_b64 s[4:5], vcc")
    bin_a(2)
    bin_a2(2)
    a("s_waitcnt lgkmcnt(0)")
    bin_b(2)
    a("s_mov_b64 exec, s[4:5]")
    a.label("P_R2")
    w7("edges", 1)
    bin_a2(0)
    bin_a2(1)
    a("s_waitcnt lgkmcnt(0)")
    bin_b(0)
    bin_b(1)
    a("s_waitcnt lgkmcnt(0)")
    a("s_barrier")
    st(15)
    a(f"ds_read_b128 v[88:91], v84 offset:{PCNT}")
    lg.issue("all")
    for i in range(4):
        r, o = cp(i)
        a(f"ds_read_b128 {vr(128+4*i,4)}, v{r} offset:{o}")
        lg.issue(f"c{i}")
    for i in range(4):
        r, o = cp(i)
        a(f"ds_read_b32 v{64+i}, v45 offset:{PCNT + i*256}")
        lg.issue(f"n{i}")
        a(f"ds_read_b128 {vr(144+4*i,4)}, v{r} offset:{o + 128}")
        lg.issue(f"d{i}")
    def pack(d):
        a(f"v_lshl_or_b32 v{d}, v{d+1}, 20, v{d}")
        a(f"v_lshrrev_b32 v{d+1}, 12, v{d+1}")
        a(f"v_or_b32 v{d+1}, v53, v{d+1}")
        a(f"v_lshl_or_b32 v{d+2}, v{d+3}, 20, v{d+2}")
        a(f"v_lshrrev_b32 v{d+3}, 12, v{d+3}")
        a(f"v_or_b32 v{d+3}, v53, v{d+3}")
    wait(ltag="all")
    for k in range(1, 4):
        a(f"v_subrev_u32 v{88+k}, {k*CST}, v{88+k}")
    a("v_max3_u32 v88, v88, v89, v90")
    a("v_max_u32 v88, v88, v91")
    a("v_cmp_gt_u32 vcc, v88, v80")
    a("s_cmp_lg_u64 vcc, 0")
    a("s_cbranch_scc1 P_OVF")
    a.label("P_OVR")
    for i in range(4):
        wait(ltag=f"c{i}")
        pack(128 + 4 * i)
        a(f"buffer_store_dwordx4 {vr(128+4*i,4)}, v{72+i}, {sr(sWS,4)}, 0 offen sc1")
    a("s_movk_i32 s6, 0x1000")
    for i in range(4):
        d = 144 + 4 * i
        wait(ltag=f"d{i}")
        a(f"v_cmp_le_u32 vcc, v{76+i}, v{64+i}")
        a("s_and_b64 exec, exec, vcc")
        a(f"s_cbranch_scc0 P_SK{i}")
        a(f"v_add_u32 v{76+i}, 128, v{76+i}")
        a(f"v_cmp_lt_u32 vcc, v{76+i}, v{64+i}")
        a("s_nop 1")
        a(f"v_cndmask_b32 v{d}, v{d}, v52, vcc")
        pack(d)
        a(f"buffer_store_dwordx4 {vr(d,4)}, v{72+i}, {sr(sWS,4)}, s6 offen sc1")
        a.label(f"P_SK{i}")
        a("s_mov_b64 exec, -1")
    if STAMP:
        st(1)
        a("s_waitcnt vmcnt(0)")
        st(2)
    a("s_barrier")
    if opt.get('ftouch', 1):
        srd(a, sW1, 100, WS_BYTES)
        a(f"v_and_b32 v{vT0}, {NW2H-1}, v{vLane}")
        a(f"v_lshlrev_b32 v{vT0}, 2, v{vT0}")
        a(f"buffer_load_dword v{vT1}, v{vT0}, {sr(sDBG,4)}, 0 offen offset:128 sc1")
        a(f"s_lshr_b32 s4, s2, 3")
        a("s_lshl_b32 s4, s4, 16")
        a(f"s_add_u32 s4, s4, {W2F}")
        a(f"v_lshlrev_b32 v{vT0}, 7, v0")
        a("s_waitcnt vmcnt(0)")
        a(f"v_cmp_eq_u32 vcc, 0, v{vT1}")
        a("s_cmp_lg_u64 vcc, 0")
        a("s_cbranch_scc1 P_NT")
        a(f"buffer_load_dword v60, v{vT0}, {sr(sW1,4)}, s4 offen sc1")
        a.label("P_NT")
    xpf(NH * 1024, 2048, NP, 16)
    if STAMP:
        a("s_waitcnt vmcnt(0)")
        st(13)
    a("s_endpgm")
    a.label("P_OVF")
    a("s_waitcnt lgkmcnt(0)")
    for i in range(4):
        a(f"v_mov_b32 v{128+4*i}, v52")
        a(f"v_mov_b32 v{64+i}, -1")
    a("s_branch P_OVR")
    a.label("M_END")
    a("s_endpgm")
    return LDS_TOTAL, bars


DOC = """
GIN layer, one fused kernel (generated by gen/gen21.py).  256 workgroups of 8 waves, one per CU:
  ids  0..31  producers : bin 5000 edges each by 48-node destination block (LDS counting), publish
              fixed-capacity cells in d_ws as 8-byte granules {2 x 20-bit entry, 24-bit launch tag}
              with sc1 stores; the tag is announced in d_debug[id].  Afterwards: L2 prefetch of x.
  ids 32..46  helpers   : 32..39 re-lay W2 into MFMA fragment order in d_ws (sc1 stores, drained,
              flag in d_debug[32+h]); all of them prefetch x into L2.
  ids 47..255 consumers : 48 nodes each.  W1 -> registers via LDS-DMA + transposing LDS reads,
              poll + sort their cells into per-node lists, gather x rows (two rows per load, summed
              in fp32 by one MFMA against a 0/1 selection matrix, self row scaled by bf16(1+eps)),
              then GEMM1 (+b1, relu) and GEMM2 (+b2) with bf16 MFMA.
  Any capacity overflow or hand-off timeout falls back to an exact scan of src/dst.
"""

def build(opt):
    name = "gather_scatter__isomorphism_gin_2__graph_kernel"
    _, bars = gen_main(Asm(), dict(opt, verbose=0), name)
    b = Asm()
    lds, bars2 = gen_main(b, opt, name, bars)
    assert bars == bars2
    a = Asm()
    a.raw(HEADER.rstrip())
    a.raw(f"; @launch grid=(256,1,1) block=(512,1,1) lds={lds}")
    a.raw('.amdgcn_target "amdgcn-amd-amdhsa--gfx950"')
    for l in DOC.strip().split("\n"):
        a.raw("; " + l)
    a.raw(".text")
    a.l += b.l
    a.raw('.section .rodata,"a"')
    a.raw(kd(name, 256, 102))
    return a.text()

if __name__ == "__main__":
    out = sys.argv[1]
    opt = {}
    for kv in sys.argv[2:]:
        k, v = kv.split("=")
        opt[k] = int(v)
    open(out, "w").write(build(opt))
```
